```python
import torch

def _softmax(x, axis=-1):
    return torch.softmax(x, dim=axis)
def _gelu(x):
    return torch.nn.functional.gelu(x, approximate="tanh")
def _silu(x):
    return torch.nn.functional.silu(x)
def _sigmoid(x):
    return torch.sigmoid(x)
def _layernorm(x, axis=-1, eps=1e-5):
    m = x.mean(dim=axis, keepdim=True)
    v = x.var(dim=axis, keepdim=True, unbiased=False)
    return (x - m) / torch.sqrt(v + eps)
def _scatter_add(tgt, idx, src, axis=0):
    return tgt.clone().index_add_(axis, idx, src)
def _segment_sum(src, seg, n):
    out = torch.zeros((n,) + src.shape[1:], dtype=src.dtype)
    return out.index_add_(0, seg, src)
def _pad(x, pw):
    flat = tuple(v for pair in reversed(pw) for v in pair)
    return torch.nn.functional.pad(x, flat)

kernel_name = 'sequential_preLN__linear_attn_block__swiglu_ffn__prompt'

def setup_inputs():

    _w = (lambda a: (lambda t: t.to(torch.bfloat16) if t.is_floating_point() else t)(torch.as_tensor(a)))
    def _A_setup():
        B, S, D = 1, 2048, 448
        return {
            "x": _w((lambda *s: torch.randn(*s, dtype=torch.bfloat16) * 0.05)(B, S, D)),
            "wqkv": _w((lambda *s: torch.randn(*s, dtype=torch.bfloat16) * 0.1)(D, 3 * D)),
            "wo": _w((lambda *s: torch.randn(*s, dtype=torch.bfloat16) * 0.05)(D, D)),
        }
    _A_in = _A_setup()

    def _B_setup():
        B, S, D, F = 1, 2048, 448, 1792
        return {
            "x": _w((lambda *s: torch.randn(*s, dtype=torch.bfloat16) * 0.05)(B, S, D)),
            "w_gate": _w((lambda *s: torch.randn(*s, dtype=torch.bfloat16) * 0.05)(D, F)),
            "w_up": _w((lambda *s: torch.randn(*s, dtype=torch.bfloat16) * 0.05)(D, F)),
            "w_down": _w((lambda *s: torch.randn(*s, dtype=torch.bfloat16) * 0.05)(F, D)),
        }
    _B_in = _B_setup()

    return {
        "A_x": _A_in["x"],
        "A_wqkv": _A_in["wqkv"],
        "A_wo": _A_in["wo"],
        "B_x": _B_in["x"],
        "B_w_gate": _B_in["w_gate"],
        "B_w_up": _B_in["w_up"],
        "B_w_down": _B_in["w_down"],
    }

def reference(A_x, A_wqkv, A_wo, B_x, B_w_gate, B_w_up, B_w_down):
    def _A_ref(x, wqkv, wo):
        B, S, D = x.shape
        H = 16; Dh = D // H
        qkv = (lambda x, *d: x.permute(*d))((x @ wqkv).reshape(B, S, 3, H, Dh), 2, 0, 3, 1, 4)
        q, k, v = qkv[0], qkv[1], qkv[2]
        phi = lambda t: torch.where(t > 0, t + 1, torch.exp(t)) + 1e-6
        pq, pk = phi(q), phi(k)
        kv = torch.einsum("bhsd,bhse->bhde", pk, v)
        z = torch.einsum("bhsd->bhd", pk)
        num = torch.einsum("bhqd,bhde->bhqe", pq, kv)
        den = torch.einsum("bhqd,bhd->bhq", pq, z)[..., None] + 1e-6
        o = num / den
        return (lambda x, *d: x.permute(*d))(o, 0, 2, 1, 3).reshape(B, S, D) @ wo

    def _B_ref(x, w_gate, w_up, w_down):
        g = _silu(x @ w_gate)
        u = x @ w_up
        return (g * u) @ w_down

    x = A_x
    h = x + _A_ref(_layernorm(x, axis=-1), A_wqkv, A_wo)
    h2 = h + _B_ref(_layernorm(h, axis=-1), B_w_gate, B_w_up, B_w_down)
    return h2
```

```python
import re

REG_RE = re.compile(r'^(-)?(\|)?(?:abs\()?([vas])(?:(\d+)|\[(\d+):(\d+)\])\)?(\|)?$')
TRANS = ('v_exp_f32', 'v_log_f32', 'v_rcp_f32', 'v_rsq_f32', 'v_sqrt_f32', 'v_sin_f32', 'v_cos_f32', 'v_rcp_iflag_f32')

def regs_of(tok):
    tok = tok.strip()
    if tok == 'vcc': return {('s', 106), ('s', 107)}
    if tok == 'exec': return {('s', 126), ('s', 127)}
    if tok == 'm0': return {('s', 124)}
    m = REG_RE.match(tok)
    if not m: return set()
    f = m.group(3)
    if m.group(4) is not None: lo = hi = int(m.group(4))
    else: lo, hi = int(m.group(5)), int(m.group(6))
    return {(f, i) for i in range(lo, hi + 1)}

def split_ops(s):
    out, depth, cur = [], 0, ''
    for ch in s:
        if ch in '[(': depth += 1
        if ch in '])': depth -= 1
        if ch == ',' and depth == 0: out.append(cur.strip()); cur = ''
        else: cur += ch
    if cur.strip(): out.append(cur.strip())
    return out

class Ins:
    def __init__(self, text):
        self.text = text
        t = text.split(';')[0].strip()
        parts = t.split(None, 1)
        self.op = parts[0]
        rest = parts[1] if len(parts) > 1 else ''
        ops = split_ops(rest)
        mods = []
        if ops:
            l = ops[-1].split()
            ops[-1] = l[0]; mods = l[1:]
        self.ops, self.mods = ops, mods
        op = self.op
        self.dst, self.src = set(), set()
        self.kind = 'other'
        self.srcC = set(); self.srcAB = set()
        R = [regs_of(o) for o in ops]
        if op.startswith('v_mfma'):
            self.kind = 'mfma'
            self.passes = 8 if '32x32' in op else 4
            self.dst = R[0]; self.srcAB = R[1] | R[2]; self.srcC = R[3]; self.src = self.srcAB | self.srcC
        elif op.startswith('v_'):
            self.kind = 'valu'
            if op.startswith('v_cmp'):
                self.dst = R[0]; self.src = set().union(*R[1:])
            elif op in ('v_add_co_u32', 'v_sub_co_u32', 'v_addc_co_u32', 'v_subb_co_u32'):
                self.dst = R[0] | R[1]; self.src = set().union(*R[2:])
            elif op.startswith('v_permlane') and 'swap' in op or op.startswith('v_swap'):
                self.dst = R[0] | R[1]; self.src = R[0] | R[1]
            elif op.startswith(('v_fmac', 'v_dot2c', 'v_pk_fmac')):
                self.dst = R[0]; self.src = set().union(*R)
            elif op == 'v_nop':
                pass
            else:
                self.dst = R[0]; self.src = set().union(*R[1:]) if len(R) > 1 else set()
            if '_dpp' in op or any(m.startswith(('row_', 'quad_perm', 'wave_')) for m in mods):
                self.dpp = True
                self.src |= R[0]
            else: self.dpp = False
        elif op.startswith('ds_'):
            self.kind = 'ds'
            if op.startswith(('ds_read', 'ds_bpermute', 'ds_permute', 'ds_swizzle')):
                self.dst = R[0]; self.src = set().union(*R[1:])
            else:
                self.src = set().union(*R)
        elif op.startswith(('buffer_', 'global_')):
            self.kind = 'vmem'
            lds = 'lds' in mods or '_lds_' in op
            self.lds = lds
            if op in ('buffer_wbl2', 'buffer_inv'):
                pass
            elif 'load' in op and not lds:
                self.dst = R[0]; self.src = set().union(*R[1:])
            else:
                self.src = set().union(*R)
                if lds: self.src |= {('s', 124)}
                if 'atomic' in op and 'sc0' in mods and op.startswith('buffer_'): self.dst = R[0]
            self.wide_store = ('store' in op and ('x4' in op or 'x3' in op))
            if self.wide_store:
                self.store_data = R[0] if op.startswith('buffer_') else R[1]
        elif op.startswith('s_'):
            self.kind = 'salu'
            if op.startswith(('s_cmp', 's_waitcnt', 's_branch', 's_cbranch', 's_barrier', 's_nop', 's_endpgm', 's_sleep', 's_setprio', 's_bitcmp')):
                self.src = set().union(*R) if R else set()
            elif op.startswith('s_load') or op.startswith('s_buffer_load') or op.startswith('s_memtime') or op.startswith('s_memrealtime'):
                self.kind = 'smem'; self.dst = R[0]; self.src = set().union(*R[1:]) if len(R) > 1 else set()
            else:
                self.dst = R[0]; self.src = set().union(*R[1:]) if len(R) > 1 else set()
                if 'saveexec' in op: self.dst = self.dst | {('s', 126), ('s', 127)}
        self.trans = op in TRANS
        self.dot = op.startswith('v_dot')

    def states(self):
        if self.op == 's_nop': return int(self.ops[0], 0) + 1
        return 1

def need(p, c):
    n = 0
    vd = {r for r in p.dst if r[0] in 'va'}
    sd = {r for r in p.dst if r[0] == 's'}
    if p.kind == 'valu':
        if c.kind == 'mfma' and vd & c.src: n = max(n, 2)
        if p.trans and c.kind in ('valu', 'vmem', 'ds') and vd & (c.src) and not (c.kind == 'valu' and c.trans): n = max(n, 1)
        if c.kind == 'valu':
            if sd & c.src: n = max(n, 4 if c.op.startswith(('v_readlane', 'v_writelane')) else 2)
            if vd & c.src:
                if c.op.startswith(('v_readlane', 'v_readfirstlane')): n = max(n, 1)
                if c.op.startswith('v_permlane'): n = max(n, 2)
                if c.dpp: n = max(n, 2)
        if c.kind == 'vmem' and sd & c.src: n = max(n, 5)
        if c.kind in ('salu', 'smem') and sd & c.src: n = max(n, 1)
        if p.dot:
            if c.kind == 'valu' and c.op == p.op:
                ab = set().union(*[regs_of(o) for o in c.ops[1:3]])
                if vd & ab: n = max(n, 3)
            elif vd & (c.src | c.dst): n = max(n, 3)
    if p.kind == 'mfma':
        P = p.passes
        if c.kind == 'mfma':
            if vd & c.srcAB: n = max(n, 8 if P == 4 else 12)
            if vd & c.srcC:
                if c.srcC == vd and c.op == p.op: pass
                else: n = max(n, 6 if P == 4 else 10)
            if vd & c.dst and not (c.srcC == vd and c.op == p.op and c.dst == vd): n = max(n, 8 if P == 4 else 12)
        elif c.kind in ('valu', 'vmem', 'ds'):
            if vd & (c.src | c.dst): n = max(n, 8 if P == 4 else 12)
            if c.kind == 'valu' and p.srcC & c.dst: n = max(n, 3 if P == 4 else 7)
    if p.kind == 'salu' and ('s', 124) in p.dst and c.kind == 'vmem' and getattr(c, 'lds', False): n = max(n, 1)
    if p.kind == 'vmem' and getattr(p, 'wide_store', False):
        if c.dst & p.store_data: n = max(n, 2 if c.kind in ('valu', 'mfma') else 1)
    return n

class Asm:
    def __init__(self):
        self.out = []
        self.hist = []
        self.vm = []
        self.lg = []
        self.nops = 0
        self.count = 0
    def raw(self, text): self.out.append(text)
    def c(self, text): self.out.append('    ; ' + text)
    def _push(self, ins):
        s = ins.states()
        self.hist = [(p, d + s) for p, d in self.hist if d + s < 24]
        self.hist.append((ins, 0))
        self.out.append('    ' + ins.text)
        self.count += 1
    def nop(self, n):
        while n > 0:
            k = min(n, 16)
            self._push(Ins('s_nop %d' % (k - 1))); n -= k; self.nops += k
    def I(self, text, tag=None, counted=True):
        ins = Ins(text)
        pad = 0
        for p, d in self.hist:
            pad = max(pad, need(p, ins) - d)
        if pad > 0: self.nop(pad)
        self._push(ins)
        if ins.kind == 'vmem' and counted and ins.op not in ('buffer_wbl2', 'buffer_inv'): self.vm.append(tag)
        if ins.kind == 'ds' and counted: self.lg.append(tag)
        return ins
    def flush(self):
        pad = 0
        for p, d in self.hist:
            if p.kind == 'mfma': pad = max(pad, (8 if p.passes == 4 else 12) - d)
            elif p.kind == 'valu': pad = max(pad, (5 if any(r[0] == 's' for r in p.dst) else 3) - d)
            elif p.kind == 'vmem' and getattr(p, 'wide_store', False): pad = max(pad, 2 - d)
            elif p.kind == 'salu' and ('s', 124) in p.dst: pad = max(pad, 1 - d)
        if pad > 0: self.nop(pad)
        self.hist = []
    def label(self, name):
        self.flush(); self.out.append(name + ':')
    def branch(self, text):
        self.flush(); self.I(text)
    @staticmethod
    def _after(lst, tags):
        if not isinstance(tags, (list, tuple, set)): tags = [tags]
        idx = max((i for i, t in enumerate(lst) if t in tags), default=None)
        assert idx is not None, ('tag not found', tags)
        return len(lst) - 1 - idx
    def wait(self, vm=None, lg=None):
        parts = []
        if vm is not None:
            n = 0 if vm == 0 else self._after(self.vm, vm)
            parts.append('vmcnt(%d)' % min(n, 63))
        if lg is not None:
            n = 0 if lg == 0 else self._after(self.lg, lg)
            parts.append('lgkmcnt(%d)' % min(n, 15))
        self.I('s_waitcnt ' + ' '.join(parts))
    def reset_counts(self):
        self.vm = []; self.lg = []
    def text(self): return '\n'.join(self.out) + '\n'

def vr(b, n=1, f='v'):
    return '%s%d' % (f, b) if n == 1 else '%s[%d:%d]' % (f, b, b + n - 1)
def ar(b, n=1): return vr(b, n, 'a')
def sr(b, n=1): return vr(b, n, 's')

class Alloc:
    def __init__(self, start, limit): self.p = start; self.limit = limit; self.hi = start
    def get(self, n=1, align=1):
        self.p = (self.p + align - 1) // align * align
        b = self.p; self.p += n
        assert self.p <= self.limit, 'register overflow %d > %d' % (self.p, self.limit)
        self.hi = max(self.hi, self.p)
        return b
    def mark(self): return self.p
    def release(self, m): self.p = m
```

```python
from gen_common import *

def interleave(a, prim, sec, per):
    sec = list(sec); i = 0
    for p in prim:
        p()
        for _ in range(per):
            if i < len(sec): a.I(sec[i]); i += 1
    while i < len(sec): a.I(sec[i]); i += 1

def gen_A(a):
    name = 'ka_kernel'
    head(a, name)
    XL, W1L = 0, 114688
    STATL, CSKVL, CSQL, CSQ2L = 155648, 156672, 157184, 157696
    W2L, PACKL, KVRL = 0, 45056, 63488
    XF, ACCK, ACCV, ACCQ, WB = 8, 120, 136, 152, 168
    aW2, aPK, aCSKV, aCSQ, aKV, aONE = 0, 44, 64, 80, 96, 112
    V = Alloc(200, 256)
    vLane = 1
    vX0, vX1, vW = V.get(), V.get(), V.get()
    vXR = [V.get() for _ in range(4)]
    vT1, vT2, vT1w, vT2kv, vT2q = [V.get() for _ in range(5)]
    vL16 = V.get()
    vP = V.get()
    vPT = [V.get() for _ in range(4)]
    vPW = V.get()
    vW2W, vW2Q = V.get(), V.get()
    vS1a, vS1b, vS2a, vS2b = [V.get() for _ in range(4)]
    vR, vM, vMR = V.get(), V.get(), V.get()
    vt = [V.get() for _ in range(8)]
    vZ = V.get(4, 4)
    vRed = [V.get() for _ in range(4)]
    vN4 = V.get()
    vCSK, vCSV = V.get(), V.get()
    vFlag = V.get()
    sX, sWq, sWS, sDBG, sP0, sP1, sKZ, sDZ, sPO = 24, 28, 32, 36, 40, 44, 48, 52, 56
    sW, sRB, sH = 60, 61, 62
    sXA = [64, 65, 66, 67]; sXL = 68; sT = [69, 70, 71, 72, 73, 74, 75]
    sONE = 76; sPS = [77, 78, 79, 80]; sPOs = [81, 82, 83, 84]; sEPS = 85; sL2E = 86
    sMK, sMV28, sMVLT, sHI = 88, 90, 92, 94

    a.I('s_cmp_ge_u32 s2, 256'); a.branch('s_cbranch_scc1 ka_end')
    load_args(a)
    a.I('v_lshrrev_b32 v2, 6, v0'); a.I('v_and_b32 v1, 63, v0')
    a.I('v_readfirstlane_b32 s%d, v2' % sW)
    a.I('s_and_b32 s%d, s2, 7' % sT[0]); a.I('s_lshr_b32 s%d, s2, 3' % sT[1])
    a.I('s_lshr_b32 s%d, s%d, 1' % (sRB, sT[0])); a.I('s_lshl_b32 s%d, s%d, 2' % (sRB, sRB))
    a.I('s_and_b32 s%d, s%d, 3' % (sT[2], sT[1])); a.I('s_add_u32 s%d, s%d, s%d' % (sRB, sRB, sT[2]))
    a.I('s_and_b32 s%d, s%d, 1' % (sH, sT[0])); a.I('s_lshl_b32 s%d, s%d, 3' % (sH, sH))
    a.I('s_lshr_b32 s%d, s%d, 2' % (sT[2], sT[1])); a.I('s_add_u32 s%d, s%d, s%d' % (sH, sH, sT[2]))
    a.I('v_lshrrev_b32 v2, 3, v1')
    a.I('v_lshrrev_b32 v3, 4, v1')
    a.I('v_and_b32 v4, 7, v1')
    a.I('v_xor_b32 v5, v4, v3')
    a.I('v_lshlrev_b32 v5, 4, v5')
    a.I('v_mul_u32_u24 v6, 896, v2'); a.I('v_add_u32 v%d, v6, v5' % vX0)
    a.I('v_xor_b32 v%d, 64, v%d' % (vX1, vX0))
    a.I('v_lshrrev_b32 v5, 2, v1'); a.I('v_mul_u32_u24 v5, 2688, v5')
    a.I('v_and_b32 v6, 3, v1'); a.I('v_lshl_add_u32 v%d, v6, 4, v5' % vW)
    a.I('v_lshlrev_b32 v%d, 4, v1' % vL16)
    a.I('s_lshl_b32 s%d, s%d, 2' % (sT[0], sRB)); a.I('s_add_u32 s%d, s%d, s%d' % (sT[0], sT[0], sW))
    a.I('s_mul_i32 s%d, s%d, %d' % (sXA[0], sT[0], 32 * 896))
    for i in range(1, 4): a.I('s_add_u32 s%d, s%d, %d' % (sXA[i], sXA[0], 7168 * i))
    a.I('s_mul_i32 s%d, s%d, 28672' % (sXL, sW))
    for i in range(4): a.I('v_mov_b32 v%d, 0' % (vZ + i))
    a.I('s_mul_i32 s%d, s2, 9363' % sT[1]); a.I('s_lshr_b32 s%d, s%d, 16' % (sT[1], sT[1]))
    a.I('s_mul_i32 s%d, s%d, 7' % (sT[2], sT[1])); a.I('s_sub_u32 s%d, s2, s%d' % (sT[2], sT[2]))
    a.I('s_waitcnt lgkmcnt(0)')
    srd(a, sX, 4, 2048 * 896); srd(a, sWq, 6, 448 * 2688); srd(a, sWS, 22, WS_BYTES); srd(a, sDBG, 20, 256)
    srd(a, sKZ, 22, WS_BYTES); srd(a, sDZ, 20, 256)
    a.I('s_cmp_eq_u32 s%d, 0' % sRB)
    a.I('s_cselect_b32 s%d, %s, 0' % (sKZ + 2, hex(WS_BYTES))); a.I('s_cselect_b32 s%d, 256, 0' % (sDZ + 2))
    a.I('s_lshl_b32 s%d, s%d, 12' % (sT[3], sH)); a.I('s_lshl_b32 s%d, s%d, 10' % (sT[4], sW))
    a.I('s_add_u32 s%d, s%d, s%d' % (sT[3], sT[3], sT[4])); a.I('s_add_u32 s%d, s%d, %d' % (sT[3], sT[3], KVACC))
    a.I('buffer_store_dwordx4 v[%d:%d], v%d, s[%d:%d], s%d offen sc0 sc1' % (vZ, vZ + 3, vL16, sKZ, sKZ + 3, sT[3]), tag='zero')
    for b in range(7):
        for q in range(4):
            a.I('s_add_u32 m0, s%d, %d' % (sXL, (7 * q + b) * 1024 - 128 * b + XL))
            a.I('buffer_load_dwordx4 v%d, s[%d:%d], s%d offen offset:%d lds' % (vX1 if q & 1 else vX0, sX, sX + 3, sXA[q], 128 * b), tag='x%d' % b)
    a.I('s_mul_i32 s%d, s%d, 56' % (sT[3], sH))
    a.I('s_lshr_b32 s%d, s%d, 1' % (sT[4], sW)); a.I('s_mul_i32 s%d, s%d, 896' % (sT[4], sT[4]))
    a.I('s_add_u32 s%d, s%d, s%d' % (sT[4], sT[4], sT[3])); a.I('s_add_u32 s%d, s%d, 896' % (sT[4], sT[4]))
    a.I('s_and_b32 s%d, s%d, 1' % (sT[5], sW))
    a.I('s_mul_i32 s%d, s%d, %d' % (sT[6], sT[5], 160 * 2688)); a.I('s_add_u32 s%d, s%d, s%d' % (sT[6], sT[6], sT[4]))
    a.I('s_mul_i32 s%d, s%d, 10240' % (sXL, sW))
    for j in range(10):
        a.I('s_add_u32 m0, s%d, %d' % (sXL, W1L + 1024 * j))
        a.I('buffer_load_dwordx4 v%d, s[%d:%d], s%d offen lds' % (vW, sWq, sWq + 3, sT[6]), tag='w1')
        if j < 9: a.I('s_add_u32 s%d, s%d, %d' % (sT[6], sT[6], 16 * 2688))
    a.I('s_mul_i32 s%d, s%d, %d' % (sT[6], sT[5], 64 * 2688)); a.I('s_add_u32 s%d, s%d, s%d' % (sT[6], sT[6], sT[4]))
    a.I('s_add_u32 s%d, s%d, %d' % (sT[6], sT[6], 320 * 2688))
    for j in range(4):
        a.I('buffer_load_dwordx4 %s, v%d, s[%d:%d], s%d offen' % (ar(aW2 + 4 * j, 4), vW, sWq, sWq + 3, sT[6]), tag='w2')
        a.I('s_add_u32 s%d, s%d, %d' % (sT[6], sT[6], 16 * 2688))
    a.I('s_mul_i32 s%d, s%d, %d' % (sT[6], sW, 112 * 2688)); a.I('s_add_u32 s%d, s%d, s%d' % (sT[6], sT[6], sT[3]))
    for j in range(7):
        a.I('buffer_load_dwordx4 %s, v%d, s[%d:%d], s%d offen' % (ar(aW2 + 16 + 4 * j, 4), vW, sWq, sWq + 3, sT[6]), tag='w2')
        if j < 6: a.I('s_add_u32 s%d, s%d, %d' % (sT[6], sT[6], 16 * 2688))
    a.I('s_cmp_lt_u32 s%d, 28' % sT[1])
    for k in range(2):
        a.I('s_cselect_b32 s%d, s%d, s%d' % (sP0 + k, 12 + k, 8 + k))
        a.I('s_cselect_b32 s%d, s%d, s%d' % (sP1 + k, 14 + k, 8 + k))
    sel(a, sP0 + 2, 448 * 3584, 448 * 896)
    sel(a, sT[3], 3584, 896)
    a.I('s_mov_b32 s%d, 0x20000' % (sP0 + 3)); a.I('s_mov_b32 s%d, 0x20000' % (sP1 + 3))
    a.I('s_lshl_b32 s%d, s%d, 2' % (sT[4], sT[2])); a.I('s_add_u32 s%d, s%d, s%d' % (sT[4], sT[4], sW))
    a.I('s_mul_i32 s%d, s%d, %d' % (sT[5], sT[4], 16 * 3584)); a.I('s_lshl_b32 s%d, s%d, 7' % (sT[6], sT[1]))
    a.I('s_add_u32 s%d, s%d, s%d' % (sPS[0], sT[5], sT[6]))
    a.I('s_mul_i32 s%d, s%d, 112' % (sT[5], sT[1])); a.I('s_add_u32 s%d, s%d, s%d' % (sT[5], sT[5], sT[4]))
    a.I('s_lshl_b32 s%d, s%d, 10' % (sT[5], sT[5])); a.I('s_add_u32 s%d, s%d, %d' % (sPOs[0], sT[5], GUP))
    a.I('s_sub_u32 s%d, s%d, 28' % (sT[4], sT[1])); a.I('s_lshl_b32 s%d, s%d, 2' % (sT[4], sT[4])); a.I('s_add_u32 s%d, s%d, s%d' % (sT[4], sT[4], sW))
    a.I('s_mul_i32 s%d, s%d, %d' % (sT[5], sT[4], 28 * 896)); a.I('s_lshl_b32 s%d, s%d, 7' % (sT[6], sT[2]))
    a.I('s_add_u32 s%d, s%d, s%d' % (sPS[1], sT[5], sT[6]))
    a.I('s_lshl_b32 s%d, s%d, 16' % (sT[5], sT[2])); a.I('s_lshl_b32 s%d, s%d, 11' % (sT[6], sT[4]))
    a.I('s_add_u32 s%d, s%d, s%d' % (sT[5], sT[5], sT[6])); a.I('s_add_u32 s%d, s%d, %d' % (sPOs[1], sT[5], WOP))
    a.I('s_cmp_lt_u32 s%d, 28' % sT[1])
    a.I('s_cselect_b32 s%d, s%d, s%d' % (sPS[0], sPS[0], sPS[1]))
    a.I('s_cselect_b32 s%d, s%d, s%d' % (sPOs[0], sPOs[0], sPOs[1]))
    sel(a, sT[4], 8 * 3584, 8 * 896); a.I('s_cselect_b32 s%d, 0, %d' % (sT[5], 16 * 896))
    sel(a, sT[6], 28672, 1024); sel(a, sT[0], 57344, 32768)
    sel(a, sONE, 16 * 144, 32)
    sel(a, sEPS, 8 * 144, 14 * 144)
    a.I('s_cselect_b32 s%d, 32, %d' % (sL2E, 8 * 144))
    a.I('s_add_u32 s%d, s%d, s%d' % (sPS[1], sPS[0], sT[4])); a.I('s_add_u32 s%d, s%d, s%d' % (sPS[2], sPS[0], sT[5]))
    a.I('s_add_u32 s%d, s%d, s%d' % (sPS[3], sPS[2], sT[4]))
    a.I('s_add_u32 s%d, s%d, s%d' % (sPOs[1], sPOs[0], sT[6])); a.I('s_add_u32 s%d, s%d, s%d' % (sPOs[2], sPOs[0], sT[0]))
    a.I('s_add_u32 s%d, s%d, s%d' % (sPOs[3], sPOs[2], sT[6]))
    a.I('s_cmp_lt_u32 s%d, 32' % sT[1])
    a.I('s_cselect_b32 s%d, s%d, 0' % (sP0 + 2, sP0 + 2)); a.I('s_mov_b32 s%d, s%d' % (sP1 + 2, sP0 + 2))
    srd(a, sPO, 22, WS_BYTES); a.I('s_cselect_b32 s%d, %s, 0' % (sPO + 2, hex(WS_BYTES)))
    a.I('v_mul_lo_u32 v5, v2, s%d' % sT[3]); a.I('v_lshl_add_u32 v%d, v4, 4, v5' % vP)
    for j in range(4):
        s = sP0 if j < 2 else sP1
        a.I('buffer_load_dwordx4 %s, v%d, s[%d:%d], s%d offen' % (ar(aPK + 4 * j, 4), vP, s, s + 3, sPS[j]), tag='pk')
    a.I('v_lshrrev_b32 v2, 5, v1')
    a.I('v_bfe_u32 v3, v1, 4, 1')
    a.I('v_bfe_u32 v4, v1, 2, 2')
    a.I('v_and_b32 v5, 3, v1')
    a.I('s_mul_i32 s%d, s%d, 4608' % (sT[0], sW)); a.I('s_add_u32 s%d, s%d, %d' % (sT[1], sT[0], PACKL))
    a.I('v_mul_lo_u32 v6, v3, s%d' % sONE); a.I('v_mul_lo_u32 v7, v2, s%d' % sEPS); a.I('v_add_u32 v6, v6, v7')
    a.I('v_mul_u32_u24 v7, 144, v4'); a.I('v_add3_u32 v6, v6, v7, s%d' % sT[1]); a.I('v_lshl_add_u32 v%d, v5, 3, v6' % vPT[0])
    a.I('v_add_u32 v%d, s%d, v%d' % (vPT[1], sL2E, vPT[0])); a.I('v_add_u32 v%d, 64, v%d' % (vPT[2], vPT[0])); a.I('v_add_u32 v%d, 64, v%d' % (vPT[3], vPT[1]))
    a.I('v_lshrrev_b32 v6, 3, v1'); a.I('v_mul_u32_u24 v6, 144, v6'); a.I('v_and_b32 v7, 7, v1')
    a.I('v_lshl_add_u32 v6, v7, 4, v6'); a.I('v_add_u32 v%d, s%d, v6' % (vPW, sT[1]))
    a.I('v_lshlrev_b32 v6, 9, v2'); a.I('v_lshl_add_u32 v6, v4, 6, v6'); a.I('v_lshl_add_u32 v6, v3, 5, v6')
    a.I('v_lshl_add_u32 v%d, v5, 3, v6' % vT2)
    a.I('v_add_u32 v%d, %d, v%d' % (vT1, W1L, vT2))
    a.I('v_add_u32 v%d, s%d, v%d' % (vT1w, sXL, vT1))
    a.I('s_lshl_b32 s%d, s%d, 12' % (sT[2], sW)); a.I('v_add_u32 v%d, s%d, v%d' % (vT2kv, sT[2], vT2))
    a.I('v_add_u32 v%d, s%d, v%d' % (vW2W, sT[2], vL16))
    a.I('s_mul_i32 s%d, s%d, 7168' % (sT[2], sW)); a.I('s_add_u32 s%d, s%d, 16384' % (sT[2], sT[2]))
    a.I('v_add_u32 v%d, s%d, v%d' % (vT2q, sT[2], vT2)); a.I('v_add_u32 v%d, s%d, v%d' % (vW2Q, sT[2], vL16))
    a.I('v_and_b32 v6, 31, v1')
    a.I('v_lshlrev_b32 v%d, 2, v6' % vN4)
    a.I('v_lshrrev_b32 v7, 3, v6'); a.I('v_mul_u32_u24 v7, 7168, v7')
    a.I('v_and_b32 v3, 7, v6'); a.I('v_lshl_add_u32 v7, v3, 7, v7')
    a.I('v_bfe_u32 v3, v6, 1, 3'); a.I('v_xor_b32 v3, v3, v2'); a.I('v_lshl_add_u32 v7, v3, 4, v7')
    a.I('s_mul_i32 s%d, s%d, 28672' % (sT[2], sW)); a.I('v_add_u32 v%d, s%d, v7' % (vXR[0], sT[2]))
    for t in range(1, 4): a.I('v_xor_b32 v%d, %d, v%d' % (vXR[t], 32 * t, vXR[0]))
    a.I('v_cmp_gt_u32 s[%d:%d], 28, v6' % (sMK, sMK + 1))
    a.I('v_cmp_eq_u32 s[%d:%d], 28, v6' % (sMV28, sMV28 + 1))
    a.I('v_cmp_eq_u32 s[%d:%d], 0, v2' % (sHI, sHI + 1))
    a.I('s_mov_b32 s%d, 0x3f803f80' % sONE)
    a.I('s_mov_b32 s%d, %s' % (sEPS, f32(1e-6))); a.I('s_mov_b32 s%d, %s' % (sL2E, f32(LOG2E)))
    a.I('v_mov_b32 v3, s%d' % sONE)
    for i in range(4): a.I('v_accvgpr_write_b32 a%d, v3' % (aONE + i))
    for r in (vS1a, vS1b, vS2a, vS2b): a.I('v_mov_b32 v%d, 0' % r)
    def stats(ks):
        for r in range(4):
            x = XF + 4 * ks + r
            a.I('v_dot2c_f32_bf16 v%d, s%d, v%d' % (vS1b if r & 1 else vS1a, sONE, x))
            a.I('v_dot2c_f32_bf16 v%d, v%d, v%d' % (vS2b if r & 1 else vS2a, x, x))
    for b in range(7):
        a.wait(vm='x%d' % b)
        if b == 0:
            a.I('v_mov_b32 v3, 1'); a.I('s_lshl_b32 s%d, s%d, 2' % (sT[2], sH)); a.I('v_mov_b32 v4, s%d' % sT[2])
            a.I('s_mov_b64 exec, 1')
            a.I('buffer_atomic_add v3, v4, s[%d:%d], 0 offen sc1' % (sDZ, sDZ + 3), tag='flag')
            a.I('s_mov_b64 exec, -1')
        for t in range(4):
            ks = 4 * b + t
            a.I('ds_read_b128 %s, v%d offset:%d' % (vr(XF + 4 * ks, 4), vXR[t], 1024 * b), tag='xf%d' % b)
        if b > 0:
            a.wait(lg='xf%d' % (b - 1))
            for t in range(4): stats(4 * (b - 1) + t)
    a.wait(lg=0)
    for t in range(4): stats(24 + t)
    def trfrag(dst, addr, off, tag):
        a.I('ds_read_b64_tr_b16 %s, v%d offset:%d' % (vr(dst, 2), addr, off), tag=tag)
        a.I('ds_read_b64_tr_b16 %s, v%d offset:%d' % (vr(dst + 2, 2), addr, off + 256), tag=tag)
    def cs_run(addr, n, acc, first, tagp):
        for j in range(min(4, n)): trfrag(WB + 4 * (j % 8), addr, 1024 * j, '%s%d' % (tagp, j))
        for j in range(n):
            if j + 4 < n: trfrag(WB + 4 * ((j + 4) % 8), addr, 1024 * (j + 4), '%s%d' % (tagp, j + 4))
            a.wait(lg='%s%d' % (tagp, j))
            a.I('v_mfma_f32_32x32x16_bf16 %s, %s, %s, %s' % (ar(acc, 16), ar(aONE, 4), vr(WB + 4 * (j % 8), 4), '0' if (first and j == 0) else ar(acc, 16)))
    a.I('v_add_f32 v%d, v%d, v%d' % (vS1a, vS1a, vS1b)); a.I('v_add_f32 v%d, v%d, v%d' % (vS2a, vS2a, vS2b))
    a.I('v_mov_b32 v%d, v%d' % (vS1b, vS1a)); a.I('v_mov_b32 v%d, v%d' % (vS2b, vS2a))
    a.I('v_permlane32_swap_b32 v%d, v%d' % (vS1a, vS1b)); a.I('v_permlane32_swap_b32 v%d, v%d' % (vS2a, vS2b))
    a.I('v_add_f32 v%d, v%d, v%d' % (vS1a, vS1a, vS1b)); a.I('v_add_f32 v%d, v%d, v%d' % (vS2a, vS2a, vS2b))
    ln_finish(a, 'v%d' % vS1a, 'v%d' % vS2a, 'v%d' % vt[0], 'v%d' % vt[1], 'v%d' % vR, 'v%d' % vM)
    a.I('v_mul_f32 v%d, v%d, v%d' % (vMR, vM, vR))
    a.I('s_lshl_b32 s%d, s%d, 8' % (sT[2], sW)); a.I('s_add_u32 s%d, s%d, %d' % (sT[2], sT[2], STATL))
    a.I('v_add_u32 v%d, s%d, v%d' % (vt[0], sT[2], vN4))
    a.I('ds_write_b32 v%d, v%d' % (vt[0], vR)); a.I('ds_write_b32 v%d, v%d offset:128' % (vt[0], vMR))
    a.wait(vm='w1')
    cs_run(vT1w, 10, aCSKV, True, 'c1_')
    a.wait(lg=0)
    a.I('s_barrier')
    def kv_reads(ks):
        st = ks % 4
        if ks < 20: ad, ok, ov = vT1, 1024 * ks, 20480 + 1024 * ks
        else: ad, ok, ov = vT2, 1024 * (ks - 20), 8192 + 1024 * (ks - 20)
        trfrag(WB + 8 * st, ad, ok, 'kv%d' % ks); trfrag(WB + 8 * st + 4, ad, ov, 'kv%d' % ks)
    def kv_mfma(ks):
        st = ks % 4
        a.wait(lg='kv%d' % ks)
        a.I('v_mfma_f32_32x32x16_bf16 %s, %s, %s, %s' % (vr(ACCK, 16), vr(XF + 4 * ks, 4), vr(WB + 8 * st, 4), '0' if ks == 0 else vr(ACCK, 16)))
        a.I('v_mfma_f32_32x32x16_bf16 %s, %s, %s, %s' % (vr(ACCV, 16), vr(XF + 4 * ks, 4), vr(WB + 8 * st + 4, 4), '0' if ks == 0 else vr(ACCV, 16)))
    def kv_range(lo, hi, hook=None):
        for ks in range(lo, min(lo + 3, hi)): kv_reads(ks)
        for ks in range(lo, hi):
            if ks + 3 < hi: kv_reads(ks + 3)
            kv_mfma(ks)
            if hook: hook(ks)
    def hook3(ks):
        if ks == 5:
            a.wait(vm='w2')
            for j in range(4): a.I('ds_write_b128 v%d, %s offset:%d' % (vW2W, ar(aW2 + 4 * j, 4), 1024 * j), tag='w2w')
        if 6 <= ks <= 12:
            j = ks - 6
            a.I('ds_write_b128 v%d, %s offset:%d' % (vW2Q, ar(aW2 + 16 + 4 * j, 4), 1024 * j), tag='w2w')
        if ks == 13:
            a.wait(vm='pk')
            for j in range(4): a.I('ds_write_b128 v%d, %s offset:%d' % (vPW, ar(aPK + 4 * j, 4), 8 * 144 * j), tag='pkw')
        if 15 <= ks <= 18:
            f = ks - 15
            a.I('ds_read_b64_tr_b16 %s, v%d' % (ar(aPK + 4 * f, 2), vPT[f]), tag='pkr')
            a.I('ds_read_b64_tr_b16 %s, v%d offset:%d' % (ar(aPK + 4 * f + 2, 2), vPT[f], 4 * 144), tag='pkr')
    kv_range(0, 20, hook3)
    a.wait(lg='pkr')
    for f in range(4):
        a.I('buffer_store_dwordx4 %s, v%d, s[%d:%d], s%d offen' % (ar(aPK + 4 * f, 4), vL16, sPO, sPO + 3, sPOs[f]), tag='pks')
    cs_run(vT2kv, 4, aCSKV, False, 'c2_')
    cs_run(vT2q, 7, aCSQ, True, 'c3_')
    a.I('s_lshl_b32 s%d, s%d, 7' % (sT[2], sW)); a.I('v_add_u32 v%d, s%d, v%d' % (vt[0], sT[2], vN4))
    a.I('v_add_u32 v%d, %d, v%d' % (vt[0], CSKVL, vt[0]))
    a.I('ds_write_b32 v%d, a%d' % (vt[0], aCSKV)); a.I('ds_write_b32 v%d, a%d offset:%d' % (vt[0], aCSQ, CSQL - CSKVL))
    a.wait(lg=0)
    a.I('s_barrier')
    a.I('s_lshl_b32 s%d, s%d, 2' % (sT[2], sH))
    a.I('v_mov_b32 v%d, s%d' % (vt[7], sT[2]))
    a.I('buffer_load_dword v%d, v%d, s[%d:%d], 0 offen sc1' % (vFlag, vt[7], sDBG, sDBG + 3), tag='poll')
    a.I('v_add_u32 v%d, %d, v%d' % (vt[1], CSKVL, vN4))
    for i in range(4): a.I('ds_read_b32 v%d, v%d offset:%d' % (vZ + i, vt[1], 128 * i), tag='cs')
    for i in range(4): a.I('ds_read_b32 v%d, v%d offset:%d' % (vRed[i], vt[1], 512 + 128 * i), tag='cs')
    def hook4(ks):
        if ks == 20:
            a.wait(lg='cs')
            a.I('v_add_f32 v%d, v%d, v%d' % (vCSK, vZ, vZ + 1)); a.I('v_add_f32 v%d, v%d, v%d' % (vCSV, vZ + 2, vZ + 3))
            a.I('v_add_f32 v%d, v%d, v%d' % (vRed[0], vRed[0], vRed[1])); a.I('v_add_f32 v%d, v%d, v%d' % (vRed[2], vRed[2], vRed[3]))
            a.I('v_add_f32 v%d, v%d, v%d' % (vRed[0], vRed[0], vRed[2]))
            a.I('ds_write_b32 v%d, v%d offset:%d' % (vt[0], vRed[0], CSQ2L - CSKVL), tag='csq2')
    kv_range(20, 28, hook4)
    return_state = dict(locals())
    a._A = return_state
    return gen_A2(a, return_state)

def gen_A2(a, L):
    globals().update({})
    g = L
    (XF, ACCK, ACCV, ACCQ, WB, vT2, sW, sT, sH, sRB, STATL, CSQ2L, KVRL, vLane, vt, vCSK, vCSV, sEPS, sL2E, sONE, sMK, sMV28, sHI,
     aKV, vRed, vZ, vFlag, sDBG, sWS, vL16, vR, vMR, vN4, trfrag) = [g[k] for k in
     'XF ACCK ACCV ACCQ WB vT2 sW sT sH sRB STATL CSQ2L KVRL vLane vt vCSK vCSV sEPS sL2E sONE sMK sMV28 sHI aKV vRed vZ vFlag sDBG sWS vL16 vR vMR vN4 trfrag'.split()]
    a.I('v_lshrrev_b32 v2, 5, v1'); a.I('v_lshlrev_b32 v2, 4, v2')
    a.I('s_lshl_b32 s%d, s%d, 8' % (sT[2], sW)); a.I('s_add_u32 s%d, s%d, %d' % (sT[2], sT[2], STATL))
    a.I('v_add_u32 v2, s%d, v2' % sT[2])
    vSA = 2
    def q_reads(ks): trfrag(WB + 4 * (ks % 4), vT2, 16384 + 1024 * ks, 'q%d' % ks)
    def q_step(ks):
        def f():
            if ks + 3 < 28: q_reads(ks + 3)
            a.wait(lg='q%d' % ks)
            a.I('v_mfma_f32_32x32x16_bf16 %s, %s, %s, %s' % (vr(ACCQ, 16), vr(WB + 4 * (ks % 4), 4), vr(XF + 4 * ks, 4), '0' if ks == 0 else vr(ACCQ, 16)))
        return f
    def st_read(qd):
        b = WB + 16 + 8 * (qd % 2)
        a.I('ds_read_b128 %s, v%d offset:%d' % (vr(b, 4), vSA, 32 * qd), tag='st%d' % qd)
        a.I('ds_read_b128 %s, v%d offset:%d' % (vr(b + 4, 4), vSA, 128 + 32 * qd), tag='st%d' % qd)
    st_read(0); st_read(1)
    for ks in range(3): q_reads(ks)
    ks = 0
    def run_q(n, sec, per):
        nonlocal ks
        interleave(a, [q_step(k) for k in range(ks, ks + n)], sec, per); ks += n
    run_q(2, [], 0)
    t0, t1, t2, t3 = vt[2], vt[3], vt[4], vt[5]
    for qd in range(4):
        b = WB + 16 + 8 * (qd % 2)
        a.wait(lg='st%d' % qd)
        ops = []
        for r in range(4):
            k, v = ACCK + 4 * qd + r, ACCV + 4 * qd + r
            R, MR = b + r, b + 4 + r
            t = vt[2 + r]
            ops += ['v_fma_f32 v%d, v%d, v%d, -s%d' % (t, vCSK, MR, sEPS),
                    'v_fma_f32 v%d, v%d, v%d, -v%d' % (k, k, R, t),
                    'v_mul_f32 v%d, v%d, v%d' % (t, vCSV, MR),
                    'v_fma_f32 v%d, v%d, v%d, -v%d' % (v, v, R, t),
                    'v_mul_f32 v%d, s%d, v%d' % (t, sL2E, k),
                    'v_min_f32 v%d, 0, v%d' % (t, t),
                    'v_exp_f32 v%d, v%d' % (t, t),
                    'v_max_f32 v%d, s%d, v%d' % (k, sEPS, k)]
        for r in range(4):
            k = ACCK + 4 * qd + r
            ops += ['v_add_f32 v%d, v%d, v%d' % (k, k, vt[2 + r])]
        for p in range(2):
            ops += ['v_cvt_pk_bf16_f32 v%d, v%d, v%d' % (ACCK + 2 * qd + p, ACCK + 4 * qd + 2 * p, ACCK + 4 * qd + 2 * p + 1),
                    'v_cvt_pk_bf16_f32 v%d, v%d, v%d' % (ACCV + 2 * qd + p, ACCV + 4 * qd + 2 * p, ACCV + 4 * qd + 2 * p + 1)]
        for p in range(2):
            ops += ['v_cndmask_b32 v%d, 0, v%d, s[%d:%d]' % (ACCK + 2 * qd + p, ACCK + 2 * qd + p, sMK, sMK + 1),
                    'v_cndmask_b32 v%d, v%d, v%d, s[%d:%d]' % (ACCV + 2 * qd + p, vt[6], ACCV + 2 * qd + p, sMK, sMK + 1)]
        if qd == 0:
            a.I('v_mov_b32 v%d, s%d' % (vt[6], sONE)); a.I('v_cndmask_b32 v%d, 0, v%d, s[%d:%d]' % (vt[6], vt[6], sMV28, sMV28 + 1))
        run_q(6, ops, 7)
        if qd < 2: st_read(qd + 2)
    a.I('v_mfma_f32_32x32x16_bf16 %s, %s, %s, 0' % (ar(aKV, 16), vr(ACCK, 4), vr(ACCV, 4)))
    a.I('v_mfma_f32_32x32x16_bf16 %s, %s, %s, %s' % (ar(aKV, 16), vr(ACCK + 4, 4), vr(ACCV + 4, 4), ar(aKV, 16)))
    run_q(2, [], 0)
    assert ks == 28
    a.I('s_mul_i32 s%d, s%d, 4608' % (sT[2], sW)); a.I('s_add_u32 s%d, s%d, %d' % (sT[2], sT[2], KVRL))
    a.I('v_and_b32 v3, 31, v1'); a.I('v_mul_u32_u24 v3, 144, v3'); a.I('v_lshrrev_b32 v4, 5, v1')
    a.I('v_lshl_add_u32 v3, v4, 4, v3'); a.I('v_add_u32 v3, s%d, v3' % sT[2])
    a.I('v_lshrrev_b32 v4, 5, v1'); a.I('v_bfe_u32 v5, v1, 2, 2'); a.I('v_lshl_add_u32 v4, v4, 2, v5')
    a.I('v_bfe_u32 v5, v1, 4, 1'); a.I('v_mul_u32_u24 v5, 14, v5'); a.I('v_add_u32 v5, v5, v4')
    a.I('v_and_b32 v6, 3, v1'); a.I('v_lshlrev_b32 v6, 2, v6')
    a.I('s_lshl_b32 s%d, s%d, 5' % (sT[3], sW)); a.I('s_add_u32 s%d, s%d, %d' % (sT[3], sT[3], KVRL))
    a.I('v_add_u32 v6, s%d, v6' % sT[3])
    a.I('v_mul_u32_u24 v7, 144, v5'); a.I('v_add_u32 v%d, v7, v6' % vRed[0])
    a.I('v_add_u32 v%d, %d, v%d' % (vRed[1], 8 * 144, vRed[0]))
    a.I('v_mul_u32_u24 v7, 144, v4'); a.I('v_add_u32 v7, v7, v6'); a.I('v_add_u32 v7, %d, v7' % (22 * 144))
    a.I('v_cmp_lt_u32 vcc, 5, v4')
    a.I('v_cndmask_b32 v%d, v%d, v7, vcc' % (vRed[1], vRed[1]))
    a.I('v_add_u32 v%d, 16, v%d' % (vRed[2], vRed[0])); a.I('v_add_u32 v%d, 16, v%d' % (vRed[3], vRed[1]))
    for q in range(4): a.I('ds_write_b128 v3, %s offset:%d' % (ar(aKV + 4 * q, 4), 32 * q))
    a.I('s_lshl_b32 s%d, s%d, 7' % (sT[2], sW)); a.I('s_add_u32 s%d, s%d, %d' % (sT[2], sT[2], CSQ2L))
    a.I('v_lshrrev_b32 v4, 5, v1'); a.I('v_lshlrev_b32 v4, 4, v4'); a.I('v_add_u32 v4, s%d, v4' % sT[2])
    for q in range(4): a.I('ds_read_b128 %s, v4 offset:%d' % (vr(WB + 4 * q, 4), 32 * q))
    a.wait(lg=0)
    a.I('s_barrier')
    RB = WB + 16
    for j in range(4):
        for p in range(4): a.I('ds_read_b32 v%d, v%d offset:%d' % (RB + 4 * j + p, vRed[j], 4608 * p), tag='red%d' % j)
    a.wait(vm='poll')
    a.label('ka_poll')
    a.I('v_readfirstlane_b32 s%d, v%d' % (sT[2], vFlag))
    a.I('s_cmp_ge_u32 s%d, 4' % sT[2])
    a.branch('s_cbranch_scc1 ka_go')
    a.I('s_sleep 2')
    a.I('buffer_load_dword v%d, v%d, s[%d:%d], 0 offen sc1' % (vFlag, vt[7], sDBG, sDBG + 3), counted=False)
    a.I('s_waitcnt vmcnt(0)')
    a.branch('s_branch ka_poll')
    a.label('ka_go')
    a.I('s_lshl_b32 s%d, s%d, 12' % (sT[3], sH)); a.I('s_lshl_b32 s%d, s%d, 10' % (sT[4], sW))
    a.I('s_add_u32 s%d, s%d, s%d' % (sT[3], sT[3], sT[4])); a.I('s_add_u32 s%d, s%d, %d' % (sT[3], sT[3], KVACC))
    a.I('v_lshlrev_b32 v3, 2, v1')
    for j in range(4):
        a.wait(lg='red%d' % j)
        b = RB + 4 * j
        a.I('v_add_f32 v%d, v%d, v%d' % (b, b, b + 1)); a.I('v_add_f32 v%d, v%d, v%d' % (b + 2, b + 2, b + 3))
        a.I('v_add_f32 v%d, v%d, v%d' % (b, b, b + 2))
        a.I('buffer_atomic_add_f32 v%d, v3, s[%d:%d], s%d offen offset:%d' % (b, sWS, sWS + 3, sT[3], 256 * j))
    for v in range(16):
        q, c, t = ACCQ + v, WB + v, vt[v % 4]
        a.I('v_fma_f32 v%d, v%d, v%d, -s%d' % (c, c, vMR, sEPS))
        a.I('v_fma_f32 v%d, v%d, v%d, -v%d' % (q, q, vR, c))
        a.I('v_mul_f32 v%d, s%d, v%d' % (c, sL2E, q))
        a.I('v_min_f32 v%d, 0, v%d' % (c, c))
        a.I('v_exp_f32 v%d, v%d' % (c, c))
        a.I('v_max_f32 v%d, s%d, v%d' % (q, sEPS, q))
    for v in range(16): a.I('v_add_f32 v%d, v%d, v%d' % (ACCQ + v, ACCQ + v, WB + v))
    for p in range(8): a.I('v_cvt_pk_bf16_f32 v%d, v%d, v%d' % (ACCK + p, ACCQ + 2 * p, ACCQ + 2 * p + 1))
    for p in (6, 7): a.I('v_cndmask_b32 v%d, 0, v%d, s[%d:%d]' % (ACCK + p, ACCK + p, sHI, sHI + 1))
    a.I('s_lshl_b32 s%d, s%d, 2' % (sT[0], sRB)); a.I('s_add_u32 s%d, s%d, s%d' % (sT[0], sT[0], sW))
    a.I('s_lshl_b32 s%d, s%d, 6' % (sT[1], sH)); a.I('s_add_u32 s%d, s%d, s%d' % (sT[0], sT[0], sT[1]))
    a.I('s_lshl_b32 s%d, s%d, 11' % (sT[0], sT[0]))
    if PQF: a.I('s_add_u32 s%d, s%d, %d' % (sT[0], sT[0], PQF))
    a.I('buffer_store_dwordx4 %s, v%d, s[%d:%d], s%d offen' % (vr(ACCK, 4), vL16, sWS, sWS + 3, sT[0]))
    a.I('buffer_store_dwordx4 %s, v%d, s[%d:%d], s%d offen offset:1024' % (vr(ACCK + 4, 4), vL16, sWS, sWS + 3, sT[0]))
    a.label('ka_end')
    a.I('s_endpgm')
    return ('ka_kernel', 256, 256, 163840, 384, 102, 256)
```

```python
from gen_common import *
from gen_a import interleave

def gen_B(a):
    name = 'kb_kernel'
    head(a, name)
    KVF, NUM = 8, 72
    aPQ, aWO, aACC = 0, 64, 128
    V = Alloc(200, 256)
    vL16 = V.get(); vXo = V.get(); vXD = V.get(8, 4); vWr = V.get(); vRd = V.get()
    vt = [V.get() for _ in range(8)]
    sX, sWS = 24, 28
    sW, sRB, sCS = 32, 33, 34
    sT = [36, 37, 38, 39, 40, 41, 42, 43]
    sEPS = 44; sONE = 45
    RS = 272; PW = 64 * RS
    a.I('s_cmp_ge_u32 s2, 252'); a.branch('s_cbranch_scc1 kb_end')
    load_args(a)
    a.I('v_lshrrev_b32 v2, 6, v0'); a.I('v_and_b32 v1, 63, v0')
    a.I('v_readfirstlane_b32 s%d, v2' % sW)
    a.I('v_lshlrev_b32 v%d, 4, v1' % vL16)
    a.I('s_and_b32 s%d, s2, 7' % sT[0]); a.I('s_lshr_b32 s%d, s2, 3' % sT[1])
    a.I('s_mul_i32 s%d, s%d, 37' % (sT[2], sT[1])); a.I('s_lshr_b32 s%d, s%d, 8' % (sT[2], sT[2]))
    a.I('s_mul_i32 s%d, s%d, 7' % (sT[3], sT[2])); a.I('s_sub_u32 s%d, s%d, s%d' % (sCS, sT[1], sT[3]))
    a.I('s_lshl_b32 s%d, s%d, 2' % (sRB, sT[0])); a.I('s_add_u32 s%d, s%d, s%d' % (sRB, sRB, sT[2]))
    a.I('s_waitcnt lgkmcnt(0)')
    srd(a, sX, 4, 2048 * 896); srd(a, sWS, 22, WS_BYTES)
    a.I('s_cmp_ge_u32 s2, 224'); a.branch('s_cbranch_scc1 kb_cs')
    a.I('s_lshl_b32 s%d, s%d, 14' % (sT[0], sW)); a.I('s_add_u32 s%d, s%d, %d' % (sT[0], sT[0], KVACC))
    a.I('s_lshl_b32 s%d, s%d, 19' % (sT[1], sW)); a.I('s_lshl_b32 s%d, s%d, 12' % (sT[2], sRB))
    a.I('s_add_u32 s%d, s%d, s%d' % (sT[1], sT[1], sT[2]))
    if PQF: a.I('s_add_u32 s%d, s%d, %d' % (sT[1], sT[1], PQF))
    for hh in range(4):
        for q in range(4):
            a.I('buffer_load_dwordx4 %s, v%d, s[%d:%d], s%d offen offset:%d' % (vr(KVF + 16 * hh + 4 * q, 4), vL16, sWS, sWS + 3, sT[0], 1024 * q), tag='kv%d' % hh)
        for f in range(4):
            a.I('buffer_load_dwordx4 %s, v%d, s[%d:%d], s%d offen offset:%d' % (ar(aPQ + 16 * hh + 4 * f, 4), vL16, sWS, sWS + 3, sT[1], 1024 * f), tag='pq%d' % hh)
        if hh < 3:
            a.I('s_add_u32 s%d, s%d, 4096' % (sT[0], sT[0])); a.I('s_add_u32 s%d, s%d, %d' % (sT[1], sT[1], 1 << 17))
    a.I('s_lshl_b32 s%d, s%d, 16' % (sT[0], sCS)); a.I('s_lshl_b32 s%d, s%d, 13' % (sT[1], sW))
    a.I('s_add_u32 s%d, s%d, s%d' % (sT[0], sT[0], sT[1])); a.I('s_add_u32 s%d, s%d, %d' % (sT[0], sT[0], WOP))
    a.I('s_add_u32 s%d, s%d, 32768' % (sT[1], sT[0]))
    a.I('s_add_u32 s%d, s%d, 4096' % (sT[2], sT[0])); a.I('s_add_u32 s%d, s%d, 4096' % (sT[3], sT[1]))
    for hh in range(4):
        for ct in range(2):
            for kk in range(2):
                s = sT[ct + 2 * (hh >> 1)]
                a.I('buffer_load_dwordx4 %s, v%d, s[%d:%d], s%d offen offset:%d' % (ar(aWO + 16 * hh + 8 * ct + 4 * kk, 4), vL16, sWS, sWS + 3, s, 2048 * (hh & 1) + 1024 * kk), tag='wo%d' % hh)
    a.I('v_and_b32 v2, 31, v1'); a.I('v_lshrrev_b32 v3, 5, v1')
    a.I('v_mul_u32_u24 v4, 896, v2'); a.I('v_lshl_add_u32 v%d, v3, 4, v4' % vXo)
    a.I('s_lshr_b32 s%d, s%d, 1' % (sT[4], sW)); a.I('s_and_b32 s%d, s%d, 1' % (sT[5], sW))
    a.I('s_lshl_b32 s%d, s%d, 1' % (sT[6], sRB)); a.I('s_add_u32 s%d, s%d, s%d' % (sT[6], sT[6], sT[4]))
    a.I('s_mul_i32 s%d, s%d, %d' % (sT[0], sT[6], 32 * 896))
    a.I('s_lshl_b32 s%d, s%d, 1' % (sT[7], sCS)); a.I('s_add_u32 s%d, s%d, s%d' % (sT[7], sT[7], sT[5]))
    a.I('s_lshl_b32 s%d, s%d, 6' % (sT[1], sT[7])); a.I('s_add_u32 s%d, s%d, s%d' % (sT[0], sT[0], sT[1]))
    for i in range(2):
        a.I('buffer_load_dwordx4 %s, v%d, s[%d:%d], s%d offen offset:%d' % (vr(vXD + 4 * i, 4), vXo, sX, sX + 3, sT[0], 32 * i), tag='x')
    a.I('v_mul_u32_u24 v4, %d, v2' % RS); a.I('v_lshl_add_u32 v5, v3, 4, v4')
    a.I('s_mul_i32 s%d, s%d, %d' % (sT[0], sW, PW)); a.I('v_add_u32 v%d, s%d, v5' % (vWr, sT[0]))
    a.I('v_lshl_add_u32 v5, v3, 5, v4')
    a.I('s_mul_i32 s%d, s%d, %d' % (sT[0], sT[4], 32 * RS)); a.I('s_lshl_b32 s%d, s%d, 7' % (sT[1], sT[5]))
    a.I('s_add_u32 s%d, s%d, s%d' % (sT[0], sT[0], sT[1])); a.I('v_add_u32 v%d, s%d, v5' % (vRd, sT[0]))
    a.I('s_mov_b32 s%d, %s' % (sEPS, f32(1e-6)))
    for hh in range(4):
        a.wait(vm='kv%d' % hh)
        b = KVF + 16 * hh
        for p in range(8): a.I('v_cvt_pk_bf16_f32 v%d, v%d, v%d' % (b + p, b + 2 * p, b + 2 * p + 1))
        a.wait(vm='pq%d' % hh)
        for kk in range(2):
            for rt in range(2):
                n = NUM + 16 * (2 * hh + rt)
                a.I('v_mfma_f32_32x32x16_bf16 %s, %s, %s, %s' % (vr(n, 16), vr(b + 4 * kk, 4), ar(aPQ + 16 * hh + 8 * rt + 4 * kk, 4), '0' if kk == 0 else vr(n, 16)))
    def o_ops(blk):
        n = NUM + 16 * blk; t = vt[blk % 4]
        ops = ['v_cvt_pk_bf16_f32 v%d, v%d, v%d' % (t, n + 14, n + 14), 'v_and_b32 v%d, 0xffff0000, v%d' % (t, t),
               'v_add_f32 v%d, s%d, v%d' % (t, sEPS, t), 'v_rcp_f32 v%d, v%d' % (t, t)]
        for v in range(14): ops.append('v_mul_f32 v%d, v%d, v%d' % (n + v, n + v, t))
        for p in range(7): ops.append('v_cvt_pk_bf16_f32 v%d, v%d, v%d' % (n + p, n + 2 * p, n + 2 * p + 1))
        ops.append('v_mov_b32 v%d, 0' % (n + 7))
        return ops
    def g_mfma(blk, ct, kk):
        hh, rt = blk >> 1, blk & 1
        def f():
            if ct == 0 and kk == 0 and rt == 0: a.wait(vm='wo%d' % hh)
            acc = aACC + 16 * (2 * rt + ct)
            a.I('v_mfma_f32_32x32x16_bf16 %s, %s, %s, %s' % (ar(acc, 16), ar(aWO + 16 * hh + 8 * ct + 4 * kk, 4), vr(NUM + 16 * blk + 4 * kk, 4), '0' if (hh == 0 and kk == 0) else ar(acc, 16)))
        return f
    for op in o_ops(0): a.I(op)
    for blk in range(8):
        prim = [g_mfma(blk, ct, kk) for kk in range(2) for ct in range(2)]
        interleave(a, prim, o_ops(blk + 1) if blk < 7 else [], 7)
    for rt in range(2):
        for ct in range(2):
            for q in range(4):
                a.I('ds_write_b128 v%d, %s offset:%d' % (vWr, ar(aACC + 16 * (2 * rt + ct) + 4 * q, 4), rt * 32 * RS + ct * 128 + q * 32))
    a.wait(lg=0); a.I('s_barrier')
    P = NUM
    for i in range(2):
        for p in range(4):
            for hf in range(2):
                a.I('ds_read_b128 %s, v%d offset:%d' % (vr(P + 32 * i + 8 * p + 4 * hf, 4), vRd, PW * p + 64 * i + 16 * hf), tag='r%d' % i)
    a.wait(vm='x')
    s1, s2 = vt[0], vt[1]
    a.I('v_mov_b32 v%d, 0' % s1); a.I('v_mov_b32 v%d, 0' % s2)
    a.I('s_mov_b32 s%d, 0x3f803f80' % sONE)
    a.I('s_mul_i32 s%d, s%d, 28' % (sT[0], sT[6])); a.I('s_lshl_b32 s%d, s%d, 1' % (sT[1], sT[7])); a.I('s_add_u32 s%d, s%d, s%d' % (sT[0], sT[0], sT[1]))
    a.I('s_lshl_b32 s%d, s%d, 10' % (sT[0], sT[0])); a.I('s_add_u32 s%d, s%d, %d' % (sT[0], sT[0], HF))
    for i in range(2):
        a.wait(lg='r%d' % i)
        b = P + 32 * i
        for e in range(8):
            a.I('v_add_f32 v%d, v%d, v%d' % (b + e, b + e, b + 8 + e)); a.I('v_add_f32 v%d, v%d, v%d' % (b + 16 + e, b + 16 + e, b + 24 + e))
        for e in range(8): a.I('v_add_f32 v%d, v%d, v%d' % (b + e, b + e, b + 16 + e))
        for p in range(4): a.I('v_cvt_pk_bf16_f32 v%d, v%d, v%d' % (b + 8 + p, b + 2 * p, b + 2 * p + 1))
        for p in range(4):
            x = vXD + 4 * i + p
            a.I('v_lshlrev_b32 v%d, 16, v%d' % (b + 2 * p, b + 8 + p)); a.I('v_and_b32 v%d, 0xffff0000, v%d' % (b + 2 * p + 1, b + 8 + p))
            a.I('v_lshlrev_b32 v%d, 16, v%d' % (b + 16 + 2 * p, x)); a.I('v_and_b32 v%d, 0xffff0000, v%d' % (b + 16 + 2 * p + 1, x))
        for e in range(8): a.I('v_add_f32 v%d, v%d, v%d' % (b + e, b + e, b + 16 + e))
        for p in range(4): a.I('v_cvt_pk_bf16_f32 v%d, v%d, v%d' % (b + 8 + p, b + 2 * p, b + 2 * p + 1))
        a.I('buffer_store_dwordx4 %s, v%d, s[%d:%d], s%d offen offset:%d' % (vr(b + 8, 4), vL16, sWS, sWS + 3, sT[0], 1024 * i))
        for p in range(4):
            a.I('v_dot2c_f32_bf16 v%d, s%d, v%d' % (s1, sONE, b + 8 + p)); a.I('v_dot2c_f32_bf16 v%d, v%d, v%d' % (s2, b + 8 + p, b + 8 + p))
    a.I('v_mov_b32 v%d, v%d' % (vt[2], s1)); a.I('v_mov_b32 v%d, v%d' % (vt[3], s2))
    a.I('v_permlane32_swap_b32 v%d, v%d' % (s1, vt[2])); a.I('v_permlane32_swap_b32 v%d, v%d' % (s2, vt[3]))
    a.I('v_add_f32 v%d, v%d, v%d' % (vXD, s1, vt[2])); a.I('v_add_f32 v%d, v%d, v%d' % (vXD + 1, s2, vt[3]))
    a.I('s_lshl_b32 s%d, s%d, 14' % (sT[0], sT[7])); a.I('s_lshl_b32 s%d, s%d, 8' % (sT[1], sT[6]))
    a.I('s_add_u32 s%d, s%d, s%d' % (sT[0], sT[0], sT[1])); a.I('s_add_u32 s%d, s%d, %d' % (sT[0], sT[0], STATS))
    a.I('v_lshlrev_b32 v4, 3, v2')
    a.I('s_mov_b32 exec_hi, 0')
    a.I('buffer_store_dwordx2 %s, v4, s[%d:%d], s%d offen' % (vr(vXD, 2), sWS, sWS + 3, sT[0]))
    a.I('s_endpgm')
    a.label('kb_cs')
    a.reset_counts()
    a.I('s_sub_u32 s%d, s2, 224' % sT[0]); a.I('s_lshl_b32 s%d, s%d, 2' % (sT[0], sT[0])); a.I('s_add_u32 s%d, s%d, s%d' % (sT[0], sT[0], sW))
    a.I('s_mul_i32 s%d, s%d, 28672' % (sT[1], sT[0])); a.I('s_add_u32 s%d, s%d, %d' % (sT[1], sT[1], GUP))
    for ks in range(28):
        a.I('buffer_load_dwordx4 %s, v%d, s[%d:%d], s%d offen offset:%d' % (ar(4 * ks, 4), vL16, sWS, sWS + 3, sT[1], 1024 * (ks % 4)), tag='g%d' % ks)
        if ks % 4 == 3: a.I('s_add_u32 s%d, s%d, 4096' % (sT[1], sT[1]))
    for i in range(4): a.I('v_mov_b32 v%d, 0x3f803f80' % (8 + i))
    for ks in range(28):
        a.wait(vm='g%d' % ks)
        a.I('v_mfma_f32_32x32x16_bf16 v[16:31], %s, v[8:11], %s' % (ar(4 * ks, 4), '0' if ks == 0 else 'v[16:31]'))
    a.I('s_lshl_b32 s%d, s%d, 7' % (sT[1], sT[0])); a.I('s_add_u32 s%d, s%d, %d' % (sT[1], sT[1], CSGU))
    a.I('v_lshrrev_b32 v3, 5, v1'); a.I('v_lshlrev_b32 v3, 6, v3')
    a.I('s_mov_b32 exec_lo, 1'); a.I('s_mov_b32 exec_hi, 1')
    for q in range(4):
        a.I('buffer_store_dwordx4 %s, v3, s[%d:%d], s%d offen offset:%d' % (vr(16 + 4 * q, 4), sWS, sWS + 3, sT[1], 16 * q))
    a.label('kb_end')
    a.I('s_endpgm')
    return ('kb_kernel', 252, 256, 4 * PW, 448, 102, 256)
```

```python
from gen_common import *

def gen_C(a, LEAD=16):
    name = 'kc_kernel'
    head(a, name)
    ACC = 8
    HB = 136
    NB = 3
    CS = 184
    ST = 216
    V = Alloc(232, 256)
    vL16 = V.get(); vH = V.get()
    vt = [V.get() for _ in range(12)]
    vSP = HB
    sWS, sWD = 24, 28
    sW, sRB, sFS = 32, 33, 34
    sT = [36, 37, 38, 39, 40, 41, 42, 43]
    sHG, sHL, sW0, sW1 = 44, 45, 46, 47
    STL = 114688
    a.I('s_cmp_ge_u32 s2, 252'); a.branch('s_cbranch_scc1 kc_end')
    load_args(a)
    a.I('v_lshrrev_b32 v2, 6, v0'); a.I('v_and_b32 v1, 63, v0')
    a.I('v_readfirstlane_b32 s%d, v2' % sW)
    a.I('v_lshlrev_b32 v%d, 4, v1' % vL16)
    a.I('s_and_b32 s%d, s2, 7' % sT[0]); a.I('s_lshr_b32 s%d, s2, 3' % sT[1])
    a.I('s_mul_i32 s%d, s%d, 37' % (sT[2], sT[1])); a.I('s_lshr_b32 s%d, s%d, 8' % (sT[2], sT[2]))
    a.I('s_mul_i32 s%d, s%d, 7' % (sT[3], sT[2])); a.I('s_sub_u32 s%d, s%d, s%d' % (sT[3], sT[1], sT[3]))
    a.I('s_lshr_b32 s%d, s%d, 1' % (sRB, sT[0])); a.I('s_lshl_b32 s%d, s%d, 2' % (sRB, sRB)); a.I('s_add_u32 s%d, s%d, s%d' % (sRB, sRB, sT[2]))
    a.I('s_and_b32 s%d, s%d, 1' % (sFS, sT[0])); a.I('s_mul_i32 s%d, s%d, 7' % (sFS, sFS)); a.I('s_add_u32 s%d, s%d, s%d' % (sFS, sFS, sT[3]))
    a.I('v_and_b32 v2, 31, v1'); a.I('v_lshrrev_b32 v3, 5, v1')
    a.I('s_waitcnt lgkmcnt(0)')
    srd(a, sWS, 22, WS_BYTES); srd(a, sWD, 16, 1792 * 896)
    a.I('s_cmp_ge_u32 s2, 224'); a.branch('s_cbranch_scc1 kc_pack')
    a.I('v_mul_u32_u24 v4, %d, v3' % (7 * 16384)); a.I('v_lshl_add_u32 v4, v2, 3, v4')
    a.I('s_lshl_b32 s%d, s%d, 2' % (sT[0], sRB)); a.I('s_add_u32 s%d, s%d, s%d' % (sT[0], sT[0], sW))
    a.I('s_lshl_b32 s%d, s%d, 8' % (sT[1], sT[0])); a.I('s_add_u32 s%d, s%d, %d' % (sT[1], sT[1], STATS))
    for p in range(7):
        a.I('buffer_load_dwordx2 %s, v4, s[%d:%d], s%d offen' % (vr(vSP + 2 * p, 2), sWS, sWS + 3, sT[1]), tag='sp')
        if p < 6: a.I('s_add_u32 s%d, s%d, 16384' % (sT[1], sT[1]))
    a.I('s_lshl_b32 s%d, s%d, 3' % (sT[2], sFS)); a.I('s_lshl_b32 s%d, s%d, 1' % (sT[3], sW)); a.I('s_add_u32 s%d, s%d, s%d' % (sT[2], sT[2], sT[3]))
    a.I('s_lshl_b32 s%d, s%d, 7' % (sT[3], sT[2])); a.I('s_add_u32 s%d, s%d, %d' % (sT[3], sT[3], CSGU))
    a.I('v_lshlrev_b32 v5, 6, v3')
    for c in range(2):
        for q in range(4):
            a.I('buffer_load_dwordx4 %s, v5, s[%d:%d], s%d offen offset:%d' % (vr(CS + 16 * c + 4 * q, 4), sWS, sWS + 3, sT[3], 128 * c + 16 * q), tag='cs')
    a.I('s_mul_i32 s%d, s%d, 28672' % (sHG, sT[0])); a.I('s_add_u32 s%d, s%d, %d' % (sHG, sHG, HF))
    a.I('s_mul_i32 s%d, s%d, 28672' % (sHL, sW))
    a.I('s_mul_i32 s%d, s%d, 28672' % (sW0, sT[2])); a.I('s_add_u32 s%d, s%d, %d' % (sW0, sW0, GUP))
    a.I('s_add_u32 s%d, s%d, 28672' % (sW1, sW0))
    order = []; k1 = 0
    for t in range(28):
        order.append((0, t))
        while k1 < (t + 1) * LEAD // 28: order.append((1, k1)); k1 += 1
    while k1 < 28: order.append((1, k1)); k1 += 1
    SG = 4
    loads = []; hdone = -1
    for (c, ks) in order:
        while hdone < ks // SG:
            hdone += 1
            for k in range(hdone * SG, hdone * SG + SG): loads.append(('h', k))
        loads.append((c, ks))
    li = 0
    def issue(n):
        nonlocal li
        for _ in range(n):
            if li >= len(loads): return
            c, ks = loads[li]; li += 1
            if c == 'h':
                if ks % 4 == 0:
                    a.I('s_add_u32 s%d, s%d, %d' % (sT[4], sHG, 1024 * ks)); a.I('s_add_u32 m0, s%d, %d' % (sHL, 1024 * ks))
                a.I('buffer_load_dwordx4 v%d, s[%d:%d], s%d offen offset:%d lds' % (vL16, sWS, sWS + 3, sT[4], 1024 * (ks % 4)), tag='h%d' % (ks // SG))
            else:
                s = sT[5 + c]
                if ks % 4 == 0: a.I('s_add_u32 s%d, s%d, %d' % (s, sW1 if c else sW0, 1024 * ks))
                a.I('buffer_load_dwordx4 %s, v%d, s[%d:%d], s%d offen offset:%d' % (ar(112 * c + 4 * ks, 4), vL16, sWS, sWS + 3, s, 1024 * (ks % 4)), tag='w%d_%d' % (c, ks))
    issue(46)
    a.wait(vm='sp')
    for p in range(1, 7):
        a.I('v_add_f32 v%d, v%d, v%d' % (vSP, vSP, vSP + 2 * p)); a.I('v_add_f32 v%d, v%d, v%d' % (vSP + 1, vSP + 1, vSP + 2 * p + 1))
    a.I('v_mov_b32 v%d, v%d' % (vt[0], vSP)); a.I('v_mov_b32 v%d, v%d' % (vt[1], vSP + 1))
    a.I('v_permlane32_swap_b32 v%d, v%d' % (vSP, vt[0])); a.I('v_permlane32_swap_b32 v%d, v%d' % (vSP + 1, vt[1]))
    a.I('v_add_f32 v%d, v%d, v%d' % (vSP, vSP, vt[0])); a.I('v_add_f32 v%d, v%d, v%d' % (vSP + 1, vSP + 1, vt[1]))
    ln_finish(a, 'v%d' % vSP, 'v%d' % (vSP + 1), 'v%d' % vt[0], 'v%d' % vt[1], 'v%d' % vt[2], 'v%d' % vt[3])
    a.I('v_sub_f32 v%d, 0, v%d' % (ST, vt[3])); a.I('v_mul_f32 v%d, %s, v%d' % (ST + 1, f32(-LOG2E), vt[2]))
    a.I('v_mul_f32 v%d, v%d, v%d' % (ST + 2, vt[1], vt[1])); a.I('v_mov_b32 v%d, 0' % (ST + 3))
    a.I('s_lshl_b32 s%d, s%d, 9' % (sT[1], sW)); a.I('s_add_u32 s%d, s%d, %d' % (sT[1], sT[1], STL))
    a.I('v_lshlrev_b32 v4, 4, v2'); a.I('v_add_u32 v5, s%d, v4' % sT[1]); a.I('v_add_u32 v4, %d, v4' % STL)
    a.I('ds_write_b128 v5, %s' % vr(ST, 4))
    a.wait(vm='h0', lg=0); a.I('s_barrier')
    for rt in range(4): a.I('ds_read_b128 %s, v4 offset:%d' % (vr(ST + 4 * rt, 4), 512 * rt), tag='st')
    a.I('v_add_u32 v%d, 57344, v%d' % (vH, vL16))
    stage_ok = 0
    def h_reads(gi):
        nonlocal stage_ok
        c, ks = order[gi]
        if ks // SG > stage_ok:
            stage_ok = ks // SG
            a.wait(vm='h%d' % stage_ok); a.I('s_barrier')
        b = HB + 16 * (gi % NB)
        for rt in range(4):
            off = rt * 28672 + ks * 1024
            if off < 57344: a.I('ds_read_b128 %s, v%d offset:%d' % (vr(b + 4 * rt, 4), vL16, off), tag='hr%d' % gi)
            else: a.I('ds_read_b128 %s, v%d offset:%d' % (vr(b + 4 * rt, 4), vH, off - 57344), tag='hr%d' % gi)
    for gi in range(NB - 1): h_reads(gi)
    a.wait(vm='cs', lg='st')
    def init_ops(c):
        return ['v_mul_f32 v%d, v%d, v%d' % (ACC + 16 * (4 * c + rt) + v, ST + 4 * rt, CS + 16 * c + v) for rt in range(4) for v in range(16)]
    for op in init_ops(0) + init_ops(1): a.I(op)
    a.I('s_mul_i32 s%d, s%d, %d' % (sT[0], sRB, 4 * 112)); a.I('s_add_u32 s%d, s%d, s%d' % (sT[0], sT[0], sT[2]))
    a.I('s_lshl_b32 s%d, s%d, 10' % (sT[0], sT[0])); a.I('s_add_u32 s%d, s%d, %d' % (sT[0], sT[0], ACTF))
    sO = [48, 49, 50, 51]
    for rt in range(4): a.I('s_add_u32 s%d, s%d, %d' % (sO[rt], sT[0], rt * 112 * 1024))
    def epi_ops(c, rt):
        b = ACC + 16 * (4 * c + rt); c1, ir2 = ST + 4 * rt + 1, ST + 4 * rt + 2
        ops = []
        for half in range(2):
            js = range(4 * half, 4 * half + 4)
            T = {j: vt[j % 4 + 4 * half] for j in js}
            ops += ['v_mul_f32 v%d, v%d, v%d' % (T[j], c1, b + j) for j in js]
            ops += ['v_exp_f32 v%d, v%d' % (T[j], T[j]) for j in js]
            ops += ['v_mul_f32 v%d, v%d, v%d' % (b + j, b + j, b + 8 + j) for j in js]
            ops += ['v_fma_f32 v%d, v%d, v%d, v%d' % (T[j], T[j], ir2, ir2) for j in js]
            ops += ['v_rcp_f32 v%d, v%d' % (T[j], T[j]) for j in js]
        for j in range(8): ops.append('v_mul_f32 v%d, v%d, v%d' % (b + j, b + j, vt[j]))
        ops += ['v_cvt_pk_bf16_f32 v%d, v%d, v%d' % (b + 8 + p, b + 2 * p, b + 2 * p + 1) for p in range(4)]
        ops.append('buffer_store_dwordx4 %s, v%d, s[%d:%d], s%d offen offset:%d' % (vr(b + 8, 4), vL16, sWS, sWS + 3, sO[rt], 1024 * c))
        return ops
    last0 = max(i for i, (c, ks) in enumerate(order) if c == 0)
    side = []
    for gi, (c, ks) in enumerate(order):
        if gi + NB - 1 < len(order): h_reads(gi + NB - 1)
        issue(2)
        a.wait(vm='w%d_%d' % (c, ks), lg='hr%d' % gi)
        if gi == last0 + 1:
            for rt in range(4): side += epi_ops(0, rt)
        b = HB + 16 * (gi % NB)
        for rt in range(4):
            acc = ACC + 16 * (4 * c + rt)
            a.I('v_mfma_f32_32x32x16_bf16 %s, %s, %s, %s' % (vr(acc, 16), ar(112 * c + 4 * ks, 4), vr(b + 4 * rt, 4), vr(acc, 16)))
            for _ in range(5):
                if side: a.I(side.pop(0), counted=True)
    while side: a.I(side.pop(0))
    for rt in range(4):
        for op in epi_ops(1, rt): a.I(op)
    a.I('s_endpgm')
    a.label('kc_pack')
    a.reset_counts()
    a.I('s_sub_u32 s%d, s2, 224' % sT[0]); a.I('s_lshl_b32 s%d, s%d, 2' % (sT[0], sT[0])); a.I('s_add_u32 s%d, s%d, s%d' % (sT[0], sT[0], sW))
    a.I('s_mul_i32 s%d, s%d, 14336' % (sT[1], sT[0])); a.I('s_mul_i32 s%d, s%d, 14336' % (sT[2], sW))
    for i in range(14):
        if i % 4 == 0:
            a.I('s_add_u32 s%d, s%d, %d' % (sT[3], sT[1], 1024 * i)); a.I('s_add_u32 m0, s%d, %d' % (sT[2], 1024 * i))
        a.I('buffer_load_dwordx4 v%d, s[%d:%d], s%d offen offset:%d lds' % (vL16, sWD, sWD + 3, sT[3], 1024 * (i % 4)))
    a.I('v_bfe_u32 v4, v1, 2, 2'); a.I('v_lshl_add_u32 v4, v3, 2, v4'); a.I('v_mul_u32_u24 v4, 896, v4')
    a.I('v_bfe_u32 v5, v1, 4, 1'); a.I('v_lshl_add_u32 v4, v5, 5, v4'); a.I('v_and_b32 v5, 3, v1'); a.I('v_lshl_add_u32 v4, v5, 3, v4')
    a.I('v_add_u32 v4, s%d, v4' % sT[2])
    a.I('s_lshl_b32 s%d, s%d, 10' % (sT[1], sT[0])); a.I('s_add_u32 s%d, s%d, %d' % (sT[1], sT[1], WDP))
    a.wait(vm=0)
    for ct in range(14):
        a.I('ds_read_b64_tr_b16 %s, v4 offset:%d' % (vr(16 + 4 * ct, 2), 64 * ct), tag='t%d' % ct)
        a.I('ds_read_b64_tr_b16 %s, v4 offset:%d' % (vr(18 + 4 * ct, 2), 64 * ct + 8 * 896), tag='t%d' % ct)
        if ct >= 4:
            cc = ct - 4
            a.wait(lg='t%d' % cc)
            a.I('buffer_store_dwordx4 %s, v%d, s[%d:%d], s%d offen' % (vr(16 + 4 * cc, 4), vL16, sWS, sWS + 3, sT[1]))
            a.I('s_add_u32 s%d, s%d, %d' % (sT[1], sT[1], 112 * 1024))
    for cc in range(10, 14):
        a.wait(lg='t%d' % cc)
        a.I('buffer_store_dwordx4 %s, v%d, s[%d:%d], s%d offen' % (vr(16 + 4 * cc, 4), vL16, sWS, sWS + 3, sT[1]))
        a.I('s_add_u32 s%d, s%d, %d' % (sT[1], sT[1], 112 * 1024))
    a.label('kc_end')
    a.I('s_endpgm')
    return ('kc_kernel', 252, 256, 116736, 480, 102, 256)
```

```python
from asmlib import *
KN = "sequential_preLN__linear_attn_block__swiglu_ffn__prompt"
PQF   = 0
KVACC = 2 << 20
WOP   = KVACC + (256 << 10)
CSGU  = KVACC + (768 << 10)
STATS = (3 << 20) + 1835008
HF    = 3 << 20
GUP   = 5 << 20
WDP   = 9 << 20
ACTF  = 11 << 20
WS_BYTES = 268435456
LOG2E = 1.4426950408889634
import struct
def f32(x): return '0x%08x' % struct.unpack('<I', struct.pack('<f', x))[0]

def kd(name, vgpr, sgpr, accum):
    return '''.p2align 6
.amdhsa_kernel %s
  .amdhsa_next_free_vgpr %d
  .amdhsa_next_free_sgpr %d
  .amdhsa_accum_offset %d
  .amdhsa_group_segment_fixed_size 0
  .amdhsa_kernarg_size 80
  .amdhsa_user_sgpr_count 2
  .amdhsa_user_sgpr_kernarg_segment_ptr 1
  .amdhsa_system_sgpr_workgroup_id_x 1
.end_amdhsa_kernel
''' % (name, vgpr, sgpr, accum)

def head(a, name):
    a.raw('.globl %s\n.p2align 8\n.type %s,@function\n%s:' % (name, name, name))
    a.hist = []; a.reset_counts()

def srd(a, d, ptr, nbytes):
    a.I('s_mov_b32 s%d, s%d' % (d, ptr)); a.I('s_mov_b32 s%d, s%d' % (d + 1, ptr + 1))
    a.I('s_mov_b32 s%d, %s' % (d + 2, nbytes if isinstance(nbytes, str) else hex(nbytes)))
    a.I('s_mov_b32 s%d, 0x20000' % (d + 3))

def load_args(a):
    a.I('s_load_dwordx16 s[4:19], s[0:1], 0')
    a.I('s_load_dwordx4 s[20:23], s[0:1], 64')

def bf16_round(a, d, s):
    a.I('v_cvt_pk_bf16_f32 %s, %s, %s' % (d, s, s))
    a.I('v_and_b32 %s, 0xffff0000, %s' % (d, d))

def ln_finish(a, s1, s2, t0, t1, R, M):
    a.I('v_mul_f32 %s, %s, %s' % (t0, f32(1.0 / 448), s1))
    a.I('v_mul_f32 %s, %s, %s' % (t1, f32(1.0 / 448), s2))
    a.I('v_fma_f32 %s, -%s, %s, %s' % (t1, t0, t0, t1))
    a.I('v_max_f32 %s, 0, %s' % (t1, t1))
    bf16_round(a, M, t0)
    bf16_round(a, t1, t1)
    a.I('v_add_f32 %s, %s, %s' % (t1, f32(1e-5), t1))
    bf16_round(a, t1, t1)
    a.I('v_sqrt_f32 %s, %s' % (t1, t1))
    bf16_round(a, t1, t1)
    a.I('v_rcp_f32 %s, %s' % (R, t1))

def sel(a, d, x, y):
    a.I('s_mov_b32 s%d, %d' % (d, y)); a.I('s_cmov_b32 s%d, %d' % (d, x))

HDR = """.amdgcn_target "amdgcn-amd-amdhsa--gfx950"
.text
"""
def assemble_file(fn, gens, top=""):
    a = Asm(); L = top; K = ""
    for g in gens:
        name, grid, block, lds, vg, sg, acc = g(a)
        L += "; @launch kernel=%s grid=(%d,1,1) block=(%d,1,1) lds=%d\n" % (name, grid, block, lds)
        K += kd(name, vg, sg, acc)
    open(fn, "w").write(L + HDR + a.text() + '.section .rodata,"a"\n' + K)
    print(fn, "instrs", a.count, "nop states", a.nops)
```

```python
from gen_common import *

def gen_D(a):
    name = 'kd_kernel'
    head(a, name)
    ACC = 8
    P = 72
    V = Alloc(136, 256)
    vL16 = V.get(); vHo = V.get(); vHD = V.get(8, 4); vWr = V.get(); vRd = V.get(); vOo = V.get()
    sOUT, sWS = 24, 28
    sW, sRB, sCS = 32, 33, 34
    sT = [36, 37, 38, 39, 40, 41, 42, 43]
    sA = [44, 45]; sB = [46, 47]
    RS = 272; PW = 64 * RS
    a.I('s_cmp_ge_u32 s2, 224'); a.branch('s_cbranch_scc1 kd_end')
    load_args(a)
    a.I('v_lshrrev_b32 v2, 6, v0'); a.I('v_and_b32 v1, 63, v0')
    a.I('v_readfirstlane_b32 s%d, v2' % sW)
    a.I('v_lshlrev_b32 v%d, 4, v1' % vL16)
    a.I('s_and_b32 s%d, s2, 7' % sT[0]); a.I('s_lshr_b32 s%d, s2, 3' % sT[1])
    a.I('s_mul_i32 s%d, s%d, 37' % (sT[2], sT[1])); a.I('s_lshr_b32 s%d, s%d, 8' % (sT[2], sT[2]))
    a.I('s_mul_i32 s%d, s%d, 7' % (sT[3], sT[2])); a.I('s_sub_u32 s%d, s%d, s%d' % (sCS, sT[1], sT[3]))
    a.I('s_lshl_b32 s%d, s%d, 2' % (sRB, sT[0])); a.I('s_add_u32 s%d, s%d, s%d' % (sRB, sRB, sT[2]))
    a.I('s_mul_i32 s%d, s%d, 28672' % (sT[0], sW))
    a.I('s_mul_i32 s%d, s%d, %d' % (sA[0], sRB, 2 * 112 * 1024)); a.I('s_add_u32 s%d, s%d, s%d' % (sA[0], sA[0], sT[0]))
    a.I('s_add_u32 s%d, s%d, %d' % (sA[0], sA[0], ACTF)); a.I('s_add_u32 s%d, s%d, %d' % (sA[1], sA[0], 112 * 1024))
    a.I('s_mul_i32 s%d, s%d, %d' % (sB[0], sCS, 2 * 112 * 1024)); a.I('s_add_u32 s%d, s%d, s%d' % (sB[0], sB[0], sT[0]))
    a.I('s_add_u32 s%d, s%d, %d' % (sB[0], sB[0], WDP)); a.I('s_add_u32 s%d, s%d, %d' % (sB[1], sB[0], 112 * 1024))
    a.I('s_waitcnt lgkmcnt(0)')
    srd(a, sOUT, 18, 2048 * 896); srd(a, sWS, 22, WS_BYTES)
    def issue(ks):
        b = 16 * (ks % 16)
        if ks % 4 == 0 and ks:
            for s in sA + sB: a.I('s_add_u32 s%d, s%d, 4096' % (s, s))
        for i, s in enumerate((sB[0], sA[0], sA[1], sB[1])):
            a.I('buffer_load_dwordx4 %s, v%d, s[%d:%d], s%d offen offset:%d' % (ar(b + 4 * i, 4), vL16, sWS, sWS + 3, s, 1024 * (ks % 4)), tag='k%d' % ks)
    for ks in range(15): issue(ks)
    a.I('v_lshrrev_b32 v2, 3, v0')
    a.I('v_and_b32 v3, 7, v0')
    a.I('v_lshrrev_b32 v4, 1, v3'); a.I('v_lshlrev_b32 v4, 10, v4'); a.I('v_and_b32 v5, 1, v3'); a.I('v_lshl_add_u32 v4, v5, 9, v4')
    a.I('v_lshl_add_u32 v%d, v2, 4, v4' % vHo)
    a.I('s_mul_i32 s%d, s%d, 56' % (sT[0], sRB)); a.I('s_lshl_b32 s%d, s%d, 2' % (sT[1], sCS)); a.I('s_add_u32 s%d, s%d, s%d' % (sT[0], sT[0], sT[1]))
    a.I('s_lshl_b32 s%d, s%d, 10' % (sT[0], sT[0])); a.I('s_add_u32 s%d, s%d, %d' % (sT[0], sT[0], HF)); a.I('s_add_u32 s%d, s%d, 28672' % (sT[1], sT[0]))
    for i in range(2):
        a.I('buffer_load_dwordx4 %s, v%d, s[%d:%d], s%d offen' % (vr(vHD + 4 * i, 4), vHo, sWS, sWS + 3, sT[i]), tag='h')
    a.I('v_mul_u32_u24 v4, 896, v2'); a.I('v_lshl_add_u32 v%d, v3, 4, v4' % vOo)
    a.I('s_mul_i32 s%d, s%d, %d' % (sT[2], sRB, 64 * 896)); a.I('s_lshl_b32 s%d, s%d, 7' % (sT[3], sCS)); a.I('s_add_u32 s%d, s%d, s%d' % (sT[2], sT[2], sT[3]))
    a.I('s_add_u32 s%d, s%d, %d' % (sT[3], sT[2], 32 * 896))
    a.I('v_mul_u32_u24 v4, %d, v2' % RS); a.I('v_lshl_add_u32 v%d, v3, 5, v4' % vRd)
    a.I('v_and_b32 v4, 31, v1'); a.I('v_lshrrev_b32 v5, 5, v1'); a.I('v_mul_u32_u24 v4, %d, v4' % RS); a.I('v_lshl_add_u32 v4, v5, 4, v4')
    a.I('s_mul_i32 s%d, s%d, %d' % (sT[4], sW, PW)); a.I('v_add_u32 v%d, s%d, v4' % (vWr, sT[4]))
    for ks in range(28):
        a.wait(vm='k%d' % ks)
        b = 16 * (ks % 16)
        for (rt, ct) in ((0, 0), (1, 0), (1, 1), (0, 1)):
            acc = ACC + 16 * (2 * rt + ct)
            a.I('v_mfma_f32_32x32x16_bf16 %s, %s, %s, %s' % (vr(acc, 16), ar(b + (12 if ct else 0), 4), ar(b + 4 + 4 * rt, 4), '0' if ks == 0 else vr(acc, 16)))
        if ks + 15 < 28: issue(ks + 15)
    for rt in range(2):
        for ct in range(2):
            for q in range(4):
                a.I('ds_write_b128 v%d, %s offset:%d' % (vWr, vr(ACC + 16 * (2 * rt + ct) + 4 * q, 4), rt * 32 * RS + ct * 128 + q * 32))
    a.wait(lg=0); a.I('s_barrier')
    for i in range(2):
        for p in range(4):
            for hf in range(2):
                a.I('ds_read_b128 %s, v%d offset:%d' % (vr(P + 32 * i + 8 * p + 4 * hf, 4), vRd, PW * p + 32 * RS * i + 16 * hf), tag='r%d' % i)
    for i in range(2):
        a.wait(lg='r%d' % i)
        b = P + 32 * i
        for e in range(8):
            a.I('v_add_f32 v%d, v%d, v%d' % (b + e, b + e, b + 8 + e)); a.I('v_add_f32 v%d, v%d, v%d' % (b + 16 + e, b + 16 + e, b + 24 + e))
        for e in range(8): a.I('v_add_f32 v%d, v%d, v%d' % (b + e, b + e, b + 16 + e))
        for p in range(4): a.I('v_cvt_pk_bf16_f32 v%d, v%d, v%d' % (b + 8 + p, b + 2 * p, b + 2 * p + 1))
        for p in range(4):
            x = vHD + 4 * i + p
            a.I('v_lshlrev_b32 v%d, 16, v%d' % (b + 2 * p, b + 8 + p)); a.I('v_and_b32 v%d, 0xffff0000, v%d' % (b + 2 * p + 1, b + 8 + p))
            a.I('v_lshlrev_b32 v%d, 16, v%d' % (b + 16 + 2 * p, x)); a.I('v_and_b32 v%d, 0xffff0000, v%d' % (b + 16 + 2 * p + 1, x))
        for e in range(8): a.I('v_add_f32 v%d, v%d, v%d' % (b + e, b + e, b + 16 + e))
        for p in range(4): a.I('v_cvt_pk_bf16_f32 v%d, v%d, v%d' % (b + 8 + p, b + 2 * p, b + 2 * p + 1))
        a.I('buffer_store_dwordx4 %s, v%d, s[%d:%d], s%d offen' % (vr(b + 8, 4), vOo, sOUT, sOUT + 3, sT[2 + i]))
    a.label('kd_end')
    a.I('s_endpgm')
    return ('kd_kernel', 224, 256, 4 * PW, 512, 102, 256)
```

```python
import sys
from gen_common import *
from gen_a import gen_A
from gen_b import gen_B
from gen_c import gen_C
from gen_d import gen_D
gens = [gen_A, gen_B, gen_C, gen_D]
ref = open('cdna_kernels/%s.s.ref' % KN).read().splitlines()
top = ''
for l in ref:
    if not l.startswith(';'): break
    if '@launch' in l or 'Override launch' in l or 'grid=ceil' in l: continue
    top += l + '\n'
top += '; Generated by work/gen.py (hand-written generator). 4 launches: A qkv+kv, B attn-out+h, C gate/up, D down.\n'
out = sys.argv[1] if len(sys.argv) > 1 else 'k.s'
assemble_file(out, gens, top)
```

```python
import re

REG_RE = re.compile(r'^(-)?(\|)?(?:abs\()?([vas])(?:(\d+)|\[(\d+):(\d+)\])\)?(\|)?$')
TRANS = ('v_exp_f32', 'v_log_f32', 'v_rcp_f32', 'v_rsq_f32', 'v_sqrt_f32', 'v_sin_f32', 'v_cos_f32', 'v_rcp_iflag_f32')

def regs_of(tok):
    tok = tok.strip()
    if tok == 'vcc': return {('s', 106), ('s', 107)}
    if tok == 'exec': return {('s', 126), ('s', 127)}
    if tok == 'm0': return {('s', 124)}
    if tok == 'vcc_lo': return {('s', 106)}
    if tok == 'vcc_hi': return {('s', 107)}
    if tok == 'exec_lo': return {('s', 126)}
    if tok == 'exec_hi': return {('s', 127)}
    m = REG_RE.match(tok)
    if not m: return set()
    f = m.group(3)
    if m.group(4) is not None: lo = hi = int(m.group(4))
    else: lo, hi = int(m.group(5)), int(m.group(6))
    return {(f, i) for i in range(lo, hi + 1)}

def split_ops(s):
    out, depth, cur = [], 0, ''
    for ch in s:
        if ch in '[(': depth += 1
        if ch in '])': depth -= 1
        if ch == ',' and depth == 0: out.append(cur.strip()); cur = ''
        else: cur += ch
    if cur.strip(): out.append(cur.strip())
    return out

class Ins:
    def __init__(self, text):
        self.text = text
        t = text.split(';')[0].strip()
        parts = t.split(None, 1)
        self.op = parts[0]
        rest = parts[1] if len(parts) > 1 else ''
        ops = split_ops(rest)
        mods = []
        if ops:
            l = ops[-1].split()
            ops[-1] = l[0]; mods = l[1:]
        self.ops, self.mods = ops, mods
        op = self.op
        self.dst, self.src = set(), set()
        self.kind = 'other'
        self.srcC = set(); self.srcAB = set()
        R = [regs_of(o) for o in ops]
        if op.startswith('v_mfma'):
            self.kind = 'mfma'
            self.passes = 8 if '32x32' in op else 4
            self.dst = R[0]; self.srcAB = R[1] | R[2]; self.srcC = R[3]; self.src = self.srcAB | self.srcC
        elif op.startswith('v_'):
            self.kind = 'valu'
            if op.startswith('v_cmp'):
                self.dst = R[0]; self.src = set().union(*R[1:])
            elif op in ('v_add_co_u32', 'v_sub_co_u32', 'v_addc_co_u32', 'v_subb_co_u32'):
                self.dst = R[0] | R[1]; self.src = set().union(*R[2:])
            elif op.startswith('v_permlane') and 'swap' in op or op.startswith('v_swap'):
                self.dst = R[0] | R[1]; self.src = R[0] | R[1]
            elif op.startswith(('v_fmac', 'v_dot2c', 'v_pk_fmac')):
                self.dst = R[0]; self.src = set().union(*R)
            elif op == 'v_nop':
                pass
            else:
                self.dst = R[0]; self.src = set().union(*R[1:]) if len(R) > 1 else set()
            if '_dpp' in op or any(m.startswith(('row_', 'quad_perm', 'wave_')) for m in mods):
                self.dpp = True
                self.src |= R[0]
            else: self.dpp = False
        elif op.startswith('ds_'):
            self.kind = 'ds'
            if op.startswith(('ds_read', 'ds_bpermute', 'ds_permute', 'ds_swizzle')):
                self.dst = R[0]; self.src = set().union(*R[1:])
            else:
                self.src = set().union(*R)
        elif op.startswith(('buffer_', 'global_')):
            self.kind = 'vmem'
            lds = 'lds' in mods or '_lds_' in op
            self.lds = lds
            if op in ('buffer_wbl2', 'buffer_inv'):
                pass
            elif 'load' in op and not lds:
                self.dst = R[0]; self.src = set().union(*R[1:])
            else:
                self.src = set().union(*R)
                if lds: self.src |= {('s', 124)}
                if 'atomic' in op and 'sc0' in mods and op.startswith('buffer_'): self.dst = R[0]
            self.wide_store = ('store' in op and ('x4' in op or 'x3' in op))
            if self.wide_store:
                self.store_data = R[0] if op.startswith('buffer_') else R[1]
        elif op.startswith('s_'):
            self.kind = 'salu'
            if op.startswith(('s_cmp', 's_waitcnt', 's_branch', 's_cbranch', 's_barrier', 's_nop', 's_endpgm', 's_sleep', 's_setprio', 's_bitcmp')):
                self.src = set().union(*R) if R else set()
            elif op.startswith('s_load') or op.startswith('s_buffer_load') or op.startswith('s_memtime') or op.startswith('s_memrealtime'):
                self.kind = 'smem'; self.dst = R[0]; self.src = set().union(*R[1:]) if len(R) > 1 else set()
            else:
                self.dst = R[0]; self.src = set().union(*R[1:]) if len(R) > 1 else set()
                if 'saveexec' in op: self.dst = self.dst | {('s', 126), ('s', 127)}
        self.trans = op in TRANS
        self.dot = op.startswith('v_dot')

    def states(self):
        if self.op == 's_nop': return int(self.ops[0], 0) + 1
        return 1

def need(p, c):
    n = 0
    vd = {r for r in p.dst if r[0] in 'va'}
    sd = {r for r in p.dst if r[0] == 's'}
    if p.kind == 'valu':
        if c.kind == 'mfma' and vd & c.src: n = max(n, 2)
        if p.trans and c.kind in ('valu', 'vmem', 'ds') and vd & (c.src) and not (c.kind == 'valu' and c.trans): n = max(n, 1)
        if c.kind == 'valu':
            if sd & c.src: n = max(n, 4 if c.op.startswith(('v_readlane', 'v_writelane')) else 2)
            if vd & c.src:
                if c.op.startswith(('v_readlane', 'v_readfirstlane')): n = max(n, 1)
                if c.op.startswith('v_permlane'): n = max(n, 2)
                if c.dpp: n = max(n, 2)
        if c.kind == 'vmem' and sd & c.src: n = max(n, 5)
        if c.kind in ('salu', 'smem') and sd & c.src: n = max(n, 1)
        if p.dot:
            if c.kind == 'valu' and c.op == p.op:
                ab = set().union(*[regs_of(o) for o in c.ops[1:3]])
                if vd & ab: n = max(n, 3)
            elif vd & (c.src | c.dst): n = max(n, 3)
    if p.kind == 'mfma':
        P = p.passes
        if c.kind == 'mfma':
            if vd & c.srcAB: n = max(n, 8 if P == 4 else 12)
            if vd & c.srcC:
                if c.srcC == vd and c.op == p.op: pass
                else: n = max(n, 6 if P == 4 else 10)
            if vd & c.dst and not (c.srcC == vd and c.op == p.op and c.dst == vd): n = max(n, 8 if P == 4 else 12)
        elif c.kind in ('valu', 'vmem', 'ds'):
            if vd & (c.src | c.dst): n = max(n, 8 if P == 4 else 12)
            if c.kind == 'valu' and p.srcC & c.dst: n = max(n, 3 if P == 4 else 7)
    if p.kind == 'salu' and ('s', 124) in p.dst and c.kind == 'vmem' and getattr(c, 'lds', False): n = max(n, 1)
    if p.kind == 'vmem' and getattr(p, 'wide_store', False):
        if c.dst & p.store_data: n = max(n, 2 if c.kind in ('valu', 'mfma') else 1)
    return n

class Asm:
    def __init__(self):
        self.out = []
        self.hist = []
        self.vm = []
        self.lg = []
        self.nops = 0
        self.count = 0
    def raw(self, text): self.out.append(text)
    def c(self, text): self.out.append('    ; ' + text)
    def _push(self, ins):
        s = ins.states()
        self.hist = [(p, d + s) for p, d in self.hist if d + s < 24]
        self.hist.append((ins, 0))
        self.out.append('    ' + ins.text)
        self.count += 1
    def nop(self, n):
        while n > 0:
            k = min(n, 16)
            self._push(Ins('s_nop %d' % (k - 1))); n -= k; self.nops += k
    def I(self, text, tag=None, counted=True):
        ins = Ins(text)
        pad = 0
        for p, d in self.hist:
            pad = max(pad, need(p, ins) - d)
        if pad > 0: self.nop(pad)
        self._push(ins)
        if ins.kind == 'vmem' and counted and ins.op not in ('buffer_wbl2', 'buffer_inv'): self.vm.append(tag)
        if ins.kind == 'ds' and counted: self.lg.append(tag)
        return ins
    def flush(self):
        pad = 0
        for p, d in self.hist:
            if p.kind == 'mfma': pad = max(pad, (8 if p.passes == 4 else 12) - d)
            elif p.kind == 'valu': pad = max(pad, (5 if any(r[0] == 's' for r in p.dst) else 3) - d)
            elif p.kind == 'vmem' and getattr(p, 'wide_store', False): pad = max(pad, 2 - d)
            elif p.kind == 'salu' and ('s', 124) in p.dst: pad = max(pad, 1 - d)
        if pad > 0: self.nop(pad)
        self.hist = []
    def label(self, name):
        self.flush(); self.out.append(name + ':')
    def branch(self, text):
        self.flush(); self.I(text)
    @staticmethod
    def _after(lst, tags):
        if not isinstance(tags, (list, tuple, set)): tags = [tags]
        idx = max((i for i, t in enumerate(lst) if t in tags), default=None)
        assert idx is not None, ('tag not found', tags)
        return len(lst) - 1 - idx
    def wait(self, vm=None, lg=None):
        parts = []
        if vm is not None:
            n = 0 if vm == 0 else self._after(self.vm, vm)
            parts.append('vmcnt(%d)' % min(n, 63))
        if lg is not None:
            n = 0 if lg == 0 else self._after(self.lg, lg)
            parts.append('lgkmcnt(%d)' % min(n, 15))
        self.I('s_waitcnt ' + ' '.join(parts))
    def reset_counts(self):
        self.vm = []; self.lg = []
    def text(self): return '\n'.join(self.out) + '\n'

def vr(b, n=1, f='v'):
    return '%s%d' % (f, b) if n == 1 else '%s[%d:%d]' % (f, b, b + n - 1)
def ar(b, n=1): return vr(b, n, 'a')
def sr(b, n=1): return vr(b, n, 's')

class Alloc:
    def __init__(self, start, limit): self.p = start; self.limit = limit; self.hi = start
    def get(self, n=1, align=1):
        self.p = (self.p + align - 1) // align * align
        b = self.p; self.p += n
        assert self.p <= self.limit, 'register overflow %d > %d' % (self.p, self.limit)
        self.hi = max(self.hi, self.p)
        return b
    def mark(self): return self.p
    def release(self, m): self.p = m
```

```python
from asmlib import *
KN = "sequential_preLN__linear_attn_block__swiglu_ffn__prompt"
PQF   = 0
KVACC = 2 << 20
WOP   = KVACC + (256 << 10)
CSGU  = KVACC + (768 << 10)
STATS = (3 << 20) + 1835008
HF    = 3 << 20
GUP   = 5 << 20
WDP   = 9 << 20
ACTF  = 11 << 20
WS_BYTES = 268435456
LOG2E = 1.4426950408889634
import struct
def f32(x): return '0x%08x' % struct.unpack('<I', struct.pack('<f', x))[0]

def kd(name, vgpr, sgpr, accum):
    return '''.p2align 6
.amdhsa_kernel %s
  .amdhsa_next_free_vgpr %d
  .amdhsa_next_free_sgpr %d
  .amdhsa_accum_offset %d
  .amdhsa_group_segment_fixed_size 0
  .amdhsa_kernarg_size 80
  .amdhsa_user_sgpr_count 2
  .amdhsa_user_sgpr_kernarg_segment_ptr 1
  .amdhsa_system_sgpr_workgroup_id_x 1
.end_amdhsa_kernel
''' % (name, vgpr, sgpr, accum)

def head(a, name):
    a.raw('.globl %s\n.p2align 8\n.type %s,@function\n%s:' % (name, name, name))
    a.hist = []; a.reset_counts()

def srd(a, d, ptr, nbytes):
    a.I('s_mov_b32 s%d, s%d' % (d, ptr)); a.I('s_mov_b32 s%d, s%d' % (d + 1, ptr + 1))
    a.I('s_mov_b32 s%d, %s' % (d + 2, nbytes if isinstance(nbytes, str) else hex(nbytes)))
    a.I('s_mov_b32 s%d, 0x20000' % (d + 3))

def load_args(a):
    a.I('s_load_dwordx16 s[4:19], s[0:1], 0')
    a.I('s_load_dwordx4 s[20:23], s[0:1], 64')

def bf16_round(a, d, s):
    a.I('v_cvt_pk_bf16_f32 %s, %s, %s' % (d, s, s))
    a.I('v_and_b32 %s, 0xffff0000, %s' % (d, d))

def ln_finish(a, s1, s2, t0, t1, R, M):
    a.I('v_mul_f32 %s, %s, %s' % (t0, f32(1.0 / 448), s1))
    a.I('v_mul_f32 %s, %s, %s' % (t1, f32(1.0 / 448), s2))
    a.I('v_fma_f32 %s, -%s, %s, %s' % (t1, t0, t0, t1))
    a.I('v_max_f32 %s, 0, %s' % (t1, t1))
    bf16_round(a, M, t0)
    bf16_round(a, t1, t1)
    a.I('v_add_f32 %s, %s, %s' % (t1, f32(1e-5), t1))
    bf16_round(a, t1, t1)
    a.I('v_sqrt_f32 %s, %s' % (t1, t1))
    bf16_round(a, t1, t1)
    a.I('v_rcp_f32 %s, %s' % (R, t1))

def sel(a, d, x, y):
    a.I('s_mov_b32 s%d, %d' % (d, y)); a.I('s_cmov_b32 s%d, %d' % (d, x))

HDR = """.amdgcn_target "amdgcn-amd-amdhsa--gfx950"
.text
"""
def assemble_file(fn, gens, top=""):
    a = Asm(); L = top; K = ""
    for g in gens:
        name, grid, block, lds, vg, sg, acc = g(a)
        L += "; @launch kernel=%s grid=(%d,1,1) block=(%d,1,1) lds=%d\n" % (name, grid, block, lds)
        K += kd(name, vg, sg, acc)
    open(fn, "w").write(L + HDR + a.text() + '.section .rodata,"a"\n' + K)
    print(fn, "instrs", a.count, "nop states", a.nops)

import os
PROF = int(os.environ.get("PROF", "0"))
PROF_OFF = 200 << 20
class Prof:
    def __init__(self, a, kidx, vreg=255, s=96):
        self.a, self.k, self.v, self.s, self.n = a, kidx, vreg, s, 0
        self.names = []
    def stamp(self, name):
        if not PROF: return
        a = self.a
        a.I('%s s[%d:%d]' % ('s_memrealtime' if PROF == 2 else 's_memtime', self.s, self.s + 1)); a.I('s_waitcnt lgkmcnt(0)')
        a.I('v_writelane_b32 v%d, s%d, %d' % (self.v, self.s, self.n)); self.n += 1; self.names.append(name)
    def dump(self, sWS):
        if not PROF: return
        a = self.a
        self.stamp('end')
        a.I('s_mov_b64 exec, -1')
        a.I('s_lshl_b32 s%d, s2, %d' % (self.s, getattr(self, 'shift', 10))); a.I('s_add_u32 s%d, s%d, %d' % (self.s, self.s, PROF_OFF + self.k * (1 << 20)))
        a.I('v_lshlrev_b32 v2, 2, v0')
        a.I('buffer_store_dword v%d, v2, s[%d:%d], s%d offen' % (self.v, sWS, sWS + 3, self.s))
        print('PROF', self.k, self.names)
        open('prof_names_%d.txt' % self.k, 'w').write(' '.join(self.names))
```

```python
from gen_common import *
from types import SimpleNamespace as NS

CNT = KVACC + (128 << 10)
SPIN_MAX = 1 << 22

def MF(d, A, B, C): return 'v_mfma_f32_32x32x16_bf16 %s, %s, %s, %s' % (d, A, B, C)

class Side:
    def __init__(self, a): self.a = a; self.q = []
    def add(self, ops): self.q += list(ops)
    def emit(self, n):
        for _ in range(n):
            if not self.q: return
            o = self.q.pop(0)
            if callable(o): o()
            else: self.a.I(o)
    def drain(self): self.emit(1 << 30)

class Prefetch:
    def __init__(self, g):
        self.g = g; self.units = {}; self.pool(13); self.uid = 0
        self.inflight = []; self.cs_pending = []; self.cs_n = 0; self.queue = []
    def pool(self, n):
        self.free = {k: None for k in range(n)}
    def add(self, key, u): self.units[key] = u; self.queue.append(key)
    def _alloc(self, n):
        for k in sorted(self.free):
            if all((k + i) in self.free for i in range(n)): return k
        return None
    def issue(self, n=1):
        a = self.g.a
        for _ in range(n):
            if not self.queue: return False
            u = self.units[self.queue[0]]
            k = self._alloc(u['n'])
            if k is None: return False
            tags = [self.free[k + i] for i in range(u['n']) if self.free[k + i] is not None]
            if tags: a.wait(lg=tags)
            for i in range(u['n']): del self.free[k + i]
            u['slot'] = k; u['id'] = self.uid; self.uid += 1
            u['dma'](u['id'], k * self.g.SLOT)
            self.inflight.append(self.queue.pop(0))
        return True
    def order(self, keys):
        for k in reversed(keys): self.queue.remove(k); self.queue.insert(0, k)
    def consume(self, n=1, kind=None):
        a = self.g.a
        for _ in range(n):
            c = [k for k in self.inflight if kind is None or k[0] == kind]
            if not c: return
            key = c[0]; self.inflight.remove(key); u = self.units[key]
            a.wait(vm='pf%d' % u['id'])
            u['rd'](u['id'], u['slot'] * self.g.SLOT)
            for i in range(u['n']): self.free[u['slot'] + i] = 'pfr%d' % u['id']
            if key[0] == 'gu': self.cs_pending.append((key[1], 'pfr%d' % u['id']))
    def cs(self, n=1 << 20, keep=0):
        a = self.g.a
        if len(self.cs_pending) <= keep: return
        for i in range(4): a.I('v_mov_b32 v%d, s%d' % (4 + i, self.g.sONE))
        while len(self.cs_pending) > keep and n > 0:
            j, tag = self.cs_pending.pop(0); n -= 1
            a.wait(lg=tag)
            for c in range(2):
                a.I(MF(ar(224 + 16 * c, 16), ar(112 * c + 4 * j, 4), 'v[4:7]', '0' if self.cs_n == 0 else ar(224 + 16 * c, 16)))
            self.cs_n += 1
    def step(self, n=1):
        for _ in range(n): self.consume(); self.issue()
    def stream(self, n, depth=5, cs=False):
        for _ in range(n):
            while len(self.inflight) < depth and self.issue(): pass
            self.consume()
            if cs and len(self.cs_pending) >= 4: self.cs(keep=1)

def poll(g, lbl, addr_v, lanes_mask, target, srdreg, soff='0'):
    a = g.a; I = a.I
    I('s_mov_b32 s%d, 0' % g.sSPIN)
    a.label(lbl)
    I('buffer_load_dword v%d, v%d, s[%d:%d], %s offen sc1' % (g.vPoll, addr_v, srdreg, srdreg + 3, soff), counted=False)
    I('s_add_u32 s%d, s%d, 1' % (g.sSPIN, g.sSPIN))
    I('s_waitcnt vmcnt(0)')
    I('v_cmp_le_u32 vcc, %d, v%d' % (target, g.vPoll))
    I('s_cmp_ge_u32 s%d, %d' % (g.sSPIN, SPIN_MAX))
    a.branch('s_cbranch_scc1 %s_ok' % lbl)
    I('s_and_b32 s%d, vcc_lo, %d' % (g.sT[7], lanes_mask))
    I('s_cmp_eq_u32 s%d, %d' % (g.sT[7], lanes_mask))
    a.branch('s_cbranch_scc1 %s_ok' % lbl)
    I('s_sleep 1')
    a.branch('s_branch %s' % lbl)
    a.label(lbl + '_ok')
    a.vm = ['drained']

def signal(g, kind, idx_s, wait_tag):
    a = g.a; I = a.I
    a.wait(vm=wait_tag)
    I('s_barrier')
    I('s_lshl_b32 s%d, s%d, 8' % (g.sT[6], idx_s)); I('s_add_u32 s%d, s%d, %d' % (g.sT[6], g.sT[6], CNT + 4096 * kind))
    I('s_cmp_eq_u32 s%d, 0' % g.sW); I('s_cselect_b32 s%d, %s, 0' % (g.sKZ + 2, hex(WS_BYTES)))
    I('v_mov_b32 v2, 1'); I('v_mov_b32 v3, 0')
    I('s_mov_b64 exec, 1')
    I('buffer_atomic_add v2, v3, s[%d:%d], s%d offen sc1' % (g.sKZ, g.sKZ + 3, g.sT[6]), tag='sig')
    I('s_mov_b64 exec, -1')

def trfrag(a, dst, addr, off, tag, f='v', d2=256):
    a.I('ds_read_b64_tr_b16 %s, v%d offset:%d' % (vr(dst, 2, f), addr, off), tag=tag)
    a.I('ds_read_b64_tr_b16 %s, v%d offset:%d' % (vr(dst + 2, 2, f), addr, off + d2), tag=tag)

def setup(a, cfg):
    g = NS(a=a, cfg=cfg); I = a.I
    g.pf = Prof(a, 0, vreg=255, s=100)
    (g.sX, g.sWq, g.sWO, g.sG, g.sU, g.sD, g.sOUT, g.sDBG, g.sWS, g.sKZ, g.sDZ) = 24, 28, 32, 36, 40, 44, 48, 52, 56, 60, 64
    (g.sW, g.sRBA, g.sH, g.sRHO, g.sRB64, g.sCS, g.sRB128, g.sFS, g.sR4) = 68, 69, 70, 71, 72, 73, 74, 75, 76
    g.sT = [77, 78, 79, 80, 81, 82, 83, 84]
    g.sONE, g.sEPS, g.sL2E = 85, 86, 87
    g.sMK, g.sMV28, g.sHI = 88, 90, 92
    g.sSPIN, g.sPR = 94, 95
    g.sQ = [96, 97, 98, 99]
    g.sPT = 3
    g.S4 = list(range(4, 24))
    g.WQL, g.WKL, g.WVL = 0, 51200, 79872
    g.STATL, g.CSL, g.CSQ2L = 28672, 29696, 31232
    g.XRL, g.KVRL, g.REDL, g.HL, g.STL = 108544, 32768, 0, 0, 114688
    g.S1L, g.S1S = 51200, 28160
    g.PRL, g.PRS, g.SLOT = 116736, 11776, 2112
    V = Alloc(232, 255)
    g.vHK = V.get(8, 4); g.vL16 = V.get()
    g.vTG, g.vTD, g.vTO, g.vDG, g.vD8 = [V.get() for _ in range(5)]
    g.vRW = [V.get() for _ in range(3)]; g.vRR = V.get()
    g.vPoll, g.vPA = V.get(), V.get()
    g.vXo = V.get(); g.vTO2, g.vTD2 = V.get(), V.get()
    g.sWOB = g.S4[19]; g.sPR1 = g.S4[18]
    sT = g.sT
    I('s_cmp_ge_u32 s2, 256'); a.branch('s_cbranch_scc1 kf_end')
    g.pf.stamp('start')
    load_args(a)
    I('s_getpc_b64 s[%d:%d]' % (g.sMK, g.sMK + 1))
    I('v_lshrrev_b32 v2, 6, v0'); I('v_and_b32 v1, 63, v0')
    if not cfg.get('notouch'):
        I('s_lshr_b32 s%d, s2, 3' % sT[1]); I('s_mul_i32 s%d, s%d, 12' % (sT[1], sT[1]))
        I('v_mul_u32_u24 v3, 3, v2'); I('v_add3_u32 v3, v3, v1, s%d' % sT[1]); I('v_lshlrev_b32 v3, 7, v3')
        I('s_mov_b64 exec, 7')
        I('global_load_dword v%d, v3, s[%d:%d]' % (g.vPoll, g.sMK, g.sMK + 1), tag='code')
        I('s_mov_b64 exec, -1')
    I('v_readfirstlane_b32 s%d, v2' % g.sW)
    I('s_and_b32 s%d, s2, 7' % sT[0]); I('s_lshr_b32 s%d, s2, 3' % sT[1])
    I('s_lshr_b32 s%d, s%d, 1' % (sT[2], sT[0])); I('s_lshl_b32 s%d, s%d, 2' % (sT[2], sT[2]))
    I('s_and_b32 s%d, s%d, 3' % (sT[3], sT[1])); I('s_add_u32 s%d, s%d, s%d' % (g.sRBA, sT[2], sT[3]))
    I('s_and_b32 s%d, s%d, 1' % (sT[4], sT[0])); I('s_lshr_b32 s%d, s%d, 2' % (sT[5], sT[1]))
    I('s_lshl_b32 s%d, s%d, 3' % (g.sH, sT[4])); I('s_add_u32 s%d, s%d, s%d' % (g.sH, g.sH, sT[5]))
    I('s_lshl_b32 s%d, s%d, 1' % (g.sRHO, sT[3])); I('s_add_u32 s%d, s%d, s%d' % (g.sRHO, g.sRHO, sT[5]))
    I('s_sub_u32 s%d, s%d, 7' % (sT[6], g.sRHO)); I('s_cmp_ge_u32 s%d, 7' % g.sRHO); I('s_cselect_b32 s%d, s%d, s%d' % (g.sRHO, sT[6], g.sRHO))
    if cfg.get('norot'): I('s_mov_b32 s%d, 0' % g.sRHO)
    I('s_mul_i32 s%d, s%d, 37' % (g.sR4, sT[1])); I('s_lshr_b32 s%d, s%d, 8' % (g.sR4, g.sR4))
    I('s_mul_i32 s%d, s%d, 7' % (sT[6], g.sR4)); I('s_sub_u32 s%d, s%d, s%d' % (g.sCS, sT[1], sT[6]))
    I('s_and_b32 s%d, s%d, 3' % (g.sR4, g.sR4))
    I('s_lshl_b32 s%d, s%d, 2' % (g.sRB64, sT[0])); I('s_add_u32 s%d, s%d, s%d' % (g.sRB64, g.sRB64, g.sR4))
    I('s_add_u32 s%d, s%d, s%d' % (g.sRB128, sT[2], g.sR4))
    I('s_mul_i32 s%d, s%d, 7' % (g.sFS, sT[4])); I('s_add_u32 s%d, s%d, s%d' % (g.sFS, g.sFS, g.sCS))
    if cfg.get('norot'): I('s_mov_b32 s%d, 0' % g.sR4)
    I('s_mul_i32 s%d, s%d, %d' % (g.sPR, g.sW, g.PRS)); I('s_add_u32 s%d, s%d, %d' % (g.sPR, g.sPR, g.PRL))
    return g

def make_streams(g):
    a = g.a; I = a.I; P = Prefetch(g); g.P = P
    g.WO = 8
    def wo_unit(i):
        def dma(k, base):
            I('s_add_u32 s%d, s%d, %d' % (g.sPT, g.sR4, i)); I('s_and_b32 s%d, s%d, 3' % (g.sPT, g.sPT))
            I('s_mul_i32 s%d, s%d, %d' % (g.sPT, g.sPT, 28 * 896)); I('s_add_u32 s%d, s%d, s%d' % (g.sPT, g.sPT, g.sWOB))
            for j in range(4):
                I('s_add_u32 m0, s%d, %d' % (g.sPR1, base + 1024 * j))
                I('buffer_load_dwordx4 v%d, s[%d:%d], s%d offen lds' % (g.vD8, g.sWO, g.sWO + 3, g.sPT), tag='pf%d' % k)
                if j < 3: I('s_add_u32 s%d, s%d, %d' % (g.sPT, g.sPT, 8 * 896))
        def rd(k, base):
            for c in range(2):
                for kk in range(2):
                    trfrag(a, g.WO + 16 * i + 8 * c + 4 * kk, g.vTO if c == 0 else g.vTO2, base + kk * 8 * 128, 'pfr%d' % k, d2=4 * 128)
        return dict(n=2, dma=dma, rd=rd)
    def gu_unit(j):
        def dma(k, base):
            I('s_add_u32 s%d, s%d, %d' % (g.sPT, g.sQ[j // 7], (j % 7) * 16 * 3584))
            I('s_add_u32 m0, s%d, %d' % (g.sPR1, base))
            I('buffer_load_dwordx4 v%d, s[%d:%d], s%d offen lds' % (g.vDG, g.sG, g.sG + 3, g.sPT), tag='pf%d' % k)
            I('s_add_u32 m0, s%d, %d' % (g.sPR1, base + 1024 + 32))
            I('buffer_load_dwordx4 v%d, s[%d:%d], s%d offen lds' % (g.vDG, g.sU, g.sU + 3, g.sPT), tag='pf%d' % k)
        def rd(k, base):
            for c in range(2): trfrag(a, 112 * c + 4 * j, g.vTG, base + 32 * c, 'pfr%d' % k, f='a')
        return dict(n=1, dma=dma, rd=rd)
    def wd_unit(j, regs):
        def dma(k, base):
            I('s_add_u32 s%d, s%d, %d' % (g.sPT, g.sQ[j // 7], (j % 7) * 16 * 896))
            I('s_add_u32 m0, s%d, %d' % (g.sPR, base))
            I('buffer_load_dwordx4 v%d, s[%d:%d], s%d offen lds' % (g.vD8, g.sD, g.sD + 3, g.sPT), tag='pf%d' % k)
            I('s_add_u32 s%d, s%d, %d' % (g.sPT, g.sPT, 8 * 896))
            I('s_add_u32 m0, s%d, %d' % (g.sPR, base + 1024))
            I('buffer_load_dwordx4 v%d, s[%d:%d], s%d offen lds' % (g.vD8, g.sD, g.sD + 3, g.sPT), tag='pf%d' % k)
        def rd(k, base):
            for c in range(2):
                f, r = regs[c]
                trfrag(a, r, g.vTD if c == 0 else g.vTD2, base, 'pfr%d' % k, f=f, d2=1024)
        return dict(n=1, dma=dma, rd=rd)
    g.wo_unit, g.gu_unit, g.wd_unit = wo_unit, gu_unit, wd_unit

def phase_A(g):
    a = g.a; I = a.I; sT = g.sT; pf = g.pf; cfg = g.cfg; P = g.P
    sW, sH, sRBA = g.sW, g.sH, g.sRBA
    XF, ACCK, ACCV, ACCQ, WB = 8, 120, 136, 152, 168
    VA = Alloc(200, 232)
    vONE = VA.get(4, 4)
    vX = [VA.get() for _ in range(4)]; vW = VA.get()
    vXR = [VA.get() for _ in range(4)]
    vT, vTc, vTo = VA.get(), VA.get(), VA.get()
    vS1a, vS1b, vS2a, vS2b = [VA.get() for _ in range(4)]
    vR, vMR, vN4 = VA.get(), VA.get(), VA.get()
    vCSK, vCSV, vOM, vCA, vSA = [VA.get() for _ in range(5)]
    vRed = vX
    vE = vXR
    aC0, aC1 = 224, 240
    vL16 = g.vL16
    I('v_lshrrev_b32 v2, 3, v1'); I('v_lshrrev_b32 v3, 4, v1'); I('v_and_b32 v4, 7, v1')
    I('v_xor_b32 v5, v4, v3'); I('v_lshlrev_b32 v5, 4, v5')
    I('v_mul_u32_u24 v6, 896, v2'); I('v_add_u32 v%d, v6, v5' % vX[0])
    I('v_lshl_add_u32 v%d, v4, 4, v6' % g.vD8)
    I('v_xor_b32 v%d, 64, v%d' % (vX[1], vX[0])); I('v_add_u32 v%d, 7168, v%d' % (vX[1], vX[1]))
    I('v_add_u32 v%d, 14336, v%d' % (vX[2], vX[0])); I('v_add_u32 v%d, 14336, v%d' % (vX[3], vX[1]))
    I('v_lshrrev_b32 v5, 2, v1'); I('v_and_b32 v6, 3, v1')
    I('v_mul_u32_u24 v7, 2688, v5'); I('v_lshl_add_u32 v%d, v6, 4, v7' % vW)
    I('v_mul_u32_u24 v7, 3584, v5'); I('v_lshl_add_u32 v%d, v6, 4, v7' % g.vDG)
    I('v_lshlrev_b32 v%d, 4, v1' % vL16)
    for i in range(4): I('v_mov_b32 v%d, 0' % (vONE + i))
    I('s_waitcnt lgkmcnt(0)')
    pf.stamp('args')
    srd(a, g.sX, 4, 2048 * 896); srd(a, g.sWq, 6, 448 * 2688); srd(a, g.sWS, 22, WS_BYTES); srd(a, g.sKZ, 22, WS_BYTES)
    srd(a, g.sDZ, 20, 256)
    I('s_cmp_eq_u32 s%d, 0' % sRBA); I('s_cselect_b32 s%d, %s, 0' % (g.sKZ + 2, hex(WS_BYTES))); I('s_cselect_b32 s%d, 256, 0' % (g.sDZ + 2))
    srd(a, g.sWO, 8, 448 * 896); srd(a, g.sG, 12, 448 * 3584); srd(a, g.sU, 14, 448 * 3584); srd(a, g.sD, 16, 1792 * 896)
    srd(a, g.sOUT, 18, 2048 * 896); srd(a, g.sDBG, 20, 256)
    sXB, sWB, sXRB, sCL, sCC, sW10 = g.S4[0:6]
    I('s_lshl_b32 s%d, s%d, 10' % (sW10, sW))
    I('s_lshl_b32 s%d, s%d, 12' % (sT[3], sH)); I('s_add_u32 s%d, s%d, s%d' % (sT[3], sT[3], sW10)); I('s_add_u32 s%d, s%d, %d' % (sT[3], sT[3], KVACC))
    I('buffer_store_dwordx4 v[%d:%d], v%d, s[%d:%d], s%d offen sc0 sc1' % (vONE, vONE + 3, vL16, g.sKZ, g.sKZ + 3, sT[3]), tag='zero')
    I('s_lshl_b32 s%d, s%d, 8' % (sT[3], sH)); I('s_lshl_b32 s%d, s%d, 12' % (sT[4], sW))
    I('s_add_u32 s%d, s%d, s%d' % (sT[3], sT[3], sT[4])); I('s_add_u32 s%d, s%d, %d' % (sT[3], sT[3], CNT))
    I('s_mov_b64 exec, 0xffff')
    I('buffer_store_dwordx4 v[%d:%d], v%d, s[%d:%d], s%d offen sc0 sc1' % (vONE, vONE + 3, vL16, g.sKZ, g.sKZ + 3, sT[3]), tag='zero')
    I('s_mov_b64 exec, -1')
    I('s_lshl_b32 s%d, s%d, 2' % (sT[0], sRBA)); I('s_add_u32 s%d, s%d, s%d' % (sT[0], sT[0], sW))
    I('s_mul_i32 s%d, s%d, %d' % (sXB, sT[0], 32 * 896))
    I('s_mul_i32 s%d, s%d, 56' % (sWB, sH)); I('s_mul_i32 s%d, s%d, %d' % (sT[1], sW, 16 * 2688)); I('s_add_u32 s%d, s%d, s%d' % (sWB, sWB, sT[1]))
    I('s_mul_i32 s%d, s%d, 12288' % (sXRB, sW)); I('s_add_u32 s%d, s%d, %d' % (sXRB, sXRB, g.XRL))
    I('s_mov_b32 s%d, s%d' % (sCL, g.sRHO)); I('s_mov_b32 s%d, s%d' % (sCC, g.sRHO))
    def adv(s):
        I('s_add_u32 s%d, s%d, 1' % (s, s)); I('s_cmp_eq_u32 s%d, 7' % s); I('s_cselect_b32 s%d, 0, s%d' % (s, s))
    def a_loads(j):
        I('s_lshl_b32 s%d, s%d, 7' % (sT[0], sCL)); I('s_add_u32 s%d, s%d, s%d' % (sT[0], sT[0], sXB))
        I('s_mul_i32 s%d, s%d, %d' % (sT[1], sCL, 64 * 2688)); I('s_add_u32 s%d, s%d, s%d' % (sT[1], sT[1], sWB))
        I('s_lshl_b32 s%d, s%d, 12' % (sT[2], sCL)); I('s_add_u32 s%d, s%d, s%d' % (sT[2], sT[2], sW10))
        for m in range(2):
            I('s_add_u32 s%d, s%d, 896' % (sT[1], sT[1]))
            I('s_add_u32 m0, s%d, %d' % (sT[2], (g.WKL, g.WVL)[m]))
            I('buffer_load_dwordx4 v%d, s[%d:%d], s%d offen lds' % (vW, g.sWq, g.sWq + 3, sT[1]), tag='c%d' % j)
        for q in range(4):
            I('s_add_u32 m0, s%d, %d' % (sXRB, (j % 3) * 4096 + q * 1024))
            I('buffer_load_dwordx4 v%d, s[%d:%d], s%d offen lds' % (vX[q], g.sX, g.sX + 3, sT[0]), tag='c%d' % j)
        adv(sCL)
    def q_loads(lo, hi):
        for _ in range(lo, hi):
            I('s_mul_i32 s%d, s%d, %d' % (sT[1], sCL, 64 * 2688)); I('s_add_u32 s%d, s%d, s%d' % (sT[1], sT[1], sWB))
            I('s_lshl_b32 s%d, s%d, 12' % (sT[2], sCL)); I('s_add_u32 s%d, s%d, s%d' % (sT[2], sT[2], sW10))
            I('s_add_u32 m0, s%d, %d' % (sT[2], g.WQL))
            I('buffer_load_dwordx4 v%d, s[%d:%d], s%d offen lds' % (vW, g.sWq, g.sWq + 3, sT[1]), tag='wq')
            adv(sCL)
    for j in range(2): a_loads(j)
    I('s_mul_i32 s%d, s%d, %d' % (g.sPR1, sW, g.S1S)); I('s_add_u32 s%d, s%d, %d' % (g.sPR1, g.sPR1, g.S1L))
    I('v_lshrrev_b32 v2, 5, v1'); I('v_bfe_u32 v3, v1, 4, 1'); I('v_bfe_u32 v4, v1, 2, 2'); I('v_and_b32 v5, 3, v1')
    I('v_lshlrev_b32 v6, 9, v2'); I('v_lshl_add_u32 v6, v4, 6, v6'); I('v_lshl_add_u32 v6, v5, 3, v6')
    I('v_lshl_add_u32 v%d, v3, 5, v6' % vT); I('v_add_u32 v%d, %d, v%d' % (vT, g.WKL, vT))
    I('v_mul_u32_u24 v7, 1056, v3'); I('v_add3_u32 v%d, v6, v7, s%d' % (g.vTG, g.sPR1))
    I('s_and_b32 s%d, s%d, 1' % (sT[3], sW)); I('s_lshl_b32 s%d, s%d, 6' % (sT[3], sT[3]))
    I('v_lshlrev_b32 v6, 5, v3'); I('v_lshl_add_u32 v6, v5, 3, v6'); I('v_lshl_add_u32 v6, v4, 7, v6'); I('v_add_u32 v6, s%d, v6' % sT[3])
    I('v_lshl_add_u32 v7, v2, 9, v6'); I('v_add_u32 v%d, s%d, v7' % (g.vTD, g.sPR)); I('v_xor_b32 v%d, 64, v%d' % (g.vTD2, g.vTD))
    I('v_mul_u32_u24 v7, %d, v2' % (14 * 128)); I('v_add3_u32 v%d, v7, v6, s%d' % (g.vTO, g.sPR1)); I('v_xor_b32 v%d, 64, v%d' % (g.vTO2, g.vTO))
    I('v_and_b32 v6, 31, v1'); I('v_lshlrev_b32 v%d, 2, v6' % vN4)
    I('v_lshrrev_b32 v7, 3, v6'); I('v_lshlrev_b32 v7, 10, v7')
    I('v_and_b32 v3, 7, v6'); I('v_lshl_add_u32 v7, v3, 7, v7')
    I('v_bfe_u32 v3, v6, 1, 3'); I('v_xor_b32 v3, v3, v2'); I('v_lshl_add_u32 v7, v3, 4, v7')
    I('v_add_u32 v%d, s%d, v7' % (vXR[0], sXRB))
    for t in range(1, 4): I('v_xor_b32 v%d, %d, v%d' % (vXR[t], 32 * t, vXR[0]))
    I('v_mul_u32_u24 v7, 896, v6'); I('v_lshl_add_u32 v%d, v2, 4, v7' % g.vXo)
    I('v_cmp_gt_u32 s[%d:%d], 28, v6' % (g.sMK, g.sMK + 1)); I('v_cmp_eq_u32 s[%d:%d], 28, v6' % (g.sMV28, g.sMV28 + 1))
    I('v_cmp_eq_u32 s[%d:%d], 0, v2' % (g.sHI, g.sHI + 1))
    I('s_mov_b32 s%d, 0x3f803f80' % g.sONE); I('s_mov_b32 s%d, %s' % (g.sEPS, f32(1e-6))); I('s_mov_b32 s%d, %s' % (g.sL2E, f32(LOG2E)))
    for i in range(4): I('v_mov_b32 v%d, s%d' % (vONE + i, g.sONE))
    I('v_cndmask_b32 v%d, 0, v%d, s[%d:%d]' % (vOM, vONE, g.sMV28, g.sMV28 + 1))
    for r in (vS1a, vS1b, vS2a, vS2b): I('v_mov_b32 v%d, 0' % r)
    I('s_lshl_b32 s%d, s%d, 7' % (sT[3], sW)); I('s_add_u32 s%d, s%d, %d' % (sT[3], sT[3], g.CSL)); I('v_add_u32 v%d, s%d, v%d' % (vCA, sT[3], vN4))
    I('s_lshl_b32 s%d, s%d, 8' % (sT[3], sW)); I('s_add_u32 s%d, s%d, %d' % (sT[3], sT[3], g.STATL))
    I('v_lshlrev_b32 v3, 4, v2'); I('v_add_u32 v%d, s%d, v3' % (vSA, sT[3]))
    for t in range(1, 4):
        I('s_xor_b32 s%d, s%d, %d' % (sT[3], sW, t)); I('s_mul_i32 s%d, s%d, 12288' % (sT[3], sT[3])); I('s_add_u32 s%d, s%d, %d' % (sT[3], sT[3], g.REDL + (t - 1) * 4096))
        I('v_add_u32 v%d, s%d, v%d' % (g.vRW[t - 1], sT[3], vL16))
    I('s_mul_i32 s%d, s%d, 12288' % (sT[3], sW)); I('s_add_u32 s%d, s%d, %d' % (sT[3], sT[3], g.REDL)); I('v_add_u32 v%d, s%d, v%d' % (g.vRR, sT[3], vL16))
    I('s_lshl_b32 s%d, s%d, 8' % (sT[3], g.sFS)); I('s_lshl_b32 s%d, s%d, 6' % (sT[4], sW)); I('s_add_u32 s%d, s%d, s%d' % (sT[3], sT[3], sT[4]))
    for q in range(4):
        I('s_add_u32 s%d, s%d, %d' % (sT[4], g.sR4, q)); I('s_and_b32 s%d, s%d, 3' % (sT[4], sT[4]))
        I('s_mul_i32 s%d, s%d, %d' % (sT[4], sT[4], 112 * 3584)); I('s_add_u32 s%d, s%d, s%d' % (g.sQ[q], sT[4], sT[3]))
    I('s_mul_i32 s%d, s%d, %d' % (g.sWOB, sW, 112 * 896)); I('s_lshl_b32 s%d, s%d, 7' % (sT[3], g.sCS)); I('s_add_u32 s%d, s%d, s%d' % (g.sWOB, g.sWOB, sT[3]))
    pf.stamp('issued')
    for j in range(7):
        a.wait(vm='c%d' % j)
        if j == 0:
            I('v_mov_b32 v3, 1'); I('s_lshl_b32 s%d, s%d, 2' % (sT[2], sH)); I('v_mov_b32 v4, s%d' % sT[2])
            I('s_mov_b64 exec, 1')
            I('buffer_atomic_add v3, v4, s[%d:%d], 0 offen sc1' % (g.sDZ, g.sDZ + 3), tag='flag')
            I('s_mov_b64 exec, -1')
        for t in range(4): I('ds_read_b128 %s, v%d offset:%d' % (vr(XF + 16 * j + 4 * t, 4), vXR[t], 4096 * (j % 3)), tag='xf%d' % j)
        I('s_lshl_b32 s%d, s%d, 12' % (sT[3], sCC)); I('v_add_u32 v%d, s%d, v%d' % (vTc, sT[3], vT)); I('v_add_u32 v%d, s%d, v%d' % (vTo, sW10, vTc))
        adv(sCC)
        trfrag(a, WB + 24, vTo, 0, 'o%d' % j); trfrag(a, WB + 28, vTo, 28672, 'o%d' % j)
        I('s_barrier')
        if j in (0, 3, 6): pf.stamp('c%d' % j)
        def rd(t):
            st = t % 3
            trfrag(a, WB + 8 * st, vTc, 1024 * t, 'w%d_%d' % (j, t)); trfrag(a, WB + 8 * st + 4, vTc, 28672 + 1024 * t, 'w%d_%d' % (j, t))
        rd(0); rd(1)
        if j + 2 < 7: a_loads(j + 2)
        elif j == 5: q_loads(0, 4)
        elif j == 6: q_loads(4, 7)
        a.wait(lg='o%d' % j)
        I(MF(ar(aC0, 16), vr(vONE, 4), vr(WB + 24, 4), '0' if j == 0 else ar(aC0, 16)))
        I(MF(ar(aC1, 16), vr(vONE, 4), vr(WB + 28, 4), '0' if j == 0 else ar(aC1, 16)))
        rd(2)
        for t in range(4):
            x = XF + 16 * j + 4 * t; st = t % 3
            a.wait(lg='w%d_%d' % (j, t))
            first = (j == 0 and t == 0)
            I(MF(vr(ACCK, 16), vr(x, 4), vr(WB + 8 * st, 4), '0' if first else vr(ACCK, 16)))
            for r in range(2):
                I('v_dot2c_f32_bf16 v%d, s%d, v%d' % (vS1b if r & 1 else vS1a, g.sONE, x + r)); I('v_dot2c_f32_bf16 v%d, v%d, v%d' % (vS2b if r & 1 else vS2a, x + r, x + r))
            I(MF(vr(ACCV, 16), vr(x, 4), vr(WB + 8 * st + 4, 4), '0' if first else vr(ACCV, 16)))
            if t == 0: rd(3)
            for r in range(2, 4):
                I('v_dot2c_f32_bf16 v%d, s%d, v%d' % (vS1b if r & 1 else vS1a, g.sONE, x + r)); I('v_dot2c_f32_bf16 v%d, v%d, v%d' % (vS2b if r & 1 else vS2a, x + r, x + r))
    pf.stamp('loop')
    I('ds_write_b32 v%d, a%d' % (vCA, aC0)); I('ds_write_b32 v%d, a%d offset:512' % (vCA, aC1))
    I('v_add_f32 v%d, v%d, v%d' % (vS1a, vS1a, vS1b)); I('v_add_f32 v%d, v%d, v%d' % (vS2a, vS2a, vS2b))
    I('v_mov_b32 v%d, v%d' % (vS1b, vS1a)); I('v_mov_b32 v%d, v%d' % (vS2b, vS2a))
    I('v_permlane32_swap_b32 v%d, v%d' % (vS1a, vS1b)); I('v_permlane32_swap_b32 v%d, v%d' % (vS2a, vS2b))
    I('v_add_f32 v%d, v%d, v%d' % (vS1a, vS1a, vS1b)); I('v_add_f32 v%d, v%d, v%d' % (vS2a, vS2a, vS2b))
    ln_finish(a, 'v%d' % vS1a, 'v%d' % vS2a, 'v2', 'v3', 'v%d' % vR, 'v4')
    I('v_mul_f32 v%d, v4, v%d' % (vMR, vR))
    I('s_lshl_b32 s%d, s%d, 8' % (sT[3], sW)); I('s_add_u32 s%d, s%d, %d' % (sT[3], sT[3], g.STATL)); I('v_add_u32 v2, s%d, v%d' % (sT[3], vN4))
    I('ds_write_b32 v2, v%d' % vR); I('ds_write_b32 v2, v%d offset:128' % vMR)
    I('v_lshlrev_b32 v%d, 2, v1' % g.vPA)
    I('buffer_load_dword v%d, v%d, s[%d:%d], 0 offen sc1' % (g.vPoll, g.vPA, g.sDBG, g.sDBG + 3), tag='poll')
    a.wait(lg=0); I('s_barrier')
    pf.stamp('X1')
    I('v_add_u32 v2, %d, v%d' % (g.CSL, vN4))
    for i in range(8): I('ds_read_b32 v%d, v2 offset:%d' % (WB + i, 128 * i), tag='cs')
    def st_read(qd):
        b = WB + 16 + 8 * (qd % 2)
        I('ds_read_b128 %s, v%d offset:%d' % (vr(b, 4), vSA, 32 * qd), tag='st%d' % qd)
        I('ds_read_b128 %s, v%d offset:%d' % (vr(b + 4, 4), vSA, 128 + 32 * qd), tag='st%d' % qd)
    st_read(0); st_read(1)
    a.wait(lg='cs')
    I('v_add_f32 v%d, v%d, v%d' % (WB, WB, WB + 1)); I('v_add_f32 v%d, v%d, v%d' % (WB + 2, WB + 2, WB + 3)); I('v_add_f32 v%d, v%d, v%d' % (vCSK, WB, WB + 2))
    I('v_add_f32 v%d, v%d, v%d' % (WB + 4, WB + 4, WB + 5)); I('v_add_f32 v%d, v%d, v%d' % (WB + 6, WB + 6, WB + 7)); I('v_add_f32 v%d, v%d, v%d' % (vCSV, WB + 4, WB + 6))
    def epi_kv(qd):
        b = WB + 16 + 8 * (qd % 2)
        ops = [lambda: a.wait(lg='st%d' % qd)]
        for r in range(4):
            k, v, R, MR, t = ACCK + 4 * qd + r, ACCV + 4 * qd + r, b + r, b + 4 + r, vE[r]
            ops += ['v_fma_f32 v%d, v%d, v%d, -s%d' % (t, vCSK, MR, g.sEPS), 'v_fma_f32 v%d, v%d, v%d, -v%d' % (k, k, R, t),
                    'v_mul_f32 v%d, v%d, v%d' % (t, vCSV, MR), 'v_fma_f32 v%d, v%d, v%d, -v%d' % (v, v, R, t),
                    'v_mul_f32 v%d, s%d, v%d' % (t, g.sL2E, k), 'v_min_f32 v%d, 0, v%d' % (t, t), 'v_exp_f32 v%d, v%d' % (t, t),
                    'v_max_f32 v%d, s%d, v%d' % (k, g.sEPS, k)]
        if qd < 2: ops.append(lambda: st_read(qd + 2))
        for r in range(4): ops.append('v_add_f32 v%d, v%d, v%d' % (ACCK + 4 * qd + r, ACCK + 4 * qd + r, vE[r]))
        for p in range(2):
            ops += ['v_cvt_pk_bf16_f32 v%d, v%d, v%d' % (ACCK + 2 * qd + p, ACCK + 4 * qd + 2 * p, ACCK + 4 * qd + 2 * p + 1),
                    'v_cvt_pk_bf16_f32 v%d, v%d, v%d' % (ACCV + 2 * qd + p, ACCV + 4 * qd + 2 * p, ACCV + 4 * qd + 2 * p + 1)]
        for p in range(2):
            ops += ['v_cndmask_b32 v%d, 0, v%d, s[%d:%d]' % (ACCK + 2 * qd + p, ACCK + 2 * qd + p, g.sMK, g.sMK + 1),
                    'v_cndmask_b32 v%d, v%d, v%d, s[%d:%d]' % (ACCV + 2 * qd + p, vOM, ACCV + 2 * qd + p, g.sMK, g.sMK + 1)]
        return ops
    S = Side(a)
    S.add(epi_kv(0)); S.drain()
    a.wait(vm='wq'); I('s_barrier')
    pf.stamp('X2')
    P.issue(4)
    for qd in range(1, 4): S.add(epi_kv(qd))
    I('s_mov_b32 s%d, s%d' % (sCC, g.sRHO))
    QB = WB
    seq = []
    for j in range(7):
        for t in range(4): seq.append((j, t))
        seq.append((j, 'o'))
    vTq = [vTc, vTo, vS1a, vS1b]
    def q_rd(n):
        j, t = seq[n]
        if t == 0:
            I('s_lshl_b32 s%d, s%d, 12' % (sT[3], sCC)); I('s_sub_u32 s%d, s%d, %d' % (sT[3], sT[3], g.WKL - g.WQL))
            I('v_add_u32 v%d, s%d, v%d' % (vTq[2 * (j % 2)], sT[3], vT)); I('v_add_u32 v%d, s%d, v%d' % (vTq[2 * (j % 2) + 1], sW10, vTq[2 * (j % 2)]))
            adv(sCC)
        if t == 'o': trfrag(a, QB + 4 * (n % 4), vTq[2 * (j % 2) + 1], 0, 'q%d' % n)
        else: trfrag(a, QB + 4 * (n % 4), vTq[2 * (j % 2)], 1024 * t, 'q%d' % n)
    for n in range(3): q_rd(n)
    kv_done = False
    def kv_tail():
        I(MF(ar(aC1, 16), vr(ACCK, 4), vr(ACCV, 4), '0')); I(MF(ar(aC1, 16), vr(ACCK + 4, 4), vr(ACCV + 4, 4), ar(aC1, 16)))
    for n in range(len(seq)):
        j, t = seq[n]
        if n + 3 < len(seq): q_rd(n + 3)
        a.wait(lg='q%d' % n)
        if t == 'o': I(MF(ar(aC0, 16), vr(vONE, 4), vr(QB + 4 * (n % 4), 4), '0' if j == 0 else ar(aC0, 16)))
        else: I(MF(vr(ACCQ, 16), vr(QB + 4 * (n % 4), 4), vr(XF + 16 * j + 4 * t, 4), '0' if n == 0 else vr(ACCQ, 16)))
        S.emit(6)
        if not S.q and not kv_done:
            kv_done = True; kv_tail(); nkv = n
            I('s_mul_i32 s%d, s%d, 4608' % (sT[2], sW)); I('s_add_u32 s%d, s%d, %d' % (sT[2], sT[2], g.KVRL))
            S.add(['v_and_b32 v3, 31, v1', 'v_mul_u32_u24 v3, 144, v3', 'v_lshrrev_b32 v4, 5, v1', 'v_lshl_add_u32 v3, v4, 4, v3', 'v_add_u32 v3, s%d, v3' % sT[2],
                   'v_bfe_u32 v5, v1, 2, 2', 'v_lshl_add_u32 v4, v4, 2, v5',
                   'v_bfe_u32 v5, v1, 4, 1', 'v_mul_u32_u24 v5, 14, v5', 'v_add_u32 v5, v5, v4',
                   'v_and_b32 v6, 3, v1', 'v_lshlrev_b32 v6, 2, v6', 's_lshl_b32 s%d, s%d, 5' % (sT[4], sW), 's_add_u32 s%d, s%d, %d' % (sT[4], sT[4], g.KVRL),
                   'v_add_u32 v6, s%d, v6' % sT[4], 'v_mul_u32_u24 v7, 144, v5', 'v_add_u32 v%d, v7, v6' % vRed[0],
                   'v_add_u32 v%d, %d, v%d' % (vRed[1], 8 * 144, vRed[0]), 'v_mul_u32_u24 v7, 144, v4', 'v_add_u32 v7, v7, v6', 'v_add_u32 v7, %d, v7' % (22 * 144),
                   'v_cmp_lt_u32 vcc, 5, v4', 'v_cndmask_b32 v%d, v%d, v7, vcc' % (vRed[1], vRed[1]),
                   'v_add_u32 v%d, 16, v%d' % (vRed[2], vRed[0]), 'v_add_u32 v%d, 16, v%d' % (vRed[3], vRed[1])])
            S.add(['ds_write_b128 v3, %s offset:%d' % (ar(aC1 + 4 * q, 4), 32 * q) for q in range(4)])
    S.drain()
    pf.stamp('q28')
    I('ds_write_b32 v%d, a%d offset:1024' % (vCA, aC0))
    a.wait(lg=0); I('s_barrier')
    pf.stamp('X3')
    RB = WB + 16
    for j in range(4):
        for p in range(4): I('ds_read_b32 v%d, v%d offset:%d' % (RB + 4 * j + p, vRed[j], 4608 * p), tag='red%d' % j)
    a.wait(vm='poll')
    I('v_cmp_le_u32 vcc, 4, v%d' % g.vPoll); I('s_and_b32 s%d, vcc_lo, 0xffff' % sT[7]); I('s_cmp_eq_u32 s%d, 0xffff' % sT[7])
    saved = list(a.vm)
    a.branch('s_cbranch_scc1 kf_pz_ok')
    poll(g, 'kf_pz', g.vPA, 0xffff, 4, g.sDBG)
    a.vm = saved
    I('s_lshl_b32 s%d, s%d, 12' % (sT[3], sH)); I('s_add_u32 s%d, s%d, s%d' % (sT[3], sT[3], sW10)); I('s_add_u32 s%d, s%d, %d' % (sT[3], sT[3], KVACC))
    for j in range(4):
        a.wait(lg='red%d' % j)
        b = RB + 4 * j
        I('v_add_f32 v%d, v%d, v%d' % (b, b, b + 1)); I('v_add_f32 v%d, v%d, v%d' % (b + 2, b + 2, b + 3)); I('v_add_f32 v%d, v%d, v%d' % (b, b, b + 2))
        I('buffer_atomic_add_f32 v%d, v%d, s[%d:%d], s%d offen offset:%d' % (b, g.vPA, g.sWS, g.sWS + 3, sT[3], 256 * j), tag='ast')
    pf.stamp('atom')
    P.issue(4)
    I('v_add_u32 v2, %d, v%d' % (g.CSL + 1024, vN4))
    for i in range(4): I('ds_read_b32 v%d, v2 offset:%d' % (WB + i, 128 * i), tag='cq')
    I('s_lshl_b32 s%d, s%d, 7' % (sT[2], sW)); I('s_add_u32 s%d, s%d, %d' % (sT[2], sT[2], g.CSQ2L))
    I('v_add_u32 v3, s%d, v%d' % (sT[2], vN4)); I('v_lshrrev_b32 v4, 5, v1'); I('v_lshlrev_b32 v4, 4, v4'); I('v_add_u32 v4, s%d, v4' % sT[2])
    a.wait(lg='cq')
    I('v_add_f32 v%d, v%d, v%d' % (WB, WB, WB + 1)); I('v_add_f32 v%d, v%d, v%d' % (WB + 2, WB + 2, WB + 3)); I('v_add_f32 v%d, v%d, v%d' % (WB, WB, WB + 2))
    I('ds_write_b32 v3, v%d' % WB)
    for q in range(4): I('ds_read_b128 %s, v4 offset:%d' % (vr(WB + 4 * q, 4), 32 * q), tag='cq2')
    a.wait(lg='cq2')
    for v in range(16):
        q, c = ACCQ + v, WB + v
        I('v_fma_f32 v%d, v%d, v%d, -s%d' % (c, c, vMR, g.sEPS)); I('v_fma_f32 v%d, v%d, v%d, -v%d' % (q, q, vR, c))
        I('v_mul_f32 v%d, s%d, v%d' % (c, g.sL2E, q)); I('v_min_f32 v%d, 0, v%d' % (c, c)); I('v_exp_f32 v%d, v%d' % (c, c))
        I('v_max_f32 v%d, s%d, v%d' % (q, g.sEPS, q))
    for v in range(16): I('v_add_f32 v%d, v%d, v%d' % (ACCQ + v, ACCQ + v, WB + v))
    for p in range(8): I('v_cvt_pk_bf16_f32 v%d, v%d, v%d' % (ACCK + p, ACCQ + 2 * p, ACCQ + 2 * p + 1))
    for p in (6, 7): I('v_cndmask_b32 v%d, 0, v%d, s[%d:%d]' % (ACCK + p, ACCK + p, g.sHI, g.sHI + 1))
    I('s_lshl_b32 s%d, s%d, 2' % (sT[0], sRBA)); I('s_add_u32 s%d, s%d, s%d' % (sT[0], sT[0], sW))
    I('s_lshl_b32 s%d, s%d, 6' % (sT[1], sH)); I('s_add_u32 s%d, s%d, s%d' % (sT[0], sT[0], sT[1])); I('s_lshl_b32 s%d, s%d, 11' % (sT[0], sT[0]))
    if PQF: I('s_add_u32 s%d, s%d, %d' % (sT[0], sT[0], PQF))
    I('buffer_store_dwordx4 %s, v%d, s[%d:%d], s%d offen sc1' % (vr(ACCK, 4), vL16, g.sWS, g.sWS + 3, sT[0]), tag='ast')
    I('buffer_store_dwordx4 %s, v%d, s[%d:%d], s%d offen offset:1024 sc1' % (vr(ACCK + 4, 4), vL16, g.sWS, g.sWS + 3, sT[0]), tag='ast')
    pf.stamp('pqst')
    P.issue(2)
    P.consume(4)
    signal(g, 0, sH, 'ast')
    pf.stamp('sigA')
    I('s_cmp_ge_u32 s2, 224'); a.branch('s_cbranch_scc1 kf_warm')

def reduce_tiles(g, ACC, P0, f='v'):
    a = g.a; I = a.I
    for t in range(1, 4):
        for q in range(4): I('ds_write_b128 v%d, %s offset:%d' % (g.vRW[t - 1], vr(ACC + 16 * t + 4 * q, 4, f), 1024 * q))
    a.wait(lg=0); I('s_barrier')
    for q in range(4):
        for t in range(3): I('ds_read_b128 %s, v%d offset:%d' % (vr(P0 + 16 * t + 4 * q, 4), g.vRR, 4096 * t + 1024 * q), tag='rr%d' % q)
    for q in range(4):
        a.wait(lg='rr%d' % q)
        for r in range(4):
            v = 4 * q + r
            I('v_add_f32 v%d, v%d, v%d' % (P0 + v, P0 + v, ACC + v)); I('v_add_f32 v%d, v%d, v%d' % (P0 + 16 + v, P0 + 16 + v, P0 + 32 + v))
        for r in range(4):
            v = 4 * q + r
            I('v_add_f32 v%d, v%d, v%d' % (P0 + v, P0 + v, P0 + 16 + v))

def resid_add(g, P0, RES, OUT):
    a = g.a; I = a.I
    T = P0 + 16
    for p in range(8): I('v_cvt_pk_bf16_f32 v%d, v%d, v%d' % (T + p, P0 + 2 * p, P0 + 2 * p + 1))
    for pr in range(2):
        for k in range(2): I('v_permlane32_swap_b32 v%d, v%d' % (T + 4 * pr + k, T + 4 * pr + 2 + k))
    for p in range(8):
        I('v_lshlrev_b32 v%d, 16, v%d' % (P0 + 2 * p, T + p)); I('v_and_b32 v%d, 0xffff0000, v%d' % (P0 + 2 * p + 1, T + p))
        I('v_lshlrev_b32 v%d, 16, v%d' % (T + 16 + 2 * p, RES + p)); I('v_and_b32 v%d, 0xffff0000, v%d' % (T + 16 + 2 * p + 1, RES + p))
    for e in range(16): I('v_add_f32 v%d, v%d, v%d' % (P0 + e, P0 + e, T + 16 + e))
    for p in range(8): I('v_cvt_pk_bf16_f32 v%d, v%d, v%d' % (OUT + p, P0 + 2 * p, P0 + 2 * p + 1))

def phase_B(g):
    a = g.a; I = a.I; sT = g.sT; pf = g.pf; P = g.P; cfg = g.cfg
    sW = g.sW; vL16 = g.vL16
    WO, ACC, KV, NUM = 8, 72, 136, 168
    aPQ = 192
    sRT, sCT, sKVB, sPQB = g.S4[6:10]
    I('s_lshr_b32 s%d, s%d, 1' % (sT[0], sW)); I('s_and_b32 s%d, s%d, 1' % (sT[1], sW))
    I('s_lshl_b32 s%d, s%d, 1' % (sRT, g.sRB64)); I('s_add_u32 s%d, s%d, s%d' % (sRT, sRT, sT[0]))
    I('s_lshl_b32 s%d, s%d, 1' % (sCT, g.sCS)); I('s_add_u32 s%d, s%d, s%d' % (sCT, sCT, sT[1]))
    g.sRT, g.sCT = sRT, sCT
    I('s_mul_i32 s%d, s%d, %d' % (sT[2], sRT, 32 * 896)); I('s_lshl_b32 s%d, s%d, 6' % (sT[3], sCT)); I('s_add_u32 s%d, s%d, s%d' % (sT[2], sT[2], sT[3]))
    for i in range(2):
        I('buffer_load_dwordx4 %s, v%d, s[%d:%d], s%d offen offset:%d' % (vr(g.vHK + 4 * i, 4), g.vXo, g.sX, g.sX + 3, sT[2], 32 * i), tag='xr')
    P.stream(7 + cfg.get('pre_b', 4), depth=6, cs=True)
    while len(P.inflight) < 5 and P.issue(): pass
    P.cs()
    pf.stamp('pfB')
    I('s_lshl_b32 s%d, s%d, 10' % (sT[2], sW)); I('s_add_u32 s%d, s%d, %d' % (sT[2], sT[2], CNT))
    I('v_and_b32 v2, 3, v1'); I('v_lshlrev_b32 v2, 8, v2'); I('v_add_u32 v%d, s%d, v2' % (g.vPA, sT[2]))
    I('s_lshl_b32 s%d, s%d, 14' % (sKVB, sW)); I('s_add_u32 s%d, s%d, %d' % (sKVB, sKVB, KVACC))
    I('s_lshl_b32 s%d, s%d, 19' % (sPQB, sW)); I('s_lshl_b32 s%d, s%d, 12' % (sT[2], g.sRB64)); I('s_add_u32 s%d, s%d, s%d' % (sPQB, sPQB, sT[2]))
    if PQF: I('s_add_u32 s%d, s%d, %d' % (sPQB, sPQB, PQF))
    sRX = g.S4[10]; I('s_lshl_b32 s%d, s%d, 11' % (sRX, sT[0]))
    saved = list(a.vm)
    poll(g, 'kf_p1', g.vPA, 0xf, 16, g.sWS)
    a.vm = saved
    pf.stamp('sync1')
    def loads(i):
        I('s_add_u32 s%d, s%d, %d' % (sT[2], g.sR4, i)); I('s_and_b32 s%d, s%d, 3' % (sT[2], sT[2]))
        I('s_lshl_b32 s%d, s%d, 12' % (sT[3], sT[2])); I('s_add_u32 s%d, s%d, s%d' % (sT[3], sT[3], sKVB))
        I('s_lshl_b32 s%d, s%d, 17' % (sT[4], sT[2])); I('s_add_u32 s%d, s%d, s%d' % (sT[4], sT[4], sPQB))
        I('s_add_u32 s%d, s%d, s%d' % (sT[5], sT[4], sRX)); I('s_xor_b32 s%d, s%d, 2048' % (sT[4], sT[5]))
        for q in range(4):
            I('buffer_load_dwordx4 %s, v%d, s[%d:%d], s%d offen offset:%d sc1' % (vr(KV + 16 * (i % 2) + 4 * q, 4), vL16, g.sWS, g.sWS + 3, sT[3], 1024 * q), tag='kv%d' % i)
        for rt in range(2):
            for kk in range(2):
                I('buffer_load_dwordx4 %s, v%d, s[%d:%d], s%d offen offset:%d sc1' % (ar(aPQ + 16 * (i % 2) + 8 * rt + 4 * kk, 4), vL16, g.sWS, g.sWS + 3, sT[5] if rt == 0 else sT[4], 1024 * kk), tag='pq%d' % i)
    def o_ops(i, rt):
        n = NUM + 32 * (i % 2) + 16 * rt; t = 2 + rt
        ops = ['v_cvt_pk_bf16_f32 v%d, v%d, v%d' % (t, n + 14, n + 14), 'v_and_b32 v%d, 0xffff0000, v%d' % (t, t),
               'v_add_f32 v%d, s%d, v%d' % (t, g.sEPS, t), 'v_rcp_f32 v%d, v%d' % (t, t)]
        for v in range(14): ops.append('v_mul_f32 v%d, v%d, v%d' % (n + v, n + v, t))
        for p in range(7): ops.append('v_cvt_pk_bf16_f32 v%d, v%d, v%d' % (n + p, n + 2 * p, n + 2 * p + 1))
        ops.append('v_mov_b32 v%d, 0' % (n + 7))
        return ops
    def num(i):
        b = KV + 16 * (i % 2)
        a.wait(vm='kv%d' % i)
        for p in range(8): I('v_cvt_pk_bf16_f32 v%d, v%d, v%d' % (b + p, b + 2 * p, b + 2 * p + 1))
        a.wait(vm='pq%d' % i)
        for rt in range(2):
            for kk in range(2):
                n = NUM + 32 * (i % 2) + 16 * rt
                I(MF(vr(n, 16), vr(b + 4 * kk, 4), ar(aPQ + 16 * (i % 2) + 8 * rt + 4 * kk, 4), '0' if kk == 0 else vr(n, 16)))
        if i + 2 < 4: loads(i + 2)
    def gemm(i, rt, S, per):
        for kk in range(2):
            for c in range(2):
                acc = ACC + 16 * (2 * rt + c)
                I(MF(vr(acc, 16), vr(WO + 16 * i + 8 * c + 4 * kk, 4), vr(NUM + 32 * (i % 2) + 16 * rt + 4 * kk, 4), '0' if (i == 0 and kk == 0) else vr(acc, 16)))
                S.emit(per)
    loads(0); loads(1)
    S = Side(a)
    num(0)
    for i in range(4):
        S.add(o_ops(i, 0)); S.drain()
        S.add(o_ops(i, 1))
        gemm(i, 0, S, 7); S.drain()
        if i + 1 < 4: num(i + 1)
        gemm(i, 1, S, 0)
    pf.stamp('gemmB')
    P.consume(5); P.issue(5)
    reduce_tiles(g, ACC, NUM)
    a.wait(vm='xr')
    resid_add(g, NUM, g.vHK, g.vHK)
    I('s_mul_i32 s%d, s%d, 28' % (sT[0], sRT)); I('s_lshl_b32 s%d, s%d, 1' % (sT[1], sCT)); I('s_add_u32 s%d, s%d, s%d' % (sT[0], sT[0], sT[1]))
    I('s_lshl_b32 s%d, s%d, 10' % (sT[0], sT[0])); I('s_add_u32 s%d, s%d, %d' % (sT[0], sT[0], HF))
    for i in range(2):
        I('buffer_store_dwordx4 %s, v%d, s[%d:%d], s%d offen offset:%d sc1' % (vr(g.vHK + 4 * i, 4), vL16, g.sWS, g.sWS + 3, sT[0], 1024 * i), tag='bst')
    I('v_mov_b32 v2, 0'); I('v_mov_b32 v3, 0')
    for p in range(8):
        I('v_dot2c_f32_bf16 v2, s%d, v%d' % (g.sONE, g.vHK + p)); I('v_dot2c_f32_bf16 v3, v%d, v%d' % (g.vHK + p, g.vHK + p))
    I('v_mov_b32 v4, v2'); I('v_mov_b32 v5, v3')
    I('v_permlane32_swap_b32 v2, v4'); I('v_permlane32_swap_b32 v3, v5')
    I('v_add_f32 v2, v2, v4'); I('v_add_f32 v3, v3, v5')
    I('s_lshl_b32 s%d, s%d, 14' % (sT[0], sCT)); I('s_lshl_b32 s%d, s%d, 8' % (sT[1], sRT))
    I('s_add_u32 s%d, s%d, s%d' % (sT[0], sT[0], sT[1])); I('s_add_u32 s%d, s%d, %d' % (sT[0], sT[0], STATS))
    I('v_lshlrev_b32 v4, 3, v1')
    I('s_mov_b32 exec_hi, 0')
    I('buffer_store_dwordx2 v[2:3], v4, s[%d:%d], s%d offen sc1' % (g.sWS, g.sWS + 3, sT[0]), tag='bst')
    I('s_mov_b64 exec, -1')
    pf.stamp('hst')
    P.issue(4); P.consume(5); P.cs()
    I('s_lshr_b32 s%d, s%d, 1' % (sT[5], g.sRB64))
    signal(g, 1, sT[5], 'bst')
    pf.stamp('sigB')

def phase_C(g):
    a = g.a; I = a.I; sT = g.sT; pf = g.pf; P = g.P; cfg = g.cfg
    sW = g.sW; vL16 = g.vL16
    ACC, HB, CS, ST, TM = 8, 72, 96, 128, 144
    NHB = 6
    vHQ = [152, 153, 154, 155, 156, 157, 158, 159]
    ON = 160
    P.stream(len(P.queue) + len(P.inflight), depth=6, cs=True)
    P.cs()
    assert P.cs_n == 28
    a.wait(lg=0); I('s_barrier')
    P.pool(5)
    pf.stamp('pfC')
    I('s_mul_i32 s%d, s%d, %d' % (sT[3], sW, 448 * 896)); I('s_lshl_b32 s%d, s%d, 7' % (sT[4], g.sCS)); I('s_add_u32 s%d, s%d, s%d' % (sT[3], sT[3], sT[4]))
    for q in range(4):
        I('s_add_u32 s%d, s%d, %d' % (sT[4], g.sR4, q)); I('s_and_b32 s%d, s%d, 3' % (sT[4], sT[4]))
        I('s_mul_i32 s%d, s%d, 7168' % (sT[5], sT[4])); I('v_add_u32 v%d, s%d, v%d' % (vHQ[q], sT[5], vL16)); I('v_add_u32 v%d, 57344, v%d' % (vHQ[4 + q], vHQ[q]))
        I('s_mul_i32 s%d, s%d, %d' % (sT[4], sT[4], 112 * 896)); I('s_add_u32 s%d, s%d, s%d' % (g.sQ[q], sT[4], sT[3]))
    for j in range(13): P.add(('wd', j), g.wd_unit(j, g.wd_regs[j]))
    for v in range(32): I('v_accvgpr_read_b32 v%d, a%d' % (CS + v, 224 + v))
    sHG, sHL = g.S4[11], g.S4[12]
    sO = g.S4[13:17]
    I('s_mul_i32 s%d, s%d, %d' % (sHG, g.sRB128, 4 * 28672)); I('s_mul_i32 s%d, s%d, 7168' % (sHL, sW))
    I('s_add_u32 s%d, s%d, s%d' % (sHG, sHG, sHL)); I('s_add_u32 s%d, s%d, %d' % (sHG, sHG, HF))
    I('s_lshl_b32 s%d, s%d, 3' % (sT[2], g.sFS)); I('s_lshl_b32 s%d, s%d, 1' % (sT[3], sW)); I('s_add_u32 s%d, s%d, s%d' % (sT[2], sT[2], sT[3]))
    I('s_mul_i32 s%d, s%d, %d' % (sT[0], g.sRB128, 4 * 112)); I('s_add_u32 s%d, s%d, s%d' % (sT[0], sT[0], sT[2]))
    I('s_lshl_b32 s%d, s%d, 10' % (sT[0], sT[0])); I('s_add_u32 s%d, s%d, %d' % (sT[0], sT[0], ACTF))
    for rt in range(4): I('s_add_u32 s%d, s%d, %d' % (sO[rt], sT[0], rt * 112 * 1024))
    I('v_and_b32 v2, 31, v1'); I('v_lshrrev_b32 v3, 5, v1')
    I('v_mul_u32_u24 v4, %d, v3' % (7 * 16384)); I('v_lshl_add_u32 v4, v2, 3, v4')
    I('s_lshl_b32 s%d, s%d, 2' % (sT[0], g.sRB128)); I('s_add_u32 s%d, s%d, s%d' % (sT[0], sT[0], sW))
    I('s_lshl_b32 s%d, s%d, 8' % (sT[1], sT[0])); I('s_add_u32 s%d, s%d, %d' % (sT[1], sT[1], STATS))
    I('s_lshl_b32 s%d, s%d, 8' % (sT[2], g.sRB128)); I('s_add_u32 s%d, s%d, %d' % (sT[2], sT[2], CNT + 4096)); I('v_mov_b32 v%d, s%d' % (g.vPA, sT[2]))
    pf.stamp('csC')
    saved = list(a.vm)
    poll(g, 'kf_p2', g.vPA, 1, 14, g.sWS)
    a.vm = saved
    pf.stamp('sync2')
    vSP = HB
    for p in range(7):
        I('buffer_load_dwordx2 %s, v4, s[%d:%d], s%d offen sc1' % (vr(vSP + 2 * p, 2), g.sWS, g.sWS + 3, sT[1]), tag='sp')
        if p < 6: I('s_add_u32 s%d, s%d, 16384' % (sT[1], sT[1]))
    def h_dma(rt):
        for k in range(7):
            if k % 4 == 0:
                I('s_add_u32 s%d, s%d, %d' % (sT[3], sHG, rt * 28672 + 1024 * k)); I('s_add_u32 m0, s%d, %d' % (sHL, g.HL + rt * 28672 + 1024 * k))
            I('buffer_load_dwordx4 v%d, s[%d:%d], s%d offen offset:%d sc1 lds' % (vL16, g.sWS, g.sWS + 3, sT[3], 1024 * (k % 4)), tag='h%d' % rt)
    h_dma(0)
    a.wait(vm='sp')
    for p in range(1, 7):
        I('v_add_f32 v%d, v%d, v%d' % (vSP, vSP, vSP + 2 * p)); I('v_add_f32 v%d, v%d, v%d' % (vSP + 1, vSP + 1, vSP + 2 * p + 1))
    I('v_mov_b32 v5, v%d' % vSP); I('v_mov_b32 v6, v%d' % (vSP + 1))
    I('v_permlane32_swap_b32 v%d, v5' % vSP); I('v_permlane32_swap_b32 v%d, v6' % (vSP + 1))
    I('v_add_f32 v%d, v%d, v5' % (vSP, vSP)); I('v_add_f32 v%d, v%d, v6' % (vSP + 1, vSP + 1))
    ln_finish(a, 'v%d' % vSP, 'v%d' % (vSP + 1), 'v5', 'v6', 'v7', 'v3')
    I('v_sub_f32 v%d, 0, v3' % ST); I('v_mul_f32 v%d, %s, v7' % (ST + 1, f32(-LOG2E))); I('v_mul_f32 v%d, v6, v6' % (ST + 2)); I('v_mov_b32 v%d, 0' % (ST + 3))
    I('s_lshl_b32 s%d, s%d, 9' % (sT[1], sW)); I('s_add_u32 s%d, s%d, %d' % (sT[1], sT[1], g.STL))
    I('v_lshlrev_b32 v4, 4, v2'); I('v_add_u32 v5, s%d, v4' % sT[1]); I('v_add_u32 v4, %d, v4' % g.STL)
    I('ds_write_b128 v5, %s' % vr(ST, 4))
    h_dma(1)
    a.wait(vm='h0', lg=0); I('s_barrier')
    pf.stamp('h0')
    for rt in range(4): I('ds_read_b128 %s, v4 offset:%d' % (vr(ST + 4 * rt, 4), 512 * rt), tag='st')
    def acc(rt, c): return ACC + 32 * (rt % 2) + 16 * c
    def init_ops(rt): return ['v_mul_f32 v%d, v%d, v%d' % (acc(rt, c) + v, ST + 4 * rt, CS + 16 * c + v) for c in range(2) for v in range(16)]
    def epi_ops(rt, c):
        b = acc(rt, c); c1, ir2 = ST + 4 * rt + 1, ST + 4 * rt + 2
        ops = []
        if rt == 0: ops += ['v_fmac_f32 v%d, v%d, v%d' % (b + v, ST, CS + 16 * c + v) for v in range(16)]
        for half in range(2):
            js = range(4 * half, 4 * half + 4)
            ops += ['v_mul_f32 v%d, v%d, v%d' % (TM + j, c1, b + j) for j in js]
            ops += ['v_exp_f32 v%d, v%d' % (TM + j, TM + j) for j in js]
            ops += ['v_mul_f32 v%d, v%d, v%d' % (b + j, b + j, b + 8 + j) for j in js]
            ops += ['v_fma_f32 v%d, v%d, v%d, v%d' % (TM + j, TM + j, ir2, ir2) for j in js]
            ops += ['v_rcp_f32 v%d, v%d' % (TM + j, TM + j) for j in js]
        for j in range(8): ops.append('v_mul_f32 v%d, v%d, v%d' % (b + j, b + j, TM + j))
        ops += ['v_cvt_pk_bf16_f32 v%d, v%d, v%d' % (b + 8 + p, b + 2 * p, b + 2 * p + 1) for p in range(4)]
        ops.append(lambda: I('buffer_store_dwordx4 %s, v%d, s[%d:%d], s%d offen offset:%d sc1' % (vr(b + 8, 4), vL16, g.sWS, g.sWS + 3, sO[rt], 1024 * c), tag='cst'))
        return ops
    seq = [(rt, j) for rt in range(4) for j in range(28)]
    vis = 0
    def h_rd(n):
        nonlocal vis
        rt, j = seq[n]
        if rt > vis:
            vis = rt
            a.wait(vm='h%d' % rt); I('s_barrier')
        I('ds_read_b128 %s, v%d offset:%d' % (vr(HB + 4 * (n % NHB), 4), vHQ[4 * (rt // 2) + j // 7], (rt % 2) * 28672 + (j % 7) * 1024), tag='hr%d' % n)
    LA = NHB - 1
    for n in range(LA): h_rd(n)
    S = Side(a)
    for n, (rt, j) in enumerate(seq):
        if n + LA < len(seq): h_rd(n + LA)
        if j == 0:
            S.drain()
            if rt == 0: S.add([lambda: h_dma(2), lambda: a.wait(lg='st')]); S.add(init_ops(1)); S.add([lambda: h_dma(3)])
            if rt >= 1:
                S.add(epi_ops(rt - 1, 0) + epi_ops(rt - 1, 1))
                if rt + 1 < 4: S.add(init_ops(rt + 1))
            if rt % 2 == 0: pf.stamp('rt%d' % rt)
        a.wait(lg='hr%d' % n)
        for c in range(2):
            I(MF(vr(acc(rt, c), 16), ar(112 * c + 4 * j, 4), vr(HB + 4 * (n % NHB), 4), '0' if n == 0 else vr(acc(rt, c), 16)))
            if not (j == 0 and rt >= 1): S.emit(4 if rt == 1 else 3)
        if n >= 34 and n % cfg.get('wd_every', 6) == 0: P.step()
        if n == 24: P.issue(5)
    S.drain()
    pf.stamp('mfmaC')
    P.consume(8)
    for j in range(13, 28): P.add(('wd', j), g.wd_unit(j, g.wd_regs[j]))
    P.issue(5)
    S.add(epi_ops(3, 0) + epi_ops(3, 1)); S.drain()
    pf.stamp('actst')
    P.consume(5)
    signal(g, 2, g.sRB128, 'cst')
    pf.stamp('sigC')

def phase_D(g):
    a = g.a; I = a.I; sT = g.sT; pf = g.pf; P = g.P; cfg = g.cfg
    sW = g.sW; vL16 = g.vL16
    ACC, P0 = 8, 72
    P.stream(len(P.queue) + len(P.inflight), depth=5)
    a.wait(lg=0)
    pf.stamp('pfD')
    sA = g.sQ
    I('s_mul_i32 s%d, s%d, 112' % (sT[0], g.sRT)); I('s_mul_i32 s%d, s%d, 28' % (sT[1], sW)); I('s_add_u32 s%d, s%d, s%d' % (sT[0], sT[0], sT[1]))
    I('s_lshl_b32 s%d, s%d, 10' % (sT[0], sT[0])); I('s_add_u32 s%d, s%d, %d' % (sT[0], sT[0], ACTF))
    for q in range(4):
        I('s_add_u32 s%d, s%d, %d' % (sT[4], g.sR4, q)); I('s_and_b32 s%d, s%d, 3' % (sT[4], sT[4]))
        I('s_mul_i32 s%d, s%d, 7168' % (sT[4], sT[4])); I('s_add_u32 s%d, s%d, s%d' % (sA[q], sT[4], sT[0]))
    sDL = g.S4[11]
    I('s_and_b32 s%d, s%d, 1' % (sT[1], g.sRT)); I('s_cmp_eq_u32 s%d, 0' % sT[1]); sel(a, sDL, 112 * 1024, -112 * 1024)
    I('s_lshr_b32 s%d, s%d, 1' % (sT[2], g.sRB64)); I('s_lshl_b32 s%d, s%d, 8' % (sT[2], sT[2])); I('s_add_u32 s%d, s%d, %d' % (sT[2], sT[2], CNT + 8192))
    I('v_mov_b32 v%d, s%d' % (g.vPA, sT[2]))
    saved = list(a.vm)
    poll(g, 'kf_p3', g.vPA, 1, 14, g.sWS)
    a.vm = saved
    pf.stamp('sync3')
    NR = g.act_ring; AB = g.act_base
    def issue(j):
        b = AB + 8 * (j % NR)
        if j % 7 in (0, 4):
            I('s_add_u32 s%d, s%d, %d' % (sT[0], sA[j // 7], 1024 * (j % 7))); I('s_add_u32 s%d, s%d, s%d' % (sT[1], sT[0], sDL))
        off = 1024 * ((j % 7) % 4)
        for rt in range(2):
            I('buffer_load_dwordx4 %s, v%d, s[%d:%d], s%d offen offset:%d sc1' % (ar(b + 4 * rt, 4), vL16, g.sWS, g.sWS + 3, sT[rt], off), tag='k%d' % j)
    LA = min(NR - 1, cfg.get('d_la', 10))
    for j in range(LA): issue(j)
    for j in range(28):
        a.wait(vm='k%d' % j)
        if j % 8 == 0: pf.stamp('k%d' % j)
        b = AB + 8 * (j % NR)
        for (rt, c) in ((0, 0), (1, 0), (1, 1), (0, 1)):
            f, r = g.wd_regs[j][c]
            ac = ACC + 16 * (2 * rt + c)
            I(MF(vr(ac, 16), vr(r, 4, f), ar(b + 4 * rt, 4), '0' if j == 0 else vr(ac, 16)))
        if j + LA < 28: issue(j + LA)
    pf.stamp('gemmD')
    reduce_tiles(g, ACC, P0)
    resid_add(g, P0, g.vHK, ACC)
    I('s_mul_i32 s%d, s%d, %d' % (sT[2], g.sRT, 32 * 896)); I('s_lshl_b32 s%d, s%d, 6' % (sT[3], g.sCT)); I('s_add_u32 s%d, s%d, s%d' % (sT[2], sT[2], sT[3]))
    for i in range(2):
        I('buffer_store_dwordx4 %s, v%d, s[%d:%d], s%d offen offset:%d' % (vr(ACC + 4 * i, 4), g.vXo, g.sOUT, g.sOUT + 3, sT[2], 32 * i))
    pf.stamp('out')
    if PROF: I('s_waitcnt vmcnt(0)')
    pf.dump(g.sWS)

def gen_F(a, cfg=None):
    cfg = cfg or {}
    name = KN + '_kernel'
    head(a, name)
    g = setup(a, cfg)
    make_streams(g)
    P = g.P
    for j in range(28): P.add(('gu', j), g.gu_unit(j))
    for i in range(4): P.add(('wo', i), g.wo_unit(i))
    P.order([('gu', 0), ('gu', 1), ('gu', 2), ('wo', 0), ('gu', 3), ('gu', 4), ('gu', 5), ('gu', 6), ('wo', 1), ('wo', 2), ('wo', 3)])
    homes = [('v', 160 + 4 * k) for k in range(18)] + [('a', 224 + 4 * k) for k in range(8)] + [('a', 4 * k) for k in range(30)]
    g.wd_regs = [(homes[2 * j], homes[2 * j + 1]) for j in range(28)]
    g.act_base, g.act_ring = 120, 13
    phase_A(g); phase_B(g); phase_C(g); phase_D(g)
    a.I('s_endpgm')
    a.label('kf_warm')
    I = a.I; sT = g.sT
    I('s_lshr_b32 s%d, s2, 3' % sT[0]); I('s_sub_u32 s%d, s%d, 28' % (sT[0], sT[0])); I('s_lshl_b32 s%d, s%d, 2' % (sT[0], sT[0])); I('s_add_u32 s%d, s%d, s%d' % (sT[0], sT[0], g.sW))
    I('s_mul_i32 s%d, s%d, %d' % (sT[0], sT[0], 784 * 128)); I('v_lshlrev_b32 v2, 7, v1')
    for k in range(13):
        I('buffer_load_dword v%d, v2, s[%d:%d], s%d offen' % (8 + k, g.sD, g.sD + 3, sT[0]))
        I('s_add_u32 s%d, s%d, 8192' % (sT[0], sT[0]))
    a.label('kf_end')
    a.I('s_endpgm')
    a.raw('kf_pad:\n.fill (49664 - (kf_pad - %s)) / 4, 4, 0xbf800000' % name)
    return (name, 256, 256, 163840, 512, 102, 256)
```

```python
import sys, json
from gen_common import *
from gen_f import gen_F
ref = open('cdna_kernels/%s.s.ref' % KN).read().splitlines()
top = ''
for l in ref:
    if not l.startswith(';'): break
    if '@launch' in l or 'Override launch' in l or 'grid=ceil' in l: continue
    top += l + '\n'
top += '; Generated by work/genf.py (hand-written generator). One persistent launch, 4 phases with counter hand-offs.\n'
out = sys.argv[1] if len(sys.argv) > 1 else 'f.s'
cfg = json.loads(sys.argv[2]) if len(sys.argv) > 2 else {}
a = Asm()
name, grid, block, lds, vg, sg, acc = gen_F(a, cfg)
L = top + "; @launch grid=(%d,1,1) block=(%d,1,1) lds=%d\n" % (grid, block, lds)
open(out, "w").write(L + HDR + a.text() + '.section .rodata,"a"\n' + kd(name, vg, sg, acc))
print(out, "instrs", a.count, "nop states", a.nops)
```

```python
from gen_common import *
from types import SimpleNamespace as NS

CNT = KVACC + (128 << 10)
SPIN_MAX = 1 << 22
V3 = ('v_fma_f32', 'v_cvt_pk_bf16_f32', 'v_add3_u32', 'v_lshl_add_u32', 'v_bfe_u32', 'v_cndmask_b32', 'v_mul_lo_u32', 'v_accvgpr_read_b32', 'v_accvgpr_write_b32')

def MF(d, A, B, C): return 'v_mfma_f32_32x32x16_bf16 %s, %s, %s, %s' % (d, A, B, C)

def cost(o):
    if isinstance(o, tuple): return o[1]
    op = o.split()[0]
    if op in TRANS: return 8.4
    if op in V3 or op.startswith('v_pk'): return 5.3
    if op.startswith('v_'): return 4.2 if '0x' not in o else 5.3
    if op.startswith('ds_'): return 5.3
    if op.startswith('buffer_'): return 16
    return 3.0

class Side:
    def __init__(self, a): self.a = a; self.q = []; self.credit = 0.0
    def add(self, ops): self.q += list(ops)
    def _one(self):
        o = self.q.pop(0)
        if isinstance(o, tuple): o[0]()
        else: self.a.I(o)
    def emit(self, budget):
        self.credit = min(self.credit + budget, budget + 8)
        while self.q and cost(self.q[0]) <= self.credit + 2:
            self.credit -= cost(self.q[0]); self._one()
    def drain(self):
        while self.q: self._one()
        self.credit = 0.0

def poll(g, lbl, addr_v, lanes_mask, target, srdreg, early=None):
    a = g.a; I = a.I
    saved = list(a.vm)
    I('s_mov_b32 s%d, 0' % g.sSPIN)
    if early:
        a.wait(vm=early)
        a.branch('s_branch %s_chk' % lbl)
    a.label(lbl)
    I('buffer_load_dword v%d, v%d, s[%d:%d], 0 offen sc1' % (g.vPoll, addr_v, srdreg, srdreg + 3), counted=False)
    I('s_add_u32 s%d, s%d, 1' % (g.sSPIN, g.sSPIN))
    I('s_waitcnt vmcnt(0)')
    a.label(lbl + '_chk')
    I('v_cmp_le_u32 vcc, %s, v%d' % (target, g.vPoll))
    I('s_cmp_ge_u32 s%d, %d' % (g.sSPIN, SPIN_MAX))
    a.branch('s_cbranch_scc1 %s_ok' % lbl)
    I('s_and_b32 s%d, vcc_lo, %d' % (g.sT[7], lanes_mask))
    I('s_cmp_eq_u32 s%d, %d' % (g.sT[7], lanes_mask))
    a.branch('s_cbranch_scc1 %s_ok' % lbl)
    I('s_sleep 1')
    a.branch('s_branch %s' % lbl)
    a.label(lbl + '_ok')
    a.vm = saved

def sig_add(g, off_s):
    I = g.a.I
    I('v_mov_b32 v2, 1'); I('v_mov_b32 v3, 0')
    I('s_mov_b64 exec, 1')
    I('buffer_atomic_add v2, v3, s[%d:%d], s%d offen sc1' % (g.sKZ, g.sKZ + 3, off_s), tag='sig')
    I('s_mov_b64 exec, -1')

def signal(g, kind, idx_s, wait_tag):
    a = g.a; I = a.I
    I('s_lshl_b32 s%d, s%d, 8' % (g.sT[6], idx_s)); I('s_add_u32 s%d, s%d, %d' % (g.sT[6], g.sT[6], CNT + 4096 * kind))
    a.wait(vm=wait_tag)
    I('s_barrier')
    sig_add(g, g.sT[6])

def trfrag(a, dst, addr, off, tag, f='v', d2=256):
    a.I('ds_read_b64_tr_b16 %s, v%d offset:%d' % (vr(dst, 2, f), addr, off), tag=tag)
    a.I('ds_read_b64_tr_b16 %s, v%d offset:%d' % (vr(dst + 2, 2, f), addr, off + d2), tag=tag)

def setup(a, cfg):
    g = NS(a=a, cfg=cfg); I = a.I
    g.pf = Prof(a, 0, vreg=255, s=100)
    (g.sX, g.sWq, g.sP0, g.sP1, g.sPO, g.sD, g.sOUT, g.sDBG, g.sWS, g.sKZ, g.sDZ) = 24, 28, 32, 36, 40, 44, 48, 52, 56, 60, 64
    (g.sW, g.sRBA, g.sH, g.sRHO, g.sRB64, g.sCS, g.sRB128, g.sFS, g.sR4) = 68, 69, 70, 71, 72, 73, 74, 75, 76
    g.sT = [77, 78, 79, 80, 81, 82, 83, 84]
    g.sONE, g.sEPS, g.sL2E = 85, 86, 87
    g.sMV28, g.sHI = 88, 90
    g.sPA, g.sPC = 92, 93
    g.sSPIN = 94; g.sPT = 95
    g.sQ = [96, 97, 98, 99]
    g.S4 = list(range(4, 24))
    g.WQL, g.WKL, g.WVL = 0, 51200, 79872
    g.STATL, g.CSL, g.CSQ2L = 28672, 29696, 31232
    g.XRL, g.KVRL, g.REDL, g.HL, g.STL = 108544, 32768, 0, 0, 114688
    V = Alloc(232, 255)
    g.vHK = V.get(8, 4); g.vL16 = V.get()
    g.vLo = [g.vL16, V.get(), V.get(), V.get()]
    g.vRW = [V.get() for _ in range(3)]; g.vRR = V.get()
    g.vPoll, g.vPA, g.vPT = V.get(), V.get(), V.get()
    g.vXo = V.get(); g.vCSg = V.get(2, 2)
    sT = g.sT
    I('s_cmp_ge_u32 s2, 256'); a.branch('s_cbranch_scc1 kf_end')
    g.pf.stamp('start')
    load_args(a)
    I('s_getpc_b64 s[%d:%d]' % (g.sMV28, g.sMV28 + 1))
    I('v_lshrrev_b32 v2, 6, v0'); I('v_and_b32 v1, 63, v0')
    I('s_lshr_b32 s%d, s2, 3' % sT[1]); I('s_mul_i32 s%d, s%d, 12' % (sT[2], sT[1]))
    I('v_mul_u32_u24 v3, 3, v2'); I('v_add3_u32 v3, v3, v1, s%d' % sT[2]); I('v_lshlrev_b32 v3, 7, v3')
    I('s_mov_b64 exec, 7')
    I('global_load_dword v%d, v3, s[%d:%d]' % (g.vPoll, g.sMV28, g.sMV28 + 1), tag='code')
    I('s_mov_b64 exec, -1')
    I('v_readfirstlane_b32 s%d, v2' % g.sW)
    I('s_and_b32 s%d, s2, 7' % sT[0])
    I('s_lshr_b32 s%d, s%d, 1' % (sT[2], sT[0])); I('s_lshl_b32 s%d, s%d, 2' % (sT[2], sT[2]))
    I('s_and_b32 s%d, s%d, 3' % (sT[3], sT[1])); I('s_add_u32 s%d, s%d, s%d' % (g.sRBA, sT[2], sT[3]))
    I('s_and_b32 s%d, s%d, 1' % (sT[4], sT[0])); I('s_lshr_b32 s%d, s%d, 2' % (sT[5], sT[1]))
    I('s_lshl_b32 s%d, s%d, 3' % (g.sH, sT[4])); I('s_add_u32 s%d, s%d, s%d' % (g.sH, g.sH, sT[5]))
    I('s_lshl_b32 s%d, s%d, 1' % (g.sRHO, sT[3])); I('s_add_u32 s%d, s%d, s%d' % (g.sRHO, g.sRHO, sT[5]))
    I('s_sub_u32 s%d, s%d, 7' % (sT[6], g.sRHO)); I('s_cmp_ge_u32 s%d, 7' % g.sRHO); I('s_cselect_b32 s%d, s%d, s%d' % (g.sRHO, sT[6], g.sRHO))
    I('s_mul_i32 s%d, s%d, 37' % (g.sR4, sT[1])); I('s_lshr_b32 s%d, s%d, 8' % (g.sR4, g.sR4))
    I('s_mul_i32 s%d, s%d, 7' % (sT[6], g.sR4)); I('s_sub_u32 s%d, s%d, s%d' % (g.sCS, sT[1], sT[6]))
    I('s_and_b32 s%d, s%d, 3' % (g.sR4, g.sR4))
    I('s_lshl_b32 s%d, s%d, 2' % (g.sRB64, sT[0])); I('s_add_u32 s%d, s%d, s%d' % (g.sRB64, g.sRB64, g.sR4))
    I('s_add_u32 s%d, s%d, s%d' % (g.sRB128, sT[2], g.sR4))
    I('s_mul_i32 s%d, s%d, 7' % (g.sFS, sT[4])); I('s_add_u32 s%d, s%d, s%d' % (g.sFS, g.sFS, g.sCS))
    I('s_mul_i32 s%d, s2, 9363' % g.sPA); I('s_lshr_b32 s%d, s%d, 16' % (g.sPA, g.sPA))
    I('s_mul_i32 s%d, s%d, 7' % (g.sPC, g.sPA)); I('s_sub_u32 s%d, s2, s%d' % (g.sPC, g.sPC))
    return g

def gu_load(g, j, c):
    r = j % 7
    g.a.I('buffer_load_dwordx4 %s, v%d, s[%d:%d], s%d offen offset:%d sc1' % (ar(112 * c + 4 * j, 4), g.vLo[2 * c + (r >= 4)], g.sWS, g.sWS + 3, g.sQ[j // 7], 1024 * (r % 4)), tag='gu')
def wd_load(g, j, c):
    r = j % 7; f, reg = g.wd_regs[j][c]
    g.a.I('buffer_load_dwordx4 %s, v%d, s[%d:%d], s%d offen offset:%d sc1' % (vr(reg, 4, f), g.vLo[2 * c + (r >= 4)], g.sWS, g.sWS + 3, g.sQ[j // 7], 1024 * (r % 4)), tag='wd')

def phase_A(g):
    a = g.a; I = a.I; sT = g.sT; pf = g.pf; cfg = g.cfg
    sW, sH, sRBA = g.sW, g.sH, g.sRBA
    XF, ACCK, ACCV, ACCQ, WB = 8, 120, 136, 152, 168
    VA = Alloc(200, 232)
    vONE = VA.get(4, 4)
    vX = [VA.get() for _ in range(4)]; vW = VA.get()
    vXR = [VA.get() for _ in range(4)]
    vT, vTc, vTo = VA.get(), VA.get(), VA.get()
    vS1a, vS1b, vS2a, vS2b = [VA.get() for _ in range(4)]
    vRN = VA.get(2, 2); vCS = VA.get(2, 2)
    vN4, vCA, vSA = VA.get(), VA.get(), VA.get()
    vXS = [VA.get() for _ in range(4)]
    vRed = vX[0:2]; vKW = vX[2]
    vPT = [g.vHK, g.vHK + 1, g.vHK + 2, g.vHK + 3]; vPD = g.vHK + 4
    aPK = 0
    LAH = cfg.get('lah', 3)
    xslot = {0: 0, 1: 1, 2: 2, 4: 0, 5: 1, 6: 2}
    aC0, aC1 = 224, 240
    vL16 = g.vL16
    I('v_lshrrev_b32 v2, 3, v1'); I('v_lshrrev_b32 v3, 4, v1'); I('v_and_b32 v4, 7, v1')
    I('v_xor_b32 v5, v4, v3'); I('v_lshlrev_b32 v5, 4, v5')
    I('v_mul_u32_u24 v6, 896, v2'); I('v_add_u32 v%d, v6, v5' % vX[0])
    I('v_xor_b32 v%d, 64, v%d' % (vX[1], vX[0])); I('v_add_u32 v%d, 7168, v%d' % (vX[1], vX[1]))
    I('v_add_u32 v%d, 14336, v%d' % (vX[2], vX[0])); I('v_add_u32 v%d, 14336, v%d' % (vX[3], vX[1]))
    I('v_lshrrev_b32 v5, 2, v1'); I('v_and_b32 v6, 3, v1')
    I('v_mul_u32_u24 v7, 2688, v5'); I('v_lshl_add_u32 v%d, v6, 4, v7' % vW)
    I('v_lshlrev_b32 v%d, 4, v1' % vL16)
    I('v_and_b32 v5, 15, v1'); I('v_lshlrev_b32 v5, 4, v5'); I('v_lshl_add_u32 v5, v3, 14, v5')
    for i in range(4): I('v_mov_b32 v%d, 0' % (vONE + i))
    I('s_waitcnt lgkmcnt(0)')
    pf.stamp('args')
    srd(a, g.sX, 4, 2048 * 896); srd(a, g.sWq, 6, 448 * 2688); srd(a, g.sWS, 22, WS_BYTES); srd(a, g.sKZ, 22, WS_BYTES)
    srd(a, g.sDZ, 20, 256)
    I('s_cmp_eq_u32 s%d, 0' % sRBA); I('s_cselect_b32 s%d, %s, 0' % (g.sKZ + 2, hex(WS_BYTES))); I('s_cselect_b32 s%d, 256, 0' % (g.sDZ + 2))
    srd(a, g.sD, 16, 1792 * 896); srd(a, g.sOUT, 18, 2048 * 896); srd(a, g.sDBG, 20, 256); srd(a, g.sPO, 22, WS_BYTES)
    I('s_cmp_lt_u32 s%d, 28' % g.sPA)
    for k in range(2):
        I('s_cselect_b32 s%d, s%d, s%d' % (g.sP0 + k, 12 + k, 8 + k)); I('s_cselect_b32 s%d, s%d, s%d' % (g.sP1 + k, 14 + k, 8 + k))
    sel(a, g.sP0 + 2, 448 * 3584, 448 * 896)
    I('s_mov_b32 s%d, 0x20000' % (g.sP0 + 3)); I('s_mov_b32 s%d, 0x20000' % (g.sP1 + 3))
    I('s_cmp_lt_u32 s%d, 32' % g.sPA)
    I('s_cselect_b32 s%d, s%d, 0' % (g.sP0 + 2, g.sP0 + 2)); I('s_mov_b32 s%d, s%d' % (g.sP1 + 2, g.sP0 + 2)); I('s_cselect_b32 s%d, %s, 0' % (g.sPO + 2, hex(WS_BYTES)))
    sXB, sWB, sXRB, sCL, sCC, sW10, sW12 = g.S4[0:7]
    sPS = g.S4[7:11]; sPOs = g.S4[11:15]; sPSG = g.S4[15]; sPCS = g.S4[16]
    I('s_lshl_b32 s%d, s%d, 10' % (sW10, sW)); I('s_lshl_b32 s%d, s%d, 12' % (sW12, sW))
    I('s_lshl_b32 s%d, s%d, 12' % (sT[3], sH)); I('s_add_u32 s%d, s%d, s%d' % (sT[3], sT[3], sW10)); I('s_add_u32 s%d, s%d, %d' % (sT[3], sT[3], KVACC))
    I('buffer_store_dwordx4 v[%d:%d], v%d, s[%d:%d], s%d offen sc0 sc1' % (vONE, vONE + 3, vL16, g.sKZ, g.sKZ + 3, sT[3]), tag='zero')
    I('s_lshl_b32 s%d, s%d, 8' % (sT[3], sH)); I('s_add_u32 s%d, s%d, s%d' % (sT[3], sT[3], sW12)); I('s_add_u32 s%d, s%d, %d' % (sT[3], sT[3], CNT))
    I('s_mov_b32 exec_hi, 0')
    I('buffer_store_dwordx4 v[%d:%d], v5, s[%d:%d], s%d offen sc0 sc1' % (vONE, vONE + 3, g.sKZ, g.sKZ + 3, sT[3]), tag='zero')
    I('s_lshl_b32 s%d, s%d, 10' % (sT[3], sH)); I('s_lshl_b32 s%d, s%d, 8' % (sT[4], sW)); I('s_add_u32 s%d, s%d, s%d' % (sT[3], sT[3], sT[4])); I('s_add_u32 s%d, s%d, %d' % (sT[3], sT[3], CSGU))
    I('s_mov_b32 exec_lo, 0xffff')
    I('buffer_store_dwordx4 v[%d:%d], v%d, s[%d:%d], s%d offen sc0 sc1' % (vONE, vONE + 3, vL16, g.sKZ, g.sKZ + 3, sT[3]), tag='zero')
    I('s_mov_b64 exec, -1')
    I('s_lshl_b32 s%d, s%d, 2' % (sT[0], sRBA)); I('s_add_u32 s%d, s%d, s%d' % (sT[0], sT[0], sW))
    I('s_mul_i32 s%d, s%d, %d' % (sXB, sT[0], 32 * 896))
    I('s_mul_i32 s%d, s%d, 56' % (sWB, sH)); I('s_mul_i32 s%d, s%d, %d' % (sT[1], sW, 16 * 2688)); I('s_add_u32 s%d, s%d, s%d' % (sWB, sWB, sT[1]))
    I('s_mul_i32 s%d, s%d, 12288' % (sXRB, sW)); I('s_add_u32 s%d, s%d, %d' % (sXRB, sXRB, g.XRL))
    I('s_mov_b32 s%d, s%d' % (sCL, g.sRHO)); I('s_mov_b32 s%d, s%d' % (sCC, g.sRHO))
    def adv_ops(s): return ['s_add_u32 s%d, s%d, 1' % (s, s), 's_cmp_eq_u32 s%d, 7' % s, 's_cselect_b32 s%d, 0, s%d' % (s, s)]
    def adv(s):
        for o in adv_ops(s): I(o)
    def grp(ops):
        def f():
            for o in ops:
                if callable(o): o()
                else: I(o)
        return f
    def a_groups(j):
        G = []
        pre = ['s_mul_i32 s%d, s%d, %d' % (sT[1], sCL, 64 * 2688), 's_lshl_b32 s%d, s%d, 12' % (sT[2], sCL), 's_add_u32 s%d, s%d, s%d' % (sT[2], sT[2], sW10),
               's_add_u32 m0, s%d, %d' % (sT[2], g.WKL - 896), 's_add_u32 s%d, s%d, s%d' % (sT[1], sT[1], sWB)]
        G.append(grp(pre + [lambda: I('buffer_load_dwordx4 v%d, s[%d:%d], s%d offen offset:896 lds' % (vW, g.sWq, g.sWq + 3, sT[1]), tag='c%d' % j)]))
        G.append(grp(['s_add_u32 m0, s%d, %d' % (sT[2], g.WVL - 1792), 's_lshl_b32 s%d, s%d, 7' % (sT[0], sCL),
                      lambda: I('buffer_load_dwordx4 v%d, s[%d:%d], s%d offen offset:1792 lds' % (vW, g.sWq, g.sWq + 3, sT[1]), tag='c%d' % j)]))
        for q in range(4):
            m = ('s_add_u32 m0, s%d, %d' % (sW12, g.WQL + q * 1024)) if j == 3 else ('s_add_u32 m0, s%d, %d' % (sXRB, xslot[j] * 4096 + q * 1024))
            mid = ['s_add_u32 s%d, s%d, s%d' % (sT[0], sT[0], sXB)] if q == 0 else (adv_ops(sCL) if q == 1 else [])
            G.append(grp([m] + mid + [lambda q=q: I('buffer_load_dwordx4 v%d, s[%d:%d], s%d offen lds' % (vX[q], g.sX, g.sX + 3, sT[0]), tag='c%d' % j)]))
        return G
    def a_loads(j):
        for f in a_groups(j): f()
    def q_groups(n):
        return [grp(['s_mul_i32 s%d, s%d, %d' % (sT[1], sCL, 64 * 2688), 's_lshl_b32 s%d, s%d, 12' % (sT[2], sCL), 's_add_u32 s%d, s%d, s%d' % (sT[2], sT[2], sW10),
                     's_add_u32 m0, s%d, %d' % (sT[2], g.WQL), 's_add_u32 s%d, s%d, s%d' % (sT[1], sT[1], sWB),
                     lambda: I('buffer_load_dwordx4 v%d, s[%d:%d], s%d offen lds' % (vW, g.sWq, g.sWq + 3, sT[1]), tag='wq')] + adv_ops(sCL)) for _ in range(n)]
    a_loads(0); a_loads(1)
    A_, C_ = g.sPA, g.sPC
    I('s_lshl_b32 s%d, s%d, 2' % (sT[4], C_)); I('s_add_u32 s%d, s%d, s%d' % (sT[4], sT[4], sW))
    I('s_mul_i32 s%d, s%d, %d' % (sT[5], sT[4], 16 * 3584)); I('s_lshl_b32 s%d, s%d, 7' % (sT[6], A_)); I('s_add_u32 s%d, s%d, s%d' % (sPS[0], sT[5], sT[6]))
    I('s_mul_i32 s%d, s%d, 112' % (sT[5], A_)); I('s_add_u32 s%d, s%d, s%d' % (sT[5], sT[5], sT[4]))
    I('s_lshl_b32 s%d, s%d, 10' % (sT[5], sT[5])); I('s_add_u32 s%d, s%d, %d' % (sPOs[0], sT[5], GUP))
    I('s_lshr_b32 s%d, s%d, 1' % (sPSG, A_)); I('s_lshl_b32 s%d, s%d, 8' % (sPSG, sPSG)); I('s_add_u32 s%d, s%d, %d' % (sPSG, sPSG, CNT + 3 * 4096))
    I('s_sub_u32 s%d, s%d, 28' % (sT[4], A_)); I('s_lshl_b32 s%d, s%d, 2' % (sT[4], sT[4])); I('s_add_u32 s%d, s%d, s%d' % (sT[4], sT[4], sW))
    I('s_mul_i32 s%d, s%d, %d' % (sT[5], sT[4], 28 * 896)); I('s_lshl_b32 s%d, s%d, 7' % (sT[6], C_)); I('s_add_u32 s%d, s%d, s%d' % (sPS[1], sT[5], sT[6]))
    I('s_lshl_b32 s%d, s%d, 16' % (sT[5], C_)); I('s_lshl_b32 s%d, s%d, 11' % (sT[6], sT[4]))
    I('s_add_u32 s%d, s%d, s%d' % (sT[5], sT[5], sT[6])); I('s_add_u32 s%d, s%d, %d' % (sPOs[1], sT[5], WOP))
    I('s_lshl_b32 s%d, s%d, 8' % (sT[5], C_)); I('s_add_u32 s%d, s%d, %d' % (sT[5], sT[5], CNT + 4 * 4096))
    I('s_cmp_lt_u32 s%d, 32' % A_); I('s_cselect_b32 s%d, s%d, 0x20000000' % (sT[5], sT[5]))
    I('s_cmp_lt_u32 s%d, 28' % A_)
    I('s_cselect_b32 s%d, s%d, s%d' % (sPS[0], sPS[0], sPS[1])); I('s_cselect_b32 s%d, s%d, s%d' % (sPOs[0], sPOs[0], sPOs[1]))
    I('s_cselect_b32 s%d, s%d, s%d' % (sPSG, sPSG, sT[5]))
    I('s_mul_i32 s%d, s%d, 512' % (sPCS, A_)); I('s_cselect_b32 s%d, s%d, 0x20000000' % (sPCS, sPCS))
    sel(a, sT[3], 3584, 896); sel(a, sT[4], 8 * 3584, 8 * 896); I('s_cselect_b32 s%d, 0, %d' % (sT[5], 16 * 896))
    sel(a, sT[6], 28672, 1024); sel(a, sT[7], 57344, 32768)
    sel(a, g.sONE, 16 * 128, 32); sel(a, g.sEPS, 8 * 128, 14 * 128); I('s_cselect_b32 s%d, 32, %d' % (g.sL2E, 8 * 128))
    I('s_add_u32 s%d, s%d, s%d' % (sPS[1], sPS[0], sT[4])); I('s_add_u32 s%d, s%d, s%d' % (sPS[2], sPS[0], sT[5])); I('s_add_u32 s%d, s%d, s%d' % (sPS[3], sPS[2], sT[4]))
    I('s_add_u32 s%d, s%d, s%d' % (sPOs[1], sPOs[0], sT[6])); I('s_add_u32 s%d, s%d, s%d' % (sPOs[2], sPOs[0], sT[7])); I('s_add_u32 s%d, s%d, s%d' % (sPOs[3], sPOs[2], sT[6]))
    I('v_mul_lo_u32 v5, v2, s%d' % sT[3]); I('v_lshl_add_u32 v%d, v4, 4, v5' % vPD)
    def flag_set():
        I('v_mov_b32 v5, 1'); I('s_lshl_b32 s%d, s%d, 2' % (sT[4], sH)); I('v_mov_b32 v6, s%d' % sT[4])
        I('s_mov_b64 exec, 1')
        I('buffer_atomic_add v5, v6, s[%d:%d], 0 offen sc1' % (g.sDZ, g.sDZ + 3), tag='flag')
        I('s_mov_b64 exec, -1')
        I('s_cmp_eq_u32 s%d, 0' % sW); I('s_cselect_b32 s%d, %s, 0' % (g.sKZ + 2, hex(WS_BYTES)))
    I('v_lshrrev_b32 v2, 5, v1'); I('v_bfe_u32 v3, v1, 4, 1'); I('v_bfe_u32 v4, v1, 2, 2'); I('v_and_b32 v5, 3, v1')
    I('s_mul_i32 s%d, s%d, 4608' % (g.sPT, sW)); I('s_add_u32 s%d, s%d, %d' % (g.sPT, g.sPT, g.KVRL))
    I('v_mul_lo_u32 v6, v3, s%d' % g.sONE); I('v_mul_lo_u32 v7, v2, s%d' % g.sEPS); I('v_add3_u32 v6, v6, v7, s%d' % g.sPT)
    I('v_lshl_add_u32 v6, v4, 7, v6'); I('v_lshl_add_u32 v%d, v5, 3, v6' % vPT[0])
    I('v_add_u32 v%d, s%d, v%d' % (vPT[1], g.sL2E, vPT[0])); I('v_add_u32 v%d, 64, v%d' % (vPT[2], vPT[0])); I('v_add_u32 v%d, 64, v%d' % (vPT[3], vPT[1]))
    I('v_lshlrev_b32 v6, 9, v2'); I('v_lshl_add_u32 v6, v4, 6, v6'); I('v_lshl_add_u32 v6, v5, 3, v6')
    I('v_lshl_add_u32 v%d, v3, 5, v6' % vT); I('v_add_u32 v%d, %d, v%d' % (vT, g.WKL, vT))
    I('v_and_b32 v6, 31, v1'); I('v_lshlrev_b32 v%d, 2, v6' % vN4)
    I('v_lshrrev_b32 v7, 3, v6'); I('v_lshlrev_b32 v7, 10, v7')
    I('v_and_b32 v3, 7, v6'); I('v_lshl_add_u32 v7, v3, 7, v7')
    I('v_bfe_u32 v3, v6, 1, 3'); I('v_xor_b32 v3, v3, v2'); I('v_lshl_add_u32 v7, v3, 4, v7')
    I('v_add_u32 v%d, s%d, v7' % (vXR[0], sXRB))
    for t in range(1, 4): I('v_xor_b32 v%d, %d, v%d' % (vXR[t], 32 * t, vXR[0]))
    I('v_add_u32 v%d, s%d, v7' % (vXS[0], sW12))
    for t in range(1, 4): I('v_xor_b32 v%d, %d, v%d' % (vXS[t], 32 * t, vXS[0]))
    I('v_mul_u32_u24 v7, 896, v6'); I('v_lshl_add_u32 v%d, v2, 4, v7' % g.vXo)
    I('v_cmp_eq_u32 s[%d:%d], 28, v6' % (g.sMV28, g.sMV28 + 1)); I('v_cmp_eq_u32 s[%d:%d], 0, v2' % (g.sHI, g.sHI + 1))
    I('s_mov_b32 s%d, 0x3f803f80' % g.sONE); I('s_mov_b32 s%d, %s' % (g.sEPS, f32(1e-6))); I('s_mov_b32 s%d, %s' % (g.sL2E, f32(LOG2E)))
    for i in range(4): I('v_mov_b32 v%d, s%d' % (vONE + i, g.sONE))
    for r in (vS1a, vS1b, vS2a, vS2b): I('v_mov_b32 v%d, 0' % r)
    I('s_lshl_b32 s%d, s%d, 7' % (sT[3], sW)); I('s_add_u32 s%d, s%d, %d' % (sT[3], sT[3], g.CSL)); I('v_add_u32 v%d, s%d, v%d' % (vCA, sT[3], vN4))
    I('s_lshl_b32 s%d, s%d, 8' % (sT[3], sW)); I('s_add_u32 s%d, s%d, %d' % (sT[3], sT[3], g.STATL))
    I('v_lshlrev_b32 v3, 4, v2'); I('v_add_u32 v%d, s%d, v3' % (vSA, sT[3]))
    for t in range(1, 4):
        I('s_xor_b32 s%d, s%d, %d' % (sT[3], sW, t)); I('s_mul_i32 s%d, s%d, 12288' % (sT[3], sT[3])); I('s_add_u32 s%d, s%d, %d' % (sT[3], sT[3], g.REDL + (t - 1) * 4096))
        I('v_add_u32 v%d, s%d, v%d' % (g.vRW[t - 1], sT[3], vL16))
    I('s_mul_i32 s%d, s%d, 12288' % (sT[3], sW)); I('s_add_u32 s%d, s%d, %d' % (sT[3], sT[3], g.REDL)); I('v_add_u32 v%d, s%d, v%d' % (g.vRR, sT[3], vL16))
    I('v_add_u32 v%d, 4096, v%d' % (g.vLo[1], vL16)); I('v_add_u32 v%d, 28672, v%d' % (g.vLo[2], vL16)); I('v_add_u32 v%d, 32768, v%d' % (g.vLo[3], vL16))
    I('s_lshl_b32 s%d, s%d, 2' % (sT[3], g.sFS)); I('s_add_u32 s%d, s%d, s%d' % (sT[3], sT[3], sW)); I('s_mul_i32 s%d, s%d, 57344' % (sT[3], sT[3])); I('s_add_u32 s%d, s%d, %d' % (sT[3], sT[3], GUP))
    for q in range(4):
        I('s_add_u32 s%d, s%d, %d' % (sT[4], g.sR4, q)); I('s_and_b32 s%d, s%d, 3' % (sT[4], sT[4]))
        I('s_mul_i32 s%d, s%d, 7168' % (sT[4], sT[4])); I('s_add_u32 s%d, s%d, s%d' % (g.sQ[q], sT[4], sT[3]))
    if LAH > 2: a_loads(2)
    def pk_group(j):
        s = g.sP0 if j < 2 else g.sP1
        return grp(['s_add_u32 m0, s%d, %d' % (g.sPT, 1024 * j), lambda: I('buffer_load_dwordx4 v%d, s[%d:%d], s%d offen lds' % (vPD, s, s + 3, sPS[j]), tag='pk')])
    pf.stamp('issued')
    def w_addr():
        I('s_lshl_b32 s%d, s%d, 12' % (sT[3], sCC)); I('v_add_u32 v%d, s%d, v%d' % (vTc, sT[3], vT)); I('v_add_u32 v%d, s%d, v%d' % (vTo, sW10, vTc))
        adv(sCC)
    def flag_poll():
        I('v_lshlrev_b32 v%d, 2, v1' % g.vPA)
        I('buffer_load_dword v%d, v%d, s[%d:%d], 0 offen sc1' % (g.vPoll, g.vPA, g.sDBG, g.sDBG + 3), tag='poll')
    def pack_rd():
        a.wait(vm='pk')
        for f in range(4): trfrag(a, aPK + 4 * f, vPT[f], 0, 'pkr', f='a', d2=512)
    def pack_st():
        a.wait(lg='pkr')
        for f in range(4): I('buffer_store_dwordx4 %s, v%d, s[%d:%d], s%d offen sc1' % (ar(aPK + 4 * f, 4), vL16, g.sPO, g.sPO + 3, sPOs[f]), tag='pks')
    def go_poll():
        I('s_lshl_b32 s%d, s%d, 8' % (sT[4], g.sFS)); I('s_add_u32 s%d, s%d, %d' % (sT[4], sT[4], CNT + 3 * 4096))
        I('s_lshl_b32 s%d, s%d, 8' % (sT[5], g.sCS)); I('s_add_u32 s%d, s%d, %d' % (sT[5], sT[5], CNT + 4 * 4096))
        I('v_mov_b32 v%d, s%d' % (vXS[0], sT[5])); I('v_writelane_b32 v%d, s%d, 0' % (vXS[0], sT[4]))
        I('v_mov_b32 v%d, 4' % g.vPT); I('v_writelane_b32 v%d, 14, 0' % g.vPT)
        I('buffer_load_dword v%d, v%d, s[%d:%d], 0 offen sc1' % (g.vPoll, vXS[0], g.sWS, g.sWS + 3), tag='gop')
    def fin_groups():
        ops = ['v_add_f32 v%d, v%d, v%d' % (vS1a, vS1a, vS1b), 'v_add_f32 v%d, v%d, v%d' % (vS2a, vS2a, vS2b),
               'v_mov_b32 v%d, v%d' % (vS1b, vS1a), 'v_mov_b32 v%d, v%d' % (vS2b, vS2a),
               's_lshl_b32 s%d, s%d, 8' % (sT[3], sW), 's_add_u32 s%d, s%d, %d' % (sT[3], sT[3], g.STATL),
               'v_permlane32_swap_b32 v%d, v%d' % (vS1a, vS1b), 'v_permlane32_swap_b32 v%d, v%d' % (vS2a, vS2b),
               'v_add_f32 v%d, v%d, v%d' % (vS1a, vS1a, vS1b), 'v_add_f32 v%d, v%d, v%d' % (vS2a, vS2a, vS2b)]
        b = Asm(); ln_finish(b, 'v%d' % vS1a, 'v%d' % vS2a, 'v2', 'v3', 'v%d' % vRN, 'v4')
        ops += [l.strip() for l in b.out if not l.strip().startswith('s_nop')]
        ops += ['v_sub_f32 v%d, 0, v4' % (vRN + 1), 'v_add_u32 v2, s%d, v%d' % (sT[3], vN4), 'ds_write_b32 v2, v%d' % vRN, 'ds_write_b32 v2, v%d offset:128' % (vRN + 1),
                'ds_write_b32 v%d, a%d' % (vCA, aC0), 'ds_write_b32 v%d, a%d offset:512' % (vCA, aC1), 'v_add_u32 v5, %d, v%d' % (g.CSL, vN4)]
        n = (len(ops) + 7) // 8
        return [grp(ops[k:k + n]) for k in range(0, len(ops), n)]
    w_addr()
    PKI = cfg.get('pki', 6 - LAH)
    for j in range(7):
        a.wait(vm='c%d' % j)
        if j == 3:
            for t in range(4): I('ds_read_b128 %s, v%d' % (vr(XF + 16 * j + 4 * t, 4), vXS[t]), tag='xf%d' % j)
        else:
            for t in range(4): I('ds_read_b128 %s, v%d offset:%d' % (vr(XF + 16 * j + 4 * t, 4), vXR[t], 4096 * xslot[j]), tag='xf%d' % j)
        trfrag(a, WB + 24, vTo, 0, 'o%d' % j); trfrag(a, WB + 28, vTo, 28672, 'o%d' % j)
        I('s_barrier')
        if j in (0, 3, 6): pf.stamp('c%d' % j)
        def rd(t):
            st = t % 3
            trfrag(a, WB + 8 * st, vTc, 1024 * t, 'w%d_%d' % (j, t)); trfrag(a, WB + 8 * st + 4, vTc, 28672 + 1024 * t, 'w%d_%d' % (j, t))
        def dots(jj):
            for r in range(16):
                x = XF + 16 * jj + r
                I('v_dot2c_f32_bf16 v%d, s%d, v%d' % (vS1b if r & 1 else vS1a, g.sONE, x)); I('v_dot2c_f32_bf16 v%d, v%d, v%d' % (vS2b if r & 1 else vS2a, x, x))
        rd(0); rd(1); rd(2)
        if j == 0: flag_set()
        if j > 0: dots(j - 1)
        if j == 6:
            a.wait(lg='xf6'); dots(6)
        G = []
        if j + LAH < 7: G = a_groups(j + LAH)
        elif j + LAH == 7: G = q_groups(7)
        if j == PKI: G = G + [pk_group(k) for k in range(4)]
        if j == 3: G = [flag_poll] + G
        if j == 6: G = fin_groups()
        a.wait(lg='o%d' % j)
        I(MF(ar(aC0, 16), vr(vONE, 4), vr(WB + 24, 4), '0' if j == 0 else ar(aC0, 16)))
        if G: G.pop(0)()
        I(MF(ar(aC1, 16), vr(vONE, 4), vr(WB + 28, 4), '0' if j == 0 else ar(aC1, 16)))
        if G: G.pop(0)()
        for t in range(4):
            x = XF + 16 * j + 4 * t; st = t % 3
            a.wait(lg='w%d_%d' % (j, t))
            first = (j == 0 and t == 0)
            I(MF(vr(ACCK, 16), vr(x, 4), vr(WB + 8 * st, 4), '0' if first else vr(ACCK, 16)))
            if G: G.pop(0)()
            I(MF(vr(ACCV, 16), vr(x, 4), vr(WB + 8 * st + 4, 4), '0' if first else vr(ACCV, 16)))
            if t == 0:
                rd(3)
                if j < 6: w_addr()
            elif G: G.pop(0)()
        while G: G.pop(0)()
    pf.stamp('loop')
    a.wait(lg=0); I('s_barrier')
    for i in range(8): I('ds_read_b32 v%d, v5 offset:%d' % (ACCQ + i, 128 * i), tag='cs')
    for qd in range(4):
        I('ds_read_b128 %s, v%d offset:%d' % (vr(WB + 16 + 4 * qd, 4), vSA, 128 + 32 * qd), tag='st')
    for qd in range(4):
        I('ds_read_b128 %s, v%d offset:%d' % (vr(WB + 4 * qd, 4), vSA, 32 * qd), tag='st2')
    pf.stamp('X1')
    poll(g, 'kf_pz', g.vPA, 0xffff, 4, g.sDBG, early='poll')
    pack_rd()
    for op in ['v_and_b32 v3, 31, v1', 'v_mul_u32_u24 v3, 144, v3', 'v_lshrrev_b32 v4, 5, v1', 'v_lshl_add_u32 v3, v4, 4, v3', 'v_add_u32 v%d, s%d, v3' % (vKW, g.sPT),
               'v_bfe_u32 v5, v1, 2, 2', 'v_lshl_add_u32 v4, v4, 2, v5',
               'v_bfe_u32 v5, v1, 4, 1', 'v_mul_u32_u24 v5, 14, v5', 'v_add_u32 v5, v5, v4',
               'v_and_b32 v6, 3, v1', 'v_lshlrev_b32 v6, 2, v6', 's_lshl_b32 s%d, s%d, 5' % (sT[4], sW), 's_add_u32 s%d, s%d, %d' % (sT[4], sT[4], g.KVRL),
               'v_add_u32 v6, s%d, v6' % sT[4], 'v_mul_u32_u24 v7, 144, v5', 'v_add_u32 v%d, v7, v6' % vRed[0],
               'v_add_u32 v%d, %d, v%d' % (vRed[1], 8 * 144, vRed[0]), 'v_mul_u32_u24 v7, 144, v4', 'v_add_u32 v7, v7, v6', 'v_add_u32 v7, %d, v7' % (22 * 144),
               'v_cmp_lt_u32 vcc, 5, v4', 'v_cndmask_b32 v%d, v%d, v7, vcc' % (vRed[1], vRed[1])]: I(op)
    Q = ACCQ
    pack_st()
    for f in range(4): I(MF(ar(32 + 16 * f, 16), vr(vONE, 4), ar(aPK + 4 * f, 4), '0'))
    a.wait(lg='cs')
    I('v_add_f32 v%d, v%d, v%d' % (Q, Q, Q + 1)); I('v_add_f32 v%d, v%d, v%d' % (Q + 2, Q + 2, Q + 3)); I('v_add_f32 v%d, v%d, v%d' % (vCS, Q, Q + 2))
    I('v_add_f32 v%d, v%d, v%d' % (Q + 4, Q + 4, Q + 5)); I('v_add_f32 v%d, v%d, v%d' % (Q + 6, Q + 6, Q + 7)); I('v_add_f32 v%d, v%d, v%d' % (vCS + 1, Q + 4, Q + 6))
    SE = 's[%d:%d]' % (g.sEPS, g.sEPS + 1)
    def phi(acc, tmp, n):
        for p in range(0, n, 2): I('v_pk_mul_f32 %s, %s, %s op_sel:[0,1] op_sel_hi:[1,1]' % (vr(tmp + p, 2), vr(acc + p, 2), SE))
        for v in range(n): I('v_min_f32 v%d, 0, v%d' % (tmp + v, tmp + v))
        for v in range(n): I('v_exp_f32 v%d, v%d' % (tmp + v, tmp + v)); I('v_max_f32 v%d, s%d, v%d' % (acc + v, g.sEPS, acc + v))
        for p in range(0, n, 2): I('v_pk_add_f32 %s, %s, %s' % (vr(acc + p, 2), vr(acc + p, 2), vr(tmp + p, 2)))
    CSP = vr(vCS, 2)
    a.wait(lg='st')
    for p in range(0, 16, 2):
        I('v_pk_fma_f32 %s, %s, %s, %s op_sel_hi:[1,0,1]' % (vr(ACCK + p, 2), vr(WB + 16 + p, 2), CSP, vr(ACCK + p, 2)))
        I('v_pk_fma_f32 %s, %s, %s, %s op_sel:[0,1,0] op_sel_hi:[1,1,1]' % (vr(ACCV + p, 2), vr(WB + 16 + p, 2), CSP, vr(ACCV + p, 2)))
    I('s_add_u32 s%d, s%d, %d' % (sPCS, sPCS, CSGU)); I('s_mov_b32 exec_hi, 0')
    for f in range(4): I('buffer_atomic_add_f32 a%d, v%d, s[%d:%d], s%d offen offset:%d' % (32 + 16 * f, g.vPA, g.sWS, g.sWS + 3, sPCS, 128 * f), tag='pks')
    I('s_mov_b64 exec, -1')
    a.wait(lg='st2')
    for p in range(0, 16, 2):
        I('v_pk_fma_f32 %s, %s, %s, %s op_sel_hi:[1,1,0]' % (vr(ACCK + p, 2), vr(ACCK + p, 2), vr(WB + p, 2), SE))
        I('v_pk_mul_f32 %s, %s, %s' % (vr(ACCV + p, 2), vr(ACCV + p, 2), vr(WB + p, 2)))
    a.wait(vm='wq')
    I('s_sub_u32 s%d, s%d, %d' % (sT[3], sW10, g.WKL - g.WQL)); I('v_add_u32 v%d, s%d, v%d' % (vTo, sT[3], vT))
    for c in range(7): trfrag(a, WB + 4 * c, vTo, 4096 * c, 'qo%d' % c)
    phi(ACCK, ACCQ, 16)
    for p in range(8):
        I('v_cvt_pk_bf16_f32 v%d, v%d, v%d' % (ACCK + p, ACCK + 2 * p, ACCK + 2 * p + 1)); I('v_cvt_pk_bf16_f32 v%d, v%d, v%d' % (ACCV + p, ACCV + 2 * p, ACCV + 2 * p + 1))
    I('s_mov_b64 exec, s[%d:%d]' % (g.sMV28, g.sMV28 + 1))
    for p in range(8): I('v_mov_b32 v%d, s%d' % (ACCV + p, g.sONE))
    I('s_mov_b64 exec, -1')
    pf.stamp('epikv')
    I(MF(ar(aC1, 16), vr(ACCK, 4), vr(ACCV, 4), '0')); I(MF(ar(aC1, 16), vr(ACCK + 4, 4), vr(ACCV + 4, 4), ar(aC1, 16)))
    a.wait(lg='qo6')
    for c in range(7):
        I(MF(ar(aC0, 16), vr(vONE, 4), vr(WB + 4 * c, 4), '0' if c == 0 else ar(aC0, 16)))
        if c == 1:
            for q in range(4): I('ds_write_b128 v%d, %s offset:%d' % (vKW, ar(aC1 + 4 * q, 4), 32 * q))
    I('s_mov_b32 s%d, s%d' % (sCC, g.sRHO))
    I('s_lshl_b32 s%d, s%d, 12' % (sT[5], sH)); I('s_add_u32 s%d, s%d, s%d' % (sT[5], sT[5], sW10)); I('s_add_u32 s%d, s%d, %d' % (sT[5], sT[5], KVACC))
    I('ds_write_b32 v%d, a%d offset:1024' % (vCA, aC0))
    a.wait(vm='pks', lg=0); I('s_barrier')
    pf.stamp('X2')
    RB = WB + 16
    for j in range(4):
        for p in range(4): I('ds_read_b32 v%d, v%d offset:%d' % (RB + 4 * j + p, vRed[j % 2], 4608 * p + 16 * (j // 2)), tag='red%d' % j)
    for j in range(4):
        a.wait(lg='red%d' % j)
        b = RB + 4 * j
        I('v_add_f32 v%d, v%d, v%d' % (b, b, b + 1)); I('v_add_f32 v%d, v%d, v%d' % (b + 2, b + 2, b + 3)); I('v_add_f32 v%d, v%d, v%d' % (b, b, b + 2))
        if j < 2: I('buffer_atomic_add_f32 v%d, v%d, s[%d:%d], s%d offen offset:%d' % (b, g.vPA, g.sWS, g.sWS + 3, sT[5], 256 * j), tag='ast')
    I('s_cmp_eq_u32 s%d, 3' % sW); a.branch('s_cbranch_scc1 kf_noat')
    for j in (2, 3): I('buffer_atomic_add_f32 v%d, v%d, s[%d:%d], s%d offen offset:%d' % (RB + 4 * j, g.vPA, g.sWS, g.sWS + 3, sT[5], 256 * j), counted=False)
    a.label('kf_noat')
    sig_add(g, sPSG)
    pf.stamp('atom')
    QB = WB
    def q_rd(n):
        j, t = n // 4, n % 4
        if t == 0:
            I('s_lshl_b32 s%d, s%d, 12' % (sT[3], sCC)); I('s_sub_u32 s%d, s%d, %d' % (sT[3], sT[3], g.WKL - g.WQL))
            I('v_add_u32 v%d, s%d, v%d' % (vTc, sT[3], vT)); adv(sCC)
        trfrag(a, QB + 4 * (n % 4), vTc, 1024 * t, 'q%d' % n)
    for n in range(3): q_rd(n)
    S = Side(a)
    CQ = ACCK + 8
    S.add(['v_add_u32 v2, %d, v%d' % (g.CSL + 1024, vN4)])
    S.add([((lambda i=i: I('ds_read_b32 v%d, v2 offset:%d' % (CQ + i, 128 * i), tag='cq')), 5) for i in range(4)])
    S.add(['s_lshl_b32 s%d, s%d, 7' % (sT[2], sW), 's_add_u32 s%d, s%d, %d' % (sT[2], sT[2], g.CSQ2L), 'v_add_u32 v3, s%d, v%d' % (sT[2], vN4),
           'v_lshrrev_b32 v4, 5, v1', 'v_lshlrev_b32 v4, 4, v4', 'v_add_u32 v4, s%d, v4' % sT[2], ((lambda: a.wait(lg='cq')), 3),
           'v_add_f32 v%d, v%d, v%d' % (CQ, CQ, CQ + 1), 'v_add_f32 v%d, v%d, v%d' % (CQ + 2, CQ + 2, CQ + 3), 'v_add_f32 v%d, v%d, v%d' % (CQ, CQ, CQ + 2),
           'ds_write_b32 v3, v%d' % CQ])
    S.add([((lambda q=q: I('ds_read_b128 %s, v4 offset:%d' % (vr(ACCV + 4 * q, 4), 32 * q), tag='cq2')), 5) for q in range(4)])
    g.guq = [(j, c) for j in range(28) for c in range(2)]
    for n in range(28):
        if n + 3 < 28: q_rd(n + 3)
        a.wait(lg='q%d' % n)
        I(MF(vr(ACCQ, 16), vr(QB + 4 * (n % 4), 4), vr(XF + 4 * n, 4), '0' if n == 0 else vr(ACCQ, 16)))
        S.emit(12)
    S.drain()
    pf.stamp('q28')
    a.wait(lg='cq2')
    RN = vr(vRN, 2)
    for p in range(0, 16, 2): I('v_pk_fma_f32 %s, %s, %s, %s op_sel:[0,1,0] op_sel_hi:[1,1,1]' % (vr(ACCQ + p, 2), vr(ACCV + p, 2), RN, vr(ACCQ + p, 2)))
    for p in range(0, 16, 2): I('v_pk_fma_f32 %s, %s, %s, %s op_sel_hi:[1,0,0]' % (vr(ACCQ + p, 2), vr(ACCQ + p, 2), RN, SE))
    phi(ACCQ, WB, 16)
    for p in range(8): I('v_cvt_pk_bf16_f32 v%d, v%d, v%d' % (ACCK + p, ACCQ + 2 * p, ACCQ + 2 * p + 1))
    for p in (6, 7): I('v_cndmask_b32 v%d, 0, v%d, s[%d:%d]' % (ACCK + p, ACCK + p, g.sHI, g.sHI + 1))
    I('s_lshl_b32 s%d, s%d, 2' % (sT[0], sRBA)); I('s_add_u32 s%d, s%d, s%d' % (sT[0], sT[0], sW))
    I('s_lshl_b32 s%d, s%d, 6' % (sT[1], sH)); I('s_add_u32 s%d, s%d, s%d' % (sT[0], sT[0], sT[1])); I('s_lshl_b32 s%d, s%d, 11' % (sT[0], sT[0]))
    if PQF: I('s_add_u32 s%d, s%d, %d' % (sT[0], sT[0], PQF))
    I('buffer_store_dwordx4 %s, v%d, s[%d:%d], s%d offen sc1' % (vr(ACCK, 4), vL16, g.sWS, g.sWS + 3, sT[0]), tag='ast')
    I('buffer_store_dwordx4 %s, v%d, s[%d:%d], s%d offen offset:1024 sc1' % (vr(ACCK + 4, 4), vL16, g.sWS, g.sWS + 3, sT[0]), tag='ast')
    pf.stamp('pqst')
    go_poll()
    signal(g, 0, sH, 'ast')
    pf.stamp('sigA')
    I('s_cmp_ge_u32 s2, 224'); a.branch('s_cbranch_scc1 kf_pack')
    poll(g, 'kf_pg', vXS[0], 3, 'v%d' % g.vPT, g.sWS, early='gop')
    wo_loads(g, 0, 2)

def wo_loads(g, lo, hi):
    a = g.a; I = a.I; sT = g.sT
    for i in range(lo, hi):
        I('s_add_u32 s%d, s%d, %d' % (sT[2], g.sR4, i)); I('s_and_b32 s%d, s%d, 3' % (sT[2], sT[2]))
        I('s_lshl_b32 s%d, s%d, 2' % (sT[3], g.sW)); I('s_add_u32 s%d, s%d, s%d' % (sT[2], sT[2], sT[3])); I('s_lshl_b32 s%d, s%d, 11' % (sT[2], sT[2]))
        I('s_lshl_b32 s%d, s%d, 1' % (sT[3], g.sCS)); I('s_and_b32 s%d, s%d, 1' % (sT[4], g.sW)); I('s_add_u32 s%d, s%d, s%d' % (sT[3], sT[3], sT[4]))
        I('s_lshl_b32 s%d, s%d, 15' % (sT[3], sT[3])); I('s_add_u32 s%d, s%d, s%d' % (sT[2], sT[2], sT[3]))
        I('s_xor_b32 s%d, s%d, 32768' % (sT[3], sT[2]))
        I('s_add_u32 s%d, s%d, %d' % (sT[2], sT[2], WOP)); I('s_add_u32 s%d, s%d, %d' % (sT[3], sT[3], WOP))
        for c in range(2):
            for kk in range(2):
                I('buffer_load_dwordx4 %s, v%d, s[%d:%d], s%d offen offset:%d sc1' % (vr(8 + 16 * i + 8 * c + 4 * kk, 4), g.vL16, g.sWS, g.sWS + 3, sT[2 + c], 1024 * kk), tag='wo')

def reduce_tiles(g, ACC, P0, f='v'):
    a = g.a; I = a.I
    for t in range(1, 4):
        for q in range(4): I('ds_write_b128 v%d, %s offset:%d' % (g.vRW[t - 1], vr(ACC + 16 * t + 4 * q, 4, f), 1024 * q))
    a.wait(lg=0); I('s_barrier')
    for q in range(4):
        for t in range(3): I('ds_read_b128 %s, v%d offset:%d' % (vr(P0 + 16 * t + 4 * q, 4), g.vRR, 4096 * t + 1024 * q), tag='rr%d' % q)
    for q in range(4):
        a.wait(lg='rr%d' % q)
        for r in range(4):
            v = 4 * q + r
            I('v_add_f32 v%d, v%d, v%d' % (P0 + v, P0 + v, ACC + v)); I('v_add_f32 v%d, v%d, v%d' % (P0 + 16 + v, P0 + 16 + v, P0 + 32 + v))
        for r in range(4):
            v = 4 * q + r
            I('v_add_f32 v%d, v%d, v%d' % (P0 + v, P0 + v, P0 + 16 + v))

def resid_add(g, P0, RES, OUT):
    a = g.a; I = a.I
    T = P0 + 16
    for p in range(8): I('v_cvt_pk_bf16_f32 v%d, v%d, v%d' % (T + p, P0 + 2 * p, P0 + 2 * p + 1))
    for pr in range(2):
        for k in range(2): I('v_permlane32_swap_b32 v%d, v%d' % (T + 4 * pr + k, T + 4 * pr + 2 + k))
    for p in range(8):
        I('v_lshlrev_b32 v%d, 16, v%d' % (P0 + 2 * p, T + p)); I('v_and_b32 v%d, 0xffff0000, v%d' % (P0 + 2 * p + 1, T + p))
        I('v_lshlrev_b32 v%d, 16, v%d' % (T + 16 + 2 * p, RES + p)); I('v_and_b32 v%d, 0xffff0000, v%d' % (T + 16 + 2 * p + 1, RES + p))
    for e in range(16): I('v_add_f32 v%d, v%d, v%d' % (P0 + e, P0 + e, T + 16 + e))
    for p in range(8): I('v_cvt_pk_bf16_f32 v%d, v%d, v%d' % (OUT + p, P0 + 2 * p, P0 + 2 * p + 1))


def colsum(g, lo, hi):
    a = g.a; I = a.I
    for i in range(4): I('v_mov_b32 v%d, s%d' % (4 + i, g.sONE))
    for j in range(lo, hi):
        for c in range(2): I(MF(ar(224 + 16 * c, 16), 'v[4:7]', ar(112 * c + 4 * j, 4), '0' if j == 0 else ar(224 + 16 * c, 16)))

def phase_B(g):
    a = g.a; I = a.I; sT = g.sT; pf = g.pf; cfg = g.cfg
    sW = g.sW; vL16 = g.vL16
    WO, ACC, KV, NUM = 8, 72, 136, 168
    aPQ = 224
    sRT, sCT, sKVB, sPQB, sRX = g.S4[0:5]
    wo_loads(g, 2, 4)
    I('s_lshr_b32 s%d, s%d, 1' % (sT[0], sW)); I('s_and_b32 s%d, s%d, 1' % (sT[1], sW))
    I('s_lshl_b32 s%d, s%d, 1' % (sRT, g.sRB64)); I('s_add_u32 s%d, s%d, s%d' % (sRT, sRT, sT[0]))
    I('s_lshl_b32 s%d, s%d, 1' % (sCT, g.sCS)); I('s_add_u32 s%d, s%d, s%d' % (sCT, sCT, sT[1]))
    g.sRT, g.sCT = sRT, sCT
    I('s_mul_i32 s%d, s%d, %d' % (sT[2], sRT, 32 * 896)); I('s_lshl_b32 s%d, s%d, 6' % (sT[3], sCT)); I('s_add_u32 s%d, s%d, s%d' % (sT[2], sT[2], sT[3]))
    for i in range(2):
        I('buffer_load_dwordx4 %s, v%d, s[%d:%d], s%d offen offset:%d' % (vr(g.vHK + 4 * i, 4), g.vXo, g.sX, g.sX + 3, sT[2], 32 * i), tag='xr')
    for _ in range(min(cfg.get('b_gu', 0), len(g.guq))): gu_load(g, *g.guq.pop(0))
    I('s_lshl_b32 s%d, s%d, 10' % (sT[2], sW)); I('s_add_u32 s%d, s%d, %d' % (sT[2], sT[2], CNT))
    I('v_and_b32 v2, 3, v1'); I('v_lshlrev_b32 v2, 8, v2'); I('v_add_u32 v%d, s%d, v2' % (g.vPA, sT[2]))
    I('s_lshl_b32 s%d, s%d, 14' % (sKVB, sW)); I('s_add_u32 s%d, s%d, %d' % (sKVB, sKVB, KVACC))
    I('s_lshl_b32 s%d, s%d, 19' % (sPQB, sW)); I('s_lshl_b32 s%d, s%d, 12' % (sT[2], g.sRB64)); I('s_add_u32 s%d, s%d, s%d' % (sPQB, sPQB, sT[2]))
    if PQF: I('s_add_u32 s%d, s%d, %d' % (sPQB, sPQB, PQF))
    I('s_lshl_b32 s%d, s%d, 11' % (sRX, sT[0]))
    pf.stamp('pfB')
    poll(g, 'kf_p1', g.vPA, 0xf, 16, g.sWS)
    pf.stamp('sync1')
    def loads(i):
        I('s_add_u32 s%d, s%d, %d' % (sT[2], g.sR4, i)); I('s_and_b32 s%d, s%d, 3' % (sT[2], sT[2]))
        I('s_lshl_b32 s%d, s%d, 12' % (sT[3], sT[2])); I('s_add_u32 s%d, s%d, s%d' % (sT[3], sT[3], sKVB))
        I('s_lshl_b32 s%d, s%d, 17' % (sT[4], sT[2])); I('s_add_u32 s%d, s%d, s%d' % (sT[4], sT[4], sPQB))
        I('s_add_u32 s%d, s%d, s%d' % (sT[5], sT[4], sRX)); I('s_xor_b32 s%d, s%d, 2048' % (sT[4], sT[5]))
        for q in range(4):
            I('buffer_load_dwordx4 %s, v%d, s[%d:%d], s%d offen offset:%d sc1' % (vr(KV + 16 * (i % 2) + 4 * q, 4), vL16, g.sWS, g.sWS + 3, sT[3], 1024 * q), tag='kv%d' % i)
        for rt in range(2):
            for kk in range(2):
                I('buffer_load_dwordx4 %s, v%d, s[%d:%d], s%d offen offset:%d sc1' % (ar(aPQ + 16 * (i % 2) + 8 * rt + 4 * kk, 4), vL16, g.sWS, g.sWS + 3, sT[5] if rt == 0 else sT[4], 1024 * kk), tag='pq%d' % i)
    def o_ops(i, rt):
        n = NUM + 32 * (i % 2) + 16 * rt; t = 2 + rt
        ops = ['v_cvt_pk_bf16_f32 v%d, v%d, v%d' % (t, n + 14, n + 14), 'v_and_b32 v%d, 0xffff0000, v%d' % (t, t),
               'v_add_f32 v%d, s%d, v%d' % (t, g.sEPS, t), 'v_rcp_f32 v%d, v%d' % (t, t)]
        for v in range(14): ops.append('v_mul_f32 v%d, v%d, v%d' % (n + v, n + v, t))
        for p in range(7): ops.append('v_cvt_pk_bf16_f32 v%d, v%d, v%d' % (n + p, n + 2 * p, n + 2 * p + 1))
        ops.append('v_mov_b32 v%d, 0' % (n + 7))
        return ops
    def num(i):
        b = KV + 16 * (i % 2)
        a.wait(vm='kv%d' % i)
        for p in range(8): I('v_cvt_pk_bf16_f32 v%d, v%d, v%d' % (b + p, b + 2 * p, b + 2 * p + 1))
        a.wait(vm='pq%d' % i)
        for rt in range(2):
            for kk in range(2):
                n = NUM + 32 * (i % 2) + 16 * rt
                I(MF(vr(n, 16), vr(b + 4 * kk, 4), ar(aPQ + 16 * (i % 2) + 8 * rt + 4 * kk, 4), '0' if kk == 0 else vr(n, 16)))
        if i + 2 < 4: loads(i + 2)
    def gemm(i, rt, S, per):
        for kk in range(2):
            for c in range(2):
                acc = ACC + 16 * (2 * rt + c)
                I(MF(vr(acc, 16), vr(WO + 16 * i + 8 * c + 4 * kk, 4), vr(NUM + 32 * (i % 2) + 16 * rt + 4 * kk, 4), '0' if (i == 0 and kk == 0) else vr(acc, 16)))
                S.emit(per)
    loads(0); loads(1)
    S = Side(a)
    num(0)
    for i in range(4):
        S.add(o_ops(i, 0)); S.drain()
        S.add(o_ops(i, 1))
        gemm(i, 0, S, 28); S.drain()
        if i + 1 < 4: num(i + 1)
        if i == 2:
            for _ in range(min(cfg.get('b_gu2', 12), len(g.guq))): gu_load(g, *g.guq.pop(0))
        gemm(i, 1, S, 0)
    pf.stamp('gemmB')
    reduce_tiles(g, ACC, NUM)
    for _ in range(min(cfg.get('b_gu3', 10), len(g.guq))): gu_load(g, *g.guq.pop(0))
    resid_add(g, NUM, g.vHK, g.vHK)
    I('s_mul_i32 s%d, s%d, 28' % (sT[0], sRT)); I('s_lshl_b32 s%d, s%d, 1' % (sT[1], sCT)); I('s_add_u32 s%d, s%d, s%d' % (sT[0], sT[0], sT[1]))
    I('s_lshl_b32 s%d, s%d, 10' % (sT[0], sT[0])); I('s_add_u32 s%d, s%d, %d' % (sT[0], sT[0], HF))
    for i in range(2):
        I('buffer_store_dwordx4 %s, v%d, s[%d:%d], s%d offen offset:%d sc1' % (vr(g.vHK + 4 * i, 4), vL16, g.sWS, g.sWS + 3, sT[0], 1024 * i), tag='bst')
    I('v_mov_b32 v2, 0'); I('v_mov_b32 v3, 0')
    for p in range(8):
        I('v_dot2c_f32_bf16 v2, s%d, v%d' % (g.sONE, g.vHK + p)); I('v_dot2c_f32_bf16 v3, v%d, v%d' % (g.vHK + p, g.vHK + p))
    I('s_lshl_b32 s%d, s%d, 14' % (sT[0], sCT)); I('s_lshl_b32 s%d, s%d, 8' % (sT[1], sRT))
    I('s_add_u32 s%d, s%d, s%d' % (sT[0], sT[0], sT[1])); I('s_add_u32 s%d, s%d, %d' % (sT[0], sT[0], STATS))
    I('v_mov_b32 v4, v2'); I('v_mov_b32 v5, v3'); I('v_lshlrev_b32 v6, 3, v1')
    I('v_permlane32_swap_b32 v2, v4'); I('v_permlane32_swap_b32 v3, v5')
    I('v_add_f32 v8, v2, v4'); I('v_add_f32 v9, v3, v5')
    I('s_mov_b32 exec_hi, 0')
    I('buffer_store_dwordx2 v[8:9], v6, s[%d:%d], s%d offen sc1' % (g.sWS, g.sWS + 3, sT[0]), tag='bst')
    I('s_mov_b64 exec, -1')
    pf.stamp('hst')
    for _ in range(min(8, len(g.guq))): gu_load(g, *g.guq.pop(0))
    I('s_lshr_b32 s%d, s%d, 1' % (sT[5], g.sRB64))
    I('s_lshl_b32 s%d, s%d, 8' % (g.sT[6], sT[5])); I('s_add_u32 s%d, s%d, %d' % (g.sT[6], g.sT[6], CNT + 4096))
    a.wait(vm='bst'); I('s_barrier'); sig_add(g, g.sT[6])
    pf.stamp('sigB')

def phase_C(g):
    a = g.a; I = a.I; sT = g.sT; pf = g.pf; cfg = g.cfg
    sW = g.sW; vL16 = g.vL16
    ACC, HB, NMF, CI, TM, CSF = 8, 72, 96, 108, 116, 132
    NHB = 6
    vHQ = list(range(124, 132))
    I('s_lshl_b32 s%d, s%d, 2' % (sT[3], g.sFS)); I('s_add_u32 s%d, s%d, s%d' % (sT[3], sT[3], sW)); I('s_lshl_b32 s%d, s%d, 8' % (sT[3], sT[3])); I('s_add_u32 s%d, s%d, %d' % (sT[3], sT[3], CSGU))
    I('v_and_b32 v2, 31, v1'); I('v_lshlrev_b32 v3, 2, v2')
    for c in range(2): I('buffer_load_dword v%d, v3, s[%d:%d], s%d offen offset:%d sc1' % (g.vCSg + c, g.sWS, g.sWS + 3, sT[3], 128 * c), tag='csg')
    while g.guq: gu_load(g, *g.guq.pop(0))
    sHG, sHL = g.S4[5], g.S4[6]
    sO = g.S4[7:11]
    I('s_mul_i32 s%d, s%d, 112' % (sT[3], g.sCT)); I('s_mul_i32 s%d, s%d, 28' % (sT[4], sW)); I('s_add_u32 s%d, s%d, s%d' % (sT[3], sT[3], sT[4]))
    I('s_lshl_b32 s%d, s%d, 10' % (sT[3], sT[3])); I('s_add_u32 s%d, s%d, %d' % (sT[3], sT[3], WDP))
    for q in range(4):
        I('s_add_u32 s%d, s%d, %d' % (sT[4], g.sR4, q)); I('s_and_b32 s%d, s%d, 3' % (sT[4], sT[4]))
        I('s_mul_i32 s%d, s%d, 7168' % (sT[5], sT[4])); I('v_add_u32 v%d, s%d, v%d' % (vHQ[q], sT[5], vL16)); I('v_add_u32 v%d, 57344, v%d' % (vHQ[4 + q], vHQ[q]))
        I('s_add_u32 s%d, s%d, s%d' % (g.sQ[q], sT[5], sT[3]))
    I('s_and_b32 s%d, s%d, 1' % (sT[4], g.sCT)); I('s_mul_i32 s%d, s%d, 114688' % (sT[4], sT[4])); I('s_sub_u32 s%d, 114688, s%d' % (sT[5], sT[4]))
    for q in range(4): I('s_sub_u32 s%d, s%d, s%d' % (g.sQ[q], g.sQ[q], sT[4]))
    g.vLd = [g.vPT, g.vLo[1], g.vLo[2], g.vLo[3]]
    I('v_add_u32 v%d, s%d, v%d' % (g.vLd[0], sT[4], vL16)); I('v_add_u32 v%d, 4096, v%d' % (g.vLd[1], g.vLd[0]))
    I('v_add_u32 v%d, s%d, v%d' % (g.vLd[2], sT[5], vL16)); I('v_add_u32 v%d, 4096, v%d' % (g.vLd[3], g.vLd[2]))
    g.vLo = g.vLd
    I('s_mul_i32 s%d, s%d, %d' % (sHG, g.sRB128, 4 * 28672)); I('s_mul_i32 s%d, s%d, 7168' % (sHL, sW))
    I('s_add_u32 s%d, s%d, s%d' % (sHG, sHG, sHL)); I('s_add_u32 s%d, s%d, %d' % (sHG, sHG, HF))
    I('s_lshl_b32 s%d, s%d, 3' % (sT[2], g.sFS)); I('s_lshl_b32 s%d, s%d, 1' % (sT[3], sW)); I('s_add_u32 s%d, s%d, s%d' % (sT[2], sT[2], sT[3]))
    I('s_mul_i32 s%d, s%d, %d' % (sT[0], g.sRB128, 4 * 112)); I('s_add_u32 s%d, s%d, s%d' % (sT[0], sT[0], sT[2]))
    I('s_lshl_b32 s%d, s%d, 10' % (sT[0], sT[0])); I('s_add_u32 s%d, s%d, %d' % (sT[0], sT[0], ACTF))
    for rt in range(4): I('s_add_u32 s%d, s%d, %d' % (sO[rt], sT[0], rt * 112 * 1024))
    I('v_and_b32 v2, 31, v1'); I('v_lshrrev_b32 v3, 5, v1')
    I('v_mul_u32_u24 v%d, %d, v3' % (TM, 7 * 16384)); I('v_lshl_add_u32 v%d, v2, 3, v%d' % (TM, TM))
    I('s_lshl_b32 s%d, s%d, 2' % (sT[0], g.sRB128)); I('s_add_u32 s%d, s%d, s%d' % (sT[0], sT[0], sW))
    I('s_lshl_b32 s%d, s%d, 8' % (sT[1], sT[0])); I('s_add_u32 s%d, s%d, %d' % (sT[1], sT[1], STATS))
    I('s_lshl_b32 s%d, s%d, 8' % (sT[2], g.sRB128)); I('s_add_u32 s%d, s%d, %d' % (sT[2], sT[2], CNT + 4096)); I('v_mov_b32 v%d, s%d' % (g.vPA, sT[2]))
    pf.stamp('csC')
    poll(g, 'kf_p2', g.vPA, 1, 14, g.sWS)
    pf.stamp('sync2')
    def h_dma(rt, lo=0, hi=7):
        for k in range(lo, hi):
            if k % 4 == 0 or k == lo:
                kb = k - k % 4
                I('s_add_u32 s%d, s%d, %d' % (sT[3], sHG, rt * 28672 + 1024 * kb)); I('s_add_u32 m0, s%d, %d' % (sHL, g.HL + rt * 28672 + 1024 * kb))
            I('buffer_load_dwordx4 v%d, s[%d:%d], s%d offen offset:%d sc1 lds' % (vL16, g.sWS, g.sWS + 3, sT[3], 1024 * (k % 4)), tag='h%d' % rt)
    h_dma(0)
    vSP = 140
    for p in range(7):
        I('buffer_load_dwordx2 %s, v%d, s[%d:%d], s%d offen sc1' % (vr(vSP + 2 * p, 2), TM, g.sWS, g.sWS + 3, sT[1]), tag='sp')
        if p < 6: I('s_add_u32 s%d, s%d, 16384' % (sT[1], sT[1]))
    for c in range(2):
        f = CSF + 4 * c
        I('v_mov_b32 v4, v%d' % (g.vCSg + c))
        I('v_cvt_pk_bf16_f32 v5, v4, v4'); I('v_and_b32 v5, 0xffff0000, v5'); I('v_sub_f32 v6, v4, v5')
        I('v_cvt_pk_bf16_f32 v%d, v4, v6' % f); I('v_and_b32 v5, 0xffff0000, v%d' % f); I('v_sub_f32 v6, v6, v5')
        I('v_cvt_pk_bf16_f32 v%d, v6, 0' % (f + 1))
        I('v_cndmask_b32 v%d, 0, v%d, s[%d:%d]' % (f, f, g.sHI, g.sHI + 1)); I('v_cndmask_b32 v%d, 0, v%d, s[%d:%d]' % (f + 1, f + 1, g.sHI, g.sHI + 1))
        I('v_mov_b32 v%d, 0' % (f + 2)); I('v_mov_b32 v%d, 0' % (f + 3))
    I('s_lshl_b32 s%d, s%d, 8' % (sT[2], sW)); I('s_add_u32 s%d, s%d, %d' % (sT[2], sT[2], CNT + 5 * 4096)); I('v_mov_b32 v%d, s%d' % (g.vPA, sT[2]))
    a.wait(vm='h0'); I('s_barrier')
    pf.stamp('h0')
    def stats_ops():
        ops = [((lambda: a.wait(vm='sp')), 3)]
        for p in range(1, 7): ops += ['v_add_f32 v%d, v%d, v%d' % (vSP, vSP, vSP + 2 * p), 'v_add_f32 v%d, v%d, v%d' % (vSP + 1, vSP + 1, vSP + 2 * p + 1)]
        ops += ['v_mov_b32 v5, v%d' % vSP, 'v_mov_b32 v6, v%d' % (vSP + 1), 's_lshl_b32 s%d, s%d, 9' % (sT[1], sW), 's_add_u32 s%d, s%d, %d' % (sT[1], sT[1], g.STL),
                'v_permlane32_swap_b32 v%d, v5' % vSP, 'v_permlane32_swap_b32 v%d, v6' % (vSP + 1),
                'v_add_f32 v%d, v%d, v5' % (vSP, vSP), 'v_add_f32 v%d, v%d, v6' % (vSP + 1, vSP + 1)]
        b = Asm(); ln_finish(b, 'v%d' % vSP, 'v%d' % (vSP + 1), 'v5', 'v6', 'v7', 'v3')
        ops += [l.strip() for l in b.out if not l.strip().startswith('s_nop')]
        X = vSP + 4
        ops += ['v_sub_f32 v3, 0, v3', 'v_cvt_pk_bf16_f32 v%d, v3, v3' % X, 'v_mov_b32 v%d, v%d' % (X + 1, X), 'v_mul_f32 v%d, %s, v7' % (X + 2, f32(-LOG2E)), 'v_mul_f32 v%d, v6, v6' % (X + 3),
                'v_lshlrev_b32 v4, 4, v2', 'v_add_u32 v5, s%d, v4' % sT[1], 'v_add_u32 v4, %d, v4' % g.STL,
                ((lambda: I('ds_write_b128 v5, %s' % vr(X, 4), tag='stw')), 6)]
        return ops
    def st_reads():
        for rt in range(4):
            I('ds_read_b64 %s, v4 offset:%d' % (vr(NMF + 2 * rt, 2), 512 * rt), tag='st')
            I('ds_read_b64 %s, v4 offset:%d' % (vr(CI + 2 * rt, 2), 512 * rt + 8), tag='st')
        I('v_mov_b32 v%d, 0' % (NMF + 8)); I('v_mov_b32 v%d, 0' % (NMF + 9))
    def acc(rt, c): return ACC + 32 * (rt % 2) + 16 * c
    def epi_ops(rt, c):
        b = acc(rt, c); c1, ir2 = CI + 2 * rt, CI + 2 * rt + 1
        ops = []
        for j in range(8): ops += ['v_mul_f32 v%d, v%d, v%d' % (TM + j, c1, b + j)]
        for j in range(8): ops += ['v_exp_f32 v%d, v%d' % (TM + j, TM + j), 'v_mul_f32 v%d, v%d, v%d' % (b + j, b + j, b + 8 + j)]
        for j in range(8): ops += ['v_fma_f32 v%d, v%d, v%d, v%d' % (TM + j, TM + j, ir2, ir2)]
        for j in range(8):
            ops += ['v_rcp_f32 v%d, v%d' % (TM + j, TM + j)]
            if j > 0: ops += ['v_mul_f32 v%d, v%d, v%d' % (b + j - 1, b + j - 1, TM + j - 1)]
        ops += ['v_cvt_pk_bf16_f32 v%d, v%d, v%d' % (b + 8 + p, b + 2 * p, b + 2 * p + 1) for p in range(3)]
        ops += ['v_mul_f32 v%d, v%d, v%d' % (b + 7, b + 7, TM + 7), 'v_cvt_pk_bf16_f32 v%d, v%d, v%d' % (b + 11, b + 6, b + 7)]
        ops.append(((lambda: I('buffer_store_dwordx4 %s, v%d, s[%d:%d], s%d offen offset:%d sc1' % (vr(b + 8, 4), vL16, g.sWS, g.sWS + 3, sO[rt], 1024 * c), tag='cst')), 16))
        return ops
    seq = [(rt, j) for rt in range(4) for j in range(28)]
    vis = 0
    def h_rd(n):
        nonlocal vis
        rt, j = seq[n]
        if rt > vis:
            vis = rt
            if rt == 1: a.wait(vm='h1', lg='stw')
            else: a.wait(vm='h%d' % rt)
            I('s_barrier')
            if rt == 1: st_reads()
        I('ds_read_b128 %s, v%d offset:%d' % (vr(HB + 4 * (n % NHB), 4), vHQ[4 * (rt // 2) + j // 7], (rt % 2) * 28672 + (j % 7) * 1024), tag='hr%d' % n)
    LA = NHB - 1
    for n in range(LA): h_rd(n)
    S = Side(a)
    wdq = [(j, c) for j in range(g.n_wd1) for c in range(2)]
    def hd(rt, k): return ((lambda: h_dma(rt, k, k + 1)), 22)
    for n, (rt, j) in enumerate(seq):
        if j == 0:
            S.drain()
            if rt == 0:
                S.add([hd(1, k) for k in range(7)]); S.add(stats_ops()); S.add([hd(2, k) for k in range(7)])
                S.add([((lambda: I('buffer_load_dword v%d, v%d, s[%d:%d], 0 offen sc1' % (g.vPoll, g.vPA, g.sWS, g.sWS + 3), tag='wdp')), 16)])
            if rt == 1:
                S.add([hd(3, k) for k in range(7)])
                poll(g, 'kf_pw', g.vPA, 1, 7, g.sWS, early='wdp')
            if rt >= 1: S.add(epi_ops(rt - 1, 0) + epi_ops(rt - 1, 1))
            if rt % 2 == 0: pf.stamp('rt%d' % rt)
        if n + LA == 28: S.drain()
        if n + LA < len(seq): h_rd(n + LA)
        a.wait(lg='hr%d' % n)
        for c in range(2):
            I(MF(vr(acc(rt, c), 16), ar(112 * c + 4 * j, 4), vr(HB + 4 * (n % NHB), 4), '0' if j == 0 else vr(acc(rt, c), 16)))
            if c == 0 and n >= 36 and n % 5 in (0, 2) and wdq: wd_load(g, *wdq.pop(0))
            elif not (j == 0 and rt >= 1): S.emit(20 if c == 0 else 24)
        if j == 27:
            a.wait(lg='st')
            for c in range(2): I(MF(vr(acc(rt, c), 16), vr(CSF + 4 * c, 4), vr(NMF + 2 * rt, 4), vr(acc(rt, c), 16)))
    S.drain()
    pf.stamp('mfmaC')
    assert not wdq
    g.wdq2 = [(j, c) for j in range(g.n_wd1, 28) for c in range(2)]
    for _ in range(8): wd_load(g, *g.wdq2.pop(0))
    S.add(epi_ops(3, 0) + epi_ops(3, 1)); S.drain()
    pf.stamp('actst')
    for _ in range(8): wd_load(g, *g.wdq2.pop(0))
    signal(g, 2, g.sRB128, 'cst')
    pf.stamp('sigC')

def phase_D(g):
    a = g.a; I = a.I; sT = g.sT; pf = g.pf; cfg = g.cfg
    sW = g.sW; vL16 = g.vL16
    ACC, P0 = 8, 72
    while g.wdq2: wd_load(g, *g.wdq2.pop(0))
    sA = g.S4[11:15]
    I('s_mul_i32 s%d, s%d, 112' % (sT[0], g.sRT)); I('s_mul_i32 s%d, s%d, 28' % (sT[1], sW)); I('s_add_u32 s%d, s%d, s%d' % (sT[0], sT[0], sT[1]))
    I('s_lshl_b32 s%d, s%d, 10' % (sT[0], sT[0])); I('s_add_u32 s%d, s%d, %d' % (sT[0], sT[0], ACTF))
    I('s_and_b32 s%d, s%d, 1' % (sT[2], g.sRT)); I('s_mul_i32 s%d, s%d, 114688' % (sT[2], sT[2])); I('s_sub_u32 s%d, 114688, s%d' % (sT[3], sT[2]))
    I('s_sub_u32 s%d, s%d, s%d' % (sT[0], sT[0], sT[2]))
    for q in range(4):
        I('s_add_u32 s%d, s%d, %d' % (sT[4], g.sR4, q)); I('s_and_b32 s%d, s%d, 3' % (sT[4], sT[4]))
        I('s_mul_i32 s%d, s%d, 7168' % (sT[4], sT[4])); I('s_add_u32 s%d, s%d, s%d' % (sA[q], sT[4], sT[0]))
    vA = [124, 125, 126, 127]
    I('v_add_u32 v%d, s%d, v%d' % (vA[0], sT[2], vL16)); I('v_add_u32 v%d, 4096, v%d' % (vA[1], vA[0]))
    I('v_add_u32 v%d, s%d, v%d' % (vA[2], sT[3], vL16)); I('v_add_u32 v%d, 4096, v%d' % (vA[3], vA[2]))
    I('s_lshr_b32 s%d, s%d, 1' % (sT[2], g.sRB64)); I('s_lshl_b32 s%d, s%d, 8' % (sT[2], sT[2])); I('s_add_u32 s%d, s%d, %d' % (sT[2], sT[2], CNT + 8192))
    I('v_mov_b32 v%d, s%d' % (g.vPA, sT[2]))
    pf.stamp('pfD')
    poll(g, 'kf_p3', g.vPA, 1, 14, g.sWS)
    pf.stamp('sync3')
    NR = g.act_ring; AB = g.act_base
    def issue(j, rt):
        b = AB + 8 * (j % NR); r = j % 7
        I('buffer_load_dwordx4 %s, v%d, s[%d:%d], s%d offen offset:%d sc1' % (ar(b + 4 * rt, 4), vA[2 * rt + (r >= 4)], g.sWS, g.sWS + 3, sA[j // 7], 1024 * (r % 4)), tag='k%d' % j)
    LA = min(NR - 1, cfg.get('d_la', 6))
    for j in range(LA): issue(j, 0); issue(j, 1)
    for j in range(28):
        a.wait(vm='k%d' % j)
        if j % 8 == 0: pf.stamp('k%d' % j)
        b = AB + 8 * (j % NR)
        for k, (rt, c) in enumerate(((0, 0), (1, 0), (1, 1), (0, 1))):
            f, r = g.wd_regs[j][c]
            ac = ACC + 16 * (2 * rt + c)
            I(MF(vr(ac, 16), vr(r, 4, f), ar(b + 4 * rt, 4), '0' if j == 0 else vr(ac, 16)))
            if j + LA < 28 and k < 2: issue(j + LA, k)
    pf.stamp('gemmD')
    reduce_tiles(g, ACC, P0)
    resid_add(g, P0, g.vHK, ACC)
    I('s_mul_i32 s%d, s%d, %d' % (sT[2], g.sRT, 32 * 896)); I('s_lshl_b32 s%d, s%d, 6' % (sT[3], g.sCT)); I('s_add_u32 s%d, s%d, s%d' % (sT[2], sT[2], sT[3]))
    for i in range(2):
        I('buffer_store_dwordx4 %s, v%d, s[%d:%d], s%d offen offset:%d' % (vr(ACC + 4 * i, 4), g.vXo, g.sOUT, g.sOUT + 3, sT[2], 32 * i))
    pf.stamp('out')
    if PROF: I('s_waitcnt vmcnt(0)')
    pf.dump(g.sWS)
    I('s_endpgm')

def pack_wd(g):
    a = g.a; I = a.I; sT = g.sT; sW = g.sW; vL16 = g.vL16
    a.label('kf_pack'); a.reset_counts()
    I('s_cmp_ge_u32 s2, 252'); a.branch('s_cbranch_scc1 kf_end')
    I('s_sub_u32 s%d, s2, 224' % sT[5]); I('s_lshl_b32 s%d, s%d, 2' % (sT[0], sT[5])); I('s_add_u32 s%d, s%d, s%d' % (sT[0], sT[0], sW))
    I('s_mul_i32 s%d, s%d, 14336' % (sT[1], sT[0])); I('s_mul_i32 s%d, s%d, 14336' % (sT[2], sW))
    for i in range(14):
        if i % 4 == 0:
            I('s_add_u32 s%d, s%d, %d' % (sT[3], sT[1], 1024 * i)); I('s_add_u32 m0, s%d, %d' % (sT[2], 1024 * i))
        I('buffer_load_dwordx4 v%d, s[%d:%d], s%d offen offset:%d lds' % (vL16, g.sD, g.sD + 3, sT[3], 1024 * (i % 4)))
    I('v_lshrrev_b32 v3, 5, v1'); I('v_bfe_u32 v4, v1, 2, 2'); I('v_lshl_add_u32 v4, v3, 2, v4'); I('v_mul_u32_u24 v4, 896, v4')
    I('v_bfe_u32 v5, v1, 4, 1'); I('v_lshl_add_u32 v4, v5, 5, v4'); I('v_and_b32 v5, 3, v1'); I('v_lshl_add_u32 v4, v5, 3, v4')
    I('v_add_u32 v4, s%d, v4' % sT[2])
    I('s_lshl_b32 s%d, s%d, 10' % (sT[1], sT[0])); I('s_add_u32 s%d, s%d, %d' % (sT[1], sT[1], WDP))
    I('s_mul_i32 s%d, s%d, 37' % (sT[5], sT[5])); I('s_lshr_b32 s%d, s%d, 8' % (sT[5], sT[5]))
    a.wait(vm=0)
    B0 = 80
    for ct in range(18):
        if ct < 14: trfrag(a, B0 + 4 * ct, 4, 64 * ct, 't%d' % ct, d2=8 * 896)
        if ct >= 4:
            cc = ct - 4
            a.wait(lg='t%d' % cc)
            I('buffer_store_dwordx4 %s, v%d, s[%d:%d], s%d offen sc1' % (vr(B0 + 4 * cc, 4), vL16, g.sWS, g.sWS + 3, sT[1]), tag='wst')
            I('s_add_u32 s%d, s%d, %d' % (sT[1], sT[1], 112 * 1024))
    signal(g, 5, sT[5], 'wst')
    if PROF:
        nm = list(g.pf.names); g.pf.n = 14; g.pf.stamp('x'); g.pf.names = nm[:-1]; g.pf.n = len(nm) - 1; g.pf.dump(g.sWS)

def gen_F(a, cfg=None):
    cfg = cfg or {}
    name = KN + '_kernel'
    head(a, name)
    g = setup(a, cfg)
    homes = [('v', 156 + 4 * k) for k in range(19)] + [('a', 224 + 4 * k) for k in range(8)] + [('v', 140 + 4 * k) for k in range(3)] + [('a', 4 * k) for k in range(26)]
    g.n_wd1 = 15
    g.wd_regs = [(homes[2 * j], homes[2 * j + 1]) for j in range(28)]
    g.act_base, g.act_ring = 104, 15
    phase_A(g); phase_B(g); phase_C(g); phase_D(g); pack_wd(g)
    a.label('kf_end')
    a.I('s_endpgm')
    a.raw('kf_pad:\n.fill (49664 - (kf_pad - %s)) / 4, 4, 0xbf800000' % name)
    return (name, 256, 256, 163840, 512, 102, 256)
```

```python
import sys, json
from gen_common import *
from gen_g import gen_F
ref = open('cdna_kernels/%s.s.ref' % KN).read().splitlines()
top = ''
for l in ref:
    if not l.startswith(';'): break
    if '@launch' in l or 'Override launch' in l or 'grid=ceil' in l: continue
    top += l + '\n'
top += '; Generated by work/genf.py (hand-written generator). One persistent launch, 4 phases with counter hand-offs.\n'
out = sys.argv[1] if len(sys.argv) > 1 else 'f.s'
cfg = json.loads(sys.argv[2]) if len(sys.argv) > 2 else {}
a = Asm()
name, grid, block, lds, vg, sg, acc = gen_F(a, cfg)
L = top + "; @launch grid=(%d,1,1) block=(%d,1,1) lds=%d\n" % (grid, block, lds)
open(out, "w").write(L + HDR + a.text() + '.section .rodata,"a"\n' + kd(name, vg, sg, acc))
print(out, "instrs", a.count, "nop states", a.nops)
```

```python
from gen_common import *
from types import SimpleNamespace as NS

CNT = KVACC + (128 << 10)
SPIN_MAX = 1 << 22
V3 = ('v_fma_f32', 'v_cvt_pk_bf16_f32', 'v_add3_u32', 'v_lshl_add_u32', 'v_bfe_u32', 'v_cndmask_b32', 'v_mul_lo_u32', 'v_accvgpr_read_b32', 'v_accvgpr_write_b32')

def MF(d, A, B, C): return 'v_mfma_f32_32x32x16_bf16 %s, %s, %s, %s' % (d, A, B, C)

def cost(o):
    if isinstance(o, tuple): return o[1]
    op = o.split()[0]
    if op in TRANS: return 8.4
    if op in V3 or op.startswith('v_pk'): return 5.3
    if op.startswith('v_'): return 4.2 if '0x' not in o else 5.3
    if op.startswith('ds_'): return 5.3
    if op.startswith('buffer_'): return 16
    return 3.0

class Side:
    def __init__(self, a): self.a = a; self.q = []; self.credit = 0.0
    def add(self, ops): self.q += list(ops)
    def _one(self):
        o = self.q.pop(0)
        if isinstance(o, tuple): o[0]()
        else: self.a.I(o)
    def emit(self, budget):
        self.credit = min(self.credit + budget, budget + 8)
        while self.q and cost(self.q[0]) <= self.credit + 2:
            self.credit -= cost(self.q[0]); self._one()
    def drain(self):
        while self.q: self._one()
        self.credit = 0.0

def poll(g, lbl, addr_v, lanes_mask, target, srdreg, early=None):
    a = g.a; I = a.I
    saved = list(a.vm)
    I('s_mov_b32 s%d, 0' % g.sSPIN)
    if early:
        a.wait(vm=early)
        a.branch('s_branch %s_chk' % lbl)
    a.label(lbl)
    I('buffer_load_dword v%d, v%d, s[%d:%d], 0 offen sc1' % (g.vPoll, addr_v, srdreg, srdreg + 3), counted=False)
    I('s_add_u32 s%d, s%d, 1' % (g.sSPIN, g.sSPIN))
    I('s_waitcnt vmcnt(0)')
    a.label(lbl + '_chk')
    I('v_cmp_le_u32 vcc, %s, v%d' % (target, g.vPoll))
    I('s_cmp_ge_u32 s%d, %d' % (g.sSPIN, SPIN_MAX))
    a.branch('s_cbranch_scc1 %s_ok' % lbl)
    I('s_and_b32 s%d, vcc_lo, %d' % (g.sT[7], lanes_mask))
    I('s_cmp_eq_u32 s%d, %d' % (g.sT[7], lanes_mask))
    a.branch('s_cbranch_scc1 %s_ok' % lbl)
    I('s_sleep 1')
    a.branch('s_branch %s' % lbl)
    a.label(lbl + '_ok')
    a.vm = saved

def sig_add(g, off_s):
    I = g.a.I
    I('v_mov_b32 v2, 1'); I('v_mov_b32 v3, 0')
    I('s_mov_b64 exec, 1')
    I('buffer_atomic_add v2, v3, s[%d:%d], s%d offen sc1' % (g.sKZ, g.sKZ + 3, off_s), tag='sig')
    I('s_mov_b64 exec, -1')

def signal(g, kind, idx_s, wait_tag):
    a = g.a; I = a.I
    I('s_lshl_b32 s%d, s%d, 8' % (g.sT[6], idx_s)); I('s_add_u32 s%d, s%d, %d' % (g.sT[6], g.sT[6], CNT + 4096 * kind))
    a.wait(vm=wait_tag)
    I('s_barrier')
    sig_add(g, g.sT[6])

def trfrag(a, dst, addr, off, tag, f='v', d2=256):
    a.I('ds_read_b64_tr_b16 %s, v%d offset:%d' % (vr(dst, 2, f), addr, off), tag=tag)
    a.I('ds_read_b64_tr_b16 %s, v%d offset:%d' % (vr(dst + 2, 2, f), addr, off + d2), tag=tag)

def setup(a, cfg):
    g = NS(a=a, cfg=cfg); I = a.I
    g.pf = Prof(a, 0, vreg=255, s=100)
    (g.sX, g.sWq, g.sP0, g.sP1, g.sPO, g.sD, g.sOUT, g.sDBG, g.sWS, g.sKZ, g.sDZ) = 24, 28, 32, 36, 40, 44, 48, 52, 56, 60, 64
    (g.sW, g.sRBA, g.sH, g.sRHO, g.sRB64, g.sCS, g.sRB128, g.sFS, g.sR4) = 68, 69, 70, 71, 72, 73, 74, 75, 76
    g.sT = [77, 78, 79, 80, 81, 82, 83, 84]
    g.sONE, g.sEPS, g.sL2E = 85, 86, 87
    g.sMV28, g.sHI = 88, 90
    g.sPA, g.sPC = 92, 93
    g.sSPIN = 94; g.sPT = 95
    g.sQ = [96, 97, 98, 99]
    g.S4 = list(range(4, 24))
    g.WQL, g.WKL, g.WVL = 0, 51200, 79872
    g.STATL, g.CSL, g.CSQ2L = 28672, 29696, 31232
    g.XRL, g.KVRL, g.REDL, g.HL, g.STL = 108544, 32768, 0, 0, 114688
    V = Alloc(232, 255)
    g.vHK = V.get(8, 4); g.vL16 = V.get()
    g.vLo = [g.vL16, V.get(), V.get(), V.get()]
    g.vRW = [V.get() for _ in range(3)]; g.vRR = V.get()
    g.vPoll, g.vPA, g.vPT = V.get(), V.get(), V.get()
    g.vXo = V.get(); g.vCSg = V.get(2, 2)
    sT = g.sT
    I('s_cmp_ge_u32 s2, 256'); a.branch('s_cbranch_scc1 kf_end')
    g.pf.stamp('start')
    load_args(a)
    I('s_getpc_b64 s[%d:%d]' % (g.sMV28, g.sMV28 + 1))
    I('v_lshrrev_b32 v2, 6, v0'); I('v_and_b32 v1, 63, v0')
    I('s_lshr_b32 s%d, s2, 3' % sT[1]); I('s_mul_i32 s%d, s%d, 12' % (sT[2], sT[1]))
    I('v_mul_u32_u24 v3, 3, v2'); I('v_add3_u32 v3, v3, v1, s%d' % sT[2]); I('v_lshlrev_b32 v3, 7, v3')
    I('s_mov_b64 exec, 7')
    I('global_load_dword v%d, v3, s[%d:%d]' % (g.vPoll, g.sMV28, g.sMV28 + 1), tag='code')
    I('s_mov_b64 exec, -1')
    I('v_readfirstlane_b32 s%d, v2' % g.sW)
    I('s_and_b32 s%d, s2, 7' % sT[0])
    I('s_lshr_b32 s%d, s%d, 1' % (sT[2], sT[0])); I('s_lshl_b32 s%d, s%d, 2' % (sT[2], sT[2]))
    I('s_and_b32 s%d, s%d, 3' % (sT[3], sT[1])); I('s_add_u32 s%d, s%d, s%d' % (g.sRBA, sT[2], sT[3]))
    I('s_and_b32 s%d, s%d, 1' % (sT[4], sT[0])); I('s_lshr_b32 s%d, s%d, 2' % (sT[5], sT[1]))
    I('s_lshl_b32 s%d, s%d, 3' % (g.sH, sT[4])); I('s_add_u32 s%d, s%d, s%d' % (g.sH, g.sH, sT[5]))
    I('s_lshl_b32 s%d, s%d, 1' % (g.sRHO, sT[3])); I('s_add_u32 s%d, s%d, s%d' % (g.sRHO, g.sRHO, sT[5]))
    I('s_sub_u32 s%d, s%d, 7' % (sT[6], g.sRHO)); I('s_cmp_ge_u32 s%d, 7' % g.sRHO); I('s_cselect_b32 s%d, s%d, s%d' % (g.sRHO, sT[6], g.sRHO))
    I('s_mul_i32 s%d, s%d, 37' % (g.sR4, sT[1])); I('s_lshr_b32 s%d, s%d, 8' % (g.sR4, g.sR4))
    I('s_mul_i32 s%d, s%d, 7' % (sT[6], g.sR4)); I('s_sub_u32 s%d, s%d, s%d' % (g.sCS, sT[1], sT[6]))
    I('s_and_b32 s%d, s%d, 3' % (g.sR4, g.sR4))
    I('s_lshl_b32 s%d, s%d, 2' % (g.sRB64, sT[0])); I('s_add_u32 s%d, s%d, s%d' % (g.sRB64, g.sRB64, g.sR4))
    I('s_add_u32 s%d, s%d, s%d' % (g.sRB128, sT[2], g.sR4))
    I('s_mul_i32 s%d, s%d, 7' % (g.sFS, sT[4])); I('s_add_u32 s%d, s%d, s%d' % (g.sFS, g.sFS, g.sCS))
    I('s_mul_i32 s%d, s2, 9363' % g.sPA); I('s_lshr_b32 s%d, s%d, 16' % (g.sPA, g.sPA))
    I('s_mul_i32 s%d, s%d, 7' % (g.sPC, g.sPA)); I('s_sub_u32 s%d, s2, s%d' % (g.sPC, g.sPC))
    return g

def gu_load(g, j, c):
    r = j % 7
    g.a.I('buffer_load_dwordx4 %s, v%d, s[%d:%d], s%d offen offset:%d sc1' % (ar(112 * c + 4 * j, 4), g.vLo[2 * c + (r >= 4)], g.sWS, g.sWS + 3, g.sQ[j // 7], 1024 * (r % 4)), tag='gu')
def wd_load(g, j, c):
    r = j % 7; f, reg = g.wd_regs[j][c]
    g.a.I('buffer_load_dwordx4 %s, v%d, s[%d:%d], s%d offen offset:%d sc1' % (vr(reg, 4, f), g.vLo[2 * c + (r >= 4)], g.sWS, g.sWS + 3, g.sQ[j // 7], 1024 * (r % 4)), tag='wd')

def phase_A(g):
    a = g.a; I = a.I; sT = g.sT; pf = g.pf; cfg = g.cfg
    sW, sH, sRBA = g.sW, g.sH, g.sRBA
    XF, ACCK, ACCV, ACCQ, WB = 8, 120, 136, 152, 168
    VA = Alloc(200, 232)
    vONE = VA.get(4, 4)
    vX = [VA.get() for _ in range(4)]; vW = VA.get()
    vXR = [VA.get() for _ in range(4)]
    vT, vTc, vTo = VA.get(), VA.get(), VA.get()
    vS1a, vS1b, vS2a, vS2b = [VA.get() for _ in range(4)]
    vRN = VA.get(2, 2); vCS = VA.get(2, 2)
    vN4, vCA, vSA = VA.get(), VA.get(), VA.get()
    vXS = [VA.get() for _ in range(4)]
    vRed = vX[0:2]; vKW = vX[2]
    vPT = [g.vHK, g.vHK + 1, g.vHK + 2, g.vHK + 3]; vPD = g.vHK + 4
    aPK = 0
    LAH = cfg.get('lah', 3)
    xslot = {0: 0, 1: 1, 2: 2, 4: 0, 5: 1, 6: 2}
    aC0, aC1 = 224, 240
    vL16 = g.vL16
    I('v_lshrrev_b32 v2, 3, v1'); I('v_lshrrev_b32 v3, 4, v1'); I('v_and_b32 v4, 7, v1')
    I('v_xor_b32 v5, v4, v3'); I('v_lshlrev_b32 v5, 4, v5')
    I('v_mul_u32_u24 v6, 896, v2'); I('v_add_u32 v%d, v6, v5' % vX[0])
    I('v_xor_b32 v%d, 64, v%d' % (vX[1], vX[0])); I('v_add_u32 v%d, 7168, v%d' % (vX[1], vX[1]))
    I('v_add_u32 v%d, 14336, v%d' % (vX[2], vX[0])); I('v_add_u32 v%d, 14336, v%d' % (vX[3], vX[1]))
    I('v_lshrrev_b32 v5, 2, v1'); I('v_and_b32 v6, 3, v1')
    I('v_mul_u32_u24 v7, 2688, v5'); I('v_lshl_add_u32 v%d, v6, 4, v7' % vW)
    I('v_lshlrev_b32 v%d, 4, v1' % vL16)
    I('v_and_b32 v5, 15, v1'); I('v_lshlrev_b32 v5, 4, v5'); I('v_lshl_add_u32 v5, v3, 14, v5')
    for i in range(4): I('v_mov_b32 v%d, 0' % (vONE + i))
    I('s_waitcnt lgkmcnt(0)')
    pf.stamp('args')
    srd(a, g.sX, 4, 2048 * 896); srd(a, g.sWq, 6, 448 * 2688); srd(a, g.sWS, 22, WS_BYTES); srd(a, g.sKZ, 22, WS_BYTES)
    srd(a, g.sDZ, 20, 256)
    I('s_cmp_eq_u32 s%d, 0' % sRBA); I('s_cselect_b32 s%d, %s, 0' % (g.sKZ + 2, hex(WS_BYTES))); I('s_cselect_b32 s%d, 256, 0' % (g.sDZ + 2))
    srd(a, g.sD, 16, 1792 * 896); srd(a, g.sOUT, 18, 2048 * 896); srd(a, g.sDBG, 20, 256); srd(a, g.sPO, 22, WS_BYTES)
    I('s_cmp_lt_u32 s%d, 28' % g.sPA)
    for k in range(2):
        I('s_cselect_b32 s%d, s%d, s%d' % (g.sP0 + k, 12 + k, 8 + k)); I('s_cselect_b32 s%d, s%d, s%d' % (g.sP1 + k, 14 + k, 8 + k))
    sel(a, g.sP0 + 2, 448 * 3584, 448 * 896)
    I('s_mov_b32 s%d, 0x20000' % (g.sP0 + 3)); I('s_mov_b32 s%d, 0x20000' % (g.sP1 + 3))
    I('s_cmp_lt_u32 s%d, 32' % g.sPA)
    I('s_cselect_b32 s%d, s%d, 0' % (g.sP0 + 2, g.sP0 + 2)); I('s_mov_b32 s%d, s%d' % (g.sP1 + 2, g.sP0 + 2)); I('s_cselect_b32 s%d, %s, 0' % (g.sPO + 2, hex(WS_BYTES)))
    sXB, sWB, sXRB, sCL, sCC, sW10, sW12 = g.S4[0:7]
    sPS = g.S4[7:11]; sPOs = g.S4[11:15]; sPSG = g.S4[15]; sPCS = g.S4[16]
    I('s_lshl_b32 s%d, s%d, 10' % (sW10, sW)); I('s_lshl_b32 s%d, s%d, 12' % (sW12, sW))
    I('s_lshl_b32 s%d, s%d, 12' % (sT[3], sH)); I('s_add_u32 s%d, s%d, s%d' % (sT[3], sT[3], sW10)); I('s_add_u32 s%d, s%d, %d' % (sT[3], sT[3], KVACC))
    I('buffer_store_dwordx4 v[%d:%d], v%d, s[%d:%d], s%d offen sc0 sc1' % (vONE, vONE + 3, vL16, g.sKZ, g.sKZ + 3, sT[3]), tag='zero')
    I('s_lshl_b32 s%d, s%d, 8' % (sT[3], sH)); I('s_add_u32 s%d, s%d, s%d' % (sT[3], sT[3], sW12)); I('s_add_u32 s%d, s%d, %d' % (sT[3], sT[3], CNT))
    I('s_mov_b32 exec_hi, 0')
    I('buffer_store_dwordx4 v[%d:%d], v5, s[%d:%d], s%d offen sc0 sc1' % (vONE, vONE + 3, g.sKZ, g.sKZ + 3, sT[3]), tag='zero')
    I('s_lshl_b32 s%d, s%d, 10' % (sT[3], sH)); I('s_lshl_b32 s%d, s%d, 8' % (sT[4], sW)); I('s_add_u32 s%d, s%d, s%d' % (sT[3], sT[3], sT[4])); I('s_add_u32 s%d, s%d, %d' % (sT[3], sT[3], CSGU))
    I('s_mov_b32 exec_lo, 0xffff')
    I('buffer_store_dwordx4 v[%d:%d], v%d, s[%d:%d], s%d offen sc0 sc1' % (vONE, vONE + 3, vL16, g.sKZ, g.sKZ + 3, sT[3]), tag='zero')
    I('s_mov_b64 exec, -1')
    I('s_lshl_b32 s%d, s%d, 2' % (sT[0], sRBA)); I('s_add_u32 s%d, s%d, s%d' % (sT[0], sT[0], sW))
    I('s_mul_i32 s%d, s%d, %d' % (sXB, sT[0], 32 * 896))
    I('s_mul_i32 s%d, s%d, 56' % (sWB, sH)); I('s_mul_i32 s%d, s%d, %d' % (sT[1], sW, 16 * 2688)); I('s_add_u32 s%d, s%d, s%d' % (sWB, sWB, sT[1]))
    I('s_mul_i32 s%d, s%d, 12288' % (sXRB, sW)); I('s_add_u32 s%d, s%d, %d' % (sXRB, sXRB, g.XRL))
    I('s_mov_b32 s%d, s%d' % (sCL, g.sRHO)); I('s_mov_b32 s%d, s%d' % (sCC, g.sRHO))
    def adv_ops(s): return ['s_add_u32 s%d, s%d, 1' % (s, s), 's_cmp_eq_u32 s%d, 7' % s, 's_cselect_b32 s%d, 0, s%d' % (s, s)]
    def adv(s):
        for o in adv_ops(s): I(o)
    def grp(ops):
        def f():
            for o in ops:
                if callable(o): o()
                else: I(o)
        return f
    def a_groups(j):
        G = []
        pre = ['s_mul_i32 s%d, s%d, %d' % (sT[1], sCL, 64 * 2688), 's_lshl_b32 s%d, s%d, 12' % (sT[2], sCL), 's_add_u32 s%d, s%d, s%d' % (sT[2], sT[2], sW10),
               's_add_u32 m0, s%d, %d' % (sT[2], g.WKL - 896), 's_add_u32 s%d, s%d, s%d' % (sT[1], sT[1], sWB)]
        G.append(grp(pre + [lambda: I('buffer_load_dwordx4 v%d, s[%d:%d], s%d offen offset:896 lds' % (vW, g.sWq, g.sWq + 3, sT[1]), tag='c%d' % j)]))
        G.append(grp(['s_add_u32 m0, s%d, %d' % (sT[2], g.WVL - 1792), 's_lshl_b32 s%d, s%d, 7' % (sT[0], sCL),
                      lambda: I('buffer_load_dwordx4 v%d, s[%d:%d], s%d offen offset:1792 lds' % (vW, g.sWq, g.sWq + 3, sT[1]), tag='c%d' % j)]))
        for q in range(4):
            m = ('s_add_u32 m0, s%d, %d' % (sW12, g.WQL + q * 1024)) if j == 3 else ('s_add_u32 m0, s%d, %d' % (sXRB, xslot[j] * 4096 + q * 1024))
            mid = ['s_add_u32 s%d, s%d, s%d' % (sT[0], sT[0], sXB)] if q == 0 else (adv_ops(sCL) if q == 1 else [])
            G.append(grp([m] + mid + [lambda q=q: I('buffer_load_dwordx4 v%d, s[%d:%d], s%d offen lds' % (vX[q], g.sX, g.sX + 3, sT[0]), tag='c%d' % j)]))
        return G
    def a_loads(j):
        for f in a_groups(j): f()
    def q_groups(n):
        return [grp(['s_mul_i32 s%d, s%d, %d' % (sT[1], sCL, 64 * 2688), 's_lshl_b32 s%d, s%d, 12' % (sT[2], sCL), 's_add_u32 s%d, s%d, s%d' % (sT[2], sT[2], sW10),
                     's_add_u32 m0, s%d, %d' % (sT[2], g.WQL), 's_add_u32 s%d, s%d, s%d' % (sT[1], sT[1], sWB),
                     lambda: I('buffer_load_dwordx4 v%d, s[%d:%d], s%d offen lds' % (vW, g.sWq, g.sWq + 3, sT[1]), tag='wq')] + adv_ops(sCL)) for _ in range(n)]
    a_loads(0); a_loads(1)
    A_, C_ = g.sPA, g.sPC
    I('s_lshl_b32 s%d, s%d, 2' % (sT[4], C_)); I('s_add_u32 s%d, s%d, s%d' % (sT[4], sT[4], sW))
    I('s_mul_i32 s%d, s%d, %d' % (sT[5], sT[4], 16 * 3584)); I('s_lshl_b32 s%d, s%d, 7' % (sT[6], A_)); I('s_add_u32 s%d, s%d, s%d' % (sPS[0], sT[5], sT[6]))
    I('s_mul_i32 s%d, s%d, 112' % (sT[5], A_)); I('s_add_u32 s%d, s%d, s%d' % (sT[5], sT[5], sT[4]))
    I('s_lshl_b32 s%d, s%d, 10' % (sT[5], sT[5])); I('s_add_u32 s%d, s%d, %d' % (sPOs[0], sT[5], GUP))
    I('s_lshr_b32 s%d, s%d, 1' % (sPSG, A_)); I('s_lshl_b32 s%d, s%d, 8' % (sPSG, sPSG)); I('s_add_u32 s%d, s%d, %d' % (sPSG, sPSG, CNT + 3 * 4096))
    I('s_sub_u32 s%d, s%d, 28' % (sT[4], A_)); I('s_lshl_b32 s%d, s%d, 2' % (sT[4], sT[4])); I('s_add_u32 s%d, s%d, s%d' % (sT[4], sT[4], sW))
    I('s_mul_i32 s%d, s%d, %d' % (sT[5], sT[4], 28 * 896)); I('s_lshl_b32 s%d, s%d, 7' % (sT[6], C_)); I('s_add_u32 s%d, s%d, s%d' % (sPS[1], sT[5], sT[6]))
    I('s_lshl_b32 s%d, s%d, 16' % (sT[5], C_)); I('s_lshl_b32 s%d, s%d, 11' % (sT[6], sT[4]))
    I('s_add_u32 s%d, s%d, s%d' % (sT[5], sT[5], sT[6])); I('s_add_u32 s%d, s%d, %d' % (sPOs[1], sT[5], WOP))
    I('s_lshl_b32 s%d, s%d, 8' % (sT[5], C_)); I('s_add_u32 s%d, s%d, %d' % (sT[5], sT[5], CNT + 4 * 4096))
    I('s_cmp_lt_u32 s%d, 32' % A_); I('s_cselect_b32 s%d, s%d, 0x20000000' % (sT[5], sT[5]))
    I('s_cmp_lt_u32 s%d, 28' % A_)
    I('s_cselect_b32 s%d, s%d, s%d' % (sPS[0], sPS[0], sPS[1])); I('s_cselect_b32 s%d, s%d, s%d' % (sPOs[0], sPOs[0], sPOs[1]))
    I('s_cselect_b32 s%d, s%d, s%d' % (sPSG, sPSG, sT[5]))
    I('s_mul_i32 s%d, s%d, 512' % (sPCS, A_)); I('s_cselect_b32 s%d, s%d, 0x20000000' % (sPCS, sPCS))
    sel(a, sT[3], 3584, 896); sel(a, sT[4], 8 * 3584, 8 * 896); I('s_cselect_b32 s%d, 0, %d' % (sT[5], 16 * 896))
    sel(a, sT[6], 28672, 1024); sel(a, sT[7], 57344, 32768)
    sel(a, g.sONE, 16 * 128, 32); sel(a, g.sEPS, 8 * 128, 14 * 128); I('s_cselect_b32 s%d, 32, %d' % (g.sL2E, 8 * 128))
    I('s_add_u32 s%d, s%d, s%d' % (sPS[1], sPS[0], sT[4])); I('s_add_u32 s%d, s%d, s%d' % (sPS[2], sPS[0], sT[5])); I('s_add_u32 s%d, s%d, s%d' % (sPS[3], sPS[2], sT[4]))
    I('s_add_u32 s%d, s%d, s%d' % (sPOs[1], sPOs[0], sT[6])); I('s_add_u32 s%d, s%d, s%d' % (sPOs[2], sPOs[0], sT[7])); I('s_add_u32 s%d, s%d, s%d' % (sPOs[3], sPOs[2], sT[6]))
    I('v_mul_lo_u32 v5, v2, s%d' % sT[3]); I('v_lshl_add_u32 v%d, v4, 4, v5' % vPD)
    def flag_set():
        I('v_mov_b32 v5, 1'); I('s_lshl_b32 s%d, s%d, 2' % (sT[4], sH)); I('v_mov_b32 v6, s%d' % sT[4])
        I('s_mov_b64 exec, 1')
        I('buffer_atomic_add v5, v6, s[%d:%d], 0 offen sc1' % (g.sDZ, g.sDZ + 3), tag='flag')
        I('s_mov_b64 exec, -1')
        I('s_cmp_eq_u32 s%d, 0' % sW); I('s_cselect_b32 s%d, %s, 0' % (g.sKZ + 2, hex(WS_BYTES)))
    I('v_lshrrev_b32 v2, 5, v1'); I('v_bfe_u32 v3, v1, 4, 1'); I('v_bfe_u32 v4, v1, 2, 2'); I('v_and_b32 v5, 3, v1')
    I('s_mul_i32 s%d, s%d, 4608' % (g.sPT, sW)); I('s_add_u32 s%d, s%d, %d' % (g.sPT, g.sPT, g.KVRL))
    I('v_mul_lo_u32 v6, v3, s%d' % g.sONE); I('v_mul_lo_u32 v7, v2, s%d' % g.sEPS); I('v_add3_u32 v6, v6, v7, s%d' % g.sPT)
    I('v_lshl_add_u32 v6, v4, 7, v6'); I('v_lshl_add_u32 v%d, v5, 3, v6' % vPT[0])
    I('v_add_u32 v%d, s%d, v%d' % (vPT[1], g.sL2E, vPT[0])); I('v_add_u32 v%d, 64, v%d' % (vPT[2], vPT[0])); I('v_add_u32 v%d, 64, v%d' % (vPT[3], vPT[1]))
    I('v_lshlrev_b32 v6, 9, v2'); I('v_lshl_add_u32 v6, v4, 6, v6'); I('v_lshl_add_u32 v6, v5, 3, v6')
    I('v_lshl_add_u32 v%d, v3, 5, v6' % vT); I('v_add_u32 v%d, %d, v%d' % (vT, g.WKL, vT))
    I('v_and_b32 v6, 31, v1'); I('v_lshlrev_b32 v%d, 2, v6' % vN4)
    I('v_lshrrev_b32 v7, 3, v6'); I('v_lshlrev_b32 v7, 10, v7')
    I('v_and_b32 v3, 7, v6'); I('v_lshl_add_u32 v7, v3, 7, v7')
    I('v_bfe_u32 v3, v6, 1, 3'); I('v_xor_b32 v3, v3, v2'); I('v_lshl_add_u32 v7, v3, 4, v7')
    I('v_add_u32 v%d, s%d, v7' % (vXR[0], sXRB))
    for t in range(1, 4): I('v_xor_b32 v%d, %d, v%d' % (vXR[t], 32 * t, vXR[0]))
    I('v_add_u32 v%d, s%d, v7' % (vXS[0], sW12))
    for t in range(1, 4): I('v_xor_b32 v%d, %d, v%d' % (vXS[t], 32 * t, vXS[0]))
    I('v_mul_u32_u24 v7, 896, v6'); I('v_lshl_add_u32 v%d, v2, 4, v7' % g.vXo)
    I('v_cmp_eq_u32 s[%d:%d], 28, v6' % (g.sMV28, g.sMV28 + 1)); I('v_cmp_eq_u32 s[%d:%d], 0, v2' % (g.sHI, g.sHI + 1))
    I('s_mov_b32 s%d, 0x3f803f80' % g.sONE); I('s_mov_b32 s%d, %s' % (g.sEPS, f32(1e-6))); I('s_mov_b32 s%d, %s' % (g.sL2E, f32(LOG2E)))
    for i in range(4): I('v_mov_b32 v%d, s%d' % (vONE + i, g.sONE))
    for r in (vS1a, vS1b, vS2a, vS2b): I('v_mov_b32 v%d, 0' % r)
    I('s_lshl_b32 s%d, s%d, 7' % (sT[3], sW)); I('s_add_u32 s%d, s%d, %d' % (sT[3], sT[3], g.CSL)); I('v_add_u32 v%d, s%d, v%d' % (vCA, sT[3], vN4))
    I('s_lshl_b32 s%d, s%d, 8' % (sT[3], sW)); I('s_add_u32 s%d, s%d, %d' % (sT[3], sT[3], g.STATL))
    I('v_lshlrev_b32 v3, 4, v2'); I('v_add_u32 v%d, s%d, v3' % (vSA, sT[3]))
    for t in range(1, 4):
        I('s_xor_b32 s%d, s%d, %d' % (sT[3], sW, t)); I('s_mul_i32 s%d, s%d, 12288' % (sT[3], sT[3])); I('s_add_u32 s%d, s%d, %d' % (sT[3], sT[3], g.REDL + (t - 1) * 4096))
        I('v_add_u32 v%d, s%d, v%d' % (g.vRW[t - 1], sT[3], vL16))
    I('s_mul_i32 s%d, s%d, 12288' % (sT[3], sW)); I('s_add_u32 s%d, s%d, %d' % (sT[3], sT[3], g.REDL)); I('v_add_u32 v%d, s%d, v%d' % (g.vRR, sT[3], vL16))
    I('v_add_u32 v%d, 4096, v%d' % (g.vLo[1], vL16)); I('v_add_u32 v%d, 28672, v%d' % (g.vLo[2], vL16)); I('v_add_u32 v%d, 32768, v%d' % (g.vLo[3], vL16))
    I('s_lshl_b32 s%d, s%d, 2' % (sT[3], g.sFS)); I('s_add_u32 s%d, s%d, s%d' % (sT[3], sT[3], sW)); I('s_mul_i32 s%d, s%d, 57344' % (sT[3], sT[3])); I('s_add_u32 s%d, s%d, %d' % (sT[3], sT[3], GUP))
    for q in range(4):
        I('s_add_u32 s%d, s%d, %d' % (sT[4], g.sR4, q)); I('s_and_b32 s%d, s%d, 3' % (sT[4], sT[4]))
        I('s_mul_i32 s%d, s%d, 7168' % (sT[4], sT[4])); I('s_add_u32 s%d, s%d, s%d' % (g.sQ[q], sT[4], sT[3]))
    if LAH > 2: a_loads(2)
    def pk_group(j):
        s = g.sP0 if j < 2 else g.sP1
        return grp(['s_add_u32 m0, s%d, %d' % (g.sPT, 1024 * j), lambda: I('buffer_load_dwordx4 v%d, s[%d:%d], s%d offen lds' % (vPD, s, s + 3, sPS[j]), tag='pk')])
    pf.stamp('issued')
    def w_addr():
        I('s_lshl_b32 s%d, s%d, 12' % (sT[3], sCC)); I('v_add_u32 v%d, s%d, v%d' % (vTc, sT[3], vT)); I('v_add_u32 v%d, s%d, v%d' % (vTo, sW10, vTc))
        adv(sCC)
    def flag_poll():
        I('v_lshlrev_b32 v%d, 2, v1' % g.vPA)
        I('buffer_load_dword v%d, v%d, s[%d:%d], 0 offen sc1' % (g.vPoll, g.vPA, g.sDBG, g.sDBG + 3), tag='poll')
    def pack_rd():
        a.wait(vm='pk')
        for f in range(4): trfrag(a, aPK + 4 * f, vPT[f], 0, 'pkr', f='a', d2=512)
    def pack_st():
        a.wait(lg='pkr')
        for f in range(4): I('buffer_store_dwordx4 %s, v%d, s[%d:%d], s%d offen sc1' % (ar(aPK + 4 * f, 4), vL16, g.sPO, g.sPO + 3, sPOs[f]), tag='pks')
    def go_poll():
        I('s_lshl_b32 s%d, s%d, 8' % (sT[4], g.sFS)); I('s_add_u32 s%d, s%d, %d' % (sT[4], sT[4], CNT + 3 * 4096))
        I('s_lshl_b32 s%d, s%d, 8' % (sT[5], g.sCS)); I('s_add_u32 s%d, s%d, %d' % (sT[5], sT[5], CNT + 4 * 4096))
        I('v_mov_b32 v%d, s%d' % (vXS[0], sT[5])); I('v_writelane_b32 v%d, s%d, 0' % (vXS[0], sT[4]))
        I('v_mov_b32 v%d, 4' % g.vPT); I('v_writelane_b32 v%d, 14, 0' % g.vPT)
        I('buffer_load_dword v%d, v%d, s[%d:%d], 0 offen sc1' % (g.vPoll, vXS[0], g.sWS, g.sWS + 3), tag='gop')
    def tlb_touch():
        sh = cfg.get('tlbsh', 19)
        I('v_lshlrev_b32 v5, %d, v1' % sh); I('s_lshl_b32 s%d, s%d, %d' % (sT[4], sW, sh - 2))
        I('s_mov_b32 exec_hi, 0xff')
        I('buffer_load_dword v%d, v5, s[%d:%d], s%d offen sc1' % (vXS[1], g.sWS, g.sWS + 3, sT[4]), tag='tlb')
        I('s_mov_b32 exec_hi, 0'); I('s_mov_b32 exec_lo, 0xf')
        I('buffer_load_dword v%d, v5, s[%d:%d], s%d offen sc1' % (vXS[1], g.sOUT, g.sOUT + 3, sT[4]), tag='tlb')
        I('s_mov_b64 exec, -1')
    def fin_groups():
        ops = ['v_add_f32 v%d, v%d, v%d' % (vS1a, vS1a, vS1b), 'v_add_f32 v%d, v%d, v%d' % (vS2a, vS2a, vS2b),
               'v_mov_b32 v%d, v%d' % (vS1b, vS1a), 'v_mov_b32 v%d, v%d' % (vS2b, vS2a),
               's_lshl_b32 s%d, s%d, 8' % (sT[3], sW), 's_add_u32 s%d, s%d, %d' % (sT[3], sT[3], g.STATL),
               'v_permlane32_swap_b32 v%d, v%d' % (vS1a, vS1b), 'v_permlane32_swap_b32 v%d, v%d' % (vS2a, vS2b),
               'v_add_f32 v%d, v%d, v%d' % (vS1a, vS1a, vS1b), 'v_add_f32 v%d, v%d, v%d' % (vS2a, vS2a, vS2b)]
        b = Asm(); ln_finish(b, 'v%d' % vS1a, 'v%d' % vS2a, 'v2', 'v3', 'v%d' % vRN, 'v4')
        ops += [l.strip() for l in b.out if not l.strip().startswith('s_nop')]
        ops += ['v_sub_f32 v%d, 0, v4' % (vRN + 1), 'v_add_u32 v2, s%d, v%d' % (sT[3], vN4), 'ds_write_b32 v2, v%d' % vRN, 'ds_write_b32 v2, v%d offset:128' % (vRN + 1),
                'ds_write_b32 v%d, a%d' % (vCA, aC0), 'ds_write_b32 v%d, a%d offset:512' % (vCA, aC1), 'v_add_u32 v5, %d, v%d' % (g.CSL, vN4)]
        n = (len(ops) + 7) // 8
        return [grp(ops[k:k + n]) for k in range(0, len(ops), n)]
    w_addr()
    PKI = cfg.get('pki', 6 - LAH)
    for j in range(7):
        a.wait(vm='c%d' % j)
        if j == 3:
            for t in range(4): I('ds_read_b128 %s, v%d' % (vr(XF + 16 * j + 4 * t, 4), vXS[t]), tag='xf%d' % j)
        else:
            for t in range(4): I('ds_read_b128 %s, v%d offset:%d' % (vr(XF + 16 * j + 4 * t, 4), vXR[t], 4096 * xslot[j]), tag='xf%d' % j)
        trfrag(a, WB + 24, vTo, 0, 'o%d' % j); trfrag(a, WB + 28, vTo, 28672, 'o%d' % j)
        I('s_barrier')
        if j in (0, 3, 6): pf.stamp('c%d' % j)
        def rd(t):
            st = t % 3
            trfrag(a, WB + 8 * st, vTc, 1024 * t, 'w%d_%d' % (j, t)); trfrag(a, WB + 8 * st + 4, vTc, 28672 + 1024 * t, 'w%d_%d' % (j, t))
        def dots(jj):
            for r in range(16):
                x = XF + 16 * jj + r
                I('v_dot2c_f32_bf16 v%d, s%d, v%d' % (vS1b if r & 1 else vS1a, g.sONE, x)); I('v_dot2c_f32_bf16 v%d, v%d, v%d' % (vS2b if r & 1 else vS2a, x, x))
        rd(0); rd(1); rd(2)
        if j == 0: flag_set()
        if j > 0: dots(j - 1)
        if j == 6:
            a.wait(lg='xf6'); dots(6)
        G = []
        if j + LAH < 7: G = a_groups(j + LAH)
        elif j + LAH == 7: G = q_groups(7)
        if j == PKI: G = G + [pk_group(k) for k in range(4)]
        if j == 3: G = [flag_poll] + G
        if j == 6: G = fin_groups()
        if j == cfg.get('tlb', -1): G = G + [tlb_touch]
        a.wait(lg='o%d' % j)
        I(MF(ar(aC0, 16), vr(vONE, 4), vr(WB + 24, 4), '0' if j == 0 else ar(aC0, 16)))
        if G: G.pop(0)()
        I(MF(ar(aC1, 16), vr(vONE, 4), vr(WB + 28, 4), '0' if j == 0 else ar(aC1, 16)))
        if G: G.pop(0)()
        for t in range(4):
            x = XF + 16 * j + 4 * t; st = t % 3
            a.wait(lg='w%d_%d' % (j, t))
            first = (j == 0 and t == 0)
            I(MF(vr(ACCK, 16), vr(x, 4), vr(WB + 8 * st, 4), '0' if first else vr(ACCK, 16)))
            if G: G.pop(0)()
            I(MF(vr(ACCV, 16), vr(x, 4), vr(WB + 8 * st + 4, 4), '0' if first else vr(ACCV, 16)))
            if t == 0:
                rd(3)
                if j < 6: w_addr()
            elif G: G.pop(0)()
        while G: G.pop(0)()
    pf.stamp('loop')
    a.wait(lg=0); I('s_barrier')
    for i in range(8): I('ds_read_b32 v%d, v5 offset:%d' % (ACCQ + i, 128 * i), tag='cs')
    for qd in range(4):
        I('ds_read_b128 %s, v%d offset:%d' % (vr(WB + 16 + 4 * qd, 4), vSA, 128 + 32 * qd), tag='st')
    for qd in range(4):
        I('ds_read_b128 %s, v%d offset:%d' % (vr(WB + 4 * qd, 4), vSA, 32 * qd), tag='st2')
    pf.stamp('X1')
    poll(g, 'kf_pz', g.vPA, 0xffff, 4, g.sDBG, early='poll')
    pack_rd()
    for op in ['v_and_b32 v3, 31, v1', 'v_mul_u32_u24 v3, 144, v3', 'v_lshrrev_b32 v4, 5, v1', 'v_lshl_add_u32 v3, v4, 4, v3', 'v_add_u32 v%d, s%d, v3' % (vKW, g.sPT),
               'v_bfe_u32 v5, v1, 2, 2', 'v_lshl_add_u32 v4, v4, 2, v5',
               'v_bfe_u32 v5, v1, 4, 1', 'v_mul_u32_u24 v5, 14, v5', 'v_add_u32 v5, v5, v4',
               'v_and_b32 v6, 3, v1', 'v_lshlrev_b32 v6, 2, v6', 's_lshl_b32 s%d, s%d, 5' % (sT[4], sW), 's_add_u32 s%d, s%d, %d' % (sT[4], sT[4], g.KVRL),
               'v_add_u32 v6, s%d, v6' % sT[4], 'v_mul_u32_u24 v7, 144, v5', 'v_add_u32 v%d, v7, v6' % vRed[0],
               'v_add_u32 v%d, %d, v%d' % (vRed[1], 8 * 144, vRed[0]), 'v_mul_u32_u24 v7, 144, v4', 'v_add_u32 v7, v7, v6', 'v_add_u32 v7, %d, v7' % (22 * 144),
               'v_cmp_lt_u32 vcc, 5, v4', 'v_cndmask_b32 v%d, v%d, v7, vcc' % (vRed[1], vRed[1])]: I(op)
    Q = ACCQ
    pack_st()
    for f in range(4): I(MF(ar(32 + 16 * f, 16), vr(vONE, 4), ar(aPK + 4 * f, 4), '0'))
    a.wait(lg='cs')
    I('v_add_f32 v%d, v%d, v%d' % (Q, Q, Q + 1)); I('v_add_f32 v%d, v%d, v%d' % (Q + 2, Q + 2, Q + 3)); I('v_add_f32 v%d, v%d, v%d' % (vCS, Q, Q + 2))
    I('v_add_f32 v%d, v%d, v%d' % (Q + 4, Q + 4, Q + 5)); I('v_add_f32 v%d, v%d, v%d' % (Q + 6, Q + 6, Q + 7)); I('v_add_f32 v%d, v%d, v%d' % (vCS + 1, Q + 4, Q + 6))
    SE = 's[%d:%d]' % (g.sEPS, g.sEPS + 1)
    def phi(acc, tmp, n):
        for p in range(0, n, 2): I('v_pk_mul_f32 %s, %s, %s op_sel:[0,1] op_sel_hi:[1,1]' % (vr(tmp + p, 2), vr(acc + p, 2), SE))
        for v in range(n): I('v_min_f32 v%d, 0, v%d' % (tmp + v, tmp + v))
        for v in range(n): I('v_exp_f32 v%d, v%d' % (tmp + v, tmp + v)); I('v_max_f32 v%d, s%d, v%d' % (acc + v, g.sEPS, acc + v))
        for p in range(0, n, 2): I('v_pk_add_f32 %s, %s, %s' % (vr(acc + p, 2), vr(acc + p, 2), vr(tmp + p, 2)))
    CSP = vr(vCS, 2)
    a.wait(lg='st')
    for p in range(0, 16, 2):
        I('v_pk_fma_f32 %s, %s, %s, %s op_sel_hi:[1,0,1]' % (vr(ACCK + p, 2), vr(WB + 16 + p, 2), CSP, vr(ACCK + p, 2)))
        I('v_pk_fma_f32 %s, %s, %s, %s op_sel:[0,1,0] op_sel_hi:[1,1,1]' % (vr(ACCV + p, 2), vr(WB + 16 + p, 2), CSP, vr(ACCV + p, 2)))
    I('s_add_u32 s%d, s%d, %d' % (sPCS, sPCS, CSGU)); I('s_mov_b32 exec_hi, 0')
    for f in range(4): I('buffer_atomic_add_f32 a%d, v%d, s[%d:%d], s%d offen offset:%d' % (32 + 16 * f, g.vPA, g.sWS, g.sWS + 3, sPCS, 128 * f), tag='pks')
    I('s_mov_b64 exec, -1')
    a.wait(lg='st2')
    for p in range(0, 16, 2):
        I('v_pk_fma_f32 %s, %s, %s, %s op_sel_hi:[1,1,0]' % (vr(ACCK + p, 2), vr(ACCK + p, 2), vr(WB + p, 2), SE))
        I('v_pk_mul_f32 %s, %s, %s' % (vr(ACCV + p, 2), vr(ACCV + p, 2), vr(WB + p, 2)))
    a.wait(vm='wq')
    I('s_sub_u32 s%d, s%d, %d' % (sT[3], sW10, g.WKL - g.WQL)); I('v_add_u32 v%d, s%d, v%d' % (vTo, sT[3], vT))
    for c in range(7): trfrag(a, WB + 4 * c, vTo, 4096 * c, 'qo%d' % c)
    phi(ACCK, ACCQ, 16)
    for p in range(8):
        I('v_cvt_pk_bf16_f32 v%d, v%d, v%d' % (ACCK + p, ACCK + 2 * p, ACCK + 2 * p + 1)); I('v_cvt_pk_bf16_f32 v%d, v%d, v%d' % (ACCV + p, ACCV + 2 * p, ACCV + 2 * p + 1))
    I('s_mov_b64 exec, s[%d:%d]' % (g.sMV28, g.sMV28 + 1))
    for p in range(8): I('v_mov_b32 v%d, s%d' % (ACCV + p, g.sONE))
    I('s_mov_b64 exec, -1')
    pf.stamp('epikv')
    I(MF(ar(aC1, 16), vr(ACCK, 4), vr(ACCV, 4), '0')); I(MF(ar(aC1, 16), vr(ACCK + 4, 4), vr(ACCV + 4, 4), ar(aC1, 16)))
    a.wait(lg='qo6')
    for c in range(7):
        I(MF(ar(aC0, 16), vr(vONE, 4), vr(WB + 4 * c, 4), '0' if c == 0 else ar(aC0, 16)))
        if c == 1:
            for q in range(4): I('ds_write_b128 v%d, %s offset:%d' % (vKW, ar(aC1 + 4 * q, 4), 32 * q))
    I('s_mov_b32 s%d, s%d' % (sCC, g.sRHO))
    I('s_lshl_b32 s%d, s%d, 12' % (sT[5], sH)); I('s_add_u32 s%d, s%d, s%d' % (sT[5], sT[5], sW10)); I('s_add_u32 s%d, s%d, %d' % (sT[5], sT[5], KVACC))
    I('ds_write_b32 v%d, a%d offset:1024' % (vCA, aC0))
    a.wait(vm='pks', lg=0); I('s_barrier')
    pf.stamp('X2')
    RB = WB + 16
    for j in range(4):
        for p in range(4): I('ds_read_b32 v%d, v%d offset:%d' % (RB + 4 * j + p, vRed[j % 2], 4608 * p + 16 * (j // 2)), tag='red%d' % j)
    for j in range(4):
        a.wait(lg='red%d' % j)
        b = RB + 4 * j
        I('v_add_f32 v%d, v%d, v%d' % (b, b, b + 1)); I('v_add_f32 v%d, v%d, v%d' % (b + 2, b + 2, b + 3)); I('v_add_f32 v%d, v%d, v%d' % (b, b, b + 2))
        if j < 2: I('buffer_atomic_add_f32 v%d, v%d, s[%d:%d], s%d offen offset:%d' % (b, g.vPA, g.sWS, g.sWS + 3, sT[5], 256 * j), tag='ast')
    I('s_cmp_eq_u32 s%d, 3' % sW); a.branch('s_cbranch_scc1 kf_noat')
    for j in (2, 3): I('buffer_atomic_add_f32 v%d, v%d, s[%d:%d], s%d offen offset:%d' % (RB + 4 * j, g.vPA, g.sWS, g.sWS + 3, sT[5], 256 * j), counted=False)
    a.label('kf_noat')
    sig_add(g, sPSG)
    pf.stamp('atom')
    QB = WB
    def q_rd(n):
        j, t = n // 4, n % 4
        if t == 0:
            I('s_lshl_b32 s%d, s%d, 12' % (sT[3], sCC)); I('s_sub_u32 s%d, s%d, %d' % (sT[3], sT[3], g.WKL - g.WQL))
            I('v_add_u32 v%d, s%d, v%d' % (vTc, sT[3], vT)); adv(sCC)
        trfrag(a, QB + 4 * (n % 4), vTc, 1024 * t, 'q%d' % n)
    for n in range(3): q_rd(n)
    S = Side(a)
    CQ = ACCK + 8
    S.add(['v_add_u32 v2, %d, v%d' % (g.CSL + 1024, vN4)])
    S.add([((lambda i=i: I('ds_read_b32 v%d, v2 offset:%d' % (CQ + i, 128 * i), tag='cq')), 5) for i in range(4)])
    S.add(['s_lshl_b32 s%d, s%d, 7' % (sT[2], sW), 's_add_u32 s%d, s%d, %d' % (sT[2], sT[2], g.CSQ2L), 'v_add_u32 v3, s%d, v%d' % (sT[2], vN4),
           'v_lshrrev_b32 v4, 5, v1', 'v_lshlrev_b32 v4, 4, v4', 'v_add_u32 v4, s%d, v4' % sT[2], ((lambda: a.wait(lg='cq')), 3),
           'v_add_f32 v%d, v%d, v%d' % (CQ, CQ, CQ + 1), 'v_add_f32 v%d, v%d, v%d' % (CQ + 2, CQ + 2, CQ + 3), 'v_add_f32 v%d, v%d, v%d' % (CQ, CQ, CQ + 2),
           'ds_write_b32 v3, v%d' % CQ])
    S.add([((lambda q=q: I('ds_read_b128 %s, v4 offset:%d' % (vr(ACCV + 4 * q, 4), 32 * q), tag='cq2')), 5) for q in range(4)])
    g.guq = [(j, c) for j in range(28) for c in range(2)]
    for n in range(28):
        if n + 3 < 28: q_rd(n + 3)
        a.wait(lg='q%d' % n)
        I(MF(vr(ACCQ, 16), vr(QB + 4 * (n % 4), 4), vr(XF + 4 * n, 4), '0' if n == 0 else vr(ACCQ, 16)))
        S.emit(12)
    S.drain()
    pf.stamp('q28')
    a.wait(lg='cq2')
    RN = vr(vRN, 2)
    for p in range(0, 16, 2): I('v_pk_fma_f32 %s, %s, %s, %s op_sel:[0,1,0] op_sel_hi:[1,1,1]' % (vr(ACCQ + p, 2), vr(ACCV + p, 2), RN, vr(ACCQ + p, 2)))
    for p in range(0, 16, 2): I('v_pk_fma_f32 %s, %s, %s, %s op_sel_hi:[1,0,0]' % (vr(ACCQ + p, 2), vr(ACCQ + p, 2), RN, SE))
    phi(ACCQ, WB, 16)
    for p in range(8): I('v_cvt_pk_bf16_f32 v%d, v%d, v%d' % (ACCK + p, ACCQ + 2 * p, ACCQ + 2 * p + 1))
    for p in (6, 7): I('v_cndmask_b32 v%d, 0, v%d, s[%d:%d]' % (ACCK + p, ACCK + p, g.sHI, g.sHI + 1))
    I('s_lshl_b32 s%d, s%d, 2' % (sT[0], sRBA)); I('s_add_u32 s%d, s%d, s%d' % (sT[0], sT[0], sW))
    I('s_lshl_b32 s%d, s%d, 6' % (sT[1], sH)); I('s_add_u32 s%d, s%d, s%d' % (sT[0], sT[0], sT[1])); I('s_lshl_b32 s%d, s%d, 11' % (sT[0], sT[0]))
    if PQF: I('s_add_u32 s%d, s%d, %d' % (sT[0], sT[0], PQF))
    I('buffer_store_dwordx4 %s, v%d, s[%d:%d], s%d offen sc1' % (vr(ACCK, 4), vL16, g.sWS, g.sWS + 3, sT[0]), tag='ast')
    I('buffer_store_dwordx4 %s, v%d, s[%d:%d], s%d offen offset:1024 sc1' % (vr(ACCK + 4, 4), vL16, g.sWS, g.sWS + 3, sT[0]), tag='ast')
    pf.stamp('pqst')
    go_poll()
    signal(g, 0, sH, 'ast')
    pf.stamp('sigA')
    I('s_cmp_ge_u32 s2, 224'); a.branch('s_cbranch_scc1 kf_pack')
    poll(g, 'kf_pg', vXS[0], 3, 'v%d' % g.vPT, g.sWS, early='gop')
    wo_loads(g, 0, 2)

def wo_loads(g, lo, hi):
    a = g.a; I = a.I; sT = g.sT
    for i in range(lo, hi):
        I('s_add_u32 s%d, s%d, %d' % (sT[2], g.sR4, i)); I('s_and_b32 s%d, s%d, 3' % (sT[2], sT[2]))
        I('s_lshl_b32 s%d, s%d, 2' % (sT[3], g.sW)); I('s_add_u32 s%d, s%d, s%d' % (sT[2], sT[2], sT[3])); I('s_lshl_b32 s%d, s%d, 11' % (sT[2], sT[2]))
        I('s_lshl_b32 s%d, s%d, 1' % (sT[3], g.sCS)); I('s_and_b32 s%d, s%d, 1' % (sT[4], g.sW)); I('s_add_u32 s%d, s%d, s%d' % (sT[3], sT[3], sT[4]))
        I('s_lshl_b32 s%d, s%d, 15' % (sT[3], sT[3])); I('s_add_u32 s%d, s%d, s%d' % (sT[2], sT[2], sT[3]))
        I('s_xor_b32 s%d, s%d, 32768' % (sT[3], sT[2]))
        I('s_add_u32 s%d, s%d, %d' % (sT[2], sT[2], WOP)); I('s_add_u32 s%d, s%d, %d' % (sT[3], sT[3], WOP))
        for c in range(2):
            for kk in range(2):
                I('buffer_load_dwordx4 %s, v%d, s[%d:%d], s%d offen offset:%d sc1' % (vr(8 + 16 * i + 8 * c + 4 * kk, 4), g.vL16, g.sWS, g.sWS + 3, sT[2 + c], 1024 * kk), tag='wo')

def reduce_tiles(g, ACC, P0, f='v'):
    a = g.a; I = a.I
    for t in range(1, 4):
        for q in range(4): I('ds_write_b128 v%d, %s offset:%d' % (g.vRW[t - 1], vr(ACC + 16 * t + 4 * q, 4, f), 1024 * q))
    a.wait(lg=0); I('s_barrier')
    for q in range(4):
        for t in range(3): I('ds_read_b128 %s, v%d offset:%d' % (vr(P0 + 16 * t + 4 * q, 4), g.vRR, 4096 * t + 1024 * q), tag='rr%d' % q)
    for q in range(4):
        a.wait(lg='rr%d' % q)
        for r in range(4):
            v = 4 * q + r
            I('v_add_f32 v%d, v%d, v%d' % (P0 + v, P0 + v, ACC + v)); I('v_add_f32 v%d, v%d, v%d' % (P0 + 16 + v, P0 + 16 + v, P0 + 32 + v))
        for r in range(4):
            v = 4 * q + r
            I('v_add_f32 v%d, v%d, v%d' % (P0 + v, P0 + v, P0 + 16 + v))

def resid_add(g, P0, RES, OUT):
    a = g.a; I = a.I
    T = P0 + 16
    for p in range(8): I('v_cvt_pk_bf16_f32 v%d, v%d, v%d' % (T + p, P0 + 2 * p, P0 + 2 * p + 1))
    for pr in range(2):
        for k in range(2): I('v_permlane32_swap_b32 v%d, v%d' % (T + 4 * pr + k, T + 4 * pr + 2 + k))
    for p in range(8):
        I('v_lshlrev_b32 v%d, 16, v%d' % (P0 + 2 * p, T + p)); I('v_and_b32 v%d, 0xffff0000, v%d' % (P0 + 2 * p + 1, T + p))
        I('v_lshlrev_b32 v%d, 16, v%d' % (T + 16 + 2 * p, RES + p)); I('v_and_b32 v%d, 0xffff0000, v%d' % (T + 16 + 2 * p + 1, RES + p))
    for e in range(16): I('v_add_f32 v%d, v%d, v%d' % (P0 + e, P0 + e, T + 16 + e))
    for p in range(8): I('v_cvt_pk_bf16_f32 v%d, v%d, v%d' % (OUT + p, P0 + 2 * p, P0 + 2 * p + 1))


def colsum(g, lo, hi):
    a = g.a; I = a.I
    for i in range(4): I('v_mov_b32 v%d, s%d' % (4 + i, g.sONE))
    for j in range(lo, hi):
        for c in range(2): I(MF(ar(224 + 16 * c, 16), 'v[4:7]', ar(112 * c + 4 * j, 4), '0' if j == 0 else ar(224 + 16 * c, 16)))

def phase_B(g):
    a = g.a; I = a.I; sT = g.sT; pf = g.pf; cfg = g.cfg
    sW = g.sW; vL16 = g.vL16
    WO, ACC, KV, NUM = 8, 72, 136, 168
    aPQ = 224
    sRT, sCT, sKVB, sPQB, sRX = g.S4[0:5]
    wo_loads(g, 2, 4)
    I('s_lshr_b32 s%d, s%d, 1' % (sT[0], sW)); I('s_and_b32 s%d, s%d, 1' % (sT[1], sW))
    I('s_lshl_b32 s%d, s%d, 1' % (sRT, g.sRB64)); I('s_add_u32 s%d, s%d, s%d' % (sRT, sRT, sT[0]))
    I('s_lshl_b32 s%d, s%d, 1' % (sCT, g.sCS)); I('s_add_u32 s%d, s%d, s%d' % (sCT, sCT, sT[1]))
    g.sRT, g.sCT = sRT, sCT
    I('s_mul_i32 s%d, s%d, %d' % (sT[2], sRT, 32 * 896)); I('s_lshl_b32 s%d, s%d, 6' % (sT[3], sCT)); I('s_add_u32 s%d, s%d, s%d' % (sT[2], sT[2], sT[3]))
    for i in range(2):
        I('buffer_load_dwordx4 %s, v%d, s[%d:%d], s%d offen offset:%d' % (vr(g.vHK + 4 * i, 4), g.vXo, g.sX, g.sX + 3, sT[2], 32 * i), tag='xr')
    for _ in range(min(cfg.get('b_gu', 0), len(g.guq))): gu_load(g, *g.guq.pop(0))
    I('s_lshl_b32 s%d, s%d, 10' % (sT[2], sW)); I('s_add_u32 s%d, s%d, %d' % (sT[2], sT[2], CNT))
    I('v_and_b32 v2, 3, v1'); I('v_lshlrev_b32 v2, 8, v2'); I('v_add_u32 v%d, s%d, v2' % (g.vPA, sT[2]))
    I('s_lshl_b32 s%d, s%d, 14' % (sKVB, sW)); I('s_add_u32 s%d, s%d, %d' % (sKVB, sKVB, KVACC))
    I('s_lshl_b32 s%d, s%d, 19' % (sPQB, sW)); I('s_lshl_b32 s%d, s%d, 12' % (sT[2], g.sRB64)); I('s_add_u32 s%d, s%d, s%d' % (sPQB, sPQB, sT[2]))
    if PQF: I('s_add_u32 s%d, s%d, %d' % (sPQB, sPQB, PQF))
    I('s_lshl_b32 s%d, s%d, 11' % (sRX, sT[0]))
    pf.stamp('pfB')
    poll(g, 'kf_p1', g.vPA, 0xf, 16, g.sWS)
    pf.stamp('sync1')
    def loads(i):
        I('s_add_u32 s%d, s%d, %d' % (sT[2], g.sR4, i)); I('s_and_b32 s%d, s%d, 3' % (sT[2], sT[2]))
        I('s_lshl_b32 s%d, s%d, 12' % (sT[3], sT[2])); I('s_add_u32 s%d, s%d, s%d' % (sT[3], sT[3], sKVB))
        I('s_lshl_b32 s%d, s%d, 17' % (sT[4], sT[2])); I('s_add_u32 s%d, s%d, s%d' % (sT[4], sT[4], sPQB))
        I('s_add_u32 s%d, s%d, s%d' % (sT[5], sT[4], sRX)); I('s_xor_b32 s%d, s%d, 2048' % (sT[4], sT[5]))
        for q in range(4):
            I('buffer_load_dwordx4 %s, v%d, s[%d:%d], s%d offen offset:%d sc1' % (vr(KV + 16 * (i % 2) + 4 * q, 4), vL16, g.sWS, g.sWS + 3, sT[3], 1024 * q), tag='kv%d' % i)
        for rt in range(2):
            for kk in range(2):
                I('buffer_load_dwordx4 %s, v%d, s[%d:%d], s%d offen offset:%d sc1' % (ar(aPQ + 16 * (i % 2) + 8 * rt + 4 * kk, 4), vL16, g.sWS, g.sWS + 3, sT[5] if rt == 0 else sT[4], 1024 * kk), tag='pq%d' % i)
    def o_ops(i, rt):
        n = NUM + 32 * (i % 2) + 16 * rt; t = 2 + rt
        ops = ['v_cvt_pk_bf16_f32 v%d, v%d, v%d' % (t, n + 14, n + 14), 'v_and_b32 v%d, 0xffff0000, v%d' % (t, t),
               'v_add_f32 v%d, s%d, v%d' % (t, g.sEPS, t), 'v_rcp_f32 v%d, v%d' % (t, t)]
        for v in range(14): ops.append('v_mul_f32 v%d, v%d, v%d' % (n + v, n + v, t))
        for p in range(7): ops.append('v_cvt_pk_bf16_f32 v%d, v%d, v%d' % (n + p, n + 2 * p, n + 2 * p + 1))
        ops.append('v_mov_b32 v%d, 0' % (n + 7))
        return ops
    def num(i):
        b = KV + 16 * (i % 2)
        a.wait(vm='kv%d' % i)
        for p in range(8): I('v_cvt_pk_bf16_f32 v%d, v%d, v%d' % (b + p, b + 2 * p, b + 2 * p + 1))
        a.wait(vm='pq%d' % i)
        for rt in range(2):
            for kk in range(2):
                n = NUM + 32 * (i % 2) + 16 * rt
                I(MF(vr(n, 16), vr(b + 4 * kk, 4), ar(aPQ + 16 * (i % 2) + 8 * rt + 4 * kk, 4), '0' if kk == 0 else vr(n, 16)))
        if i + 2 < 4: loads(i + 2)
    def gemm(i, rt, S, per):
        for kk in range(2):
            for c in range(2):
                acc = ACC + 16 * (2 * rt + c)
                I(MF(vr(acc, 16), vr(WO + 16 * i + 8 * c + 4 * kk, 4), vr(NUM + 32 * (i % 2) + 16 * rt + 4 * kk, 4), '0' if (i == 0 and kk == 0) else vr(acc, 16)))
                S.emit(per)
    loads(0); loads(1)
    S = Side(a)
    num(0)
    for i in range(4):
        S.add(o_ops(i, 0)); S.drain()
        S.add(o_ops(i, 1))
        gemm(i, 0, S, 28); S.drain()
        if i + 1 < 4: num(i + 1)
        if i == 2:
            for _ in range(min(cfg.get('b_gu2', 12), len(g.guq))): gu_load(g, *g.guq.pop(0))
        gemm(i, 1, S, 0)
    pf.stamp('gemmB')
    reduce_tiles(g, ACC, NUM)
    for _ in range(min(cfg.get('b_gu3', 10), len(g.guq))): gu_load(g, *g.guq.pop(0))
    resid_add(g, NUM, g.vHK, g.vHK)
    I('s_mul_i32 s%d, s%d, 28' % (sT[0], sRT)); I('s_lshl_b32 s%d, s%d, 1' % (sT[1], sCT)); I('s_add_u32 s%d, s%d, s%d' % (sT[0], sT[0], sT[1]))
    I('s_lshl_b32 s%d, s%d, 10' % (sT[0], sT[0])); I('s_add_u32 s%d, s%d, %d' % (sT[0], sT[0], HF))
    for i in range(2):
        I('buffer_store_dwordx4 %s, v%d, s[%d:%d], s%d offen offset:%d sc1' % (vr(g.vHK + 4 * i, 4), vL16, g.sWS, g.sWS + 3, sT[0], 1024 * i), tag='bst')
    I('v_mov_b32 v2, 0'); I('v_mov_b32 v3, 0')
    for p in range(8):
        I('v_dot2c_f32_bf16 v2, s%d, v%d' % (g.sONE, g.vHK + p)); I('v_dot2c_f32_bf16 v3, v%d, v%d' % (g.vHK + p, g.vHK + p))
    I('s_lshl_b32 s%d, s%d, 14' % (sT[0], sCT)); I('s_lshl_b32 s%d, s%d, 8' % (sT[1], sRT))
    I('s_add_u32 s%d, s%d, s%d' % (sT[0], sT[0], sT[1])); I('s_add_u32 s%d, s%d, %d' % (sT[0], sT[0], STATS))
    I('v_mov_b32 v4, v2'); I('v_mov_b32 v5, v3'); I('v_lshlrev_b32 v6, 3, v1')
    I('v_permlane32_swap_b32 v2, v4'); I('v_permlane32_swap_b32 v3, v5')
    I('v_add_f32 v8, v2, v4'); I('v_add_f32 v9, v3, v5')
    I('s_mov_b32 exec_hi, 0')
    I('buffer_store_dwordx2 v[8:9], v6, s[%d:%d], s%d offen sc1' % (g.sWS, g.sWS + 3, sT[0]), tag='bst')
    I('s_mov_b64 exec, -1')
    pf.stamp('hst')
    for _ in range(min(8, len(g.guq))): gu_load(g, *g.guq.pop(0))
    I('s_lshr_b32 s%d, s%d, 1' % (sT[5], g.sRB64))
    I('s_lshl_b32 s%d, s%d, 8' % (g.sT[6], sT[5])); I('s_add_u32 s%d, s%d, %d' % (g.sT[6], g.sT[6], CNT + 4096))
    a.wait(vm='bst'); I('s_barrier'); sig_add(g, g.sT[6])
    pf.stamp('sigB')

def phase_C(g):
    a = g.a; I = a.I; sT = g.sT; pf = g.pf; cfg = g.cfg
    sW = g.sW; vL16 = g.vL16
    ACC, HB, NMF, CI, TM, CSF = 8, 72, 96, 108, 116, 132
    NHB = 6
    vHQ = list(range(124, 132))
    I('s_lshl_b32 s%d, s%d, 2' % (sT[3], g.sFS)); I('s_add_u32 s%d, s%d, s%d' % (sT[3], sT[3], sW)); I('s_lshl_b32 s%d, s%d, 8' % (sT[3], sT[3])); I('s_add_u32 s%d, s%d, %d' % (sT[3], sT[3], CSGU))
    I('v_and_b32 v2, 31, v1'); I('v_lshlrev_b32 v3, 2, v2')
    for c in range(2): I('buffer_load_dword v%d, v3, s[%d:%d], s%d offen offset:%d sc1' % (g.vCSg + c, g.sWS, g.sWS + 3, sT[3], 128 * c), tag='csg')
    while g.guq: gu_load(g, *g.guq.pop(0))
    sHG, sHL = g.S4[5], g.S4[6]
    sO = g.S4[7:11]
    I('s_mul_i32 s%d, s%d, 112' % (sT[3], g.sCT)); I('s_mul_i32 s%d, s%d, 28' % (sT[4], sW)); I('s_add_u32 s%d, s%d, s%d' % (sT[3], sT[3], sT[4]))
    I('s_lshl_b32 s%d, s%d, 10' % (sT[3], sT[3])); I('s_add_u32 s%d, s%d, %d' % (sT[3], sT[3], WDP))
    for q in range(4):
        I('s_add_u32 s%d, s%d, %d' % (sT[4], g.sR4, q)); I('s_and_b32 s%d, s%d, 3' % (sT[4], sT[4]))
        I('s_mul_i32 s%d, s%d, 7168' % (sT[5], sT[4])); I('v_add_u32 v%d, s%d, v%d' % (vHQ[q], sT[5], vL16)); I('v_add_u32 v%d, 57344, v%d' % (vHQ[4 + q], vHQ[q]))
        I('s_add_u32 s%d, s%d, s%d' % (g.sQ[q], sT[5], sT[3]))
    I('s_and_b32 s%d, s%d, 1' % (sT[4], g.sCT)); I('s_mul_i32 s%d, s%d, 114688' % (sT[4], sT[4])); I('s_sub_u32 s%d, 114688, s%d' % (sT[5], sT[4]))
    for q in range(4): I('s_sub_u32 s%d, s%d, s%d' % (g.sQ[q], g.sQ[q], sT[4]))
    g.vLd = [g.vPT, g.vLo[1], g.vLo[2], g.vLo[3]]
    I('v_add_u32 v%d, s%d, v%d' % (g.vLd[0], sT[4], vL16)); I('v_add_u32 v%d, 4096, v%d' % (g.vLd[1], g.vLd[0]))
    I('v_add_u32 v%d, s%d, v%d' % (g.vLd[2], sT[5], vL16)); I('v_add_u32 v%d, 4096, v%d' % (g.vLd[3], g.vLd[2]))
    g.vLo = g.vLd
    I('s_mul_i32 s%d, s%d, %d' % (sHG, g.sRB128, 4 * 28672)); I('s_mul_i32 s%d, s%d, 7168' % (sHL, sW))
    I('s_add_u32 s%d, s%d, s%d' % (sHG, sHG, sHL)); I('s_add_u32 s%d, s%d, %d' % (sHG, sHG, HF))
    I('s_lshl_b32 s%d, s%d, 3' % (sT[2], g.sFS)); I('s_lshl_b32 s%d, s%d, 1' % (sT[3], sW)); I('s_add_u32 s%d, s%d, s%d' % (sT[2], sT[2], sT[3]))
    I('s_mul_i32 s%d, s%d, %d' % (sT[0], g.sRB128, 4 * 112)); I('s_add_u32 s%d, s%d, s%d' % (sT[0], sT[0], sT[2]))
    I('s_lshl_b32 s%d, s%d, 10' % (sT[0], sT[0])); I('s_add_u32 s%d, s%d, %d' % (sT[0], sT[0], ACTF))
    for rt in range(4): I('s_add_u32 s%d, s%d, %d' % (sO[rt], sT[0], rt * 112 * 1024))
    I('v_and_b32 v2, 31, v1'); I('v_lshrrev_b32 v3, 5, v1')
    I('v_mul_u32_u24 v%d, %d, v3' % (TM, 7 * 16384)); I('v_lshl_add_u32 v%d, v2, 3, v%d' % (TM, TM))
    I('s_lshl_b32 s%d, s%d, 2' % (sT[0], g.sRB128)); I('s_add_u32 s%d, s%d, s%d' % (sT[0], sT[0], sW))
    I('s_lshl_b32 s%d, s%d, 8' % (sT[1], sT[0])); I('s_add_u32 s%d, s%d, %d' % (sT[1], sT[1], STATS))
    I('s_lshl_b32 s%d, s%d, 8' % (sT[2], g.sRB128)); I('s_add_u32 s%d, s%d, %d' % (sT[2], sT[2], CNT + 4096)); I('v_mov_b32 v%d, s%d' % (g.vPA, sT[2]))
    pf.stamp('csC')
    poll(g, 'kf_p2', g.vPA, 1, 14, g.sWS)
    pf.stamp('sync2')
    def h_dma(rt, lo=0, hi=7):
        for k in range(lo, hi):
            if k % 4 == 0 or k == lo:
                kb = k - k % 4
                I('s_add_u32 s%d, s%d, %d' % (sT[3], sHG, rt * 28672 + 1024 * kb)); I('s_add_u32 m0, s%d, %d' % (sHL, g.HL + rt * 28672 + 1024 * kb))
            I('buffer_load_dwordx4 v%d, s[%d:%d], s%d offen offset:%d sc1 lds' % (vL16, g.sWS, g.sWS + 3, sT[3], 1024 * (k % 4)), tag='h%d' % rt)
    h_dma(0)
    vSP = 140
    for p in range(7):
        I('buffer_load_dwordx2 %s, v%d, s[%d:%d], s%d offen sc1' % (vr(vSP + 2 * p, 2), TM, g.sWS, g.sWS + 3, sT[1]), tag='sp')
        if p < 6: I('s_add_u32 s%d, s%d, 16384' % (sT[1], sT[1]))
    for c in range(2):
        f = CSF + 4 * c
        I('v_mov_b32 v4, v%d' % (g.vCSg + c))
        I('v_cvt_pk_bf16_f32 v5, v4, v4'); I('v_and_b32 v5, 0xffff0000, v5'); I('v_sub_f32 v6, v4, v5')
        I('v_cvt_pk_bf16_f32 v%d, v4, v6' % f); I('v_and_b32 v5, 0xffff0000, v%d' % f); I('v_sub_f32 v6, v6, v5')
        I('v_cvt_pk_bf16_f32 v%d, v6, 0' % (f + 1))
        I('v_cndmask_b32 v%d, 0, v%d, s[%d:%d]' % (f, f, g.sHI, g.sHI + 1)); I('v_cndmask_b32 v%d, 0, v%d, s[%d:%d]' % (f + 1, f + 1, g.sHI, g.sHI + 1))
        I('v_mov_b32 v%d, 0' % (f + 2)); I('v_mov_b32 v%d, 0' % (f + 3))
    I('s_lshl_b32 s%d, s%d, 8' % (sT[2], sW)); I('s_add_u32 s%d, s%d, %d' % (sT[2], sT[2], CNT + 5 * 4096)); I('v_mov_b32 v%d, s%d' % (g.vPA, sT[2]))
    a.wait(vm='h0'); I('s_barrier')
    pf.stamp('h0')
    def stats_ops():
        ops = [((lambda: a.wait(vm='sp')), 3)]
        for p in range(1, 7): ops += ['v_add_f32 v%d, v%d, v%d' % (vSP, vSP, vSP + 2 * p), 'v_add_f32 v%d, v%d, v%d' % (vSP + 1, vSP + 1, vSP + 2 * p + 1)]
        ops += ['v_mov_b32 v5, v%d' % vSP, 'v_mov_b32 v6, v%d' % (vSP + 1), 's_lshl_b32 s%d, s%d, 9' % (sT[1], sW), 's_add_u32 s%d, s%d, %d' % (sT[1], sT[1], g.STL),
                'v_permlane32_swap_b32 v%d, v5' % vSP, 'v_permlane32_swap_b32 v%d, v6' % (vSP + 1),
                'v_add_f32 v%d, v%d, v5' % (vSP, vSP), 'v_add_f32 v%d, v%d, v6' % (vSP + 1, vSP + 1)]
        b = Asm(); ln_finish(b, 'v%d' % vSP, 'v%d' % (vSP + 1), 'v5', 'v6', 'v7', 'v3')
        ops += [l.strip() for l in b.out if not l.strip().startswith('s_nop')]
        X = vSP + 4
        ops += ['v_sub_f32 v3, 0, v3', 'v_cvt_pk_bf16_f32 v%d, v3, v3' % X, 'v_mov_b32 v%d, v%d' % (X + 1, X), 'v_mul_f32 v%d, %s, v7' % (X + 2, f32(-LOG2E)), 'v_mul_f32 v%d, v6, v6' % (X + 3),
                'v_lshlrev_b32 v4, 4, v2', 'v_add_u32 v5, s%d, v4' % sT[1], 'v_add_u32 v4, %d, v4' % g.STL,
                ((lambda: I('ds_write_b128 v5, %s' % vr(X, 4), tag='stw')), 6)]
        return ops
    def st_reads():
        for rt in range(4):
            I('ds_read_b64 %s, v4 offset:%d' % (vr(NMF + 2 * rt, 2), 512 * rt), tag='st')
            I('ds_read_b64 %s, v4 offset:%d' % (vr(CI + 2 * rt, 2), 512 * rt + 8), tag='st')
        I('v_mov_b32 v%d, 0' % (NMF + 8)); I('v_mov_b32 v%d, 0' % (NMF + 9))
    def acc(rt, c): return ACC + 32 * (rt % 2) + 16 * c
    def epi_ops(rt, c):
        b = acc(rt, c); c1, ir2 = CI + 2 * rt, CI + 2 * rt + 1
        ops = []
        for j in range(8): ops += ['v_mul_f32 v%d, v%d, v%d' % (TM + j, c1, b + j)]
        for j in range(8): ops += ['v_exp_f32 v%d, v%d' % (TM + j, TM + j), 'v_mul_f32 v%d, v%d, v%d' % (b + j, b + j, b + 8 + j)]
        for j in range(8): ops += ['v_fma_f32 v%d, v%d, v%d, v%d' % (TM + j, TM + j, ir2, ir2)]
        for j in range(8):
            ops += ['v_rcp_f32 v%d, v%d' % (TM + j, TM + j)]
            if j > 0: ops += ['v_mul_f32 v%d, v%d, v%d' % (b + j - 1, b + j - 1, TM + j - 1)]
        ops += ['v_cvt_pk_bf16_f32 v%d, v%d, v%d' % (b + 8 + p, b + 2 * p, b + 2 * p + 1) for p in range(3)]
        ops += ['v_mul_f32 v%d, v%d, v%d' % (b + 7, b + 7, TM + 7), 'v_cvt_pk_bf16_f32 v%d, v%d, v%d' % (b + 11, b + 6, b + 7)]
        ops.append(((lambda: I('buffer_store_dwordx4 %s, v%d, s[%d:%d], s%d offen offset:%d sc1' % (vr(b + 8, 4), vL16, g.sWS, g.sWS + 3, sO[rt], 1024 * c), tag='cst')), 16))
        return ops
    seq = [(rt, j) for rt in range(4) for j in range(28)]
    vis = 0
    def h_rd(n):
        nonlocal vis
        rt, j = seq[n]
        if rt > vis:
            vis = rt
            if rt == 1: a.wait(vm='h1', lg='stw')
            else: a.wait(vm='h%d' % rt)
            I('s_barrier')
            if rt == 1: st_reads()
        I('ds_read_b128 %s, v%d offset:%d' % (vr(HB + 4 * (n % NHB), 4), vHQ[4 * (rt // 2) + j // 7], (rt % 2) * 28672 + (j % 7) * 1024), tag='hr%d' % n)
    LA = NHB - 1
    for n in range(LA): h_rd(n)
    S = Side(a)
    wdq = [(j, c) for j in range(g.n_wd1) for c in range(2)]
    def hd(rt, k): return ((lambda: h_dma(rt, k, k + 1)), 22)
    for n, (rt, j) in enumerate(seq):
        if j == 0:
            S.drain()
            if rt == 0:
                S.add([hd(1, k) for k in range(7)]); S.add(stats_ops()); S.add([hd(2, k) for k in range(7)])
                S.add([((lambda: I('buffer_load_dword v%d, v%d, s[%d:%d], 0 offen sc1' % (g.vPoll, g.vPA, g.sWS, g.sWS + 3), tag='wdp')), 16)])
            if rt == 1:
                S.add([hd(3, k) for k in range(7)])
                poll(g, 'kf_pw', g.vPA, 1, 7, g.sWS, early='wdp')
            if rt >= 1: S.add(epi_ops(rt - 1, 0) + epi_ops(rt - 1, 1))
            if rt % 2 == 0: pf.stamp('rt%d' % rt)
        if n + LA == 28: S.drain()
        if n + LA < len(seq): h_rd(n + LA)
        a.wait(lg='hr%d' % n)
        for c in range(2):
            I(MF(vr(acc(rt, c), 16), ar(112 * c + 4 * j, 4), vr(HB + 4 * (n % NHB), 4), '0' if j == 0 else vr(acc(rt, c), 16)))
            if c == 0 and n >= 36 and n % 5 in (0, 2) and wdq: wd_load(g, *wdq.pop(0))
            elif not (j == 0 and rt >= 1): S.emit(20 if c == 0 else 24)
        if j == 27:
            a.wait(lg='st')
            for c in range(2): I(MF(vr(acc(rt, c), 16), vr(CSF + 4 * c, 4), vr(NMF + 2 * rt, 4), vr(acc(rt, c), 16)))
    S.drain()
    pf.stamp('mfmaC')
    assert not wdq
    g.wdq2 = [(j, c) for j in range(g.n_wd1, 28) for c in range(2)]
    for _ in range(8): wd_load(g, *g.wdq2.pop(0))
    S.add(epi_ops(3, 0) + epi_ops(3, 1)); S.drain()
    pf.stamp('actst')
    for _ in range(8): wd_load(g, *g.wdq2.pop(0))
    signal(g, 2, g.sRB128, 'cst')
    pf.stamp('sigC')

def phase_D(g):
    a = g.a; I = a.I; sT = g.sT; pf = g.pf; cfg = g.cfg
    sW = g.sW; vL16 = g.vL16
    ACC, P0 = 8, 72
    while g.wdq2: wd_load(g, *g.wdq2.pop(0))
    sA = g.S4[11:15]
    I('s_mul_i32 s%d, s%d, 112' % (sT[0], g.sRT)); I('s_mul_i32 s%d, s%d, 28' % (sT[1], sW)); I('s_add_u32 s%d, s%d, s%d' % (sT[0], sT[0], sT[1]))
    I('s_lshl_b32 s%d, s%d, 10' % (sT[0], sT[0])); I('s_add_u32 s%d, s%d, %d' % (sT[0], sT[0], ACTF))
    I('s_and_b32 s%d, s%d, 1' % (sT[2], g.sRT)); I('s_mul_i32 s%d, s%d, 114688' % (sT[2], sT[2])); I('s_sub_u32 s%d, 114688, s%d' % (sT[3], sT[2]))
    I('s_sub_u32 s%d, s%d, s%d' % (sT[0], sT[0], sT[2]))
    for q in range(4):
        I('s_add_u32 s%d, s%d, %d' % (sT[4], g.sR4, q)); I('s_and_b32 s%d, s%d, 3' % (sT[4], sT[4]))
        I('s_mul_i32 s%d, s%d, 7168' % (sT[4], sT[4])); I('s_add_u32 s%d, s%d, s%d' % (sA[q], sT[4], sT[0]))
    vA = [124, 125, 126, 127]
    I('v_add_u32 v%d, s%d, v%d' % (vA[0], sT[2], vL16)); I('v_add_u32 v%d, 4096, v%d' % (vA[1], vA[0]))
    I('v_add_u32 v%d, s%d, v%d' % (vA[2], sT[3], vL16)); I('v_add_u32 v%d, 4096, v%d' % (vA[3], vA[2]))
    I('s_lshr_b32 s%d, s%d, 1' % (sT[2], g.sRB64)); I('s_lshl_b32 s%d, s%d, 8' % (sT[2], sT[2])); I('s_add_u32 s%d, s%d, %d' % (sT[2], sT[2], CNT + 8192))
    I('v_mov_b32 v%d, s%d' % (g.vPA, sT[2]))
    pf.stamp('pfD')
    poll(g, 'kf_p3', g.vPA, 1, 14, g.sWS)
    pf.stamp('sync3')
    NR = g.act_ring; AB = g.act_base
    def issue(j, rt):
        b = AB + 8 * (j % NR); r = j % 7
        I('buffer_load_dwordx4 %s, v%d, s[%d:%d], s%d offen offset:%d sc1' % (ar(b + 4 * rt, 4), vA[2 * rt + (r >= 4)], g.sWS, g.sWS + 3, sA[j // 7], 1024 * (r % 4)), tag='k%d' % j)
    LA = min(NR - 1, cfg.get('d_la', 6))
    for j in range(LA): issue(j, 0); issue(j, 1)
    for j in range(28):
        a.wait(vm='k%d' % j)
        if j % 8 == 0: pf.stamp('k%d' % j)
        b = AB + 8 * (j % NR)
        for k, (rt, c) in enumerate(((0, 0), (1, 0), (1, 1), (0, 1))):
            f, r = g.wd_regs[j][c]
            ac = ACC + 16 * (2 * rt + c)
            I(MF(vr(ac, 16), vr(r, 4, f), ar(b + 4 * rt, 4), '0' if j == 0 else vr(ac, 16)))
            if j + LA < 28 and k < 2: issue(j + LA, k)
    pf.stamp('gemmD')
    reduce_tiles(g, ACC, P0)
    resid_add(g, P0, g.vHK, ACC)
    I('s_mul_i32 s%d, s%d, %d' % (sT[2], g.sRT, 32 * 896)); I('s_lshl_b32 s%d, s%d, 6' % (sT[3], g.sCT)); I('s_add_u32 s%d, s%d, s%d' % (sT[2], sT[2], sT[3]))
    for i in range(2):
        I('buffer_store_dwordx4 %s, v%d, s[%d:%d], s%d offen offset:%d' % (vr(ACC + 4 * i, 4), g.vXo, g.sOUT, g.sOUT + 3, sT[2], 32 * i))
    pf.stamp('out')
    if PROF: I('s_waitcnt vmcnt(0)')
    pf.dump(g.sWS)
    I('s_endpgm')

def pack_wd(g):
    a = g.a; I = a.I; sT = g.sT; sW = g.sW; vL16 = g.vL16
    a.label('kf_pack'); a.reset_counts()
    I('s_cmp_ge_u32 s2, 252'); a.branch('s_cbranch_scc1 kf_end')
    I('s_sub_u32 s%d, s2, 224' % sT[5]); I('s_lshl_b32 s%d, s%d, 2' % (sT[0], sT[5])); I('s_add_u32 s%d, s%d, s%d' % (sT[0], sT[0], sW))
    I('s_mul_i32 s%d, s%d, 14336' % (sT[1], sT[0])); I('s_mul_i32 s%d, s%d, 14336' % (sT[2], sW))
    for i in range(14):
        if i % 4 == 0:
            I('s_add_u32 s%d, s%d, %d' % (sT[3], sT[1], 1024 * i)); I('s_add_u32 m0, s%d, %d' % (sT[2], 1024 * i))
        I('buffer_load_dwordx4 v%d, s[%d:%d], s%d offen offset:%d lds' % (vL16, g.sD, g.sD + 3, sT[3], 1024 * (i % 4)))
    I('v_lshrrev_b32 v3, 5, v1'); I('v_bfe_u32 v4, v1, 2, 2'); I('v_lshl_add_u32 v4, v3, 2, v4'); I('v_mul_u32_u24 v4, 896, v4')
    I('v_bfe_u32 v5, v1, 4, 1'); I('v_lshl_add_u32 v4, v5, 5, v4'); I('v_and_b32 v5, 3, v1'); I('v_lshl_add_u32 v4, v5, 3, v4')
    I('v_add_u32 v4, s%d, v4' % sT[2])
    I('s_lshl_b32 s%d, s%d, 10' % (sT[1], sT[0])); I('s_add_u32 s%d, s%d, %d' % (sT[1], sT[1], WDP))
    I('s_mul_i32 s%d, s%d, 37' % (sT[5], sT[5])); I('s_lshr_b32 s%d, s%d, 8' % (sT[5], sT[5]))
    a.wait(vm=0)
    B0 = 80
    for ct in range(18):
        if ct < 14: trfrag(a, B0 + 4 * ct, 4, 64 * ct, 't%d' % ct, d2=8 * 896)
        if ct >= 4:
            cc = ct - 4
            a.wait(lg='t%d' % cc)
            I('buffer_store_dwordx4 %s, v%d, s[%d:%d], s%d offen sc1' % (vr(B0 + 4 * cc, 4), vL16, g.sWS, g.sWS + 3, sT[1]), tag='wst')
            I('s_add_u32 s%d, s%d, %d' % (sT[1], sT[1], 112 * 1024))
    signal(g, 5, sT[5], 'wst')
    if PROF:
        nm = list(g.pf.names); g.pf.n = 14; g.pf.stamp('x'); g.pf.names = nm[:-1]; g.pf.n = len(nm) - 1; g.pf.dump(g.sWS)

def gen_F(a, cfg=None):
    cfg = cfg or {}
    name = KN + '_kernel'
    head(a, name)
    g = setup(a, cfg)
    homes = [('v', 156 + 4 * k) for k in range(19)] + [('a', 224 + 4 * k) for k in range(8)] + [('v', 140 + 4 * k) for k in range(3)] + [('a', 4 * k) for k in range(26)]
    g.n_wd1 = 15
    g.wd_regs = [(homes[2 * j], homes[2 * j + 1]) for j in range(28)]
    g.act_base, g.act_ring = 104, 15
    phase_A(g); phase_B(g); phase_C(g); phase_D(g); pack_wd(g)
    a.label('kf_end')
    a.I('s_endpgm')
    a.raw('kf_pad:\n.fill (49664 - (kf_pad - %s)) / 4, 4, 0xbf800000' % name)
    return (name, 256, 256, 163840, 512, 102, 256)
```

```python
import re

REG_RE = re.compile(r'^(-)?(\|)?(?:abs\()?([vas])(?:(\d+)|\[(\d+):(\d+)\])\)?(\|)?$')
TRANS = ('v_exp_f32', 'v_log_f32', 'v_rcp_f32', 'v_rsq_f32', 'v_sqrt_f32', 'v_sin_f32', 'v_cos_f32', 'v_rcp_iflag_f32')

def regs_of(tok):
    tok = tok.strip()
    if tok == 'vcc': return {('s', 106), ('s', 107)}
    if tok == 'exec': return {('s', 126), ('s', 127)}
    if tok == 'm0': return {('s', 124)}
    if tok == 'vcc_lo': return {('s', 106)}
    if tok == 'vcc_hi': return {('s', 107)}
    if tok == 'exec_lo': return {('s', 126)}
    if tok == 'exec_hi': return {('s', 127)}
    m = REG_RE.match(tok)
    if not m: return set()
    f = m.group(3)
    if m.group(4) is not None: lo = hi = int(m.group(4))
    else: lo, hi = int(m.group(5)), int(m.group(6))
    return {(f, i) for i in range(lo, hi + 1)}

def split_ops(s):
    out, depth, cur = [], 0, ''
    for ch in s:
        if ch in '[(': depth += 1
        if ch in '])': depth -= 1
        if ch == ',' and depth == 0: out.append(cur.strip()); cur = ''
        else: cur += ch
    if cur.strip(): out.append(cur.strip())
    return out

class Ins:
    def __init__(self, text):
        self.text = text
        t = text.split(';')[0].strip()
        parts = t.split(None, 1)
        self.op = parts[0]
        rest = parts[1] if len(parts) > 1 else ''
        ops = split_ops(rest)
        mods = []
        if ops:
            l = ops[-1].split()
            ops[-1] = l[0]; mods = l[1:]
        self.ops, self.mods = ops, mods
        op = self.op
        self.dst, self.src = set(), set()
        self.kind = 'other'
        self.srcC = set(); self.srcAB = set()
        R = [regs_of(o) for o in ops]
        if op.startswith('v_mfma'):
            self.kind = 'mfma'
            self.passes = 8 if '32x32' in op else 4
            self.dst = R[0]; self.srcAB = R[1] | R[2]; self.srcC = R[3]; self.src = self.srcAB | self.srcC
        elif op.startswith('v_'):
            self.kind = 'valu'
            if op.startswith('v_cmp'):
                self.dst = R[0]; self.src = set().union(*R[1:])
            elif op in ('v_add_co_u32', 'v_sub_co_u32', 'v_addc_co_u32', 'v_subb_co_u32'):
                self.dst = R[0] | R[1]; self.src = set().union(*R[2:])
            elif op.startswith('v_permlane') and 'swap' in op or op.startswith('v_swap'):
                self.dst = R[0] | R[1]; self.src = R[0] | R[1]
            elif op.startswith(('v_fmac', 'v_dot2c', 'v_pk_fmac')):
                self.dst = R[0]; self.src = set().union(*R)
            elif op == 'v_nop':
                pass
            else:
                self.dst = R[0]; self.src = set().union(*R[1:]) if len(R) > 1 else set()
            if '_dpp' in op or any(m.startswith(('row_', 'quad_perm', 'wave_')) for m in mods):
                self.dpp = True
                self.src |= R[0]
            else: self.dpp = False
        elif op.startswith('ds_'):
            self.kind = 'ds'
            if op.startswith(('ds_read', 'ds_bpermute', 'ds_permute', 'ds_swizzle')) or '_rtn_' in op:
                self.dst = R[0]; self.src = set().union(*R[1:])
            else:
                self.src = set().union(*R)
        elif op.startswith(('buffer_', 'global_')):
            self.kind = 'vmem'
            lds = 'lds' in mods or '_lds_' in op
            self.lds = lds
            if op in ('buffer_wbl2', 'buffer_inv'):
                pass
            elif 'load' in op and not lds:
                self.dst = R[0]; self.src = set().union(*R[1:])
            else:
                self.src = set().union(*R)
                if lds: self.src |= {('s', 124)}
                if 'atomic' in op and 'sc0' in mods and op.startswith('buffer_'): self.dst = R[0]
            self.wide_store = ('store' in op and ('x4' in op or 'x3' in op))
            if self.wide_store:
                self.store_data = R[0] if op.startswith('buffer_') else R[1]
        elif op.startswith('s_'):
            self.kind = 'salu'
            if op.startswith(('s_cmp', 's_waitcnt', 's_branch', 's_cbranch', 's_barrier', 's_nop', 's_endpgm', 's_sleep', 's_setprio', 's_bitcmp')):
                self.src = set().union(*R) if R else set()
            elif op.startswith('s_load') or op.startswith('s_buffer_load') or op.startswith('s_memtime') or op.startswith('s_memrealtime'):
                self.kind = 'smem'; self.dst = R[0]; self.src = set().union(*R[1:]) if len(R) > 1 else set()
            else:
                self.dst = R[0]; self.src = set().union(*R[1:]) if len(R) > 1 else set()
                if 'saveexec' in op: self.dst = self.dst | {('s', 126), ('s', 127)}
        self.trans = op in TRANS
        self.dot = op.startswith('v_dot')

    def states(self):
        if self.op == 's_nop': return int(self.ops[0], 0) + 1
        return 1

def need(p, c):
    n = 0
    vd = {r for r in p.dst if r[0] in 'va'}
    sd = {r for r in p.dst if r[0] == 's'}
    if p.kind == 'valu':
        if c.kind == 'mfma' and vd & c.src: n = max(n, 2)
        if p.trans and c.kind in ('valu', 'vmem', 'ds') and vd & (c.src) and not (c.kind == 'valu' and c.trans): n = max(n, 1)
        if c.kind == 'valu':
            if sd & c.src: n = max(n, 4 if c.op.startswith(('v_readlane', 'v_writelane')) else 2)
            if vd & c.src:
                if c.op.startswith(('v_readlane', 'v_readfirstlane')): n = max(n, 1)
                if c.op.startswith('v_permlane'): n = max(n, 2)
                if c.dpp: n = max(n, 2)
        if c.kind == 'vmem' and sd & c.src: n = max(n, 5)
        if c.kind in ('salu', 'smem') and sd & c.src: n = max(n, 1)
        if p.dot:
            if c.kind == 'valu' and c.op == p.op:
                ab = set().union(*[regs_of(o) for o in c.ops[1:3]])
                if vd & ab: n = max(n, 3)
            elif vd & (c.src | c.dst): n = max(n, 3)
    if p.kind == 'mfma':
        P = p.passes
        if c.kind == 'mfma':
            if vd & c.srcAB: n = max(n, 8 if P == 4 else 12)
            if vd & c.srcC:
                if c.srcC == vd and c.op == p.op: pass
                else: n = max(n, 6 if P == 4 else 10)
            if vd & c.dst and not (c.srcC == vd and c.op == p.op and c.dst == vd): n = max(n, 8 if P == 4 else 12)
        elif c.kind in ('valu', 'vmem', 'ds'):
            if vd & (c.src | c.dst): n = max(n, 8 if P == 4 else 12)
            if c.kind == 'valu' and p.srcC & c.dst: n = max(n, 3 if P == 4 else 7)
    if p.kind == 'salu' and ('s', 124) in p.dst and c.kind == 'vmem' and getattr(c, 'lds', False): n = max(n, 1)
    if p.kind == 'vmem' and getattr(p, 'wide_store', False):
        if c.dst & p.store_data: n = max(n, 2 if c.kind in ('valu', 'mfma') else 1)
    return n

class Asm:
    def __init__(self):
        self.out = []
        self.hist = []
        self.vm = []
        self.lg = []
        self.nops = 0
        self.count = 0
    def raw(self, text): self.out.append(text)
    def c(self, text): self.out.append('    ; ' + text)
    def _push(self, ins):
        s = ins.states()
        self.hist = [(p, d + s) for p, d in self.hist if d + s < 24]
        self.hist.append((ins, 0))
        self.out.append('    ' + ins.text)
        self.count += 1
    def nop(self, n):
        while n > 0:
            k = min(n, 16)
            self._push(Ins('s_nop %d' % (k - 1))); n -= k; self.nops += k
    def sprinkle(self, fn, every):
        self.spr = (fn, every) if fn else None; self.spr_acc = 0.0
    def _spr_tick(self, ins):
        if ins.op.startswith('s_') and (('s', 126) in ins.dst or ('s', 127) in ins.dst):
            self.exec_full = (ins.text.replace(' ', '').endswith('exec,-1'))
        sp = getattr(self, 'spr', None)
        if not sp or getattr(self, 'in_spr', False): return
        c = 32 if ins.kind == 'mfma' else 8.4 if ins.trans else 13 if ins.op.startswith('ds_write_b128') else 16 if ins.op.startswith('ds_read_b128') else 4.6
        if ins.op == 's_barrier': c = 60
        self.spr_acc += c
        if self.spr_acc >= sp[1] and getattr(self, 'exec_full', True) and not (ins.kind == 'salu' and (('s', 124) in ins.dst or ins.op.startswith(('s_cmp', 's_cbranch', 's_branch')))):
            self.spr_acc = 0.0; self.in_spr = True
            if not sp[0](): self.spr = None
            self.in_spr = False
    def I(self, text, tag=None, counted=True):
        ins = self._I(text, tag, counted)
        self._spr_tick(ins)
        return ins
    def _I(self, text, tag=None, counted=True):
        ins = Ins(text)
        pad = 0
        for p, d in self.hist:
            pad = max(pad, need(p, ins) - d)
        if pad > 0: self.nop(pad)
        self._push(ins)
        if ins.kind == 'vmem' and counted and ins.op not in ('buffer_wbl2', 'buffer_inv'): self.vm.append(tag)
        if ins.kind == 'ds' and counted: self.lg.append(tag)
        return ins
    def flush(self):
        pad = 0
        for p, d in self.hist:
            if p.kind == 'mfma': pad = max(pad, (8 if p.passes == 4 else 12) - d)
            elif p.kind == 'valu': pad = max(pad, (5 if any(r[0] == 's' for r in p.dst) else 3) - d)
            elif p.kind == 'vmem' and getattr(p, 'wide_store', False): pad = max(pad, 2 - d)
            elif p.kind == 'salu' and ('s', 124) in p.dst: pad = max(pad, 1 - d)
        if pad > 0: self.nop(pad)
        self.hist = []
    def label(self, name):
        self.flush(); self.out.append(name + ':')
    def branch(self, text):
        self.flush(); self.I(text)
    @staticmethod
    def _after(lst, tags):
        if not isinstance(tags, (list, tuple, set)): tags = [tags]
        idx = max((i for i, t in enumerate(lst) if t in tags), default=None)
        assert idx is not None, ('tag not found', tags)
        return len(lst) - 1 - idx
    def wait(self, vm=None, lg=None):
        parts = []
        if vm is not None:
            n = 0 if vm == 0 else self._after(self.vm, vm)
            parts.append('vmcnt(%d)' % min(n, 63))
        if lg is not None:
            n = 0 if lg == 0 else self._after(self.lg, lg)
            parts.append('lgkmcnt(%d)' % min(n, 15))
        self.I('s_waitcnt ' + ' '.join(parts))
    def reset_counts(self):
        self.vm = []; self.lg = []
    def text(self): return '\n'.join(self.out) + '\n'

def vr(b, n=1, f='v'):
    return '%s%d' % (f, b) if n == 1 else '%s[%d:%d]' % (f, b, b + n - 1)
def ar(b, n=1): return vr(b, n, 'a')
def sr(b, n=1): return vr(b, n, 's')

class Alloc:
    def __init__(self, start, limit): self.p = start; self.limit = limit; self.hi = start
    def get(self, n=1, align=1):
        self.p = (self.p + align - 1) // align * align
        b = self.p; self.p += n
        assert self.p <= self.limit, 'register overflow %d > %d' % (self.p, self.limit)
        self.hi = max(self.hi, self.p)
        return b
    def mark(self): return self.p
    def release(self, m): self.p = m
```

```python
from gen_common import *
from types import SimpleNamespace as NS

CNT = KVACC + (128 << 10)
SPIN_MAX = 1 << 22
V3 = ('v_fma_f32', 'v_cvt_pk_bf16_f32', 'v_add3_u32', 'v_lshl_add_u32', 'v_bfe_u32', 'v_cndmask_b32', 'v_mul_lo_u32', 'v_accvgpr_read_b32', 'v_accvgpr_write_b32')

def MF(d, A, B, C): return 'v_mfma_f32_32x32x16_bf16 %s, %s, %s, %s' % (d, A, B, C)

def cost(o):
    if isinstance(o, tuple): return o[1]
    op = o.split()[0]
    if op in TRANS: return 8.4
    if op in V3 or op.startswith('v_pk'): return 5.3
    if op.startswith('v_'): return 4.2 if '0x' not in o else 5.3
    if op.startswith('ds_'): return 5.3
    if op.startswith('buffer_'): return 16
    return 3.0

class Side:
    def __init__(self, a): self.a = a; self.q = []; self.credit = 0.0
    def add(self, ops): self.q += list(ops)
    def _one(self):
        o = self.q.pop(0)
        if isinstance(o, tuple): o[0]()
        else: self.a.I(o)
    def emit(self, budget):
        self.credit = min(self.credit + budget, budget + 8)
        while self.q and cost(self.q[0]) <= self.credit + 2:
            self.credit -= cost(self.q[0]); self._one()
    def drain(self):
        while self.q: self._one()
        self.credit = 0.0

def poll(g, lbl, addr_v, lanes_mask, target, srdreg, early=None):
    a = g.a; I = a.I
    saved = list(a.vm)
    I('s_mov_b32 s%d, 0' % g.sSPIN)
    if early:
        a.wait(vm=early)
        a.branch('s_branch %s_chk' % lbl)
    a.label(lbl)
    I('buffer_load_dword v%d, v%d, s[%d:%d], 0 offen sc1' % (g.vPoll, addr_v, srdreg, srdreg + 3), counted=False)
    I('s_add_u32 s%d, s%d, 1' % (g.sSPIN, g.sSPIN))
    I('s_waitcnt vmcnt(0)')
    a.label(lbl + '_chk')
    I('v_cmp_le_u32 vcc, %s, v%d' % (target, g.vPoll))
    I('s_cmp_ge_u32 s%d, %d' % (g.sSPIN, SPIN_MAX))
    a.branch('s_cbranch_scc1 %s_ok' % lbl)
    I('s_and_b32 s%d, vcc_lo, %d' % (g.sT[7], lanes_mask))
    I('s_cmp_eq_u32 s%d, %d' % (g.sT[7], lanes_mask))
    a.branch('s_cbranch_scc1 %s_ok' % lbl)
    I('s_sleep %d' % g.cfg.get('sleep', 1))
    a.branch('s_branch %s' % lbl)
    a.label(lbl + '_ok')
    a.vm = saved

def sig_add(g, off_s):
    I = g.a.I
    I('v_mov_b32 v2, 1'); I('v_mov_b32 v3, 0')
    I('s_mov_b64 exec, 1')
    I('buffer_atomic_add v2, v3, s[%d:%d], s%d offen sc1' % (g.sKZ, g.sKZ + 3, off_s), tag='sig')
    I('s_mov_b64 exec, -1')

def signal(g, kind, idx_s, wait_tag):
    a = g.a; I = a.I
    I('s_lshl_b32 s%d, s%d, 8' % (g.sT[6], idx_s)); I('s_add_u32 s%d, s%d, %d' % (g.sT[6], g.sT[6], CNT + 4096 * kind))
    a.wait(vm=wait_tag)
    I('s_barrier')
    sig_add(g, g.sT[6])

def trfrag(a, dst, addr, off, tag, f='v', d2=256):
    a.I('ds_read_b64_tr_b16 %s, v%d offset:%d' % (vr(dst, 2, f), addr, off), tag=tag)
    a.I('ds_read_b64_tr_b16 %s, v%d offset:%d' % (vr(dst + 2, 2, f), addr, off + d2), tag=tag)

def setup(a, cfg):
    g = NS(a=a, cfg=cfg); I = a.I
    g.pf = Prof(a, 0, vreg=255, s=100)
    (g.sX, g.sWq, g.sP0, g.sP1, g.sPO, g.sD, g.sOUT, g.sDBG, g.sWS, g.sKZ, g.sDZ) = 24, 28, 32, 36, 40, 44, 48, 52, 56, 60, 64
    (g.sW, g.sRBA, g.sH, g.sRHO, g.sRB64, g.sCS, g.sRB128, g.sFS, g.sR4) = 68, 69, 70, 71, 72, 73, 74, 75, 76
    g.sT = [77, 78, 79, 80, 81, 82, 83, 84]
    g.sONE, g.sEPS, g.sL2E = 85, 86, 87
    g.sMV28, g.sHI = 88, 90
    g.sPA, g.sPC = 92, 93
    g.sSPIN = 94; g.sPT = 95
    g.sQ = [96, 97, 98, 99]
    g.S4 = list(range(4, 24))
    g.WQL, g.WKL, g.WVL = 0, 51200, 79872
    g.STATL, g.CSL, g.CSQ2L = 28672, 29696, 31232
    g.XRL, g.KVRL, g.REDL, g.HL, g.STL = 108544, 32768, 0, 0, 114688
    V = Alloc(232, 255)
    g.vHK = V.get(8, 4); g.vL16 = V.get()
    g.vLo = [g.vL16, V.get(), V.get(), V.get()]
    g.vRW = [V.get() for _ in range(3)]; g.vRR = V.get()
    g.vPoll, g.vPA, g.vPT = V.get(), V.get(), V.get()
    g.vXo = V.get(); g.vCSg = V.get(2, 2)
    sT = g.sT
    I('s_cmp_ge_u32 s2, 256'); a.branch('s_cbranch_scc1 kf_end')
    g.pf.stamp('start')
    load_args(a)
    I('s_getpc_b64 s[%d:%d]' % (g.sMV28, g.sMV28 + 1))
    I('v_lshrrev_b32 v2, 6, v0'); I('v_and_b32 v1, 63, v0')
    I('s_lshr_b32 s%d, s2, 3' % sT[1]); I('s_mul_i32 s%d, s%d, 12' % (sT[2], sT[1]))
    I('v_mul_u32_u24 v3, 3, v2'); I('v_add3_u32 v3, v3, v1, s%d' % sT[2]); I('v_lshlrev_b32 v3, 7, v3')
    I('s_mov_b64 exec, 7')
    I('global_load_dword v%d, v3, s[%d:%d]' % (g.vPoll, g.sMV28, g.sMV28 + 1), tag='code')
    I('s_mov_b64 exec, -1')
    I('v_readfirstlane_b32 s%d, v2' % g.sW)
    I('s_and_b32 s%d, s2, 7' % sT[0])
    I('s_lshr_b32 s%d, s%d, 1' % (sT[2], sT[0])); I('s_lshl_b32 s%d, s%d, 2' % (sT[2], sT[2]))
    I('s_and_b32 s%d, s%d, 3' % (sT[3], sT[1])); I('s_add_u32 s%d, s%d, s%d' % (g.sRBA, sT[2], sT[3]))
    I('s_and_b32 s%d, s%d, 1' % (sT[4], sT[0])); I('s_lshr_b32 s%d, s%d, 2' % (sT[5], sT[1]))
    I('s_lshl_b32 s%d, s%d, 3' % (g.sH, sT[4])); I('s_add_u32 s%d, s%d, s%d' % (g.sH, g.sH, sT[5]))
    I('s_lshl_b32 s%d, s%d, 1' % (g.sRHO, sT[3])); I('s_add_u32 s%d, s%d, s%d' % (g.sRHO, g.sRHO, sT[5]))
    I('s_sub_u32 s%d, s%d, 7' % (sT[6], g.sRHO)); I('s_cmp_ge_u32 s%d, 7' % g.sRHO); I('s_cselect_b32 s%d, s%d, s%d' % (g.sRHO, sT[6], g.sRHO))
    I('s_mul_i32 s%d, s%d, 37' % (g.sR4, sT[1])); I('s_lshr_b32 s%d, s%d, 8' % (g.sR4, g.sR4))
    I('s_mul_i32 s%d, s%d, 7' % (sT[6], g.sR4)); I('s_sub_u32 s%d, s%d, s%d' % (g.sCS, sT[1], sT[6]))
    I('s_and_b32 s%d, s%d, 3' % (g.sR4, g.sR4))
    I('s_lshl_b32 s%d, s%d, 2' % (g.sRB64, sT[0])); I('s_add_u32 s%d, s%d, s%d' % (g.sRB64, g.sRB64, g.sR4))
    I('s_add_u32 s%d, s%d, s%d' % (g.sRB128, sT[2], g.sR4))
    I('s_mul_i32 s%d, s%d, 7' % (g.sFS, sT[4])); I('s_add_u32 s%d, s%d, s%d' % (g.sFS, g.sFS, g.sCS))
    I('s_mul_i32 s%d, s2, 9363' % g.sPA); I('s_lshr_b32 s%d, s%d, 16' % (g.sPA, g.sPA))
    I('s_mul_i32 s%d, s%d, 7' % (g.sPC, g.sPA)); I('s_sub_u32 s%d, s2, s%d' % (g.sPC, g.sPC))
    return g

def gu_load(g, j, c):
    r = j % 7
    g.a.I('buffer_load_dwordx4 %s, v%d, s[%d:%d], s%d offen offset:%d sc1' % (ar(112 * c + 4 * j, 4), g.vLo[2 * c + (r >= 4)], g.sWS, g.sWS + 3, g.sQ[j // 7], 1024 * (r % 4)), tag='gu')
def wd_load(g, j, c):
    r = j % 7; f, reg = g.wd_regs[j][c]
    g.a.I('buffer_load_dwordx4 %s, v%d, s[%d:%d], s%d offen offset:%d sc1' % (vr(reg, 4, f), g.vLd[2 * c + (r >= 4)], g.sWS, g.sWS + 3, g.sQD[j // 7], 1024 * (r % 4)), tag='wd')

def phase_A(g):
    a = g.a; I = a.I; sT = g.sT; pf = g.pf; cfg = g.cfg
    sW, sH, sRBA = g.sW, g.sH, g.sRBA
    XF, ACCK, ACCV, ACCQ, WB = 8, 120, 136, 152, 168
    VA = Alloc(200, 232)
    vONE = VA.get(4, 4)
    vX = [VA.get() for _ in range(4)]; vW = VA.get()
    vXR = [VA.get() for _ in range(4)]
    vT, vTc, vTo = VA.get(), VA.get(), VA.get()
    vS1a, vS1b, vS2a, vS2b = [VA.get() for _ in range(4)]
    vRN = VA.get(2, 2); vCS = VA.get(2, 2)
    vN4, vCA, vSA = VA.get(), VA.get(), VA.get()
    vXS = [VA.get() for _ in range(4)]
    vRed = vX[0:2]; vKW = vX[2]
    vPT = [g.vHK, g.vHK + 1, g.vHK + 2, g.vHK + 3]; vPD = g.vHK + 4
    aPK = 0
    LAH = cfg.get('lah', 2)
    xslot = {0: 0, 1: 1, 2: 2, 4: 0, 5: 1, 6: 2}
    aC0, aC1 = 224, 240
    vL16 = g.vL16
    I('v_lshrrev_b32 v2, 3, v1'); I('v_lshrrev_b32 v3, 4, v1'); I('v_and_b32 v4, 7, v1')
    I('v_xor_b32 v5, v4, v3'); I('v_lshlrev_b32 v5, 4, v5')
    I('v_mul_u32_u24 v6, 896, v2'); I('v_add_u32 v%d, v6, v5' % vX[0])
    I('v_xor_b32 v%d, 64, v%d' % (vX[1], vX[0])); I('v_add_u32 v%d, 7168, v%d' % (vX[1], vX[1]))
    I('v_add_u32 v%d, 14336, v%d' % (vX[2], vX[0])); I('v_add_u32 v%d, 14336, v%d' % (vX[3], vX[1]))
    I('v_lshrrev_b32 v5, 2, v1'); I('v_and_b32 v6, 3, v1')
    I('v_mul_u32_u24 v7, 2688, v5'); I('v_lshl_add_u32 v%d, v6, 4, v7' % vW)
    I('v_lshlrev_b32 v%d, 4, v1' % vL16)
    I('v_and_b32 v5, 15, v1'); I('v_lshlrev_b32 v5, 4, v5'); I('v_lshl_add_u32 v5, v3, 14, v5')
    for i in range(4): I('v_mov_b32 v%d, 0' % (vONE + i))
    sXB, sWB, sXRB, sCL, sCC, sW10, sW12 = g.sQ[0], g.sQ[1], g.sQ[2], g.sQ[3], 3, g.sSPIN, g.sPT
    I('s_lshl_b32 s%d, s%d, 10' % (sW10, sW)); I('s_lshl_b32 s%d, s%d, 12' % (sW12, sW))
    I('s_lshl_b32 s%d, s%d, 2' % (sT[0], sRBA)); I('s_add_u32 s%d, s%d, s%d' % (sT[0], sT[0], sW))
    I('s_mul_i32 s%d, s%d, %d' % (sXB, sT[0], 32 * 896))
    I('s_mul_i32 s%d, s%d, 56' % (sWB, sH)); I('s_mul_i32 s%d, s%d, %d' % (sT[1], sW, 16 * 2688)); I('s_add_u32 s%d, s%d, s%d' % (sWB, sWB, sT[1]))
    I('s_mul_i32 s%d, s%d, 12288' % (sXRB, sW)); I('s_add_u32 s%d, s%d, %d' % (sXRB, sXRB, g.XRL))
    I('s_mov_b32 s%d, s%d' % (sCL, g.sRHO)); I('s_mov_b32 s%d, s%d' % (sCC, g.sRHO))
    I('s_waitcnt lgkmcnt(0)')
    pf.stamp('args')
    srd(a, g.sX, 4, 2048 * 896); srd(a, g.sWq, 6, 448 * 2688)
    def adv_ops(s): return ['s_add_u32 s%d, s%d, 1' % (s, s), 's_cmp_eq_u32 s%d, 7' % s, 's_cselect_b32 s%d, 0, s%d' % (s, s)]
    def adv(s):
        for o in adv_ops(s): I(o)
    def grp(ops):
        def f():
            for o in ops:
                if callable(o): o()
                else: I(o)
        return f
    def a_groups(j):
        G = []
        pre = ['s_mul_i32 s%d, s%d, %d' % (sT[1], sCL, 64 * 2688), 's_lshl_b32 s%d, s%d, 12' % (sT[2], sCL), 's_add_u32 s%d, s%d, s%d' % (sT[2], sT[2], sW10),
               's_add_u32 m0, s%d, %d' % (sT[2], g.WKL - 896), 's_add_u32 s%d, s%d, s%d' % (sT[1], sT[1], sWB)]
        G.append(grp(pre + [lambda: I('buffer_load_dwordx4 v%d, s[%d:%d], s%d offen offset:896 lds' % (vW, g.sWq, g.sWq + 3, sT[1]), tag='c%d' % j)]))
        G.append(grp(['s_add_u32 m0, s%d, %d' % (sT[2], g.WVL - 1792), 's_lshl_b32 s%d, s%d, 7' % (sT[0], sCL),
                      lambda: I('buffer_load_dwordx4 v%d, s[%d:%d], s%d offen offset:1792 lds' % (vW, g.sWq, g.sWq + 3, sT[1]), tag='c%d' % j)]))
        for q in range(4):
            m = ('s_add_u32 m0, s%d, %d' % (sW12, g.WQL + q * 1024)) if j == 3 else ('s_add_u32 m0, s%d, %d' % (sXRB, xslot[j] * 4096 + q * 1024))
            mid = ['s_add_u32 s%d, s%d, s%d' % (sT[0], sT[0], sXB)] if q == 0 else (adv_ops(sCL) if q == 1 else [])
            G.append(grp([m] + mid + [lambda q=q: I('buffer_load_dwordx4 v%d, s[%d:%d], s%d offen lds' % (vX[q], g.sX, g.sX + 3, sT[0]), tag='c%d' % j)]))
        return G
    def a_loads(j):
        for f in a_groups(j): f()
    def q_groups(n):
        return [grp(['s_mul_i32 s%d, s%d, %d' % (sT[1], sCL, 64 * 2688), 's_lshl_b32 s%d, s%d, 12' % (sT[2], sCL), 's_add_u32 s%d, s%d, s%d' % (sT[2], sT[2], sW10),
                     's_add_u32 m0, s%d, %d' % (sT[2], g.WQL), 's_add_u32 s%d, s%d, s%d' % (sT[1], sT[1], sWB),
                     lambda: I('buffer_load_dwordx4 v%d, s[%d:%d], s%d offen lds' % (vW, g.sWq, g.sWq + 3, sT[1]), tag='wq')] + adv_ops(sCL)) for _ in range(n)]
    a_loads(0)
    srd(a, g.sWS, 22, WS_BYTES); srd(a, g.sKZ, 22, WS_BYTES)
    srd(a, g.sDZ, 20, 256)
    I('s_cmp_eq_u32 s%d, 0' % sRBA); I('s_cselect_b32 s%d, %s, 0' % (g.sKZ + 2, hex(WS_BYTES))); I('s_cselect_b32 s%d, 256, 0' % (g.sDZ + 2))
    srd(a, g.sD, 16, 1792 * 896); srd(a, g.sOUT, 18, 2048 * 896); srd(a, g.sDBG, 20, 256); srd(a, g.sPO, 22, WS_BYTES)
    I('s_cmp_lt_u32 s%d, 28' % g.sPA)
    for k in range(2):
        I('s_cselect_b32 s%d, s%d, s%d' % (g.sP0 + k, 12 + k, 8 + k)); I('s_cselect_b32 s%d, s%d, s%d' % (g.sP1 + k, 14 + k, 8 + k))
    sel(a, g.sP0 + 2, 448 * 3584, 448 * 896)
    I('s_mov_b32 s%d, 0x20000' % (g.sP0 + 3)); I('s_mov_b32 s%d, 0x20000' % (g.sP1 + 3))
    I('s_cmp_lt_u32 s%d, 32' % g.sPA)
    I('s_cselect_b32 s%d, s%d, 0' % (g.sP0 + 2, g.sP0 + 2)); I('s_mov_b32 s%d, s%d' % (g.sP1 + 2, g.sP0 + 2)); I('s_cselect_b32 s%d, %s, 0' % (g.sPO + 2, hex(WS_BYTES)))
    I('s_lshl_b32 s%d, s%d, 12' % (sT[3], sH)); I('s_add_u32 s%d, s%d, s%d' % (sT[3], sT[3], sW10)); I('s_add_u32 s%d, s%d, %d' % (sT[3], sT[3], KVACC))
    I('buffer_store_dwordx4 v[%d:%d], v%d, s[%d:%d], s%d offen sc0 sc1' % (vONE, vONE + 3, vL16, g.sKZ, g.sKZ + 3, sT[3]), tag='zero')
    I('s_lshl_b32 s%d, s%d, 8' % (sT[3], sH)); I('s_add_u32 s%d, s%d, s%d' % (sT[3], sT[3], sW12)); I('s_add_u32 s%d, s%d, %d' % (sT[3], sT[3], CNT))
    I('s_mov_b32 exec_hi, 0')
    I('buffer_store_dwordx4 v[%d:%d], v5, s[%d:%d], s%d offen sc0 sc1' % (vONE, vONE + 3, g.sKZ, g.sKZ + 3, sT[3]), tag='zero')
    I('s_lshl_b32 s%d, s%d, 10' % (sT[3], sH)); I('s_lshl_b32 s%d, s%d, 8' % (sT[4], sW)); I('s_add_u32 s%d, s%d, s%d' % (sT[3], sT[3], sT[4])); I('s_add_u32 s%d, s%d, %d' % (sT[3], sT[3], CSGU))
    I('s_mov_b32 exec_lo, 0xffff')
    I('buffer_store_dwordx4 v[%d:%d], v%d, s[%d:%d], s%d offen sc0 sc1' % (vONE, vONE + 3, vL16, g.sKZ, g.sKZ + 3, sT[3]), tag='zero')
    I('s_mov_b64 exec, -1')
    for d, sr_ in zip(g.S4[0:7], (sXB, sWB, sXRB, sCL, sCC, sW10, sW12)): I('s_mov_b32 s%d, s%d' % (d, sr_))
    sXB, sWB, sXRB, sCL, sCC, sW10, sW12 = g.S4[0:7]
    sPS = g.S4[7:11]; sPOs = g.S4[11:15]; sPSG = g.S4[15]; sPCS = g.S4[16]
    if cfg.get('c1early'): a_loads(1)
    A_, C_ = g.sPA, g.sPC
    I('s_lshl_b32 s%d, s%d, 2' % (sT[4], C_)); I('s_add_u32 s%d, s%d, s%d' % (sT[4], sT[4], sW))
    I('s_mul_i32 s%d, s%d, %d' % (sT[5], sT[4], 16 * 3584)); I('s_lshl_b32 s%d, s%d, 7' % (sT[6], A_)); I('s_add_u32 s%d, s%d, s%d' % (sPS[0], sT[5], sT[6]))
    I('s_mul_i32 s%d, s%d, 112' % (sT[5], A_)); I('s_add_u32 s%d, s%d, s%d' % (sT[5], sT[5], sT[4]))
    I('s_lshl_b32 s%d, s%d, 10' % (sT[5], sT[5])); I('s_add_u32 s%d, s%d, %d' % (sPOs[0], sT[5], GUP))
    I('s_lshr_b32 s%d, s%d, 1' % (sPSG, A_)); I('s_lshl_b32 s%d, s%d, 8' % (sPSG, sPSG)); I('s_add_u32 s%d, s%d, %d' % (sPSG, sPSG, CNT + 3 * 4096))
    I('s_sub_u32 s%d, s%d, 28' % (sT[4], A_)); I('s_lshl_b32 s%d, s%d, 2' % (sT[4], sT[4])); I('s_add_u32 s%d, s%d, s%d' % (sT[4], sT[4], sW))
    I('s_mul_i32 s%d, s%d, %d' % (sT[5], sT[4], 28 * 896)); I('s_lshl_b32 s%d, s%d, 7' % (sT[6], C_)); I('s_add_u32 s%d, s%d, s%d' % (sPS[1], sT[5], sT[6]))
    I('s_lshl_b32 s%d, s%d, 16' % (sT[5], C_)); I('s_lshl_b32 s%d, s%d, 11' % (sT[6], sT[4]))
    I('s_add_u32 s%d, s%d, s%d' % (sT[5], sT[5], sT[6])); I('s_add_u32 s%d, s%d, %d' % (sPOs[1], sT[5], WOP))
    I('s_lshl_b32 s%d, s%d, 8' % (sT[5], C_)); I('s_add_u32 s%d, s%d, %d' % (sT[5], sT[5], CNT + 4 * 4096))
    I('s_cmp_lt_u32 s%d, 32' % A_); I('s_cselect_b32 s%d, s%d, 0x20000000' % (sT[5], sT[5]))
    I('s_cmp_lt_u32 s%d, 28' % A_)
    I('s_cselect_b32 s%d, s%d, s%d' % (sPS[0], sPS[0], sPS[1])); I('s_cselect_b32 s%d, s%d, s%d' % (sPOs[0], sPOs[0], sPOs[1]))
    I('s_cselect_b32 s%d, s%d, s%d' % (sPSG, sPSG, sT[5]))
    I('s_mul_i32 s%d, s%d, 512' % (sPCS, A_)); I('s_cselect_b32 s%d, s%d, 0x20000000' % (sPCS, sPCS))
    sel(a, sT[3], 3584, 896); sel(a, sT[4], 8 * 3584, 8 * 896); I('s_cselect_b32 s%d, 0, %d' % (sT[5], 16 * 896))
    sel(a, sT[6], 28672, 1024); sel(a, sT[7], 57344, 32768)
    sel(a, g.sONE, 16 * 128, 32); sel(a, g.sEPS, 8 * 128, 14 * 128); I('s_cselect_b32 s%d, 32, %d' % (g.sL2E, 8 * 128))
    I('s_add_u32 s%d, s%d, s%d' % (sPS[1], sPS[0], sT[4])); I('s_add_u32 s%d, s%d, s%d' % (sPS[2], sPS[0], sT[5])); I('s_add_u32 s%d, s%d, s%d' % (sPS[3], sPS[2], sT[4]))
    I('s_add_u32 s%d, s%d, s%d' % (sPOs[1], sPOs[0], sT[6])); I('s_add_u32 s%d, s%d, s%d' % (sPOs[2], sPOs[0], sT[7])); I('s_add_u32 s%d, s%d, s%d' % (sPOs[3], sPOs[2], sT[6]))
    I('v_mul_lo_u32 v5, v2, s%d' % sT[3]); I('v_lshl_add_u32 v%d, v4, 4, v5' % vPD)
    def flag_set():
        I('v_mov_b32 v5, 1'); I('s_lshl_b32 s%d, s%d, 2' % (sT[4], sH)); I('v_mov_b32 v6, s%d' % sT[4])
        I('s_mov_b64 exec, 1')
        I('buffer_atomic_add v5, v6, s[%d:%d], 0 offen sc1' % (g.sDZ, g.sDZ + 3), tag='flag')
        I('s_mov_b64 exec, -1')
        I('s_cmp_eq_u32 s%d, 0' % sW); I('s_cselect_b32 s%d, %s, 0' % (g.sKZ + 2, hex(WS_BYTES)))
    I('v_lshrrev_b32 v2, 5, v1'); I('v_bfe_u32 v3, v1, 4, 1'); I('v_bfe_u32 v4, v1, 2, 2'); I('v_and_b32 v5, 3, v1')
    I('s_mul_i32 s%d, s%d, 4608' % (g.sPT, sW)); I('s_add_u32 s%d, s%d, %d' % (g.sPT, g.sPT, g.KVRL))
    I('v_mul_lo_u32 v6, v3, s%d' % g.sONE); I('v_mul_lo_u32 v7, v2, s%d' % g.sEPS); I('v_add3_u32 v6, v6, v7, s%d' % g.sPT)
    I('v_lshl_add_u32 v6, v4, 7, v6'); I('v_lshl_add_u32 v%d, v5, 3, v6' % vPT[0])
    I('v_add_u32 v%d, s%d, v%d' % (vPT[1], g.sL2E, vPT[0])); I('v_add_u32 v%d, 64, v%d' % (vPT[2], vPT[0])); I('v_add_u32 v%d, 64, v%d' % (vPT[3], vPT[1]))
    I('v_lshlrev_b32 v6, 9, v2'); I('v_lshl_add_u32 v6, v4, 6, v6'); I('v_lshl_add_u32 v6, v5, 3, v6')
    I('v_lshl_add_u32 v%d, v3, 5, v6' % vT); I('v_add_u32 v%d, %d, v%d' % (vT, g.WKL, vT))
    I('v_and_b32 v6, 31, v1'); I('v_lshlrev_b32 v%d, 2, v6' % vN4)
    I('v_lshrrev_b32 v7, 3, v6'); I('v_lshlrev_b32 v7, 10, v7')
    I('v_and_b32 v3, 7, v6'); I('v_lshl_add_u32 v7, v3, 7, v7')
    I('v_bfe_u32 v3, v6, 1, 3'); I('v_xor_b32 v3, v3, v2'); I('v_lshl_add_u32 v7, v3, 4, v7')
    I('v_add_u32 v%d, s%d, v7' % (vXR[0], sXRB))
    for t in range(1, 4): I('v_xor_b32 v%d, %d, v%d' % (vXR[t], 32 * t, vXR[0]))
    I('v_add_u32 v%d, s%d, v7' % (vXS[0], sW12))
    for t in range(1, 4): I('v_xor_b32 v%d, %d, v%d' % (vXS[t], 32 * t, vXS[0]))
    I('v_mul_u32_u24 v7, 896, v6'); I('v_lshl_add_u32 v%d, v2, 4, v7' % g.vXo)
    I('v_cmp_eq_u32 s[%d:%d], 28, v6' % (g.sMV28, g.sMV28 + 1)); I('v_cmp_eq_u32 s[%d:%d], 0, v2' % (g.sHI, g.sHI + 1))
    I('s_mov_b32 s%d, 0x3f803f80' % g.sONE); I('s_mov_b32 s%d, %s' % (g.sEPS, f32(1e-6))); I('s_mov_b32 s%d, %s' % (g.sL2E, f32(LOG2E)))
    for i in range(4): I('v_mov_b32 v%d, s%d' % (vONE + i, g.sONE))
    for r in (vS1a, vS1b, vS2a, vS2b): I('v_mov_b32 v%d, 0' % r)
    I('s_lshl_b32 s%d, s%d, 7' % (sT[3], sW)); I('s_add_u32 s%d, s%d, %d' % (sT[3], sT[3], g.CSL)); I('v_add_u32 v%d, s%d, v%d' % (vCA, sT[3], vN4))
    I('s_lshl_b32 s%d, s%d, 8' % (sT[3], sW)); I('s_add_u32 s%d, s%d, %d' % (sT[3], sT[3], g.STATL))
    I('v_lshlrev_b32 v3, 4, v2'); I('v_add_u32 v%d, s%d, v3' % (vSA, sT[3]))
    for t in range(1, 4):
        I('s_xor_b32 s%d, s%d, %d' % (sT[3], sW, t)); I('s_mul_i32 s%d, s%d, 12288' % (sT[3], sT[3])); I('s_add_u32 s%d, s%d, %d' % (sT[3], sT[3], g.REDL + (t - 1) * 4096))
        I('v_add_u32 v%d, s%d, v%d' % (g.vRW[t - 1], sT[3], vL16))
    I('s_mul_i32 s%d, s%d, 12288' % (sT[3], sW)); I('s_add_u32 s%d, s%d, %d' % (sT[3], sT[3], g.REDL)); I('v_add_u32 v%d, s%d, v%d' % (g.vRR, sT[3], vL16))
    I('v_add_u32 v%d, 4096, v%d' % (g.vLo[1], vL16)); I('v_add_u32 v%d, 28672, v%d' % (g.vLo[2], vL16)); I('v_add_u32 v%d, 32768, v%d' % (g.vLo[3], vL16))
    I('s_lshl_b32 s%d, s%d, 2' % (sT[3], g.sFS)); I('s_add_u32 s%d, s%d, s%d' % (sT[3], sT[3], sW)); I('s_mul_i32 s%d, s%d, 57344' % (sT[3], sT[3])); I('s_add_u32 s%d, s%d, %d' % (sT[3], sT[3], GUP))
    for q in range(4):
        I('s_add_u32 s%d, s%d, %d' % (sT[4], g.sR4, q)); I('s_and_b32 s%d, s%d, 3' % (sT[4], sT[4]))
        I('s_mul_i32 s%d, s%d, 7168' % (sT[4], sT[4])); I('s_add_u32 s%d, s%d, s%d' % (g.sQ[q], sT[4], sT[3]))
    if not cfg.get('c1early'): a_loads(1)
    if LAH > 2: a_loads(2)
    def pk_group(j):
        s = g.sP0 if j < 2 else g.sP1
        return grp(['s_add_u32 m0, s%d, %d' % (g.sPT, 1024 * j), lambda: I('buffer_load_dwordx4 v%d, s[%d:%d], s%d offen lds' % (vPD, s, s + 3, sPS[j]), tag='pk')])
    pf.stamp('issued')
    def w_addr():
        I('s_lshl_b32 s%d, s%d, 12' % (sT[3], sCC)); I('v_add_u32 v%d, s%d, v%d' % (vTc, sT[3], vT)); I('v_add_u32 v%d, s%d, v%d' % (vTo, sW10, vTc))
        adv(sCC)
    def flag_poll():
        I('v_lshlrev_b32 v%d, 2, v1' % g.vPA)
        I('buffer_load_dword v%d, v%d, s[%d:%d], 0 offen sc1' % (g.vPoll, g.vPA, g.sDBG, g.sDBG + 3), tag='poll')
    def pack_rd():
        a.wait(vm='pk')
        for f in range(4): trfrag(a, aPK + 4 * f, vPT[f], 0, 'pkr', f='a', d2=512)
    def pack_st():
        a.wait(lg='pkr')
        for f in range(4): I('buffer_store_dwordx4 %s, v%d, s[%d:%d], s%d offen sc1' % (ar(aPK + 4 * f, 4), vL16, g.sPO, g.sPO + 3, sPOs[f]), tag='pks')
    def go_poll():
        I('s_lshl_b32 s%d, s%d, 8' % (sT[4], g.sFS)); I('s_add_u32 s%d, s%d, %d' % (sT[4], sT[4], CNT + 3 * 4096))
        I('s_lshl_b32 s%d, s%d, 8' % (sT[5], g.sCS)); I('s_add_u32 s%d, s%d, %d' % (sT[5], sT[5], CNT + 4 * 4096))
        I('v_mov_b32 v%d, s%d' % (vXS[0], sT[5])); I('v_writelane_b32 v%d, s%d, 0' % (vXS[0], sT[4]))
        I('v_mov_b32 v%d, 4' % g.vPT); I('v_writelane_b32 v%d, 14, 0' % g.vPT)
        I('buffer_load_dword v%d, v%d, s[%d:%d], 0 offen sc1' % (g.vPoll, vXS[0], g.sWS, g.sWS + 3), tag='gop')
    def tlb_touch():
        sh = cfg.get('tlbsh', 19)
        I('v_lshlrev_b32 v5, %d, v1' % sh); I('s_lshl_b32 s%d, s%d, %d' % (sT[4], sW, sh - 2))
        I('s_mov_b32 exec_hi, 0xff')
        I('buffer_load_dword v%d, v5, s[%d:%d], s%d offen sc1' % (g.vCSg, g.sWS, g.sWS + 3, sT[4]), tag='tlb')
        I('s_mov_b32 exec_hi, 0'); I('s_mov_b32 exec_lo, 0xf')
        I('buffer_load_dword v%d, v5, s[%d:%d], s%d offen sc1' % (g.vCSg, g.sOUT, g.sOUT + 3, sT[4]), tag='tlb')
        I('s_mov_b64 exec, -1')
    def fin_groups():
        ops = ['v_add_f32 v%d, v%d, v%d' % (vS1a, vS1a, vS1b), 'v_add_f32 v%d, v%d, v%d' % (vS2a, vS2a, vS2b),
               'v_mov_b32 v%d, v%d' % (vS1b, vS1a), 'v_mov_b32 v%d, v%d' % (vS2b, vS2a),
               's_lshl_b32 s%d, s%d, 8' % (sT[3], sW), 's_add_u32 s%d, s%d, %d' % (sT[3], sT[3], g.STATL),
               'v_permlane32_swap_b32 v%d, v%d' % (vS1a, vS1b), 'v_permlane32_swap_b32 v%d, v%d' % (vS2a, vS2b),
               'v_add_f32 v%d, v%d, v%d' % (vS1a, vS1a, vS1b), 'v_add_f32 v%d, v%d, v%d' % (vS2a, vS2a, vS2b)]
        b = Asm(); ln_finish(b, 'v%d' % vS1a, 'v%d' % vS2a, 'v2', 'v3', 'v%d' % vRN, 'v4')
        ops += [l.strip() for l in b.out if not l.strip().startswith('s_nop')]
        ops += ['v_sub_f32 v%d, 0, v4' % (vRN + 1), 'v_add_u32 v2, s%d, v%d' % (sT[3], vN4), 'ds_write_b32 v2, v%d' % vRN, 'ds_write_b32 v2, v%d offset:128' % (vRN + 1),
                'ds_write_b32 v%d, a%d' % (vCA, aC0), 'ds_write_b32 v%d, a%d offset:512' % (vCA, aC1), 'v_add_u32 v5, %d, v%d' % (g.CSL, vN4)]
        n = (len(ops) + 7) // 8
        return [grp(ops[k:k + n]) for k in range(0, len(ops), n)]
    w_addr()
    PKI = cfg.get('pki', 6 - LAH)
    for j in range(7):
        a.wait(vm='c%d' % j)
        if j == 3:
            for t in range(4): I('ds_read_b128 %s, v%d' % (vr(XF + 16 * j + 4 * t, 4), vXS[t]), tag='xf%d' % j)
        else:
            for t in range(4): I('ds_read_b128 %s, v%d offset:%d' % (vr(XF + 16 * j + 4 * t, 4), vXR[t], 4096 * xslot[j]), tag='xf%d' % j)
        trfrag(a, WB + 24, vTo, 0, 'o%d' % j); trfrag(a, WB + 28, vTo, 28672, 'o%d' % j)
        I('s_barrier')
        if j in (0, 3, 6): pf.stamp('c%d' % j)
        def rd(t):
            st = t % 3
            trfrag(a, WB + 8 * st, vTc, 1024 * t, 'w%d_%d' % (j, t)); trfrag(a, WB + 8 * st + 4, vTc, 28672 + 1024 * t, 'w%d_%d' % (j, t))
        def dots(jj):
            for r in range(16):
                x = XF + 16 * jj + r
                I('v_dot2c_f32_bf16 v%d, s%d, v%d' % (vS1b if r & 1 else vS1a, g.sONE, x)); I('v_dot2c_f32_bf16 v%d, v%d, v%d' % (vS2b if r & 1 else vS2a, x, x))
        rd(0); rd(1); rd(2)
        if j == 1: flag_set()
        if j > 0: dots(j - 1)
        if j == 6:
            a.wait(lg='xf6'); dots(6)
        G = []
        if j + LAH < 7: G = a_groups(j + LAH)
        elif j + LAH == 7: G = q_groups(7)
        if j == PKI: G = G + [pk_group(k) for k in range(4)]
        if j == 4: G = [flag_poll] + G
        if j == 6: G = fin_groups()
        if j == cfg.get('tlb', -1): G = G + [tlb_touch]
        a.wait(lg='o%d' % j)
        I(MF(ar(aC0, 16), vr(vONE, 4), vr(WB + 24, 4), '0' if j == 0 else ar(aC0, 16)))
        if G: G.pop(0)()
        I(MF(ar(aC1, 16), vr(vONE, 4), vr(WB + 28, 4), '0' if j == 0 else ar(aC1, 16)))
        if G: G.pop(0)()
        for t in range(4):
            x = XF + 16 * j + 4 * t; st = t % 3
            a.wait(lg='w%d_%d' % (j, t))
            first = (j == 0 and t == 0)
            I(MF(vr(ACCK, 16), vr(x, 4), vr(WB + 8 * st, 4), '0' if first else vr(ACCK, 16)))
            if G: G.pop(0)()
            I(MF(vr(ACCV, 16), vr(x, 4), vr(WB + 8 * st + 4, 4), '0' if first else vr(ACCV, 16)))
            if t == 0:
                rd(3)
                if j < 6: w_addr()
            elif G: G.pop(0)()
        while G: G.pop(0)()
    pf.stamp('loop')
    a.wait(lg=0); I('s_barrier')
    for i in range(8): I('ds_read_b32 v%d, v5 offset:%d' % (ACCQ + i, 128 * i), tag='cs')
    for qd in range(4):
        I('ds_read_b128 %s, v%d offset:%d' % (vr(WB + 16 + 4 * qd, 4), vSA, 128 + 32 * qd), tag='st')
    for qd in range(4):
        I('ds_read_b128 %s, v%d offset:%d' % (vr(WB + 4 * qd, 4), vSA, 32 * qd), tag='st2')
    pf.stamp('X1')
    poll(g, 'kf_pz', g.vPA, 0xffff, 4, g.sDBG, early='poll')
    pack_rd()
    for op in ['v_and_b32 v3, 31, v1', 'v_mul_u32_u24 v3, 144, v3', 'v_lshrrev_b32 v4, 5, v1', 'v_lshl_add_u32 v3, v4, 4, v3', 'v_add_u32 v%d, s%d, v3' % (vKW, g.sPT),
               'v_bfe_u32 v5, v1, 2, 2', 'v_lshl_add_u32 v4, v4, 2, v5',
               'v_bfe_u32 v5, v1, 4, 1', 'v_mul_u32_u24 v5, 14, v5', 'v_add_u32 v5, v5, v4',
               'v_and_b32 v6, 3, v1', 'v_lshlrev_b32 v6, 2, v6', 's_lshl_b32 s%d, s%d, 5' % (sT[4], sW), 's_add_u32 s%d, s%d, %d' % (sT[4], sT[4], g.KVRL),
               'v_add_u32 v6, s%d, v6' % sT[4], 'v_mul_u32_u24 v7, 144, v5', 'v_add_u32 v%d, v7, v6' % vRed[0],
               'v_add_u32 v%d, %d, v%d' % (vRed[1], 8 * 144, vRed[0]), 'v_mul_u32_u24 v7, 144, v4', 'v_add_u32 v7, v7, v6', 'v_add_u32 v7, %d, v7' % (22 * 144),
               'v_cmp_lt_u32 vcc, 5, v4', 'v_cndmask_b32 v%d, v%d, v7, vcc' % (vRed[1], vRed[1])]: I(op)
    Q = ACCQ
    pack_st()
    for f in range(4): I(MF(ar(32 + 16 * f, 16), vr(vONE, 4), ar(aPK + 4 * f, 4), '0'))
    a.wait(lg='cs')
    I('v_add_f32 v%d, v%d, v%d' % (Q, Q, Q + 1)); I('v_add_f32 v%d, v%d, v%d' % (Q + 2, Q + 2, Q + 3)); I('v_add_f32 v%d, v%d, v%d' % (vCS, Q, Q + 2))
    I('v_add_f32 v%d, v%d, v%d' % (Q + 4, Q + 4, Q + 5)); I('v_add_f32 v%d, v%d, v%d' % (Q + 6, Q + 6, Q + 7)); I('v_add_f32 v%d, v%d, v%d' % (vCS + 1, Q + 4, Q + 6))
    SE = 's[%d:%d]' % (g.sEPS, g.sEPS + 1)
    def phi(acc, tmp, n):
        for p in range(0, n, 2): I('v_pk_mul_f32 %s, %s, %s op_sel:[0,1] op_sel_hi:[1,1]' % (vr(tmp + p, 2), vr(acc + p, 2), SE))
        for v in range(n): I('v_min_f32 v%d, 0, v%d' % (tmp + v, tmp + v))
        for v in range(n): I('v_exp_f32 v%d, v%d' % (tmp + v, tmp + v)); I('v_max_f32 v%d, s%d, v%d' % (acc + v, g.sEPS, acc + v))
        for p in range(0, n, 2): I('v_pk_add_f32 %s, %s, %s' % (vr(acc + p, 2), vr(acc + p, 2), vr(tmp + p, 2)))
    CSP = vr(vCS, 2)
    a.wait(lg='st')
    for p in range(0, 16, 2):
        I('v_pk_fma_f32 %s, %s, %s, %s op_sel_hi:[1,0,1]' % (vr(ACCK + p, 2), vr(WB + 16 + p, 2), CSP, vr(ACCK + p, 2)))
        I('v_pk_fma_f32 %s, %s, %s, %s op_sel:[0,1,0] op_sel_hi:[1,1,1]' % (vr(ACCV + p, 2), vr(WB + 16 + p, 2), CSP, vr(ACCV + p, 2)))
    I('s_add_u32 s%d, s%d, %d' % (sPCS, sPCS, CSGU)); I('s_mov_b32 exec_hi, 0')
    for f in range(4): I('buffer_atomic_add_f32 a%d, v%d, s[%d:%d], s%d offen offset:%d' % (32 + 16 * f, g.vPA, g.sWS, g.sWS + 3, sPCS, 128 * f), tag='pks')
    I('s_mov_b64 exec, -1')
    a.wait(lg='st2')
    for p in range(0, 16, 2):
        I('v_pk_fma_f32 %s, %s, %s, %s op_sel_hi:[1,1,0]' % (vr(ACCK + p, 2), vr(ACCK + p, 2), vr(WB + p, 2), SE))
        I('v_pk_mul_f32 %s, %s, %s' % (vr(ACCV + p, 2), vr(ACCV + p, 2), vr(WB + p, 2)))
    a.wait(vm='wq')
    I('s_sub_u32 s%d, s%d, %d' % (sT[3], sW10, g.WKL - g.WQL)); I('v_add_u32 v%d, s%d, v%d' % (vTo, sT[3], vT))
    for c in range(7): trfrag(a, WB + 4 * c, vTo, 4096 * c, 'qo%d' % c)
    phi(ACCK, ACCQ, 16)
    for p in range(8):
        I('v_cvt_pk_bf16_f32 v%d, v%d, v%d' % (ACCK + p, ACCK + 2 * p, ACCK + 2 * p + 1)); I('v_cvt_pk_bf16_f32 v%d, v%d, v%d' % (ACCV + p, ACCV + 2 * p, ACCV + 2 * p + 1))
    I('s_mov_b64 exec, s[%d:%d]' % (g.sMV28, g.sMV28 + 1))
    for p in range(8): I('v_mov_b32 v%d, s%d' % (ACCV + p, g.sONE))
    I('s_mov_b64 exec, -1')
    pf.stamp('epikv')
    I(MF(ar(aC1, 16), vr(ACCK, 4), vr(ACCV, 4), '0')); I(MF(ar(aC1, 16), vr(ACCK + 4, 4), vr(ACCV + 4, 4), ar(aC1, 16)))
    a.wait(lg='qo6')
    for c in range(7):
        I(MF(ar(aC0, 16), vr(vONE, 4), vr(WB + 4 * c, 4), '0' if c == 0 else ar(aC0, 16)))
        if c == 1:
            for q in range(4): I('ds_write_b128 v%d, %s offset:%d' % (vKW, ar(aC1 + 4 * q, 4), 32 * q))
    I('s_mov_b32 s%d, s%d' % (sCC, g.sRHO))
    I('s_lshl_b32 s%d, s%d, 12' % (sT[5], sH)); I('s_add_u32 s%d, s%d, s%d' % (sT[5], sT[5], sW10)); I('s_add_u32 s%d, s%d, %d' % (sT[5], sT[5], KVACC))
    I('ds_write_b32 v%d, a%d offset:1024' % (vCA, aC0))
    a.wait(vm='pks', lg=0); I('s_barrier')
    pf.stamp('X2')
    RB = WB + 16
    for j in range(4):
        for p in range(4): I('ds_read_b32 v%d, v%d offset:%d' % (RB + 4 * j + p, vRed[j % 2], 4608 * p + 16 * (j // 2)), tag='red%d' % j)
    for j in range(4):
        a.wait(lg='red%d' % j)
        b = RB + 4 * j
        I('v_add_f32 v%d, v%d, v%d' % (b, b, b + 1)); I('v_add_f32 v%d, v%d, v%d' % (b + 2, b + 2, b + 3)); I('v_add_f32 v%d, v%d, v%d' % (b, b, b + 2))
        if j < 2: I('buffer_atomic_add_f32 v%d, v%d, s[%d:%d], s%d offen offset:%d' % (b, g.vPA, g.sWS, g.sWS + 3, sT[5], 256 * j), tag='ast')
    I('s_cmp_eq_u32 s%d, 3' % sW); a.branch('s_cbranch_scc1 kf_noat')
    for j in (2, 3): I('buffer_atomic_add_f32 v%d, v%d, s[%d:%d], s%d offen offset:%d' % (RB + 4 * j, g.vPA, g.sWS, g.sWS + 3, sT[5], 256 * j), counted=False)
    a.label('kf_noat')
    sig_add(g, sPSG)
    pf.stamp('atom')
    QB = WB
    def q_rd(n):
        j, t = n // 4, n % 4
        if t == 0:
            I('s_lshl_b32 s%d, s%d, 12' % (sT[3], sCC)); I('s_sub_u32 s%d, s%d, %d' % (sT[3], sT[3], g.WKL - g.WQL))
            I('v_add_u32 v%d, s%d, v%d' % (vTc, sT[3], vT)); adv(sCC)
        trfrag(a, QB + 4 * (n % 4), vTc, 1024 * t, 'q%d' % n)
    for n in range(3): q_rd(n)
    S = Side(a)
    CQ = ACCK + 8
    S.add(['v_add_u32 v2, %d, v%d' % (g.CSL + 1024, vN4)])
    S.add([((lambda i=i: I('ds_read_b32 v%d, v2 offset:%d' % (CQ + i, 128 * i), tag='cq')), 5) for i in range(4)])
    S.add(['s_lshl_b32 s%d, s%d, 7' % (sT[2], sW), 's_add_u32 s%d, s%d, %d' % (sT[2], sT[2], g.CSQ2L), 'v_add_u32 v3, s%d, v%d' % (sT[2], vN4),
           'v_lshrrev_b32 v4, 5, v1', 'v_lshlrev_b32 v4, 4, v4', 'v_add_u32 v4, s%d, v4' % sT[2], ((lambda: a.wait(lg='cq')), 3),
           'v_add_f32 v%d, v%d, v%d' % (CQ, CQ, CQ + 1), 'v_add_f32 v%d, v%d, v%d' % (CQ + 2, CQ + 2, CQ + 3), 'v_add_f32 v%d, v%d, v%d' % (CQ, CQ, CQ + 2),
           'ds_write_b32 v3, v%d' % CQ])
    S.add([((lambda q=q: I('ds_read_b128 %s, v4 offset:%d' % (vr(ACCV + 4 * q, 4), 32 * q), tag='cq2')), 5) for q in range(4)])
    g.guq = [(j, c) for j in range(28) for c in range(2)]
    for n in range(28):
        if n + 3 < 28: q_rd(n + 3)
        a.wait(lg='q%d' % n)
        I(MF(vr(ACCQ, 16), vr(QB + 4 * (n % 4), 4), vr(XF + 4 * n, 4), '0' if n == 0 else vr(ACCQ, 16)))
        S.emit(12)
    S.drain()
    pf.stamp('q28')
    a.wait(lg='cq2')
    RN = vr(vRN, 2)
    for p in range(0, 16, 2): I('v_pk_fma_f32 %s, %s, %s, %s op_sel:[0,1,0] op_sel_hi:[1,1,1]' % (vr(ACCQ + p, 2), vr(ACCV + p, 2), RN, vr(ACCQ + p, 2)))
    for p in range(0, 16, 2): I('v_pk_fma_f32 %s, %s, %s, %s op_sel_hi:[1,0,0]' % (vr(ACCQ + p, 2), vr(ACCQ + p, 2), RN, SE))
    phi(ACCQ, WB, 16)
    for p in range(8): I('v_cvt_pk_bf16_f32 v%d, v%d, v%d' % (ACCK + p, ACCQ + 2 * p, ACCQ + 2 * p + 1))
    for p in (6, 7): I('v_cndmask_b32 v%d, 0, v%d, s[%d:%d]' % (ACCK + p, ACCK + p, g.sHI, g.sHI + 1))
    I('s_lshl_b32 s%d, s%d, 2' % (sT[0], sRBA)); I('s_add_u32 s%d, s%d, s%d' % (sT[0], sT[0], sW))
    I('s_lshl_b32 s%d, s%d, 6' % (sT[1], sH)); I('s_add_u32 s%d, s%d, s%d' % (sT[0], sT[0], sT[1])); I('s_lshl_b32 s%d, s%d, 11' % (sT[0], sT[0]))
    if PQF: I('s_add_u32 s%d, s%d, %d' % (sT[0], sT[0], PQF))
    I('buffer_store_dwordx4 %s, v%d, s[%d:%d], s%d offen sc1' % (vr(ACCK, 4), vL16, g.sWS, g.sWS + 3, sT[0]), tag='ast')
    I('buffer_store_dwordx4 %s, v%d, s[%d:%d], s%d offen offset:1024 sc1' % (vr(ACCK + 4, 4), vL16, g.sWS, g.sWS + 3, sT[0]), tag='ast')
    pf.stamp('pqst')
    go_poll()
    I('s_lshr_b32 s%d, s%d, 2' % (sT[6], sH)); I('s_lshl_b32 s%d, s%d, 7' % (sT[6], sT[6])); I('s_add_u32 s%d, s%d, %d' % (sT[6], sT[6], CNT))
    I('v_mov_b32 v2, 1'); I('v_lshlrev_b32 v3, 9, v1')
    a.wait(vm='ast'); I('s_barrier')
    I('s_mov_b64 exec, 0xff')
    I('buffer_atomic_add v2, v3, s[%d:%d], s%d offen sc1' % (g.sKZ, g.sKZ + 3, sT[6]), tag='sig')
    I('s_mov_b64 exec, -1')
    pf.stamp('sigA')
    I('s_cmp_ge_u32 s2, 224'); a.branch('s_cbranch_scc1 kf_pack')
    poll(g, 'kf_pg', vXS[0], 3, 'v%d' % g.vPT, g.sWS, early='gop')
    wo_loads(g, 0, 2)

def wo_loads(g, lo, hi):
    a = g.a; I = a.I; sT = g.sT
    for i in range(lo, hi):
        I('s_add_u32 s%d, s%d, %d' % (sT[2], g.sR4, i)); I('s_and_b32 s%d, s%d, 3' % (sT[2], sT[2]))
        I('s_lshl_b32 s%d, s%d, 2' % (sT[3], g.sW)); I('s_add_u32 s%d, s%d, s%d' % (sT[2], sT[2], sT[3])); I('s_lshl_b32 s%d, s%d, 11' % (sT[2], sT[2]))
        I('s_lshl_b32 s%d, s%d, 1' % (sT[3], g.sCS)); I('s_and_b32 s%d, s%d, 1' % (sT[4], g.sW)); I('s_add_u32 s%d, s%d, s%d' % (sT[3], sT[3], sT[4]))
        I('s_lshl_b32 s%d, s%d, 15' % (sT[3], sT[3])); I('s_add_u32 s%d, s%d, s%d' % (sT[2], sT[2], sT[3]))
        I('s_xor_b32 s%d, s%d, 32768' % (sT[3], sT[2]))
        I('s_add_u32 s%d, s%d, %d' % (sT[2], sT[2], WOP)); I('s_add_u32 s%d, s%d, %d' % (sT[3], sT[3], WOP))
        for c in range(2):
            for kk in range(2):
                I('buffer_load_dwordx4 %s, v%d, s[%d:%d], s%d offen offset:%d sc1' % (vr(8 + 16 * i + 8 * c + 4 * kk, 4), g.vL16, g.sWS, g.sWS + 3, sT[2 + c], 1024 * kk), tag='wo')

def resid_init(g, RES, ACC0, T):
    I = g.a.I
    for p in range(8): I('v_mov_b32 v%d, v%d' % (T + p, RES + p))
    for pr in range(2):
        for k in range(2): I('v_permlane32_swap_b32 v%d, v%d' % (T + 4 * pr + k, T + 4 * pr + 2 + k))
    for p in range(8):
        I('v_lshlrev_b32 v%d, 16, v%d' % (ACC0 + 2 * p, T + p)); I('v_and_b32 v%d, 0xffff0000, v%d' % (ACC0 + 2 * p + 1, T + p))

def reduce_tiles(g, ACC, P0, OUT):
    a = g.a; I = a.I
    for t in range(1, 4):
        for q in range(4): I('ds_write_b128 v%d, %s offset:%d' % (g.vRW[t - 1], vr(ACC + 16 * t + 4 * q, 4), 1024 * q))
    a.wait(lg=0); I('s_barrier')
    for q in range(4):
        for t in range(3): I('ds_read_b128 %s, v%d offset:%d' % (vr(P0 + 16 * t + 4 * q, 4), g.vRR, 4096 * t + 1024 * q), tag='rr%d' % q)
    for q in range(4):
        a.wait(lg='rr%d' % q)
        for v in (4 * q, 4 * q + 2):
            I('v_pk_add_f32 %s, %s, %s' % (vr(P0 + v, 2), vr(P0 + v, 2), vr(ACC + v, 2))); I('v_pk_add_f32 %s, %s, %s' % (vr(P0 + 16 + v, 2), vr(P0 + 16 + v, 2), vr(P0 + 32 + v, 2)))
        for v in (4 * q, 4 * q + 2): I('v_pk_add_f32 %s, %s, %s' % (vr(P0 + v, 2), vr(P0 + v, 2), vr(P0 + 16 + v, 2)))
        for p in (2 * q, 2 * q + 1): I('v_cvt_pk_bf16_f32 v%d, v%d, v%d' % (OUT + p, P0 + 2 * p, P0 + 2 * p + 1))
        if q % 2 == 1:
            for k in range(2): I('v_permlane32_swap_b32 v%d, v%d' % (OUT + 2 * (q - 1) + k, OUT + 2 * (q - 1) + 2 + k))

def colsum(g, lo, hi):
    a = g.a; I = a.I
    for i in range(4): I('v_mov_b32 v%d, s%d' % (4 + i, g.sONE))
    for j in range(lo, hi):
        for c in range(2): I(MF(ar(224 + 16 * c, 16), 'v[4:7]', ar(112 * c + 4 * j, 4), '0' if j == 0 else ar(224 + 16 * c, 16)))

def phase_B(g):
    a = g.a; I = a.I; sT = g.sT; pf = g.pf; cfg = g.cfg
    sW = g.sW; vL16 = g.vL16
    WO, ACC, KV, NUM = 8, 72, 136, 168
    aPQ = 224
    sRT, sCT, sKVB, sPQB, sRX = g.S4[0:5]
    wo_loads(g, 2, 4)
    I('s_lshr_b32 s%d, s%d, 1' % (sT[0], sW)); I('s_and_b32 s%d, s%d, 1' % (sT[1], sW))
    I('s_lshl_b32 s%d, s%d, 1' % (sRT, g.sRB64)); I('s_add_u32 s%d, s%d, s%d' % (sRT, sRT, sT[0]))
    I('s_lshl_b32 s%d, s%d, 1' % (sCT, g.sCS)); I('s_add_u32 s%d, s%d, s%d' % (sCT, sCT, sT[1]))
    g.sRT, g.sCT = sRT, sCT
    I('s_mul_i32 s%d, s%d, %d' % (sT[2], sRT, 32 * 896)); I('s_lshl_b32 s%d, s%d, 6' % (sT[3], sCT)); I('s_add_u32 s%d, s%d, s%d' % (sT[2], sT[2], sT[3]))
    for i in range(2):
        I('buffer_load_dwordx4 %s, v%d, s[%d:%d], s%d offen offset:%d' % (vr(g.vHK + 4 * i, 4), g.vXo, g.sX, g.sX + 3, sT[2], 32 * i), tag='xr')
    I('s_and_b32 s%d, s2, 7' % sT[2]); I('s_lshl_b32 s%d, s%d, 2' % (sT[2], sT[2])); I('s_add_u32 s%d, s%d, s%d' % (sT[2], sT[2], sW))
    I('s_lshl_b32 s%d, s%d, 7' % (sT[2], sT[2])); I('s_add_u32 s%d, s%d, %d' % (sT[2], sT[2], CNT)); I('v_mov_b32 v%d, s%d' % (g.vPA, sT[2]))
    I('s_lshl_b32 s%d, s%d, 14' % (sKVB, sW)); I('s_add_u32 s%d, s%d, %d' % (sKVB, sKVB, KVACC))
    I('s_lshl_b32 s%d, s%d, 19' % (sPQB, sW)); I('s_lshl_b32 s%d, s%d, 12' % (sT[2], g.sRB64)); I('s_add_u32 s%d, s%d, s%d' % (sPQB, sPQB, sT[2]))
    if PQF: I('s_add_u32 s%d, s%d, %d' % (sPQB, sPQB, PQF))
    I('s_lshl_b32 s%d, s%d, 11' % (sRX, sT[0]))
    pf.stamp('pfB')
    poll(g, 'kf_p1', g.vPA, 1, 64, g.sWS)
    pf.stamp('sync1')
    def loads(i):
        I('s_add_u32 s%d, s%d, %d' % (sT[2], g.sR4, i)); I('s_and_b32 s%d, s%d, 3' % (sT[2], sT[2]))
        I('s_lshl_b32 s%d, s%d, 12' % (sT[3], sT[2])); I('s_add_u32 s%d, s%d, s%d' % (sT[3], sT[3], sKVB))
        I('s_lshl_b32 s%d, s%d, 17' % (sT[4], sT[2])); I('s_add_u32 s%d, s%d, s%d' % (sT[4], sT[4], sPQB))
        I('s_add_u32 s%d, s%d, s%d' % (sT[5], sT[4], sRX)); I('s_xor_b32 s%d, s%d, 2048' % (sT[4], sT[5]))
        for q in range(4):
            I('buffer_load_dwordx4 %s, v%d, s[%d:%d], s%d offen offset:%d sc1' % (vr(KV + 16 * (i % 2) + 4 * q, 4), vL16, g.sWS, g.sWS + 3, sT[3], 1024 * q), tag='kv%d' % i)
        for rt in range(2):
            for kk in range(2):
                I('buffer_load_dwordx4 %s, v%d, s[%d:%d], s%d offen offset:%d sc1' % (ar(aPQ + 16 * (i % 2) + 8 * rt + 4 * kk, 4), vL16, g.sWS, g.sWS + 3, sT[5] if rt == 0 else sT[4], 1024 * kk), tag='pq%d' % i)
    def o_ops(i, rt):
        n = NUM + 32 * (i % 2) + 16 * rt; t = 2 + rt
        ops = ['v_cvt_pk_bf16_f32 v%d, v%d, v%d' % (t, n + 14, n + 14), 'v_and_b32 v%d, 0xffff0000, v%d' % (t, t),
               'v_add_f32 v%d, s%d, v%d' % (t, g.sEPS, t), 'v_rcp_f32 v%d, v%d' % (t, t)]
        for v in range(14): ops.append('v_mul_f32 v%d, v%d, v%d' % (n + v, n + v, t))
        for p in range(7): ops.append('v_cvt_pk_bf16_f32 v%d, v%d, v%d' % (n + p, n + 2 * p, n + 2 * p + 1))
        ops.append('v_mov_b32 v%d, 0' % (n + 7))
        return ops
    def num(i):
        b = KV + 16 * (i % 2)
        a.wait(vm='kv%d' % i)
        for p in range(8): I('v_cvt_pk_bf16_f32 v%d, v%d, v%d' % (b + p, b + 2 * p, b + 2 * p + 1))
        a.wait(vm='pq%d' % i)
        for rt in range(2):
            for kk in range(2):
                n = NUM + 32 * (i % 2) + 16 * rt
                I(MF(vr(n, 16), vr(b + 4 * kk, 4), ar(aPQ + 16 * (i % 2) + 8 * rt + 4 * kk, 4), '0' if kk == 0 else vr(n, 16)))
        if i + 2 < 4: loads(i + 2)
    def gemm(i, rt, S, per):
        for kk in range(2):
            for c in range(2):
                acc = ACC + 16 * (2 * rt + c)
                I(MF(vr(acc, 16), vr(WO + 16 * i + 8 * c + 4 * kk, 4), vr(NUM + 32 * (i % 2) + 16 * rt + 4 * kk, 4), '0' if (i == 0 and kk == 0 and (rt or c)) else vr(acc, 16)))
                S.emit(per)
    def gu_one():
        if len(g.guq) <= cfg.get('gu_keep', 20): return False
        gu_load(g, *g.guq.pop(0)); return True
    loads(0); loads(1)
    resid_init(g, g.vHK, ACC, NUM)
    S = Side(a)
    num(0)
    for i in range(4):
        S.add(o_ops(i, 0)); S.drain()
        S.add(o_ops(i, 1))
        gemm(i, 0, S, 28); S.drain()
        if i + 1 < 4: num(i + 1)
        if i == cfg.get('spr_i', 1): a.sprinkle(gu_one, cfg.get('spr', 80))
        gemm(i, 1, S, 0)
    pf.stamp('gemmB')
    reduce_tiles(g, ACC, NUM, g.vHK)
    a.sprinkle(None, 0)
    I('s_mul_i32 s%d, s%d, 28' % (sT[0], sRT)); I('s_lshl_b32 s%d, s%d, 1' % (sT[1], sCT)); I('s_add_u32 s%d, s%d, s%d' % (sT[0], sT[0], sT[1]))
    I('s_lshl_b32 s%d, s%d, 10' % (sT[0], sT[0])); I('s_add_u32 s%d, s%d, %d' % (sT[0], sT[0], HF))
    for i in range(2):
        I('buffer_store_dwordx4 %s, v%d, s[%d:%d], s%d offen offset:%d sc1' % (vr(g.vHK + 4 * i, 4), vL16, g.sWS, g.sWS + 3, sT[0], 1024 * i), tag='bst')
    I('v_mov_b32 v2, 0'); I('v_mov_b32 v3, 0')
    for p in range(8):
        I('v_dot2c_f32_bf16 v2, s%d, v%d' % (g.sONE, g.vHK + p)); I('v_dot2c_f32_bf16 v3, v%d, v%d' % (g.vHK + p, g.vHK + p))
    I('s_lshl_b32 s%d, s%d, 14' % (sT[0], sCT)); I('s_lshl_b32 s%d, s%d, 8' % (sT[1], sRT))
    I('s_add_u32 s%d, s%d, s%d' % (sT[0], sT[0], sT[1])); I('s_add_u32 s%d, s%d, %d' % (sT[0], sT[0], STATS))
    I('v_mov_b32 v4, v2'); I('v_mov_b32 v5, v3'); I('v_lshlrev_b32 v6, 3, v1')
    I('v_permlane32_swap_b32 v2, v4'); I('v_permlane32_swap_b32 v3, v5')
    I('v_add_f32 v8, v2, v4'); I('v_add_f32 v9, v3, v5')
    I('s_mov_b32 exec_hi, 0')
    I('buffer_store_dwordx2 v[8:9], v6, s[%d:%d], s%d offen sc1' % (g.sWS, g.sWS + 3, sT[0]), tag='bst')
    I('s_mov_b64 exec, -1')
    pf.stamp('hst')
    for _ in range(min(cfg.get('b_gu4', 10), len(g.guq))): gu_load(g, *g.guq.pop(0))
    I('s_lshr_b32 s%d, s%d, 1' % (sT[5], g.sRB64))
    I('s_lshl_b32 s%d, s%d, 8' % (g.sT[6], sT[5])); I('s_add_u32 s%d, s%d, %d' % (g.sT[6], g.sT[6], CNT + 4096))
    a.wait(vm='bst'); I('s_barrier'); sig_add(g, g.sT[6])
    pf.stamp('sigB')

def phase_C(g):
    a = g.a; I = a.I; sT = g.sT; pf = g.pf; cfg = g.cfg
    sW = g.sW; vL16 = g.vL16
    ACC, HB, NMF, CI, TM, CSF = 8, 72, 96, 108, 116, 132
    NHB = 6
    vHQ = list(range(124, 132))
    I('s_lshl_b32 s%d, s%d, 2' % (sT[3], g.sFS)); I('s_add_u32 s%d, s%d, s%d' % (sT[3], sT[3], sW)); I('s_lshl_b32 s%d, s%d, 8' % (sT[3], sT[3])); I('s_add_u32 s%d, s%d, %d' % (sT[3], sT[3], CSGU))
    I('v_and_b32 v2, 31, v1'); I('v_lshlrev_b32 v3, 2, v2')
    for c in range(2): I('buffer_load_dword v%d, v3, s[%d:%d], s%d offen offset:%d sc1' % (g.vCSg + c, g.sWS, g.sWS + 3, sT[3], 128 * c), tag='csg')
    while len(g.guq) > cfg.get('c_gu', 10): gu_load(g, *g.guq.pop(0))
    sHG, sHL = g.S4[5], g.S4[6]
    sO = g.S4[7:11]; g.sQD = g.S4[15:19]
    I('s_mul_i32 s%d, s%d, 112' % (sT[3], g.sCT)); I('s_mul_i32 s%d, s%d, 28' % (sT[4], sW)); I('s_add_u32 s%d, s%d, s%d' % (sT[3], sT[3], sT[4]))
    I('s_lshl_b32 s%d, s%d, 10' % (sT[3], sT[3])); I('s_add_u32 s%d, s%d, %d' % (sT[3], sT[3], WDP))
    for q in range(4):
        I('s_add_u32 s%d, s%d, %d' % (sT[4], g.sR4, q)); I('s_and_b32 s%d, s%d, 3' % (sT[4], sT[4]))
        I('s_mul_i32 s%d, s%d, 7168' % (sT[5], sT[4])); I('v_add_u32 v%d, s%d, v%d' % (vHQ[q], sT[5], vL16)); I('v_add_u32 v%d, 57344, v%d' % (vHQ[4 + q], vHQ[q]))
        I('s_add_u32 s%d, s%d, s%d' % (g.sQD[q], sT[5], sT[3]))
    I('s_and_b32 s%d, s%d, 1' % (sT[4], g.sCT)); I('s_mul_i32 s%d, s%d, 114688' % (sT[4], sT[4])); I('s_sub_u32 s%d, 114688, s%d' % (sT[5], sT[4]))
    for q in range(4): I('s_sub_u32 s%d, s%d, s%d' % (g.sQD[q], g.sQD[q], sT[4]))
    g.vLd = [152, 153, 154, 155]
    I('s_lshr_b32 s%d, s%d, 1' % (sT[6], sW)); I('s_lshl_b32 s%d, s%d, 8' % (sT[6], sT[6])); I('v_xor_b32 v2, s%d, v%d' % (sT[6], vL16))
    I('v_add_u32 v%d, s%d, v2' % (g.vLd[0], sT[4])); I('v_add_u32 v%d, 4096, v%d' % (g.vLd[1], g.vLd[0]))
    I('v_add_u32 v%d, s%d, v2' % (g.vLd[2], sT[5])); I('v_add_u32 v%d, 4096, v%d' % (g.vLd[3], g.vLd[2]))
    I('s_mul_i32 s%d, s%d, %d' % (sHG, g.sRB128, 4 * 28672)); I('s_mul_i32 s%d, s%d, 7168' % (sHL, sW))
    I('s_add_u32 s%d, s%d, s%d' % (sHG, sHG, sHL)); I('s_add_u32 s%d, s%d, %d' % (sHG, sHG, HF))
    I('s_lshl_b32 s%d, s%d, 3' % (sT[2], g.sFS)); I('s_lshl_b32 s%d, s%d, 1' % (sT[3], sW)); I('s_add_u32 s%d, s%d, s%d' % (sT[2], sT[2], sT[3]))
    I('s_mul_i32 s%d, s%d, %d' % (sT[0], g.sRB128, 4 * 112)); I('s_add_u32 s%d, s%d, s%d' % (sT[0], sT[0], sT[2]))
    I('s_lshl_b32 s%d, s%d, 10' % (sT[0], sT[0])); I('s_add_u32 s%d, s%d, %d' % (sT[0], sT[0], ACTF))
    for rt in range(4): I('s_add_u32 s%d, s%d, %d' % (sO[rt], sT[0], rt * 112 * 1024))
    I('v_and_b32 v2, 31, v1'); I('v_lshrrev_b32 v3, 5, v1')
    I('v_mul_u32_u24 v%d, %d, v3' % (TM, 7 * 16384)); I('v_lshl_add_u32 v%d, v2, 3, v%d' % (TM, TM))
    I('s_lshl_b32 s%d, s%d, 2' % (sT[0], g.sRB128)); I('s_add_u32 s%d, s%d, s%d' % (sT[0], sT[0], sW))
    I('s_lshl_b32 s%d, s%d, 8' % (sT[1], sT[0])); I('s_add_u32 s%d, s%d, %d' % (sT[1], sT[1], STATS))
    I('s_lshl_b32 s%d, s%d, 8' % (sT[2], g.sRB128)); I('s_add_u32 s%d, s%d, %d' % (sT[2], sT[2], CNT + 4096)); I('v_mov_b32 v%d, s%d' % (g.vPA, sT[2]))
    pf.stamp('csC')
    poll(g, 'kf_p2', g.vPA, 1, 14, g.sWS)
    pf.stamp('sync2')
    def h_dma(rt, lo=0, hi=7):
        for k in range(lo, hi):
            if k % 4 == 0 or k == lo:
                kb = k - k % 4
                I('s_add_u32 s%d, s%d, %d' % (sT[3], sHG, rt * 28672 + 1024 * kb)); I('s_add_u32 m0, s%d, %d' % (sHL, g.HL + rt * 28672 + 1024 * kb))
            I('buffer_load_dwordx4 v%d, s[%d:%d], s%d offen offset:%d sc1 lds' % (vL16, g.sWS, g.sWS + 3, sT[3], 1024 * (k % 4)), tag='h%d' % rt)
    h_dma(0)
    vSP = 156
    while g.guq:
        j, c = g.guq.pop(0); gu_load(g, j, c); a.vm[-1] = 'gu%d' % j
        g.late_gu = getattr(g, 'late_gu', []) + [j]
    for p in range(7):
        I('buffer_load_dwordx2 %s, v%d, s[%d:%d], s%d offen sc1' % (vr(vSP + 2 * p, 2), TM, g.sWS, g.sWS + 3, sT[1]), tag='sp')
        if p < 6: I('s_add_u32 s%d, s%d, 16384' % (sT[1], sT[1]))
    for c in range(2):
        f = CSF + 4 * c
        I('v_mov_b32 v4, v%d' % (g.vCSg + c))
        I('v_cvt_pk_bf16_f32 v5, v4, v4'); I('v_and_b32 v5, 0xffff0000, v5'); I('v_sub_f32 v6, v4, v5')
        I('v_cvt_pk_bf16_f32 v%d, v4, v6' % f); I('v_and_b32 v5, 0xffff0000, v%d' % f); I('v_sub_f32 v6, v6, v5')
        I('v_cvt_pk_bf16_f32 v%d, v6, 0' % (f + 1))
        I('v_cndmask_b32 v%d, 0, v%d, s[%d:%d]' % (f, f, g.sHI, g.sHI + 1)); I('v_cndmask_b32 v%d, 0, v%d, s[%d:%d]' % (f + 1, f + 1, g.sHI, g.sHI + 1))
        I('v_mov_b32 v%d, 0' % (f + 2)); I('v_mov_b32 v%d, 0' % (f + 3))
    I('s_lshl_b32 s%d, s%d, 8' % (sT[2], sW)); I('s_add_u32 s%d, s%d, %d' % (sT[2], sT[2], CNT + 5 * 4096)); I('v_mov_b32 v%d, s%d' % (g.vPA, sT[2]))
    a.wait(vm='h0'); I('s_barrier')
    pf.stamp('h0')
    def stats_ops():
        ops = [((lambda: a.wait(vm='sp')), 3)]
        for p in range(1, 7): ops += ['v_add_f32 v%d, v%d, v%d' % (vSP, vSP, vSP + 2 * p), 'v_add_f32 v%d, v%d, v%d' % (vSP + 1, vSP + 1, vSP + 2 * p + 1)]
        ops += ['v_mov_b32 v5, v%d' % vSP, 'v_mov_b32 v6, v%d' % (vSP + 1), 's_lshl_b32 s%d, s%d, 9' % (sT[1], sW), 's_add_u32 s%d, s%d, %d' % (sT[1], sT[1], g.STL),
                'v_permlane32_swap_b32 v%d, v5' % vSP, 'v_permlane32_swap_b32 v%d, v6' % (vSP + 1),
                'v_add_f32 v%d, v%d, v5' % (vSP, vSP), 'v_add_f32 v%d, v%d, v6' % (vSP + 1, vSP + 1)]
        b = Asm(); ln_finish(b, 'v%d' % vSP, 'v%d' % (vSP + 1), 'v5', 'v6', 'v7', 'v3')
        ops += [l.strip() for l in b.out if not l.strip().startswith('s_nop')]
        X = vSP + 4
        ops += ['v_sub_f32 v3, 0, v3', 'v_cvt_pk_bf16_f32 v%d, v3, v3' % X, 'v_mov_b32 v%d, v%d' % (X + 1, X), 'v_mul_f32 v%d, %s, v7' % (X + 2, f32(-LOG2E)), 'v_mul_f32 v%d, v6, v6' % (X + 3),
                'v_lshlrev_b32 v4, 4, v2', 'v_add_u32 v5, s%d, v4' % sT[1], 'v_add_u32 v4, %d, v4' % g.STL,
                ((lambda: I('ds_write_b128 v5, %s' % vr(X, 4), tag='stw')), 6)]
        return ops
    def st_reads():
        for rt in range(4):
            I('ds_read_b64 %s, v4 offset:%d' % (vr(NMF + 2 * rt, 2), 512 * rt), tag='st')
            I('ds_read_b64 %s, v4 offset:%d' % (vr(CI + 2 * rt, 2), 512 * rt + 8), tag='st')
        I('v_mov_b32 v%d, 0' % (NMF + 8)); I('v_mov_b32 v%d, 0' % (NMF + 9))
    def acc(rt, c): return ACC + 32 * (rt % 2) + 16 * c
    def epi_ops(rt, c):
        b = acc(rt, c); c1, ir2 = CI + 2 * rt, CI + 2 * rt + 1
        ops = []
        for j in range(8): ops += ['v_mul_f32 v%d, v%d, v%d' % (TM + j, c1, b + j)]
        for j in range(8): ops += ['v_exp_f32 v%d, v%d' % (TM + j, TM + j), 'v_mul_f32 v%d, v%d, v%d' % (b + j, b + j, b + 8 + j)]
        for j in range(8): ops += ['v_fma_f32 v%d, v%d, v%d, v%d' % (TM + j, TM + j, ir2, ir2)]
        for j in range(8):
            ops += ['v_rcp_f32 v%d, v%d' % (TM + j, TM + j)]
            if j > 0: ops += ['v_mul_f32 v%d, v%d, v%d' % (b + j - 1, b + j - 1, TM + j - 1)]
        ops += ['v_cvt_pk_bf16_f32 v%d, v%d, v%d' % (b + 8 + p, b + 2 * p, b + 2 * p + 1) for p in range(3)]
        ops += ['v_mul_f32 v%d, v%d, v%d' % (b + 7, b + 7, TM + 7), 'v_cvt_pk_bf16_f32 v%d, v%d, v%d' % (b + 11, b + 6, b + 7)]
        ops.append(((lambda: I('buffer_store_dwordx4 %s, v%d, s[%d:%d], s%d offen offset:%d sc1' % (vr(b + 8, 4), vL16, g.sWS, g.sWS + 3, sO[rt], 1024 * c), tag='cst%d' % (rt // 2))), 16))
        return ops
    seq = [(rt, j) for rt in range(4) for j in range(28)]
    vis = 0
    def h_rd(n):
        nonlocal vis
        rt, j = seq[n]
        if rt > vis:
            vis = rt
            if rt == 1: a.wait(vm='h1', lg='stw')
            else: a.wait(vm='h%d' % rt)
            I('s_barrier')
            if rt == 1: st_reads()
        I('ds_read_b128 %s, v%d offset:%d' % (vr(HB + 4 * (n % NHB), 4), vHQ[4 * (rt // 2) + j // 7], (rt % 2) * 28672 + (j % 7) * 1024), tag='hr%d' % n)
    LA = NHB - 1
    for n in range(LA): h_rd(n)
    S = Side(a)
    wdq = [(j, c) for j in range(g.n_wd1) for c in range(2)]
    g.wdq2 = [(j, c) for j in range(g.n_wd1, 28) for c in range(2)]
    def hd(rt, k): return ((lambda: h_dma(rt, k, k + 1)), 22)
    for n, (rt, j) in enumerate(seq):
        if j == 0:
            S.drain()
            if rt == 0:
                S.add([hd(1, k) for k in range(7)]); S.add(stats_ops()); S.add([hd(2, k) for k in range(7)])
                S.add([((lambda: I('buffer_load_dword v%d, v%d, s[%d:%d], 0 offen sc1' % (g.vPoll, g.vPA, g.sWS, g.sWS + 3), tag='wdp')), 16)])
            if rt == 1:
                S.add([hd(3, k) for k in range(7)])
                poll(g, 'kf_pw', g.vPA, 1, 7, g.sWS, early='wdp')
            if rt >= 1: S.add(epi_ops(rt - 1, 0) + epi_ops(rt - 1, 1))
            pf.stamp('rt%d' % rt)
        if n + LA == 28: S.drain()
        if n + LA < len(seq): h_rd(n + LA)
        if rt == 0 and j in getattr(g, 'late_gu', []): a.wait(vm='gu%d' % j)
        a.wait(lg='hr%d' % n)
        for c in range(2):
            I(MF(vr(acc(rt, c), 16), ar(112 * c + 4 * j, 4), vr(HB + 4 * (n % NHB), 4), '0' if j == 0 else vr(acc(rt, c), 16)))
            if c == 0 and n >= 30 and n % 5 in (0, 2, 4) and wdq: wd_load(g, *wdq.pop(0))
            elif c == 0 and rt == 3 and 1 <= j <= cfg.get('wd3', 26) and not wdq: wd_load(g, *g.wdq2.pop(0))
            elif not (j == 0 and rt >= 1): S.emit(cfg.get('cb0', 16) if c == 0 else cfg.get('cb1', 22))
        if rt == 3 and j == 20: S.drain(); d_setup(g)
        if rt == 3 and j == cfg.get('midsig', 6):
            I('s_lshl_b32 s%d, s%d, 8' % (sT[6], g.sRB128)); I('s_add_u32 s%d, s%d, %d' % (sT[6], sT[6], CNT + 8192))
            a.wait(vm='cst0'); I('s_barrier'); sig_add(g, sT[6])
        if j == 27:
            a.wait(lg='st')
            for c in range(2): I(MF(vr(acc(rt, c), 16), vr(CSF + 4 * c, 4), vr(NMF + 2 * rt, 4), vr(acc(rt, c), 16)))
    S.drain()
    pf.stamp('mfmaC')
    assert not wdq
    for _ in range(min(len(g.wdq2), cfg.get('wd_pre', 8))): wd_load(g, *g.wdq2.pop(0))
    S.add(epi_ops(3, 0) + epi_ops(3, 1)); S.drain()
    pf.stamp('actst')

def d_setup(g):
    a = g.a; I = a.I; sT = g.sT; sW = g.sW; vL16 = g.vL16
    g.sA = g.S4[11:15]; g.sE, g.sHR, g.sOB = g.S4[2], g.S4[3], g.S4[4]
    I('s_lshr_b32 s%d, s%d, 1' % (sT[2], g.sRB64)); I('s_lshl_b32 s%d, s%d, 2' % (g.sE, sT[2])); I('s_and_b32 s%d, s%d, 1' % (sT[3], g.sRB64)); I('s_add_u32 s%d, s%d, s%d' % (g.sE, g.sE, sT[3]))
    I('s_lshl_b32 s%d, s%d, 8' % (sT[2], sT[2])); I('s_add_u32 s%d, s%d, %d' % (sT[2], sT[2], CNT + 8192)); I('v_mov_b32 v%d, s%d' % (g.vPA, sT[2]))
    I('buffer_load_dword v%d, v%d, s[%d:%d], 0 offen sc1' % (g.vPoll, g.vPA, g.sWS, g.sWS + 3), tag='p3e')
    I('s_mul_i32 s%d, s%d, 112' % (sT[0], g.sE)); I('s_mul_i32 s%d, s%d, 28' % (sT[1], sW)); I('s_add_u32 s%d, s%d, s%d' % (sT[0], sT[0], sT[1]))
    I('s_lshl_b32 s%d, s%d, 10' % (sT[0], sT[0])); I('s_add_u32 s%d, s%d, %d' % (sT[0], sT[0], ACTF))
    for q in range(4):
        I('s_add_u32 s%d, s%d, %d' % (sT[4], g.sR4, q)); I('s_and_b32 s%d, s%d, 3' % (sT[4], sT[4]))
        I('s_mul_i32 s%d, s%d, 7168' % (sT[4], sT[4])); I('s_add_u32 s%d, s%d, s%d' % (g.sA[q], sT[4], sT[0]))
    g.vA = [vL16, g.vLo[1], g.vLo[2], g.vLo[3]]
    I('v_add_u32 v%d, %d, v%d' % (g.vA[2], 2 * 114688, vL16)); I('v_add_u32 v%d, 4096, v%d' % (g.vA[3], g.vA[2]))
    I('s_lshr_b32 s%d, s%d, 1' % (sT[1], sW))
    I('s_mul_i32 s%d, s%d, 28' % (sT[0], g.sE)); I('s_lshl_b32 s%d, s%d, 1' % (sT[2], g.sCT)); I('s_add_u32 s%d, s%d, s%d' % (sT[2], sT[2], sT[1])); I('s_add_u32 s%d, s%d, s%d' % (sT[0], sT[0], sT[2]))
    I('s_lshl_b32 s%d, s%d, 10' % (sT[0], sT[0])); I('s_add_u32 s%d, s%d, %d' % (g.sHR, sT[0], HF))
    I('s_mul_i32 s%d, s%d, %d' % (sT[0], g.sE, 32 * 896)); I('s_lshl_b32 s%d, s%d, 5' % (sT[2], sT[2])); I('s_add_u32 s%d, s%d, s%d' % (g.sOB, sT[0], sT[2]))
    for t in range(1, 4):
        I('s_xor_b32 s%d, s%d, %d' % (sT[3], sW, t)); I('s_mul_i32 s%d, s%d, 6144' % (sT[3], sT[3])); I('s_add_u32 s%d, s%d, %d' % (sT[3], sT[3], (t - 1) * 2048))
        I('v_add_u32 v%d, s%d, v%d' % (g.vRW[t - 1], sT[3], vL16))
    I('s_mul_i32 s%d, s%d, 6144' % (sT[3], sW)); I('v_add_u32 v%d, s%d, v%d' % (g.vRR, sT[3], vL16))

def phase_D(g):
    a = g.a; I = a.I; sT = g.sT; pf = g.pf; cfg = g.cfg
    sW = g.sW; vL16 = g.vL16
    ACC, P0, RS = 8, 72, 104
    poll(g, 'kf_p3', g.vPA, 1, 14, g.sWS, early='p3e')
    pf.stamp('sync3')
    NR = 2 * g.act_ring; AB = g.act_base
    def issue(m):
        p, j = m // 28, m % 28; r = j % 7
        I('buffer_load_dwordx4 %s, v%d, s[%d:%d], s%d offen offset:%d sc1' % (ar(AB + 4 * (m % NR), 4), g.vA[2 * p + (r >= 4)], g.sWS, g.sWS + 3, g.sA[j // 7], 1024 * (r % 4)), tag='k%d' % m)
    LA = cfg.get('d_la', 16)
    I('s_add_u32 s%d, s%d, %d' % (sT[0], g.sHR, 2 * 28672))
    I('buffer_load_dwordx4 %s, v%d, s[%d:%d], s%d offen sc1' % (vr(g.vHK, 4), vL16, g.sWS, g.sWS + 3, g.sHR), tag='hr')
    I('buffer_load_dwordx4 %s, v%d, s[%d:%d], s%d offen sc1' % (vr(g.vHK + 4, 4), vL16, g.sWS, g.sWS + 3, sT[0]), tag='hr')
    for m in range(8): issue(m)
    I('s_lshl_b32 s%d, s%d, 8' % (sT[6], g.sRB128)); I('s_add_u32 s%d, s%d, %d' % (sT[6], sT[6], CNT + 8192 + 128))
    a.wait(vm='cst1'); I('s_barrier'); sig_add(g, sT[6])
    pf.stamp('sigC')
    for m in range(8, LA): issue(m)
    I('v_add_u32 v%d, 128, v%d' % (g.vPA, g.vPA))
    def acc(p, c): return ACC + 32 * p + 16 * c
    def xwrite(p):
        return ['ds_write_b128 v%d, %s offset:%d' % (g.vRW[t - 1], vr(acc(p, t & 1) + 8 * (t >> 1) + 4 * q, 4), 24576 * p + 1024 * q) for t in range(1, 4) for q in range(2)]
    def xfinish(p, pk):
        O = g.vHK + 4 * p; b = acc(p, 0)
        ops = [((lambda t=t, q=q: I('ds_read_b128 %s, v%d offset:%d' % (vr(P0 + 8 * t + 4 * q, 4), g.vRR, 24576 * p + 2048 * t + 1024 * q), tag='xr%d' % p)), 6) for t in range(3) for q in range(2)]
        ops += ['v_permlane32_swap_b32 v%d, v%d' % (O + k, O + 2 + k) for k in range(2)]
        for k in range(4): ops += ['v_lshlrev_b32 v%d, 16, v%d' % (RS + 2 * k, O + k), 'v_and_b32 v%d, 0xffff0000, v%d' % (RS + 2 * k + 1, O + k)]
        if pk:
            ops += ['v_pk_add_f32 %s, %s, %s' % (vr(b + v, 2), vr(b + v, 2), vr(RS + v, 2)) for v in range(0, 8, 2)]
            ops += [((lambda: a.wait(lg='xr%d' % p)), 3)]
            for v in range(0, 8, 2): ops += ['v_pk_add_f32 %s, %s, %s' % (vr(b + v, 2), vr(b + v, 2), vr(P0 + v, 2)), 'v_pk_add_f32 %s, %s, %s' % (vr(P0 + 8 + v, 2), vr(P0 + 8 + v, 2), vr(P0 + 16 + v, 2))]
            ops += ['v_pk_add_f32 %s, %s, %s' % (vr(b + v, 2), vr(b + v, 2), vr(P0 + 8 + v, 2)) for v in range(0, 8, 2)]
        else:
            ops += ['v_add_f32 v%d, v%d, v%d' % (b + v, b + v, RS + v) for v in range(8)]
            ops += [((lambda: a.wait(lg='xr%d' % p)), 3)]
            for v in range(8): ops += ['v_add_f32 v%d, v%d, v%d' % (b + v, b + v, P0 + v), 'v_add_f32 v%d, v%d, v%d' % (P0 + 8 + v, P0 + 8 + v, P0 + 16 + v)]
            ops += ['v_add_f32 v%d, v%d, v%d' % (b + v, b + v, P0 + 8 + v) for v in range(8)]
        ops += ['v_cvt_pk_bf16_f32 v%d, v%d, v%d' % (O + k, b + 2 * k, b + 2 * k + 1) for k in range(4)]
        ops += ['s_add_u32 s%d, s%d, %d' % (sT[1], g.sOB, 64 * 896 * p), 's_nop 0']
        ops += ['v_permlane32_swap_b32 v%d, v%d' % (O + k, O + 2 + k) for k in range(2)]
        ops += [((lambda: I('buffer_store_dwordx4 %s, v%d, s[%d:%d], s%d offen' % (vr(O, 4), g.vXo, g.sOUT, g.sOUT + 3, sT[1]))), 16)]
        return ops
    S = Side(a)
    P4 = cfg.get('p4', 22)
    for m in range(56):
        p, j = m // 28, m % 28
        if m == max(28 - LA, P4 - 8): I('buffer_load_dword v%d, v%d, s[%d:%d], 0 offen sc1' % (g.vPoll, g.vPA, g.sWS, g.sWS + 3), tag='p4e')
        if m == P4:
            poll(g, 'kf_p4', g.vPA, 1, 14, g.sWS, early='p4e')
            for mm in range(28, m + LA): issue(mm)
        if m == 29: S.add(xwrite(0))
        if m == 36:
            S.drain(); a.wait(lg=0); I('s_barrier'); S.add(xfinish(0, False))
        if g.wd_wait.get(j) and p == 0: a.wait(vm=['k%d' % m, 'wd%d' % j])
        else: a.wait(vm='k%d' % m)
        if m % 14 == 0: pf.stamp('k%d' % m)
        for c in range(2):
            f, r = g.wd_regs[j][c]
            I(MF(vr(acc(p, c), 16), vr(r, 4, f), ar(AB + 4 * (m % NR), 4), '0' if j == 0 else vr(acc(p, c), 16)))
            if c == 0:
                if m + LA < 56 and (m + LA < 28 or m >= P4): issue(m + LA)
                if g.wdq2:
                    jj, cc = g.wdq2.pop(0); wd_load(g, jj, cc); a.vm[-1] = 'wd%d' % jj; g.wd_wait[jj] = True
            else: S.emit(24)
    S.drain()
    pf.stamp('gemmD')
    for op in xwrite(1): I(op)
    a.wait(lg=0); I('s_barrier')
    S.add(xfinish(1, True)); S.drain()
    pf.stamp('out')
    if PROF: I('s_waitcnt vmcnt(0)')
    pf.dump(g.sWS)
    I('s_endpgm')

def pack_wd(g):
    a = g.a; I = a.I; sT = g.sT; sW = g.sW; vL16 = g.vL16
    a.label('kf_pack'); a.reset_counts()
    I('s_cmp_ge_u32 s2, 252'); a.branch('s_cbranch_scc1 kf_end')
    I('s_sub_u32 s%d, s2, 224' % sT[5]); I('s_lshl_b32 s%d, s%d, 2' % (sT[0], sT[5])); I('s_add_u32 s%d, s%d, s%d' % (sT[0], sT[0], sW))
    I('s_mul_i32 s%d, s%d, 14336' % (sT[1], sT[0])); I('s_mul_i32 s%d, s%d, 14336' % (sT[2], sW))
    for i in range(14):
        if i % 4 == 0:
            I('s_add_u32 s%d, s%d, %d' % (sT[3], sT[1], 1024 * i)); I('s_add_u32 m0, s%d, %d' % (sT[2], 1024 * i))
        I('buffer_load_dwordx4 v%d, s[%d:%d], s%d offen offset:%d lds' % (vL16, g.sD, g.sD + 3, sT[3], 1024 * (i % 4)))
    I('v_lshrrev_b32 v3, 5, v1'); I('v_bfe_u32 v4, v1, 2, 2'); I('v_lshl_add_u32 v4, v3, 2, v4'); I('v_mul_u32_u24 v4, 896, v4')
    I('v_bfe_u32 v5, v1, 4, 1'); I('v_lshl_add_u32 v4, v5, 5, v4'); I('v_and_b32 v5, 3, v1'); I('v_lshl_add_u32 v4, v5, 3, v4')
    I('v_add_u32 v4, s%d, v4' % sT[2])
    I('s_lshl_b32 s%d, s%d, 10' % (sT[1], sT[0])); I('s_add_u32 s%d, s%d, %d' % (sT[1], sT[1], WDP))
    I('s_mul_i32 s%d, s%d, 37' % (sT[5], sT[5])); I('s_lshr_b32 s%d, s%d, 8' % (sT[5], sT[5]))
    a.wait(vm=0)
    B0 = 80
    for ct in range(18):
        if ct < 14: trfrag(a, B0 + 4 * ct, 4, 64 * ct, 't%d' % ct, d2=8 * 896)
        if ct >= 4:
            cc = ct - 4
            a.wait(lg='t%d' % cc)
            I('buffer_store_dwordx4 %s, v%d, s[%d:%d], s%d offen sc1' % (vr(B0 + 4 * cc, 4), vL16, g.sWS, g.sWS + 3, sT[1]), tag='wst')
            I('s_add_u32 s%d, s%d, %d' % (sT[1], sT[1], 112 * 1024))
    signal(g, 5, sT[5], 'wst')
    if PROF:
        nm = list(g.pf.names); g.pf.n = 14; g.pf.stamp('x'); g.pf.names = nm[:-1]; g.pf.n = len(nm) - 1; g.pf.dump(g.sWS)

def gen_F(a, cfg=None):
    cfg = cfg or {}
    name = KN + '_kernel'
    head(a, name)
    g = setup(a, cfg)
    homes = [('v', 140 + 4 * k) for k in range(3)] + [('a', 224 + 4 * k) for k in range(8)] + [('v', 156 + 4 * k) for k in range(19)] + [('a', 4 * k) for k in range(26)]
    g.n_wd1 = 15
    g.wd_regs = [(homes[2 * j], homes[2 * j + 1]) for j in range(28)]
    g.wd_wait = {}
    g.act_base, g.act_ring = 104, 15
    phase_A(g); phase_B(g); phase_C(g); phase_D(g); pack_wd(g)
    a.label('kf_end')
    a.I('s_endpgm')
    a.raw('kf_pad:\n.fill (49664 - (kf_pad - %s)) / 4, 4, 0xbf800000' % name)
    return (name, 256, 256, 163840, 512, 102, 256)
```

```python
from gen_common import *
from types import SimpleNamespace as NS

CNT = KVACC + (128 << 10)
SPIN_MAX = 1 << 22
V3 = ('v_fma_f32', 'v_cvt_pk_bf16_f32', 'v_add3_u32', 'v_lshl_add_u32', 'v_bfe_u32', 'v_cndmask_b32', 'v_mul_lo_u32', 'v_accvgpr_read_b32', 'v_accvgpr_write_b32')

def MF(d, A, B, C): return 'v_mfma_f32_32x32x16_bf16 %s, %s, %s, %s' % (d, A, B, C)

def cost(o):
    if isinstance(o, tuple): return o[1]
    op = o.split()[0]
    if op in TRANS: return 8.4
    if op in V3 or op.startswith('v_pk'): return 5.3
    if op.startswith('v_'): return 4.2 if '0x' not in o else 5.3
    if op.startswith('ds_'): return 5.3
    if op.startswith('buffer_'): return 16
    return 3.0

class Side:
    def __init__(self, a): self.a = a; self.q = []; self.credit = 0.0
    def add(self, ops): self.q += list(ops)
    def _one(self):
        o = self.q.pop(0)
        if isinstance(o, tuple): o[0]()
        else: self.a.I(o)
    def emit(self, budget):
        self.credit = min(self.credit + budget, budget + 8)
        while self.q and cost(self.q[0]) <= self.credit + 2:
            self.credit -= cost(self.q[0]); self._one()
    def drain(self):
        while self.q: self._one()
        self.credit = 0.0

def poll(g, lbl, addr_v, lanes_mask, target, srdreg, early=None):
    a = g.a; I = a.I
    saved = list(a.vm)
    I('s_mov_b32 s%d, 0' % g.sSPIN)
    if early:
        a.wait(vm=early)
        a.branch('s_branch %s_chk' % lbl)
    a.label(lbl)
    I('buffer_load_dword v%d, v%d, s[%d:%d], 0 offen sc1' % (g.vPoll, addr_v, srdreg, srdreg + 3), counted=False)
    I('s_add_u32 s%d, s%d, 1' % (g.sSPIN, g.sSPIN))
    I('s_waitcnt vmcnt(0)')
    a.label(lbl + '_chk')
    I('v_cmp_le_u32 vcc, %s, v%d' % (target, g.vPoll))
    I('s_cmp_ge_u32 s%d, %d' % (g.sSPIN, SPIN_MAX))
    a.branch('s_cbranch_scc1 %s_ok' % lbl)
    I('s_and_b32 s%d, vcc_lo, %d' % (g.sT[7], lanes_mask))
    I('s_cmp_eq_u32 s%d, %d' % (g.sT[7], lanes_mask))
    a.branch('s_cbranch_scc1 %s_ok' % lbl)
    I('s_sleep %d' % g.cfg.get('sleep', 1))
    a.branch('s_branch %s' % lbl)
    a.label(lbl + '_ok')
    a.vm = saved

def sig_add(g, off_s):
    I = g.a.I
    I('v_mov_b32 v2, 1'); I('v_mov_b32 v3, 0')
    I('s_mov_b64 exec, 1')
    I('buffer_atomic_add v2, v3, s[%d:%d], s%d offen sc1' % (g.sKZ, g.sKZ + 3, off_s), tag='sig')
    I('s_mov_b64 exec, -1')

def signal(g, kind, idx_s, wait_tag):
    a = g.a; I = a.I
    I('s_lshl_b32 s%d, s%d, 8' % (g.sT[6], idx_s)); I('s_add_u32 s%d, s%d, %d' % (g.sT[6], g.sT[6], CNT + 4096 * kind))
    a.wait(vm=wait_tag)
    I('s_barrier')
    sig_add(g, g.sT[6])

def trfrag(a, dst, addr, off, tag, f='v', d2=256):
    a.I('ds_read_b64_tr_b16 %s, v%d offset:%d' % (vr(dst, 2, f), addr, off), tag=tag)
    a.I('ds_read_b64_tr_b16 %s, v%d offset:%d' % (vr(dst + 2, 2, f), addr, off + d2), tag=tag)

def setup(a, cfg):
    g = NS(a=a, cfg=cfg); I = a.I
    g.pf = Prof(a, 0, vreg=255, s=100)
    (g.sX, g.sWq, g.sP0, g.sP1, g.sPO, g.sD, g.sOUT, g.sDBG, g.sWS, g.sKZ, g.sDZ) = 24, 28, 32, 36, 40, 44, 48, 52, 56, 60, 64
    (g.sW, g.sRBA, g.sH, g.sRHO, g.sRB64, g.sCS, g.sRB128, g.sFS, g.sR4) = 68, 69, 70, 71, 72, 73, 74, 75, 76
    g.sT = [77, 78, 79, 80, 81, 82, 83, 84]
    g.sONE, g.sEPS, g.sL2E = 85, 86, 87
    g.sMV28, g.sHI = 88, 90
    g.sPA, g.sPC = 92, 93
    g.sSPIN = 94; g.sPT = 95
    g.sQ = [96, 97, 98, 99]
    g.S4 = list(range(4, 24))
    g.WQL, g.WKL, g.WVL = 0, 51200, 79872
    g.STATL, g.CSL, g.CSQ2L = 28672, 29696, 31232
    g.XRL, g.KVRL, g.REDL, g.HL, g.STL = 108544, 32768, 0, 0, 114688
    V = Alloc(232, 255)
    g.vHK = V.get(8, 4); g.vL16 = V.get()
    g.vLo = [g.vL16, V.get(), V.get(), V.get()]
    g.vRW = [V.get() for _ in range(3)]; g.vRR = V.get()
    g.vPoll, g.vPA, g.vPT = V.get(), V.get(), V.get()
    g.vXo = V.get(); g.vCSg = V.get(2, 2)
    sT = g.sT
    I('s_cmp_ge_u32 s2, 256'); a.branch('s_cbranch_scc1 kf_end')
    g.pf.stamp('start')
    load_args(a)
    I('s_getpc_b64 s[%d:%d]' % (g.sMV28, g.sMV28 + 1))
    I('v_lshrrev_b32 v2, 6, v0'); I('v_and_b32 v1, 63, v0')
    I('s_lshr_b32 s%d, s2, 3' % sT[1]); I('s_mul_i32 s%d, s%d, 12' % (sT[2], sT[1]))
    I('v_mul_u32_u24 v3, 3, v2'); I('v_add3_u32 v3, v3, v1, s%d' % sT[2]); I('v_lshlrev_b32 v3, 7, v3')
    I('s_mov_b64 exec, 7')
    I('global_load_dword v%d, v3, s[%d:%d]' % (g.vPoll, g.sMV28, g.sMV28 + 1), tag='code')
    I('s_mov_b64 exec, -1')
    I('v_readfirstlane_b32 s%d, v2' % g.sW)
    I('s_and_b32 s%d, s2, 7' % sT[0])
    I('s_lshr_b32 s%d, s%d, 1' % (sT[2], sT[0])); I('s_lshl_b32 s%d, s%d, 2' % (sT[2], sT[2]))
    I('s_and_b32 s%d, s%d, 3' % (sT[3], sT[1])); I('s_add_u32 s%d, s%d, s%d' % (g.sRBA, sT[2], sT[3]))
    I('s_and_b32 s%d, s%d, 1' % (sT[4], sT[0])); I('s_lshr_b32 s%d, s%d, 2' % (sT[5], sT[1]))
    I('s_lshl_b32 s%d, s%d, 3' % (g.sH, sT[4])); I('s_add_u32 s%d, s%d, s%d' % (g.sH, g.sH, sT[5]))
    I('s_lshl_b32 s%d, s%d, 1' % (g.sRHO, sT[3])); I('s_add_u32 s%d, s%d, s%d' % (g.sRHO, g.sRHO, sT[5]))
    I('s_sub_u32 s%d, s%d, 7' % (sT[6], g.sRHO)); I('s_cmp_ge_u32 s%d, 7' % g.sRHO); I('s_cselect_b32 s%d, s%d, s%d' % (g.sRHO, sT[6], g.sRHO))
    I('s_and_b32 s%d, s%d, 3' % (sT[2], sT[0])); I('s_lshr_b32 s%d, s%d, 2' % (sT[3], sT[0]))
    I('s_lshr_b32 s%d, s%d, 2' % (sT[4], sT[1])); I('s_and_b32 s%d, s%d, 3' % (sT[5], sT[1]))
    I('s_mul_i32 s%d, s%d, 86' % (sT[6], sT[1])); I('s_lshr_b32 s%d, s%d, 8' % (sT[6], sT[6]))
    I('s_mul_i32 s%d, s%d, 3' % (sT[7], sT[6])); I('s_sub_u32 s%d, s%d, s%d' % (sT[7], sT[1], sT[7]))
    I('s_lshl_b32 s%d, s%d, 2' % (g.sFS, sT[2])); I('s_mul_i32 s%d, s%d, 3' % (g.sCS, sT[2])); I('s_add_u32 s%d, s%d, 2' % (g.sCS, g.sCS))
    I('s_lshl_b32 s%d, s%d, 5' % (g.sRB64, sT[2])); I('s_mul_i32 s%d, s%d, 24' % (g.sR4, sT[2])); I('s_add_u32 s%d, s%d, 16' % (g.sR4, g.sR4))
    I('s_cmp_lt_u32 s%d, 2' % sT[2])
    I('s_cselect_b32 s%d, s%d, s%d' % (sT[4], sT[4], sT[6])); I('s_cselect_b32 s%d, s%d, s%d' % (sT[5], sT[5], sT[7]))
    I('s_cselect_b32 s%d, s%d, s%d' % (g.sFS, g.sFS, g.sCS)); I('s_cselect_b32 s%d, s%d, s%d' % (sT[6], g.sRB64, g.sR4))
    I('s_cselect_b32 s%d, 32, 24' % sT[7])
    I('s_add_u32 s%d, s%d, s%d' % (g.sFS, g.sFS, sT[5]))
    I('s_and_b32 s%d, s%d, 7' % (sT[4], sT[4])); I('s_and_b32 s%d, s%d, 3' % (g.sR4, sT[4]))
    I('s_lshl_b32 s%d, s%d, 3' % (g.sRB128, sT[3])); I('s_add_u32 s%d, s%d, s%d' % (g.sRB128, g.sRB128, sT[4]))
    I('s_cmp_ge_u32 s%d, s%d' % (sT[1], sT[7])); I('s_cselect_b32 s%d, 0, s%d' % (sT[5], sT[1]))
    I('s_mul_i32 s%d, s%d, 112' % (sT[4], sT[3])); I('s_add_u32 s%d, s%d, s%d' % (sT[4], sT[4], sT[6])); I('s_add_u32 s%d, s%d, s%d' % (sT[4], sT[4], sT[5]))
    I('s_mul_i32 s%d, s%d, 9363' % (g.sRB64, sT[4])); I('s_lshr_b32 s%d, s%d, 16' % (g.sRB64, g.sRB64))
    I('s_mul_i32 s%d, s%d, 7' % (sT[5], g.sRB64)); I('s_sub_u32 s%d, s%d, s%d' % (g.sCS, sT[4], sT[5]))
    I('s_mul_i32 s%d, s2, 9363' % g.sPA); I('s_lshr_b32 s%d, s%d, 16' % (g.sPA, g.sPA))
    I('s_mul_i32 s%d, s%d, 7' % (g.sPC, g.sPA)); I('s_sub_u32 s%d, s2, s%d' % (g.sPC, g.sPC))
    return g

def gu_load(g, j, c):
    r = j % 7
    g.a.I('buffer_load_dwordx4 %s, v%d, s[%d:%d], s%d offen offset:%d sc1' % (ar(112 * c + 4 * j, 4), g.vLo[2 * c + (r >= 4)], g.sWS, g.sWS + 3, g.sQ[j // 7], 1024 * (r % 4)), tag='gu')
def wd_load(g, j, c):
    r = j % 7; f, reg = g.wd_regs[j][c]
    g.a.I('buffer_load_dwordx4 %s, v%d, s[%d:%d], s%d offen offset:%d sc1' % (vr(reg, 4, f), g.vLd[2 * c + (r >= 4)], g.sWS, g.sWS + 3, g.sQD[j // 7], 1024 * (r % 4)), tag='wd')

def phase_A(g):
    a = g.a; I = a.I; sT = g.sT; pf = g.pf; cfg = g.cfg
    sW, sH, sRBA = g.sW, g.sH, g.sRBA
    XF, ACCK, ACCV, ACCQ, WB = 8, 120, 136, 152, 168
    VA = Alloc(200, 232)
    vONE = VA.get(4, 4)
    vX = [VA.get() for _ in range(4)]; vW = VA.get()
    vXR = [VA.get() for _ in range(4)]
    vT, vTc, vTo = VA.get(), VA.get(), VA.get()
    vS1a, vS1b, vS2a, vS2b = [VA.get() for _ in range(4)]
    vRN = VA.get(2, 2); vCS = VA.get(2, 2)
    vN4, vCA, vSA = VA.get(), VA.get(), VA.get()
    vXS = [VA.get() for _ in range(4)]
    vRed = vX[0:2]; vKW = vX[2]
    vPT = [g.vHK, g.vHK + 1, g.vHK + 2, g.vHK + 3]; vPD = g.vHK + 4
    aPK = 0
    LAH = cfg.get('lah', 2)
    xslot = {j: j % 3 for j in range(7)}
    assert LAH == 2
    aC0, aC1 = 224, 240
    vL16 = g.vL16
    I('v_lshrrev_b32 v2, 3, v1'); I('v_lshrrev_b32 v3, 4, v1'); I('v_and_b32 v4, 7, v1')
    I('v_xor_b32 v5, v4, v3'); I('v_lshlrev_b32 v5, 4, v5')
    I('v_mul_u32_u24 v6, 896, v2'); I('v_add_u32 v%d, v6, v5' % vX[0])
    I('v_xor_b32 v%d, 64, v%d' % (vX[1], vX[0])); I('v_add_u32 v%d, 7168, v%d' % (vX[1], vX[1]))
    I('v_add_u32 v%d, 14336, v%d' % (vX[2], vX[0])); I('v_add_u32 v%d, 14336, v%d' % (vX[3], vX[1]))
    I('v_lshrrev_b32 v5, 2, v1'); I('v_and_b32 v6, 3, v1')
    I('v_mul_u32_u24 v7, 2688, v5'); I('v_lshl_add_u32 v%d, v6, 4, v7' % vW)
    I('v_lshlrev_b32 v%d, 4, v1' % vL16)
    I('v_and_b32 v5, 15, v1'); I('v_lshlrev_b32 v5, 4, v5'); I('v_lshl_add_u32 v5, v3, 14, v5')
    for i in range(4): I('v_mov_b32 v%d, 0' % (vONE + i))
    sXB, sWB, sXRB, sCL, sCC, sW10, sW12 = g.sQ[0], g.sQ[1], g.sQ[2], g.sQ[3], 3, g.sSPIN, g.sPT
    I('s_lshl_b32 s%d, s%d, 10' % (sW10, sW)); I('s_lshl_b32 s%d, s%d, 12' % (sW12, sW))
    I('s_lshl_b32 s%d, s%d, 2' % (sT[0], sRBA)); I('s_add_u32 s%d, s%d, s%d' % (sT[0], sT[0], sW))
    I('s_mul_i32 s%d, s%d, %d' % (sXB, sT[0], 32 * 896))
    I('s_mul_i32 s%d, s%d, 56' % (sWB, sH)); I('s_mul_i32 s%d, s%d, %d' % (sT[1], sW, 16 * 2688)); I('s_add_u32 s%d, s%d, s%d' % (sWB, sWB, sT[1]))
    I('s_mul_i32 s%d, s%d, 12288' % (sXRB, sW)); I('s_add_u32 s%d, s%d, %d' % (sXRB, sXRB, g.XRL))
    I('s_mov_b32 s%d, s%d' % (sCL, g.sRHO)); I('s_mov_b32 s%d, s%d' % (sCC, g.sRHO))
    I('s_waitcnt lgkmcnt(0)')
    pf.stamp('args')
    srd(a, g.sX, 4, 2048 * 896); srd(a, g.sWq, 6, 448 * 2688)
    def adv_ops(s): return ['s_add_u32 s%d, s%d, 1' % (s, s), 's_cmp_eq_u32 s%d, 7' % s, 's_cselect_b32 s%d, 0, s%d' % (s, s)]
    def adv(s):
        for o in adv_ops(s): I(o)
    def grp(ops):
        def f():
            for o in ops:
                if callable(o): o()
                else: I(o)
        return f
    def a_groups(j):
        G = []
        pre = ['s_mul_i32 s%d, s%d, %d' % (sT[1], sCL, 64 * 2688), 's_lshl_b32 s%d, s%d, 12' % (sT[2], sCL), 's_add_u32 s%d, s%d, s%d' % (sT[2], sT[2], sW10),
               's_add_u32 m0, s%d, %d' % (sT[2], g.WKL - 896), 's_add_u32 s%d, s%d, s%d' % (sT[1], sT[1], sWB)]
        G.append(grp(pre + [lambda: I('buffer_load_dwordx4 v%d, s[%d:%d], s%d offen offset:896 lds' % (vW, g.sWq, g.sWq + 3, sT[1]), tag='c%d' % j)]))
        G.append(grp(['s_add_u32 m0, s%d, %d' % (sT[2], g.WVL - 1792), 's_lshl_b32 s%d, s%d, 7' % (sT[0], sCL),
                      lambda: I('buffer_load_dwordx4 v%d, s[%d:%d], s%d offen offset:1792 lds' % (vW, g.sWq, g.sWq + 3, sT[1]), tag='c%d' % j)]))
        for q in range(4):
            m = 's_add_u32 m0, s%d, %d' % (sXRB, xslot[j] * 4096 + q * 1024)
            mid = ['s_add_u32 s%d, s%d, s%d' % (sT[0], sT[0], sXB)] if q == 0 else (adv_ops(sCL) if q == 1 else [])
            G.append(grp([m] + mid + [lambda q=q: I('buffer_load_dwordx4 v%d, s[%d:%d], s%d offen lds' % (vX[q], g.sX, g.sX + 3, sT[0]), tag='c%d' % j)]))
        if j >= cfg.get('wq0', 7):
            G.append(grp(['s_add_u32 m0, s%d, %d' % (sT[2], g.WQL), 's_nop 0',
                          lambda: I('buffer_load_dwordx4 v%d, s[%d:%d], s%d offen lds' % (vW, g.sWq, g.sWq + 3, sT[1]), tag='wq')]))
        return G
    def a_loads(j):
        for f in a_groups(j): f()
    def q_groups(n):
        return [grp(['s_mul_i32 s%d, s%d, %d' % (sT[1], sCL, 64 * 2688), 's_lshl_b32 s%d, s%d, 12' % (sT[2], sCL), 's_add_u32 s%d, s%d, s%d' % (sT[2], sT[2], sW10),
                     's_add_u32 m0, s%d, %d' % (sT[2], g.WQL), 's_add_u32 s%d, s%d, s%d' % (sT[1], sT[1], sWB),
                     lambda: I('buffer_load_dwordx4 v%d, s[%d:%d], s%d offen lds' % (vW, g.sWq, g.sWq + 3, sT[1]), tag='wq')] + adv_ops(sCL)) for _ in range(n)]
    a_loads(0)
    srd(a, g.sWS, 22, WS_BYTES); srd(a, g.sKZ, 22, WS_BYTES)
    srd(a, g.sDZ, 20, 256)
    I('s_cmp_eq_u32 s%d, 0' % sRBA); I('s_cselect_b32 s%d, %s, 0' % (g.sKZ + 2, hex(WS_BYTES))); I('s_cselect_b32 s%d, 256, 0' % (g.sDZ + 2))
    srd(a, g.sD, 16, 1792 * 896); srd(a, g.sOUT, 18, 2048 * 896); srd(a, g.sDBG, 20, 256); srd(a, g.sPO, 22, WS_BYTES)
    I('s_cmp_lt_u32 s%d, 28' % g.sPA)
    for k in range(2):
        I('s_cselect_b32 s%d, s%d, s%d' % (g.sP0 + k, 12 + k, 8 + k)); I('s_cselect_b32 s%d, s%d, s%d' % (g.sP1 + k, 14 + k, 8 + k))
    sel(a, g.sP0 + 2, 448 * 3584, 448 * 896)
    I('s_mov_b32 s%d, 0x20000' % (g.sP0 + 3)); I('s_mov_b32 s%d, 0x20000' % (g.sP1 + 3))
    I('s_cmp_lt_u32 s%d, 32' % g.sPA)
    I('s_cselect_b32 s%d, s%d, 0' % (g.sP0 + 2, g.sP0 + 2)); I('s_mov_b32 s%d, s%d' % (g.sP1 + 2, g.sP0 + 2)); I('s_cselect_b32 s%d, %s, 0' % (g.sPO + 2, hex(WS_BYTES)))
    I('s_lshl_b32 s%d, s%d, 12' % (sT[3], sH)); I('s_add_u32 s%d, s%d, s%d' % (sT[3], sT[3], sW10)); I('s_add_u32 s%d, s%d, %d' % (sT[3], sT[3], KVACC))
    I('buffer_store_dwordx4 v[%d:%d], v%d, s[%d:%d], s%d offen sc0 sc1' % (vONE, vONE + 3, vL16, g.sKZ, g.sKZ + 3, sT[3]), tag='zero')
    I('s_lshl_b32 s%d, s%d, 8' % (sT[3], sH)); I('s_add_u32 s%d, s%d, s%d' % (sT[3], sT[3], sW12)); I('s_add_u32 s%d, s%d, %d' % (sT[3], sT[3], CNT))
    I('s_mov_b32 exec_hi, 0')
    I('buffer_store_dwordx4 v[%d:%d], v5, s[%d:%d], s%d offen sc0 sc1' % (vONE, vONE + 3, g.sKZ, g.sKZ + 3, sT[3]), tag='zero')
    I('s_lshl_b32 s%d, s%d, 10' % (sT[3], sH)); I('s_lshl_b32 s%d, s%d, 8' % (sT[4], sW)); I('s_add_u32 s%d, s%d, s%d' % (sT[3], sT[3], sT[4])); I('s_add_u32 s%d, s%d, %d' % (sT[3], sT[3], CSGU))
    I('s_mov_b32 exec_lo, 0xffff')
    I('buffer_store_dwordx4 v[%d:%d], v%d, s[%d:%d], s%d offen sc0 sc1' % (vONE, vONE + 3, vL16, g.sKZ, g.sKZ + 3, sT[3]), tag='zero')
    I('s_mov_b64 exec, -1')
    for d, sr_ in zip(g.S4[0:7], (sXB, sWB, sXRB, sCL, sCC, sW10, sW12)): I('s_mov_b32 s%d, s%d' % (d, sr_))
    sXB, sWB, sXRB, sCL, sCC, sW10, sW12 = g.S4[0:7]
    sPS = g.S4[7:11]; sPOs = g.S4[11:15]; sPSG = g.S4[15]; sPCS = g.S4[16]
    if cfg.get('c1early'): a_loads(1)
    A_, C_ = g.sPA, g.sPC
    I('s_lshl_b32 s%d, s%d, 2' % (sT[4], C_)); I('s_add_u32 s%d, s%d, s%d' % (sT[4], sT[4], sW))
    I('s_mul_i32 s%d, s%d, %d' % (sT[5], sT[4], 16 * 3584)); I('s_lshl_b32 s%d, s%d, 7' % (sT[6], A_)); I('s_add_u32 s%d, s%d, s%d' % (sPS[0], sT[5], sT[6]))
    I('s_mul_i32 s%d, s%d, 112' % (sT[5], A_)); I('s_add_u32 s%d, s%d, s%d' % (sT[5], sT[5], sT[4]))
    I('s_lshl_b32 s%d, s%d, 10' % (sT[5], sT[5])); I('s_add_u32 s%d, s%d, %d' % (sPOs[0], sT[5], GUP))
    I('s_lshr_b32 s%d, s%d, 1' % (sPSG, A_)); I('s_lshl_b32 s%d, s%d, 8' % (sPSG, sPSG)); I('s_add_u32 s%d, s%d, %d' % (sPSG, sPSG, CNT + 3 * 4096))
    I('s_sub_u32 s%d, s%d, 28' % (sT[4], A_)); I('s_lshl_b32 s%d, s%d, 2' % (sT[4], sT[4])); I('s_add_u32 s%d, s%d, s%d' % (sT[4], sT[4], sW))
    I('s_mul_i32 s%d, s%d, %d' % (sT[5], sT[4], 28 * 896)); I('s_lshl_b32 s%d, s%d, 7' % (sT[6], C_)); I('s_add_u32 s%d, s%d, s%d' % (sPS[1], sT[5], sT[6]))
    I('s_lshl_b32 s%d, s%d, 16' % (sT[5], C_)); I('s_lshl_b32 s%d, s%d, 11' % (sT[6], sT[4]))
    I('s_add_u32 s%d, s%d, s%d' % (sT[5], sT[5], sT[6])); I('s_add_u32 s%d, s%d, %d' % (sPOs[1], sT[5], WOP))
    I('s_lshl_b32 s%d, s%d, 8' % (sT[5], C_)); I('s_add_u32 s%d, s%d, %d' % (sT[5], sT[5], CNT + 4 * 4096))
    I('s_cmp_lt_u32 s%d, 32' % A_); I('s_cselect_b32 s%d, s%d, 0x20000000' % (sT[5], sT[5]))
    I('s_cmp_lt_u32 s%d, 28' % A_)
    I('s_cselect_b32 s%d, s%d, s%d' % (sPS[0], sPS[0], sPS[1])); I('s_cselect_b32 s%d, s%d, s%d' % (sPOs[0], sPOs[0], sPOs[1]))
    I('s_cselect_b32 s%d, s%d, s%d' % (sPSG, sPSG, sT[5]))
    I('s_mul_i32 s%d, s%d, 512' % (sPCS, A_)); I('s_cselect_b32 s%d, s%d, 0x20000000' % (sPCS, sPCS))
    sel(a, sT[3], 3584, 896); sel(a, sT[4], 8 * 3584, 8 * 896); I('s_cselect_b32 s%d, 0, %d' % (sT[5], 16 * 896))
    sel(a, sT[6], 28672, 1024); sel(a, sT[7], 57344, 32768)
    sel(a, g.sONE, 16 * 128, 32); sel(a, g.sEPS, 8 * 128, 14 * 128); I('s_cselect_b32 s%d, 32, %d' % (g.sL2E, 8 * 128))
    I('s_add_u32 s%d, s%d, s%d' % (sPS[1], sPS[0], sT[4])); I('s_add_u32 s%d, s%d, s%d' % (sPS[2], sPS[0], sT[5])); I('s_add_u32 s%d, s%d, s%d' % (sPS[3], sPS[2], sT[4]))
    I('s_add_u32 s%d, s%d, s%d' % (sPOs[1], sPOs[0], sT[6])); I('s_add_u32 s%d, s%d, s%d' % (sPOs[2], sPOs[0], sT[7])); I('s_add_u32 s%d, s%d, s%d' % (sPOs[3], sPOs[2], sT[6]))
    I('v_mul_lo_u32 v5, v2, s%d' % sT[3]); I('v_lshl_add_u32 v%d, v4, 4, v5' % vPD)
    def flag_set():
        I('v_mov_b32 v5, 1'); I('s_lshl_b32 s%d, s%d, 2' % (sT[4], sH)); I('v_mov_b32 v6, s%d' % sT[4])
        I('s_mov_b64 exec, 1')
        I('buffer_atomic_add v5, v6, s[%d:%d], 0 offen sc1' % (g.sDZ, g.sDZ + 3), tag='flag')
        I('s_mov_b64 exec, -1')
        I('s_cmp_eq_u32 s%d, 0' % sW); I('s_cselect_b32 s%d, %s, 0' % (g.sKZ + 2, hex(WS_BYTES)))
    I('v_lshrrev_b32 v2, 5, v1'); I('v_bfe_u32 v3, v1, 4, 1'); I('v_bfe_u32 v4, v1, 2, 2'); I('v_and_b32 v5, 3, v1')
    I('s_mul_i32 s%d, s%d, 4608' % (g.sPT, sW)); I('s_add_u32 s%d, s%d, %d' % (g.sPT, g.sPT, g.KVRL))
    I('v_mul_lo_u32 v6, v3, s%d' % g.sONE); I('v_mul_lo_u32 v7, v2, s%d' % g.sEPS); I('v_add3_u32 v6, v6, v7, s%d' % g.sPT)
    I('v_lshl_add_u32 v6, v4, 7, v6'); I('v_lshl_add_u32 v%d, v5, 3, v6' % vPT[0])
    I('v_add_u32 v%d, s%d, v%d' % (vPT[1], g.sL2E, vPT[0])); I('v_add_u32 v%d, 64, v%d' % (vPT[2], vPT[0])); I('v_add_u32 v%d, 64, v%d' % (vPT[3], vPT[1]))
    I('v_lshlrev_b32 v6, 9, v2'); I('v_lshl_add_u32 v6, v4, 6, v6'); I('v_lshl_add_u32 v6, v5, 3, v6')
    I('v_lshl_add_u32 v%d, v3, 5, v6' % vT); I('v_add_u32 v%d, %d, v%d' % (vT, g.WKL, vT))
    I('v_and_b32 v6, 31, v1'); I('v_lshlrev_b32 v%d, 2, v6' % vN4)
    I('v_lshrrev_b32 v7, 3, v6'); I('v_lshlrev_b32 v7, 10, v7')
    I('v_and_b32 v3, 7, v6'); I('v_lshl_add_u32 v7, v3, 7, v7')
    I('v_bfe_u32 v3, v6, 1, 3'); I('v_xor_b32 v3, v3, v2'); I('v_lshl_add_u32 v7, v3, 4, v7')
    I('v_add_u32 v%d, s%d, v7' % (vXR[0], sXRB))
    for t in range(1, 4): I('v_xor_b32 v%d, %d, v%d' % (vXR[t], 32 * t, vXR[0]))
    I('v_mul_u32_u24 v7, 896, v6'); I('v_lshl_add_u32 v%d, v2, 4, v7' % g.vXo)
    I('v_cmp_eq_u32 s[%d:%d], 28, v6' % (g.sMV28, g.sMV28 + 1)); I('v_cmp_eq_u32 s[%d:%d], 0, v2' % (g.sHI, g.sHI + 1))
    I('s_mov_b32 s%d, 0x3f803f80' % g.sONE); I('s_mov_b32 s%d, %s' % (g.sEPS, f32(1e-6))); I('s_mov_b32 s%d, %s' % (g.sL2E, f32(LOG2E)))
    for i in range(4): I('v_mov_b32 v%d, s%d' % (vONE + i, g.sONE))
    for r in (vS1a, vS1b, vS2a, vS2b): I('v_mov_b32 v%d, 0' % r)
    I('s_lshl_b32 s%d, s%d, 7' % (sT[3], sW)); I('s_add_u32 s%d, s%d, %d' % (sT[3], sT[3], g.CSL)); I('v_add_u32 v%d, s%d, v%d' % (vCA, sT[3], vN4))
    I('s_lshl_b32 s%d, s%d, 8' % (sT[3], sW)); I('s_add_u32 s%d, s%d, %d' % (sT[3], sT[3], g.STATL))
    I('v_lshlrev_b32 v3, 4, v2'); I('v_add_u32 v%d, s%d, v3' % (vSA, sT[3]))
    for t in range(1, 4):
        I('s_xor_b32 s%d, s%d, %d' % (sT[3], sW, t)); I('s_mul_i32 s%d, s%d, 12288' % (sT[3], sT[3])); I('s_add_u32 s%d, s%d, %d' % (sT[3], sT[3], g.REDL + (t - 1) * 4096))
        I('v_add_u32 v%d, s%d, v%d' % (g.vRW[t - 1], sT[3], vL16))
    I('s_mul_i32 s%d, s%d, 12288' % (sT[3], sW)); I('s_add_u32 s%d, s%d, %d' % (sT[3], sT[3], g.REDL)); I('v_add_u32 v%d, s%d, v%d' % (g.vRR, sT[3], vL16))
    I('v_add_u32 v%d, 4096, v%d' % (g.vLo[1], vL16)); I('v_add_u32 v%d, 28672, v%d' % (g.vLo[2], vL16)); I('v_add_u32 v%d, 32768, v%d' % (g.vLo[3], vL16))
    I('s_lshl_b32 s%d, s%d, 2' % (sT[3], g.sFS)); I('s_add_u32 s%d, s%d, s%d' % (sT[3], sT[3], sW)); I('s_mul_i32 s%d, s%d, 57344' % (sT[3], sT[3])); I('s_add_u32 s%d, s%d, %d' % (sT[3], sT[3], GUP))
    for q in range(4):
        I('s_add_u32 s%d, s%d, %d' % (sT[4], g.sR4, q)); I('s_and_b32 s%d, s%d, 3' % (sT[4], sT[4]))
        I('s_mul_i32 s%d, s%d, 7168' % (sT[4], sT[4])); I('s_add_u32 s%d, s%d, s%d' % (g.sQ[q], sT[4], sT[3]))
    if not cfg.get('c1early'): a_loads(1)
    if LAH > 2: a_loads(2)
    def pk_group(j):
        s = g.sP0 if j < 2 else g.sP1
        return grp(['s_add_u32 m0, s%d, %d' % (g.sPT, 1024 * j), lambda: I('buffer_load_dwordx4 v%d, s[%d:%d], s%d offen lds' % (vPD, s, s + 3, sPS[j]), tag='pk')])
    pf.stamp('issued')
    def w_addr():
        I('s_lshl_b32 s%d, s%d, 12' % (sT[3], sCC)); I('v_add_u32 v%d, s%d, v%d' % (vTc, sT[3], vT)); I('v_add_u32 v%d, s%d, v%d' % (vTo, sW10, vTc))
        adv(sCC)
    def flag_poll():
        I('v_lshlrev_b32 v%d, 2, v1' % g.vPA)
        I('buffer_load_dword v%d, v%d, s[%d:%d], 0 offen sc1' % (g.vPoll, g.vPA, g.sDBG, g.sDBG + 3), tag='poll')
    def pack_rd():
        a.wait(vm='pk')
        for f in range(4): trfrag(a, aPK + 4 * f, vPT[f], 0, 'pkr', f='a', d2=512)
    def pack_st():
        a.wait(lg='pkr')
        for f in range(4): I('buffer_store_dwordx4 %s, v%d, s[%d:%d], s%d offen sc1' % (ar(aPK + 4 * f, 4), vL16, g.sPO, g.sPO + 3, sPOs[f]), tag='pks')
    def go_poll():
        I('s_lshl_b32 s%d, s%d, 8' % (sT[4], g.sFS)); I('s_add_u32 s%d, s%d, %d' % (sT[4], sT[4], CNT + 3 * 4096))
        I('s_lshl_b32 s%d, s%d, 8' % (sT[5], g.sCS)); I('s_add_u32 s%d, s%d, %d' % (sT[5], sT[5], CNT + 4 * 4096))
        I('v_mov_b32 v%d, s%d' % (vXS[0], sT[5])); I('v_writelane_b32 v%d, s%d, 0' % (vXS[0], sT[4]))
        I('v_mov_b32 v%d, 4' % g.vPT); I('v_writelane_b32 v%d, 14, 0' % g.vPT)
        I('buffer_load_dword v%d, v%d, s[%d:%d], 0 offen sc1' % (g.vPoll, vXS[0], g.sWS, g.sWS + 3), tag='gop')
    def tlb_touch():
        sh = cfg.get('tlbsh', 19)
        I('v_lshlrev_b32 v5, %d, v1' % sh); I('s_lshl_b32 s%d, s%d, %d' % (sT[4], sW, sh - 2))
        I('s_mov_b32 exec_hi, 0xff')
        I('buffer_load_dword v%d, v5, s[%d:%d], s%d offen sc1' % (g.vCSg, g.sWS, g.sWS + 3, sT[4]), tag='tlb')
        I('s_mov_b32 exec_hi, 0'); I('s_mov_b32 exec_lo, 0xf')
        I('buffer_load_dword v%d, v5, s[%d:%d], s%d offen sc1' % (g.vCSg, g.sOUT, g.sOUT + 3, sT[4]), tag='tlb')
        I('s_mov_b64 exec, -1')
    def fin_groups():
        ops = ['v_add_f32 v%d, v%d, v%d' % (vS1a, vS1a, vS1b), 'v_add_f32 v%d, v%d, v%d' % (vS2a, vS2a, vS2b),
               'v_mov_b32 v%d, v%d' % (vS1b, vS1a), 'v_mov_b32 v%d, v%d' % (vS2b, vS2a),
               's_lshl_b32 s%d, s%d, 8' % (sT[3], sW), 's_add_u32 s%d, s%d, %d' % (sT[3], sT[3], g.STATL),
               'v_permlane32_swap_b32 v%d, v%d' % (vS1a, vS1b), 'v_permlane32_swap_b32 v%d, v%d' % (vS2a, vS2b),
               'v_add_f32 v%d, v%d, v%d' % (vS1a, vS1a, vS1b), 'v_add_f32 v%d, v%d, v%d' % (vS2a, vS2a, vS2b)]
        b = Asm(); ln_finish(b, 'v%d' % vS1a, 'v%d' % vS2a, 'v2', 'v3', 'v%d' % vRN, 'v4')
        ops += [l.strip() for l in b.out if not l.strip().startswith('s_nop')]
        ops += ['v_sub_f32 v%d, 0, v4' % (vRN + 1), 'v_add_u32 v2, s%d, v%d' % (sT[3], vN4), 'ds_write_b32 v2, v%d' % vRN, 'ds_write_b32 v2, v%d offset:128' % (vRN + 1),
                'ds_write_b32 v%d, a%d' % (vCA, aC0), 'ds_write_b32 v%d, a%d offset:512' % (vCA, aC1), 'v_add_u32 v5, %d, v%d' % (g.CSL, vN4)]
        n = (len(ops) + 7) // 8
        return [grp(ops[k:k + n]) for k in range(0, len(ops), n)]
    w_addr()
    PKI = cfg.get('pki', 4)
    for j in range(7):
        a.wait(vm='c%d' % j)
        if True:
            for t in range(4): I('ds_read_b128 %s, v%d offset:%d' % (vr(XF + 16 * j + 4 * t, 4), vXR[t], 4096 * xslot[j]), tag='xf%d' % j)
        trfrag(a, WB + 24, vTo, 0, 'o%d' % j); trfrag(a, WB + 28, vTo, 28672, 'o%d' % j)
        I('s_barrier')
        pf.stamp('c%d' % j)
        def rd(t):
            st = t % 3
            trfrag(a, WB + 8 * st, vTc, 1024 * t, 'w%d_%d' % (j, t)); trfrag(a, WB + 8 * st + 4, vTc, 28672 + 1024 * t, 'w%d_%d' % (j, t))
        def dots(jj):
            for r in range(16):
                x = XF + 16 * jj + r
                I('v_dot2c_f32_bf16 v%d, s%d, v%d' % (vS1b if r & 1 else vS1a, g.sONE, x)); I('v_dot2c_f32_bf16 v%d, v%d, v%d' % (vS2b if r & 1 else vS2a, x, x))
        rd(0); rd(1); rd(2)
        if j == 1: flag_set()
        if j > 0: dots(j - 1)
        if j == 6:
            a.wait(lg='xf6'); dots(6)
        G = []
        if j + LAH < 7: G = a_groups(j + LAH)
        elif j + LAH == 7: G = q_groups(cfg.get('wq0', 7))
        if j == PKI: G = G + [pk_group(k) for k in range(4)]
        if j == 3: G = G + [flag_poll]
        if j == 6: G = fin_groups()
        if j == cfg.get('tlb', -1): G = G + [tlb_touch]
        a.wait(lg='o%d' % j)
        I(MF(ar(aC0, 16), vr(vONE, 4), vr(WB + 24, 4), '0' if j == 0 else ar(aC0, 16)))
        if G: G.pop(0)()
        I(MF(ar(aC1, 16), vr(vONE, 4), vr(WB + 28, 4), '0' if j == 0 else ar(aC1, 16)))
        if G: G.pop(0)()
        for t in range(4):
            x = XF + 16 * j + 4 * t; st = t % 3
            a.wait(lg='w%d_%d' % (j, t))
            first = (j == 0 and t == 0)
            I(MF(vr(ACCK, 16), vr(x, 4), vr(WB + 8 * st, 4), '0' if first else vr(ACCK, 16)))
            if G: G.pop(0)()
            I(MF(vr(ACCV, 16), vr(x, 4), vr(WB + 8 * st + 4, 4), '0' if first else vr(ACCV, 16)))
            if t == 0:
                rd(3)
                if j < 6: w_addr()
            elif G: G.pop(0)()
        while G: G.pop(0)()
    pf.stamp('loop')
    a.wait(lg=0); I('s_barrier')
    for i in range(8): I('ds_read_b32 v%d, v5 offset:%d' % (ACCQ + i, 128 * i), tag='cs')
    for qd in range(4):
        I('ds_read_b128 %s, v%d offset:%d' % (vr(WB + 16 + 4 * qd, 4), vSA, 128 + 32 * qd), tag='st')
    for qd in range(4):
        I('ds_read_b128 %s, v%d offset:%d' % (vr(WB + 4 * qd, 4), vSA, 32 * qd), tag='st2')
    pf.stamp('X1')
    poll(g, 'kf_pz', g.vPA, 0xffff, 4, g.sDBG, early='poll')
    pack_rd()
    for op in ['v_and_b32 v3, 31, v1', 'v_mul_u32_u24 v3, 144, v3', 'v_lshrrev_b32 v4, 5, v1', 'v_lshl_add_u32 v3, v4, 4, v3', 'v_add_u32 v%d, s%d, v3' % (vKW, g.sPT),
               'v_bfe_u32 v5, v1, 2, 2', 'v_lshl_add_u32 v4, v4, 2, v5',
               'v_bfe_u32 v5, v1, 4, 1', 'v_mul_u32_u24 v5, 14, v5', 'v_add_u32 v5, v5, v4',
               'v_and_b32 v6, 3, v1', 'v_lshlrev_b32 v6, 2, v6', 's_lshl_b32 s%d, s%d, 5' % (sT[4], sW), 's_add_u32 s%d, s%d, %d' % (sT[4], sT[4], g.KVRL),
               'v_add_u32 v6, s%d, v6' % sT[4], 'v_mul_u32_u24 v7, 144, v5', 'v_add_u32 v%d, v7, v6' % vRed[0],
               'v_add_u32 v%d, %d, v%d' % (vRed[1], 8 * 144, vRed[0]), 'v_mul_u32_u24 v7, 144, v4', 'v_add_u32 v7, v7, v6', 'v_add_u32 v7, %d, v7' % (22 * 144),
               'v_cmp_lt_u32 vcc, 5, v4', 'v_cndmask_b32 v%d, v%d, v7, vcc' % (vRed[1], vRed[1])]: I(op)
    Q = ACCQ
    pack_st()
    for f in range(4): I(MF(ar(32 + 16 * f, 16), vr(vONE, 4), ar(aPK + 4 * f, 4), '0'))
    a.wait(lg='cs')
    I('v_add_f32 v%d, v%d, v%d' % (Q, Q, Q + 1)); I('v_add_f32 v%d, v%d, v%d' % (Q + 2, Q + 2, Q + 3)); I('v_add_f32 v%d, v%d, v%d' % (vCS, Q, Q + 2))
    I('v_add_f32 v%d, v%d, v%d' % (Q + 4, Q + 4, Q + 5)); I('v_add_f32 v%d, v%d, v%d' % (Q + 6, Q + 6, Q + 7)); I('v_add_f32 v%d, v%d, v%d' % (vCS + 1, Q + 4, Q + 6))
    SE = 's[%d:%d]' % (g.sEPS, g.sEPS + 1)
    def phi(acc, tmp, n):
        for p in range(0, n, 2): I('v_pk_mul_f32 %s, %s, %s op_sel:[0,1] op_sel_hi:[1,1]' % (vr(tmp + p, 2), vr(acc + p, 2), SE))
        for v in range(n): I('v_min_f32 v%d, 0, v%d' % (tmp + v, tmp + v))
        for v in range(n): I('v_exp_f32 v%d, v%d' % (tmp + v, tmp + v)); I('v_max_f32 v%d, s%d, v%d' % (acc + v, g.sEPS, acc + v))
        for p in range(0, n, 2): I('v_pk_add_f32 %s, %s, %s' % (vr(acc + p, 2), vr(acc + p, 2), vr(tmp + p, 2)))
    CSP = vr(vCS, 2)
    a.wait(lg='st')
    for p in range(0, 16, 2):
        I('v_pk_fma_f32 %s, %s, %s, %s op_sel_hi:[1,0,1]' % (vr(ACCK + p, 2), vr(WB + 16 + p, 2), CSP, vr(ACCK + p, 2)))
        I('v_pk_fma_f32 %s, %s, %s, %s op_sel:[0,1,0] op_sel_hi:[1,1,1]' % (vr(ACCV + p, 2), vr(WB + 16 + p, 2), CSP, vr(ACCV + p, 2)))
    I('s_add_u32 s%d, s%d, %d' % (sPCS, sPCS, CSGU)); I('s_mov_b32 exec_hi, 0')
    for f in range(4): I('buffer_atomic_add_f32 a%d, v%d, s[%d:%d], s%d offen offset:%d' % (32 + 16 * f, g.vPA, g.sWS, g.sWS + 3, sPCS, 128 * f), tag='pks')
    I('s_mov_b64 exec, -1')
    a.wait(lg='st2')
    for p in range(0, 16, 2):
        I('v_pk_fma_f32 %s, %s, %s, %s op_sel_hi:[1,1,0]' % (vr(ACCK + p, 2), vr(ACCK + p, 2), vr(WB + p, 2), SE))
        I('v_pk_mul_f32 %s, %s, %s' % (vr(ACCV + p, 2), vr(ACCV + p, 2), vr(WB + p, 2)))
    a.wait(vm='wq')
    I('s_sub_u32 s%d, s%d, %d' % (sT[3], sW10, g.WKL - g.WQL)); I('v_add_u32 v%d, s%d, v%d' % (vTo, sT[3], vT))
    for c in range(7): trfrag(a, WB + 4 * c, vTo, 4096 * c, 'qo%d' % c)
    phi(ACCK, ACCQ, 16)
    for p in range(8):
        I('v_cvt_pk_bf16_f32 v%d, v%d, v%d' % (ACCK + p, ACCK + 2 * p, ACCK + 2 * p + 1)); I('v_cvt_pk_bf16_f32 v%d, v%d, v%d' % (ACCV + p, ACCV + 2 * p, ACCV + 2 * p + 1))
    I('s_mov_b64 exec, s[%d:%d]' % (g.sMV28, g.sMV28 + 1))
    for p in range(8): I('v_mov_b32 v%d, s%d' % (ACCV + p, g.sONE))
    I('s_mov_b64 exec, -1')
    pf.stamp('epikv')
    I(MF(ar(aC1, 16), vr(ACCK, 4), vr(ACCV, 4), '0')); I(MF(ar(aC1, 16), vr(ACCK + 4, 4), vr(ACCV + 4, 4), ar(aC1, 16)))
    a.wait(lg='qo6')
    for c in range(7):
        I(MF(ar(aC0, 16), vr(vONE, 4), vr(WB + 4 * c, 4), '0' if c == 0 else ar(aC0, 16)))
        if c == 1:
            for q in range(4): I('ds_write_b128 v%d, %s offset:%d' % (vKW, ar(aC1 + 4 * q, 4), 32 * q))
    I('s_mov_b32 s%d, s%d' % (sCC, g.sRHO))
    I('s_lshl_b32 s%d, s%d, 12' % (sT[5], sH)); I('s_add_u32 s%d, s%d, s%d' % (sT[5], sT[5], sW10)); I('s_add_u32 s%d, s%d, %d' % (sT[5], sT[5], KVACC))
    I('ds_write_b32 v%d, a%d offset:1024' % (vCA, aC0))
    a.wait(vm='pks', lg=0); I('s_barrier')
    pf.stamp('X2')
    RB = WB + 16
    for j in range(4):
        for p in range(4): I('ds_read_b32 v%d, v%d offset:%d' % (RB + 4 * j + p, vRed[j % 2], 4608 * p + 16 * (j // 2)), tag='red%d' % j)
    for j in range(4):
        a.wait(lg='red%d' % j)
        b = RB + 4 * j
        I('v_add_f32 v%d, v%d, v%d' % (b, b, b + 1)); I('v_add_f32 v%d, v%d, v%d' % (b + 2, b + 2, b + 3)); I('v_add_f32 v%d, v%d, v%d' % (b, b, b + 2))
        if j < 2: I('buffer_atomic_add_f32 v%d, v%d, s[%d:%d], s%d offen offset:%d' % (b, g.vPA, g.sWS, g.sWS + 3, sT[5], 256 * j), tag='ast')
    I('s_cmp_eq_u32 s%d, 3' % sW); a.branch('s_cbranch_scc1 kf_noat')
    for j in (2, 3): I('buffer_atomic_add_f32 v%d, v%d, s[%d:%d], s%d offen offset:%d' % (RB + 4 * j, g.vPA, g.sWS, g.sWS + 3, sT[5], 256 * j), counted=False)
    a.label('kf_noat')
    sig_add(g, sPSG)
    pf.stamp('atom')
    QB = WB
    def q_rd(n):
        j, t = n // 4, n % 4
        if t == 0:
            I('s_lshl_b32 s%d, s%d, 12' % (sT[3], sCC)); I('s_sub_u32 s%d, s%d, %d' % (sT[3], sT[3], g.WKL - g.WQL))
            I('v_add_u32 v%d, s%d, v%d' % (vTc, sT[3], vT)); adv(sCC)
        trfrag(a, QB + 4 * (n % 4), vTc, 1024 * t, 'q%d' % n)
    for n in range(3): q_rd(n)
    S = Side(a)
    CQ = ACCK + 8
    S.add(['v_add_u32 v2, %d, v%d' % (g.CSL + 1024, vN4)])
    S.add([((lambda i=i: I('ds_read_b32 v%d, v2 offset:%d' % (CQ + i, 128 * i), tag='cq')), 5) for i in range(4)])
    S.add(['s_lshl_b32 s%d, s%d, 7' % (sT[2], sW), 's_add_u32 s%d, s%d, %d' % (sT[2], sT[2], g.CSQ2L), 'v_add_u32 v3, s%d, v%d' % (sT[2], vN4),
           'v_lshrrev_b32 v4, 5, v1', 'v_lshlrev_b32 v4, 4, v4', 'v_add_u32 v4, s%d, v4' % sT[2], ((lambda: a.wait(lg='cq')), 3),
           'v_add_f32 v%d, v%d, v%d' % (CQ, CQ, CQ + 1), 'v_add_f32 v%d, v%d, v%d' % (CQ + 2, CQ + 2, CQ + 3), 'v_add_f32 v%d, v%d, v%d' % (CQ, CQ, CQ + 2),
           'ds_write_b32 v3, v%d' % CQ])
    S.add([((lambda q=q: I('ds_read_b128 %s, v4 offset:%d' % (vr(ACCV + 4 * q, 4), 32 * q), tag='cq2')), 5) for q in range(4)])
    g.guq = [(j, c) for j in range(28) for c in range(2)]
    for n in range(28):
        if n + 3 < 28: q_rd(n + 3)
        a.wait(lg='q%d' % n)
        I(MF(vr(ACCQ, 16), vr(QB + 4 * (n % 4), 4), vr(XF + 4 * n, 4), '0' if n == 0 else vr(ACCQ, 16)))
        S.emit(12)
    S.drain()
    pf.stamp('q28')
    a.wait(lg='cq2')
    RN = vr(vRN, 2)
    for p in range(0, 16, 2): I('v_pk_fma_f32 %s, %s, %s, %s op_sel:[0,1,0] op_sel_hi:[1,1,1]' % (vr(ACCQ + p, 2), vr(ACCV + p, 2), RN, vr(ACCQ + p, 2)))
    for p in range(0, 16, 2): I('v_pk_fma_f32 %s, %s, %s, %s op_sel_hi:[1,0,0]' % (vr(ACCQ + p, 2), vr(ACCQ + p, 2), RN, SE))
    phi(ACCQ, WB, 16)
    for p in range(8): I('v_cvt_pk_bf16_f32 v%d, v%d, v%d' % (ACCK + p, ACCQ + 2 * p, ACCQ + 2 * p + 1))
    for p in (6, 7): I('v_cndmask_b32 v%d, 0, v%d, s[%d:%d]' % (ACCK + p, ACCK + p, g.sHI, g.sHI + 1))
    I('s_lshl_b32 s%d, s%d, 2' % (sT[0], sRBA)); I('s_add_u32 s%d, s%d, s%d' % (sT[0], sT[0], sW))
    I('s_lshl_b32 s%d, s%d, 6' % (sT[1], sH)); I('s_add_u32 s%d, s%d, s%d' % (sT[0], sT[0], sT[1])); I('s_lshl_b32 s%d, s%d, 11' % (sT[0], sT[0]))
    if PQF: I('s_add_u32 s%d, s%d, %d' % (sT[0], sT[0], PQF))
    I('buffer_store_dwordx4 %s, v%d, s[%d:%d], s%d offen sc1' % (vr(ACCK, 4), vL16, g.sWS, g.sWS + 3, sT[0]), tag='ast')
    I('buffer_store_dwordx4 %s, v%d, s[%d:%d], s%d offen offset:1024 sc1' % (vr(ACCK + 4, 4), vL16, g.sWS, g.sWS + 3, sT[0]), tag='ast')
    pf.stamp('pqst')
    go_poll()
    I('s_lshr_b32 s%d, s%d, 2' % (sT[6], sH)); I('s_lshl_b32 s%d, s%d, 7' % (sT[6], sT[6])); I('s_add_u32 s%d, s%d, %d' % (sT[6], sT[6], CNT))
    I('v_mov_b32 v2, 1'); I('v_lshlrev_b32 v3, 9, v1')
    a.wait(vm='ast'); I('s_barrier')
    I('s_mov_b64 exec, 0xff')
    I('buffer_atomic_add v2, v3, s[%d:%d], s%d offen sc1' % (g.sKZ, g.sKZ + 3, sT[6]), tag='sig')
    I('s_mov_b64 exec, -1')
    pf.stamp('sigA')
    I('s_and_b32 s%d, s2, 0xc2' % sT[0]); I('s_cmp_eq_u32 s%d, 0xc2' % sT[0]); a.branch('s_cbranch_scc1 kf_pack')
    poll(g, 'kf_pg', vXS[0], 3, 'v%d' % g.vPT, g.sWS, early='gop')
    wo_loads(g, 0, 2)

def wo_loads(g, lo, hi):
    a = g.a; I = a.I; sT = g.sT
    for i in range(lo, hi):
        I('s_add_u32 s%d, s%d, %d' % (sT[2], g.sR4, i)); I('s_and_b32 s%d, s%d, 3' % (sT[2], sT[2]))
        I('s_lshl_b32 s%d, s%d, 2' % (sT[3], g.sW)); I('s_add_u32 s%d, s%d, s%d' % (sT[2], sT[2], sT[3])); I('s_lshl_b32 s%d, s%d, 11' % (sT[2], sT[2]))
        I('s_lshl_b32 s%d, s%d, 1' % (sT[3], g.sCS)); I('s_and_b32 s%d, s%d, 1' % (sT[4], g.sW)); I('s_add_u32 s%d, s%d, s%d' % (sT[3], sT[3], sT[4]))
        I('s_lshl_b32 s%d, s%d, 15' % (sT[3], sT[3])); I('s_add_u32 s%d, s%d, s%d' % (sT[2], sT[2], sT[3]))
        I('s_xor_b32 s%d, s%d, 32768' % (sT[3], sT[2]))
        I('s_add_u32 s%d, s%d, %d' % (sT[2], sT[2], WOP)); I('s_add_u32 s%d, s%d, %d' % (sT[3], sT[3], WOP))
        for c in range(2):
            for kk in range(2):
                I('buffer_load_dwordx4 %s, v%d, s[%d:%d], s%d offen offset:%d sc1' % (vr(8 + 16 * i + 8 * c + 4 * kk, 4), g.vL16, g.sWS, g.sWS + 3, sT[2 + c], 1024 * kk), tag='wo')

def resid_init(g, RES, ACC0, T):
    I = g.a.I
    for p in range(8): I('v_mov_b32 v%d, v%d' % (T + p, RES + p))
    for pr in range(2):
        for k in range(2): I('v_permlane32_swap_b32 v%d, v%d' % (T + 4 * pr + k, T + 4 * pr + 2 + k))
    for p in range(8):
        I('v_lshlrev_b32 v%d, 16, v%d' % (ACC0 + 2 * p, T + p)); I('v_and_b32 v%d, 0xffff0000, v%d' % (ACC0 + 2 * p + 1, T + p))

def reduce_tiles(g, ACC, P0, OUT):
    a = g.a; I = a.I
    for t in range(1, 4):
        for q in range(4): I('ds_write_b128 v%d, %s offset:%d' % (g.vRW[t - 1], vr(ACC + 16 * t + 4 * q, 4), 1024 * q))
    a.wait(lg=0); I('s_barrier')
    for q in range(4):
        for t in range(3): I('ds_read_b128 %s, v%d offset:%d' % (vr(P0 + 16 * t + 4 * q, 4), g.vRR, 4096 * t + 1024 * q), tag='rr%d' % q)
    for q in range(4):
        a.wait(lg='rr%d' % q)
        for v in (4 * q, 4 * q + 2):
            I('v_pk_add_f32 %s, %s, %s' % (vr(P0 + v, 2), vr(P0 + v, 2), vr(ACC + v, 2))); I('v_pk_add_f32 %s, %s, %s' % (vr(P0 + 16 + v, 2), vr(P0 + 16 + v, 2), vr(P0 + 32 + v, 2)))
        for v in (4 * q, 4 * q + 2): I('v_pk_add_f32 %s, %s, %s' % (vr(P0 + v, 2), vr(P0 + v, 2), vr(P0 + 16 + v, 2)))
        for p in (2 * q, 2 * q + 1): I('v_cvt_pk_bf16_f32 v%d, v%d, v%d' % (OUT + p, P0 + 2 * p, P0 + 2 * p + 1))
        if q % 2 == 1:
            for k in range(2): I('v_permlane32_swap_b32 v%d, v%d' % (OUT + 2 * (q - 1) + k, OUT + 2 * (q - 1) + 2 + k))

def colsum(g, lo, hi):
    a = g.a; I = a.I
    for i in range(4): I('v_mov_b32 v%d, s%d' % (4 + i, g.sONE))
    for j in range(lo, hi):
        for c in range(2): I(MF(ar(224 + 16 * c, 16), 'v[4:7]', ar(112 * c + 4 * j, 4), '0' if j == 0 else ar(224 + 16 * c, 16)))

def phase_B(g):
    a = g.a; I = a.I; sT = g.sT; pf = g.pf; cfg = g.cfg
    sW = g.sW; vL16 = g.vL16
    WO, ACC, KV, NUM = 8, 72, 136, 168
    aPQ = 224
    sRT, sCT, sKVB, sPQB, sRX = g.S4[0:5]
    wo_loads(g, 2, 4)
    I('s_lshr_b32 s%d, s%d, 1' % (sT[0], sW)); I('s_and_b32 s%d, s%d, 1' % (sT[1], sW))
    I('s_lshl_b32 s%d, s%d, 1' % (sRT, g.sRB64)); I('s_add_u32 s%d, s%d, s%d' % (sRT, sRT, sT[0]))
    I('s_lshl_b32 s%d, s%d, 1' % (sCT, g.sCS)); I('s_add_u32 s%d, s%d, s%d' % (sCT, sCT, sT[1]))
    g.sRT, g.sCT = sRT, sCT
    I('s_mul_i32 s%d, s%d, %d' % (sT[2], sRT, 32 * 896)); I('s_lshl_b32 s%d, s%d, 6' % (sT[3], sCT)); I('s_add_u32 s%d, s%d, s%d' % (sT[2], sT[2], sT[3]))
    for i in range(2):
        I('buffer_load_dwordx4 %s, v%d, s[%d:%d], s%d offen offset:%d' % (vr(g.vHK + 4 * i, 4), g.vXo, g.sX, g.sX + 3, sT[2], 32 * i), tag='xr')
    I('s_and_b32 s%d, s2, 7' % sT[2]); I('s_lshl_b32 s%d, s%d, 2' % (sT[2], sT[2])); I('s_add_u32 s%d, s%d, s%d' % (sT[2], sT[2], sW))
    I('s_lshl_b32 s%d, s%d, 7' % (sT[2], sT[2])); I('s_add_u32 s%d, s%d, %d' % (sT[2], sT[2], CNT)); I('v_mov_b32 v%d, s%d' % (g.vPA, sT[2]))
    I('s_lshl_b32 s%d, s%d, 14' % (sKVB, sW)); I('s_add_u32 s%d, s%d, %d' % (sKVB, sKVB, KVACC))
    I('s_lshl_b32 s%d, s%d, 19' % (sPQB, sW)); I('s_lshl_b32 s%d, s%d, 12' % (sT[2], g.sRB64)); I('s_add_u32 s%d, s%d, s%d' % (sPQB, sPQB, sT[2]))
    if PQF: I('s_add_u32 s%d, s%d, %d' % (sPQB, sPQB, PQF))
    I('s_lshl_b32 s%d, s%d, 11' % (sRX, sT[0]))
    pf.stamp('pfB')
    poll(g, 'kf_p1', g.vPA, 1, 64, g.sWS)
    pf.stamp('sync1')
    def loads(i):
        I('s_add_u32 s%d, s%d, %d' % (sT[2], g.sR4, i)); I('s_and_b32 s%d, s%d, 3' % (sT[2], sT[2]))
        I('s_lshl_b32 s%d, s%d, 12' % (sT[3], sT[2])); I('s_add_u32 s%d, s%d, s%d' % (sT[3], sT[3], sKVB))
        I('s_lshl_b32 s%d, s%d, 17' % (sT[4], sT[2])); I('s_add_u32 s%d, s%d, s%d' % (sT[4], sT[4], sPQB))
        I('s_add_u32 s%d, s%d, s%d' % (sT[5], sT[4], sRX)); I('s_xor_b32 s%d, s%d, 2048' % (sT[4], sT[5]))
        for q in range(4):
            I('buffer_load_dwordx4 %s, v%d, s[%d:%d], s%d offen offset:%d sc1' % (vr(KV + 16 * (i % 2) + 4 * q, 4), vL16, g.sWS, g.sWS + 3, sT[3], 1024 * q), tag='kv%d' % i)
        for rt in range(2):
            for kk in range(2):
                I('buffer_load_dwordx4 %s, v%d, s[%d:%d], s%d offen offset:%d sc1' % (ar(aPQ + 16 * (i % 2) + 8 * rt + 4 * kk, 4), vL16, g.sWS, g.sWS + 3, sT[5] if rt == 0 else sT[4], 1024 * kk), tag='pq%d' % i)
    def o_ops(i, rt):
        n = NUM + 32 * (i % 2) + 16 * rt; t = 2 + rt
        ops = ['v_cvt_pk_bf16_f32 v%d, v%d, v%d' % (t, n + 14, n + 14), 'v_and_b32 v%d, 0xffff0000, v%d' % (t, t),
               'v_add_f32 v%d, s%d, v%d' % (t, g.sEPS, t), 'v_rcp_f32 v%d, v%d' % (t, t)]
        for v in range(14): ops.append('v_mul_f32 v%d, v%d, v%d' % (n + v, n + v, t))
        for p in range(7): ops.append('v_cvt_pk_bf16_f32 v%d, v%d, v%d' % (n + p, n + 2 * p, n + 2 * p + 1))
        ops.append('v_mov_b32 v%d, 0' % (n + 7))
        return ops
    def num(i):
        b = KV + 16 * (i % 2)
        a.wait(vm='kv%d' % i)
        for p in range(8): I('v_cvt_pk_bf16_f32 v%d, v%d, v%d' % (b + p, b + 2 * p, b + 2 * p + 1))
        a.wait(vm='pq%d' % i)
        for rt in range(2):
            for kk in range(2):
                n = NUM + 32 * (i % 2) + 16 * rt
                I(MF(vr(n, 16), vr(b + 4 * kk, 4), ar(aPQ + 16 * (i % 2) + 8 * rt + 4 * kk, 4), '0' if kk == 0 else vr(n, 16)))
        if i + 2 < 4: loads(i + 2)
    def gemm(i, rt, S, per):
        for kk in range(2):
            for c in range(2):
                acc = ACC + 16 * (2 * rt + c)
                I(MF(vr(acc, 16), vr(WO + 16 * i + 8 * c + 4 * kk, 4), vr(NUM + 32 * (i % 2) + 16 * rt + 4 * kk, 4), '0' if (i == 0 and kk == 0 and (rt or c)) else vr(acc, 16)))
                S.emit(per)
    def gu_one():
        if len(g.guq) <= cfg.get('gu_keep', 20): return False
        gu_load(g, *g.guq.pop(0)); return True
    loads(0); loads(1)
    resid_init(g, g.vHK, ACC, NUM)
    S = Side(a)
    num(0)
    for i in range(4):
        S.add(o_ops(i, 0)); S.drain()
        S.add(o_ops(i, 1))
        gemm(i, 0, S, 28); S.drain()
        if i + 1 < 4: num(i + 1)
        if i == cfg.get('spr_i', 1): a.sprinkle(gu_one, cfg.get('spr', 80))
        gemm(i, 1, S, 0)
    pf.stamp('gemmB')
    reduce_tiles(g, ACC, NUM, g.vHK)
    a.sprinkle(None, 0)
    I('s_mul_i32 s%d, s%d, 28' % (sT[0], sRT)); I('s_lshl_b32 s%d, s%d, 1' % (sT[1], sCT)); I('s_add_u32 s%d, s%d, s%d' % (sT[0], sT[0], sT[1]))
    I('s_lshl_b32 s%d, s%d, 10' % (sT[0], sT[0])); I('s_add_u32 s%d, s%d, %d' % (sT[0], sT[0], HF))
    for i in range(2):
        I('buffer_store_dwordx4 %s, v%d, s[%d:%d], s%d offen offset:%d sc1' % (vr(g.vHK + 4 * i, 4), vL16, g.sWS, g.sWS + 3, sT[0], 1024 * i), tag='bst')
    I('v_mov_b32 v2, 0'); I('v_mov_b32 v3, 0')
    for p in range(8):
        I('v_dot2c_f32_bf16 v2, s%d, v%d' % (g.sONE, g.vHK + p)); I('v_dot2c_f32_bf16 v3, v%d, v%d' % (g.vHK + p, g.vHK + p))
    I('s_lshl_b32 s%d, s%d, 14' % (sT[0], sCT)); I('s_lshl_b32 s%d, s%d, 8' % (sT[1], sRT))
    I('s_add_u32 s%d, s%d, s%d' % (sT[0], sT[0], sT[1])); I('s_add_u32 s%d, s%d, %d' % (sT[0], sT[0], STATS))
    I('v_mov_b32 v4, v2'); I('v_mov_b32 v5, v3'); I('v_lshlrev_b32 v6, 3, v1')
    I('v_permlane32_swap_b32 v2, v4'); I('v_permlane32_swap_b32 v3, v5')
    I('v_add_f32 v8, v2, v4'); I('v_add_f32 v9, v3, v5')
    I('s_mov_b32 exec_hi, 0')
    I('buffer_store_dwordx2 v[8:9], v6, s[%d:%d], s%d offen sc1' % (g.sWS, g.sWS + 3, sT[0]), tag='bst')
    I('s_mov_b64 exec, -1')
    pf.stamp('hst')
    for _ in range(min(cfg.get('b_gu4', 10), len(g.guq))): gu_load(g, *g.guq.pop(0))
    I('s_lshr_b32 s%d, s%d, 1' % (sT[5], g.sRB64))
    I('s_lshl_b32 s%d, s%d, 8' % (g.sT[6], sT[5])); I('s_add_u32 s%d, s%d, %d' % (g.sT[6], g.sT[6], CNT + 4096))
    a.wait(vm='bst'); I('s_barrier'); sig_add(g, g.sT[6])
    pf.stamp('sigB')

def phase_C(g):
    a = g.a; I = a.I; sT = g.sT; pf = g.pf; cfg = g.cfg
    sW = g.sW; vL16 = g.vL16
    ACC, HB, NMF, CI, TM, CSF = 8, 72, 96, 108, 116, 132
    NHB = 6
    vHQ = list(range(124, 132))
    I('s_lshl_b32 s%d, s%d, 2' % (sT[3], g.sFS)); I('s_add_u32 s%d, s%d, s%d' % (sT[3], sT[3], sW)); I('s_lshl_b32 s%d, s%d, 8' % (sT[3], sT[3])); I('s_add_u32 s%d, s%d, %d' % (sT[3], sT[3], CSGU))
    I('v_and_b32 v2, 31, v1'); I('v_lshlrev_b32 v3, 2, v2')
    for c in range(2): I('buffer_load_dword v%d, v3, s[%d:%d], s%d offen offset:%d sc1' % (g.vCSg + c, g.sWS, g.sWS + 3, sT[3], 128 * c), tag='csg')
    while len(g.guq) > cfg.get('c_gu', 0): gu_load(g, *g.guq.pop(0))
    sHG, sHL = g.S4[5], g.S4[6]
    sO = g.S4[7:11]; g.sQD = g.S4[15:19]
    I('s_mul_i32 s%d, s%d, 112' % (sT[3], g.sCT)); I('s_mul_i32 s%d, s%d, 28' % (sT[4], sW)); I('s_add_u32 s%d, s%d, s%d' % (sT[3], sT[3], sT[4]))
    I('s_lshl_b32 s%d, s%d, 10' % (sT[3], sT[3])); I('s_add_u32 s%d, s%d, %d' % (sT[3], sT[3], WDP))
    for q in range(4):
        I('s_add_u32 s%d, s%d, %d' % (sT[4], g.sR4, q)); I('s_and_b32 s%d, s%d, 3' % (sT[4], sT[4]))
        I('s_mul_i32 s%d, s%d, 7168' % (sT[5], sT[4])); I('v_add_u32 v%d, s%d, v%d' % (vHQ[q], sT[5], vL16)); I('v_add_u32 v%d, 57344, v%d' % (vHQ[4 + q], vHQ[q]))
        I('s_add_u32 s%d, s%d, s%d' % (g.sQD[q], sT[5], sT[3]))
    I('s_and_b32 s%d, s%d, 1' % (sT[4], g.sCT)); I('s_mul_i32 s%d, s%d, 114688' % (sT[4], sT[4])); I('s_sub_u32 s%d, 114688, s%d' % (sT[5], sT[4]))
    for q in range(4): I('s_sub_u32 s%d, s%d, s%d' % (g.sQD[q], g.sQD[q], sT[4]))
    g.vLd = [152, 153, 154, 155]
    I('s_lshr_b32 s%d, s%d, 1' % (sT[6], sW)); I('s_lshl_b32 s%d, s%d, 8' % (sT[6], sT[6])); I('v_xor_b32 v2, s%d, v%d' % (sT[6], vL16))
    I('v_add_u32 v%d, s%d, v2' % (g.vLd[0], sT[4])); I('v_add_u32 v%d, 4096, v%d' % (g.vLd[1], g.vLd[0]))
    I('v_add_u32 v%d, s%d, v2' % (g.vLd[2], sT[5])); I('v_add_u32 v%d, 4096, v%d' % (g.vLd[3], g.vLd[2]))
    I('s_mul_i32 s%d, s%d, %d' % (sHG, g.sRB128, 4 * 28672)); I('s_mul_i32 s%d, s%d, 7168' % (sHL, sW))
    I('s_add_u32 s%d, s%d, s%d' % (sHG, sHG, sHL)); I('s_add_u32 s%d, s%d, %d' % (sHG, sHG, HF))
    I('s_lshl_b32 s%d, s%d, 3' % (sT[2], g.sFS)); I('s_lshl_b32 s%d, s%d, 1' % (sT[3], sW)); I('s_add_u32 s%d, s%d, s%d' % (sT[2], sT[2], sT[3]))
    I('s_mul_i32 s%d, s%d, %d' % (sT[0], g.sRB128, 4 * 112)); I('s_add_u32 s%d, s%d, s%d' % (sT[0], sT[0], sT[2]))
    I('s_lshl_b32 s%d, s%d, 10' % (sT[0], sT[0])); I('s_add_u32 s%d, s%d, %d' % (sT[0], sT[0], ACTF))
    for rt in range(4): I('s_add_u32 s%d, s%d, %d' % (sO[rt], sT[0], rt * 112 * 1024))
    I('v_and_b32 v2, 31, v1'); I('v_lshrrev_b32 v3, 5, v1')
    I('v_mul_u32_u24 v%d, %d, v3' % (TM, 7 * 16384)); I('v_lshl_add_u32 v%d, v2, 3, v%d' % (TM, TM))
    I('s_lshl_b32 s%d, s%d, 2' % (sT[0], g.sRB128)); I('s_add_u32 s%d, s%d, s%d' % (sT[0], sT[0], sW))
    I('s_lshl_b32 s%d, s%d, 8' % (sT[1], sT[0])); I('s_add_u32 s%d, s%d, %d' % (sT[1], sT[1], STATS))
    I('s_lshl_b32 s%d, s%d, 8' % (sT[2], g.sRB128)); I('s_add_u32 s%d, s%d, %d' % (sT[2], sT[2], CNT + 4096)); I('v_mov_b32 v%d, s%d' % (g.vPA, sT[2]))
    pf.stamp('csC')
    poll(g, 'kf_p2', g.vPA, 1, 14, g.sWS)
    pf.stamp('sync2')
    def h_dma(rt, lo=0, hi=7):
        for k in range(lo, hi):
            if k % 4 == 0 or k == lo:
                kb = k - k % 4
                I('s_add_u32 s%d, s%d, %d' % (sT[3], sHG, rt * 28672 + 1024 * kb)); I('s_add_u32 m0, s%d, %d' % (sHL, g.HL + rt * 28672 + 1024 * kb))
            I('buffer_load_dwordx4 v%d, s[%d:%d], s%d offen offset:%d sc1 lds' % (vL16, g.sWS, g.sWS + 3, sT[3], 1024 * (k % 4)), tag='h%d' % rt)
    h_dma(0)
    vSP = 156
    while g.guq:
        j, c = g.guq.pop(0); gu_load(g, j, c); a.vm[-1] = 'gu%d' % j
        g.late_gu = getattr(g, 'late_gu', []) + [j]
    for p in range(7):
        I('buffer_load_dwordx2 %s, v%d, s[%d:%d], s%d offen sc1' % (vr(vSP + 2 * p, 2), TM, g.sWS, g.sWS + 3, sT[1]), tag='sp')
        if p < 6: I('s_add_u32 s%d, s%d, 16384' % (sT[1], sT[1]))
    for c in range(2):
        f = CSF + 4 * c
        I('v_mov_b32 v4, v%d' % (g.vCSg + c))
        I('v_cvt_pk_bf16_f32 v5, v4, v4'); I('v_and_b32 v5, 0xffff0000, v5'); I('v_sub_f32 v6, v4, v5')
        I('v_cvt_pk_bf16_f32 v%d, v4, v6' % f); I('v_and_b32 v5, 0xffff0000, v%d' % f); I('v_sub_f32 v6, v6, v5')
        I('v_cvt_pk_bf16_f32 v%d, v6, 0' % (f + 1))
        I('v_cndmask_b32 v%d, 0, v%d, s[%d:%d]' % (f, f, g.sHI, g.sHI + 1)); I('v_cndmask_b32 v%d, 0, v%d, s[%d:%d]' % (f + 1, f + 1, g.sHI, g.sHI + 1))
        I('v_mov_b32 v%d, 0' % (f + 2)); I('v_mov_b32 v%d, 0' % (f + 3))
    I('s_lshl_b32 s%d, s%d, 8' % (sT[2], sW)); I('s_add_u32 s%d, s%d, %d' % (sT[2], sT[2], CNT + 5 * 4096)); I('v_mov_b32 v%d, s%d' % (g.vPA, sT[2]))
    a.wait(vm='h0'); I('s_barrier')
    pf.stamp('h0')
    def stats_ops():
        ops = [((lambda: a.wait(vm='sp')), 3)]
        for p in range(1, 7): ops += ['v_add_f32 v%d, v%d, v%d' % (vSP, vSP, vSP + 2 * p), 'v_add_f32 v%d, v%d, v%d' % (vSP + 1, vSP + 1, vSP + 2 * p + 1)]
        ops += ['v_mov_b32 v5, v%d' % vSP, 'v_mov_b32 v6, v%d' % (vSP + 1), 's_lshl_b32 s%d, s%d, 9' % (sT[1], sW), 's_add_u32 s%d, s%d, %d' % (sT[1], sT[1], g.STL),
                'v_permlane32_swap_b32 v%d, v5' % vSP, 'v_permlane32_swap_b32 v%d, v6' % (vSP + 1),
                'v_add_f32 v%d, v%d, v5' % (vSP, vSP), 'v_add_f32 v%d, v%d, v6' % (vSP + 1, vSP + 1)]
        b = Asm(); ln_finish(b, 'v%d' % vSP, 'v%d' % (vSP + 1), 'v5', 'v6', 'v7', 'v3')
        ops += [l.strip() for l in b.out if not l.strip().startswith('s_nop')]
        X = vSP + 4
        ops += ['v_sub_f32 v3, 0, v3', 'v_cvt_pk_bf16_f32 v%d, v3, v3' % X, 'v_mov_b32 v%d, v%d' % (X + 1, X), 'v_mul_f32 v%d, %s, v7' % (X + 2, f32(-LOG2E)), 'v_mul_f32 v%d, v6, v6' % (X + 3),
                'v_lshlrev_b32 v4, 4, v2', 'v_add_u32 v5, s%d, v4' % sT[1], 'v_add_u32 v4, %d, v4' % g.STL,
                ((lambda: I('ds_write_b128 v5, %s' % vr(X, 4), tag='stw')), 6)]
        return ops
    def st_reads():
        for rt in range(4):
            I('ds_read_b64 %s, v4 offset:%d' % (vr(NMF + 2 * rt, 2), 512 * rt), tag='st')
            I('ds_read_b64 %s, v4 offset:%d' % (vr(CI + 2 * rt, 2), 512 * rt + 8), tag='st')
        I('v_mov_b32 v%d, 0' % (NMF + 8)); I('v_mov_b32 v%d, 0' % (NMF + 9))
    def acc(rt, c): return ACC + 32 * (rt % 2) + 16 * c
    def epi_ops(rt, c):
        b = acc(rt, c); c1, ir2 = CI + 2 * rt, CI + 2 * rt + 1
        ops = []
        for j in range(8): ops += ['v_mul_f32 v%d, v%d, v%d' % (TM + j, c1, b + j)]
        for j in range(8): ops += ['v_exp_f32 v%d, v%d' % (TM + j, TM + j), 'v_mul_f32 v%d, v%d, v%d' % (b + j, b + j, b + 8 + j)]
        for j in range(8): ops += ['v_fma_f32 v%d, v%d, v%d, v%d' % (TM + j, TM + j, ir2, ir2)]
        for j in range(8):
            ops += ['v_rcp_f32 v%d, v%d' % (TM + j, TM + j)]
            if j > 0: ops += ['v_mul_f32 v%d, v%d, v%d' % (b + j - 1, b + j - 1, TM + j - 1)]
        ops += ['v_cvt_pk_bf16_f32 v%d, v%d, v%d' % (b + 8 + p, b + 2 * p, b + 2 * p + 1) for p in range(3)]
        ops += ['v_mul_f32 v%d, v%d, v%d' % (b + 7, b + 7, TM + 7), 'v_cvt_pk_bf16_f32 v%d, v%d, v%d' % (b + 11, b + 6, b + 7)]
        ops.append(((lambda: I('buffer_store_dwordx4 %s, v%d, s[%d:%d], s%d offen offset:%d sc1' % (vr(b + 8, 4), vL16, g.sWS, g.sWS + 3, sO[rt], 1024 * c), tag='cst%d' % (rt // 2))), 16))
        return ops
    seq = [(rt, j) for rt in range(4) for j in range(28)]
    vis = 0
    def h_rd(n):
        nonlocal vis
        rt, j = seq[n]
        if rt > vis:
            vis = rt
            if rt == 1: a.wait(vm='h1', lg='stw')
            else: a.wait(vm='h%d' % rt)
            I('s_barrier')
            if rt == 1: st_reads()
        I('ds_read_b128 %s, v%d offset:%d' % (vr(HB + 4 * (n % NHB), 4), vHQ[4 * (rt // 2) + j // 7], (rt % 2) * 28672 + (j % 7) * 1024), tag='hr%d' % n)
    LA = NHB - 1
    for n in range(LA): h_rd(n)
    S = Side(a)
    wdq = [(j, c) for j in range(g.n_wd1) for c in range(2)]
    g.wdq2 = [(j, c) for j in range(g.n_wd1, 28) for c in range(2)]
    def hd(rt, k): return ((lambda: h_dma(rt, k, k + 1)), 22)
    for n, (rt, j) in enumerate(seq):
        if j == 0:
            S.drain()
            if rt == 0:
                S.add([hd(1, k) for k in range(7)]); S.add(stats_ops()); S.add([hd(2, k) for k in range(7)])
                S.add([((lambda: I('buffer_load_dword v%d, v%d, s[%d:%d], 0 offen sc1' % (g.vPoll, g.vPA, g.sWS, g.sWS + 3), tag='wdp')), 16)])
            if rt == 1:
                S.add([hd(3, k) for k in range(7)])
                poll(g, 'kf_pw', g.vPA, 1, 7, g.sWS, early='wdp')
            if rt >= 1: S.add(epi_ops(rt - 1, 0) + epi_ops(rt - 1, 1))
            pf.stamp('rt%d' % rt)
        if n + LA == 28: S.drain()
        if n + LA < len(seq): h_rd(n + LA)
        if rt == 0 and j in getattr(g, 'late_gu', []): a.wait(vm='gu%d' % j)
        a.wait(lg='hr%d' % n)
        for c in range(2):
            I(MF(vr(acc(rt, c), 16), ar(112 * c + 4 * j, 4), vr(HB + 4 * (n % NHB), 4), '0' if j == 0 else vr(acc(rt, c), 16)))
            if c == 0 and n >= 30 and n % 5 in (0, 2, 4) and wdq: wd_load(g, *wdq.pop(0))
            elif c == 0 and rt == 3 and 1 <= j <= cfg.get('wd3', 26) and not wdq: wd_load(g, *g.wdq2.pop(0))
            elif not (j == 0 and rt >= 1): S.emit(cfg.get('cb0', 16) if c == 0 else cfg.get('cb1', 22))
        if rt == 3 and j == 20: S.drain(); d_setup(g)
        if rt == 3 and j == cfg.get('midsig', 6):
            I('s_lshl_b32 s%d, s%d, 8' % (sT[6], g.sRB128)); I('s_add_u32 s%d, s%d, %d' % (sT[6], sT[6], CNT + 8192))
            a.wait(vm='cst0'); I('s_barrier'); sig_add(g, sT[6])
        if j == 27:
            a.wait(lg='st')
            for c in range(2): I(MF(vr(acc(rt, c), 16), vr(CSF + 4 * c, 4), vr(NMF + 2 * rt, 4), vr(acc(rt, c), 16)))
    S.drain()
    pf.stamp('mfmaC')
    assert not wdq
    for _ in range(min(len(g.wdq2), cfg.get('wd_pre', 8))): wd_load(g, *g.wdq2.pop(0))
    S.add(epi_ops(3, 0) + epi_ops(3, 1)); S.drain()
    pf.stamp('actst')

def d_setup(g):
    a = g.a; I = a.I; sT = g.sT; sW = g.sW; vL16 = g.vL16
    g.sA = g.S4[11:15]; g.sE, g.sHR, g.sOB = g.S4[2], g.S4[3], g.S4[4]
    I('s_lshr_b32 s%d, s%d, 1' % (sT[2], g.sRB64)); I('s_lshl_b32 s%d, s%d, 2' % (g.sE, sT[2])); I('s_and_b32 s%d, s%d, 1' % (sT[3], g.sRB64)); I('s_add_u32 s%d, s%d, s%d' % (g.sE, g.sE, sT[3]))
    I('s_lshl_b32 s%d, s%d, 8' % (sT[2], sT[2])); I('s_add_u32 s%d, s%d, %d' % (sT[2], sT[2], CNT + 8192)); I('v_mov_b32 v%d, s%d' % (g.vPA, sT[2]))
    I('buffer_load_dword v%d, v%d, s[%d:%d], 0 offen sc1' % (g.vPoll, g.vPA, g.sWS, g.sWS + 3), tag='p3e')
    I('s_mul_i32 s%d, s%d, 112' % (sT[0], g.sE)); I('s_mul_i32 s%d, s%d, 28' % (sT[1], sW)); I('s_add_u32 s%d, s%d, s%d' % (sT[0], sT[0], sT[1]))
    I('s_lshl_b32 s%d, s%d, 10' % (sT[0], sT[0])); I('s_add_u32 s%d, s%d, %d' % (sT[0], sT[0], ACTF))
    for q in range(4):
        I('s_add_u32 s%d, s%d, %d' % (sT[4], g.sR4, q)); I('s_and_b32 s%d, s%d, 3' % (sT[4], sT[4]))
        I('s_mul_i32 s%d, s%d, 7168' % (sT[4], sT[4])); I('s_add_u32 s%d, s%d, s%d' % (g.sA[q], sT[4], sT[0]))
    g.vA = [vL16, g.vLo[1], g.vLo[2], g.vLo[3]]
    I('v_add_u32 v%d, %d, v%d' % (g.vA[2], 2 * 114688, vL16)); I('v_add_u32 v%d, 4096, v%d' % (g.vA[3], g.vA[2]))
    I('s_lshr_b32 s%d, s%d, 1' % (sT[1], sW))
    I('s_mul_i32 s%d, s%d, 28' % (sT[0], g.sE)); I('s_lshl_b32 s%d, s%d, 1' % (sT[2], g.sCT)); I('s_add_u32 s%d, s%d, s%d' % (sT[2], sT[2], sT[1])); I('s_add_u32 s%d, s%d, s%d' % (sT[0], sT[0], sT[2]))
    I('s_lshl_b32 s%d, s%d, 10' % (sT[0], sT[0])); I('s_add_u32 s%d, s%d, %d' % (g.sHR, sT[0], HF))
    I('s_mul_i32 s%d, s%d, %d' % (sT[0], g.sE, 32 * 896)); I('s_lshl_b32 s%d, s%d, 5' % (sT[2], sT[2])); I('s_add_u32 s%d, s%d, s%d' % (g.sOB, sT[0], sT[2]))
    for t in range(1, 4):
        I('s_xor_b32 s%d, s%d, %d' % (sT[3], sW, t)); I('s_mul_i32 s%d, s%d, 6144' % (sT[3], sT[3])); I('s_add_u32 s%d, s%d, %d' % (sT[3], sT[3], (t - 1) * 2048))
        I('v_add_u32 v%d, s%d, v%d' % (g.vRW[t - 1], sT[3], vL16))
    I('s_mul_i32 s%d, s%d, 6144' % (sT[3], sW)); I('v_add_u32 v%d, s%d, v%d' % (g.vRR, sT[3], vL16))

def phase_D(g):
    a = g.a; I = a.I; sT = g.sT; pf = g.pf; cfg = g.cfg
    sW = g.sW; vL16 = g.vL16
    ACC, P0, RS = 8, 72, 104
    poll(g, 'kf_p3', g.vPA, 1, 14, g.sWS, early='p3e')
    pf.stamp('sync3')
    NR = 2 * g.act_ring; AB = g.act_base
    def issue(m):
        p, j = m // 28, m % 28; r = j % 7
        I('buffer_load_dwordx4 %s, v%d, s[%d:%d], s%d offen offset:%d sc1' % (ar(AB + 4 * (m % NR), 4), g.vA[2 * p + (r >= 4)], g.sWS, g.sWS + 3, g.sA[j // 7], 1024 * (r % 4)), tag='k%d' % m)
    LA = cfg.get('d_la', 16)
    I('s_add_u32 s%d, s%d, %d' % (sT[0], g.sHR, 2 * 28672))
    I('buffer_load_dwordx4 %s, v%d, s[%d:%d], s%d offen sc1' % (vr(g.vHK, 4), vL16, g.sWS, g.sWS + 3, g.sHR), tag='hr')
    I('buffer_load_dwordx4 %s, v%d, s[%d:%d], s%d offen sc1' % (vr(g.vHK + 4, 4), vL16, g.sWS, g.sWS + 3, sT[0]), tag='hr')
    for m in range(8): issue(m)
    I('s_lshl_b32 s%d, s%d, 8' % (sT[6], g.sRB128)); I('s_add_u32 s%d, s%d, %d' % (sT[6], sT[6], CNT + 8192 + 128))
    a.wait(vm='cst1'); I('s_barrier'); sig_add(g, sT[6])
    pf.stamp('sigC')
    for m in range(8, LA): issue(m)
    I('v_add_u32 v%d, 128, v%d' % (g.vPA, g.vPA))
    def acc(p, c): return ACC + 32 * p + 16 * c
    def xwrite(p):
        return ['ds_write_b128 v%d, %s offset:%d' % (g.vRW[t - 1], vr(acc(p, t & 1) + 8 * (t >> 1) + 4 * q, 4), 24576 * p + 1024 * q) for t in range(1, 4) for q in range(2)]
    def xfinish(p, pk):
        O = g.vHK + 4 * p; b = acc(p, 0)
        ops = [((lambda t=t, q=q: I('ds_read_b128 %s, v%d offset:%d' % (vr(P0 + 8 * t + 4 * q, 4), g.vRR, 24576 * p + 2048 * t + 1024 * q), tag='xr%d' % p)), 6) for t in range(3) for q in range(2)]
        ops += ['v_permlane32_swap_b32 v%d, v%d' % (O + k, O + 2 + k) for k in range(2)]
        for k in range(4): ops += ['v_lshlrev_b32 v%d, 16, v%d' % (RS + 2 * k, O + k), 'v_and_b32 v%d, 0xffff0000, v%d' % (RS + 2 * k + 1, O + k)]
        if pk:
            ops += ['v_pk_add_f32 %s, %s, %s' % (vr(b + v, 2), vr(b + v, 2), vr(RS + v, 2)) for v in range(0, 8, 2)]
            ops += [((lambda: a.wait(lg='xr%d' % p)), 3)]
            for v in range(0, 8, 2): ops += ['v_pk_add_f32 %s, %s, %s' % (vr(b + v, 2), vr(b + v, 2), vr(P0 + v, 2)), 'v_pk_add_f32 %s, %s, %s' % (vr(P0 + 8 + v, 2), vr(P0 + 8 + v, 2), vr(P0 + 16 + v, 2))]
            ops += ['v_pk_add_f32 %s, %s, %s' % (vr(b + v, 2), vr(b + v, 2), vr(P0 + 8 + v, 2)) for v in range(0, 8, 2)]
        else:
            ops += ['v_add_f32 v%d, v%d, v%d' % (b + v, b + v, RS + v) for v in range(8)]
            ops += [((lambda: a.wait(lg='xr%d' % p)), 3)]
            for v in range(8): ops += ['v_add_f32 v%d, v%d, v%d' % (b + v, b + v, P0 + v), 'v_add_f32 v%d, v%d, v%d' % (P0 + 8 + v, P0 + 8 + v, P0 + 16 + v)]
            ops += ['v_add_f32 v%d, v%d, v%d' % (b + v, b + v, P0 + 8 + v) for v in range(8)]
        ops += ['v_cvt_pk_bf16_f32 v%d, v%d, v%d' % (O + k, b + 2 * k, b + 2 * k + 1) for k in range(4)]
        ops += ['s_add_u32 s%d, s%d, %d' % (sT[1], g.sOB, 64 * 896 * p), 's_nop 0']
        ops += ['v_permlane32_swap_b32 v%d, v%d' % (O + k, O + 2 + k) for k in range(2)]
        ops += [((lambda: I('buffer_store_dwordx4 %s, v%d, s[%d:%d], s%d offen' % (vr(O, 4), g.vXo, g.sOUT, g.sOUT + 3, sT[1]))), 16)]
        return ops
    S = Side(a)
    P4 = cfg.get('p4', 22)
    for m in range(56):
        p, j = m // 28, m % 28
        if m == max(28 - LA, P4 - 8): I('buffer_load_dword v%d, v%d, s[%d:%d], 0 offen sc1' % (g.vPoll, g.vPA, g.sWS, g.sWS + 3), tag='p4e')
        if m == P4:
            poll(g, 'kf_p4', g.vPA, 1, 14, g.sWS, early='p4e')
            for mm in range(28, m + LA): issue(mm)
        if m == 29: S.add(xwrite(0))
        if m == 36:
            S.drain(); a.wait(lg=0); I('s_barrier'); S.add(xfinish(0, False))
        if g.wd_wait.get(j) and p == 0: a.wait(vm=['k%d' % m, 'wd%d' % j])
        else: a.wait(vm='k%d' % m)
        if m % 14 == 0: pf.stamp('k%d' % m)
        for c in range(2):
            f, r = g.wd_regs[j][c]
            I(MF(vr(acc(p, c), 16), vr(r, 4, f), ar(AB + 4 * (m % NR), 4), '0' if j == 0 else vr(acc(p, c), 16)))
            if c == 0:
                if m + LA < 56 and (m + LA < 28 or m >= P4): issue(m + LA)
                if g.wdq2:
                    jj, cc = g.wdq2.pop(0); wd_load(g, jj, cc); a.vm[-1] = 'wd%d' % jj; g.wd_wait[jj] = True
            else: S.emit(24)
    S.drain()
    pf.stamp('gemmD')
    for op in xwrite(1): I(op)
    a.wait(lg=0); I('s_barrier')
    S.add(xfinish(1, True)); S.drain()
    pf.stamp('out')
    if PROF: I('s_waitcnt vmcnt(0)')
    pf.dump(g.sWS)
    I('s_endpgm')

def pack_wd(g):
    a = g.a; I = a.I; sT = g.sT; sW = g.sW; vL16 = g.vL16
    a.label('kf_pack'); a.reset_counts()
    I('s_bfe_u32 s%d, s2, 0x30003' % sT[5]); I('s_and_b32 s%d, s2, 1' % sT[0]); I('s_lshl_b32 s%d, s%d, 3' % (sT[0], sT[0])); I('s_add_u32 s%d, s%d, s%d' % (sT[5], sT[5], sT[0]))
    I('s_and_b32 s%d, s2, 4' % sT[0]); I('s_lshl_b32 s%d, s%d, 2' % (sT[0], sT[0])); I('s_add_u32 s%d, s%d, s%d' % (sT[5], sT[5], sT[0]))
    I('s_cmp_ge_u32 s%d, 28' % sT[5]); a.branch('s_cbranch_scc1 kf_end')
    I('s_lshl_b32 s%d, s%d, 2' % (sT[0], sT[5])); I('s_add_u32 s%d, s%d, s%d' % (sT[0], sT[0], sW))
    I('s_mul_i32 s%d, s%d, 14336' % (sT[1], sT[0])); I('s_mul_i32 s%d, s%d, 14336' % (sT[2], sW))
    for i in range(14):
        if i % 4 == 0:
            I('s_add_u32 s%d, s%d, %d' % (sT[3], sT[1], 1024 * i)); I('s_add_u32 m0, s%d, %d' % (sT[2], 1024 * i))
        I('buffer_load_dwordx4 v%d, s[%d:%d], s%d offen offset:%d lds' % (vL16, g.sD, g.sD + 3, sT[3], 1024 * (i % 4)))
    I('v_lshrrev_b32 v3, 5, v1'); I('v_bfe_u32 v4, v1, 2, 2'); I('v_lshl_add_u32 v4, v3, 2, v4'); I('v_mul_u32_u24 v4, 896, v4')
    I('v_bfe_u32 v5, v1, 4, 1'); I('v_lshl_add_u32 v4, v5, 5, v4'); I('v_and_b32 v5, 3, v1'); I('v_lshl_add_u32 v4, v5, 3, v4')
    I('v_add_u32 v4, s%d, v4' % sT[2])
    I('s_lshl_b32 s%d, s%d, 10' % (sT[1], sT[0])); I('s_add_u32 s%d, s%d, %d' % (sT[1], sT[1], WDP))
    I('s_mul_i32 s%d, s%d, 37' % (sT[5], sT[5])); I('s_lshr_b32 s%d, s%d, 8' % (sT[5], sT[5]))
    a.wait(vm=0)
    B0 = 80
    for ct in range(18):
        if ct < 14: trfrag(a, B0 + 4 * ct, 4, 64 * ct, 't%d' % ct, d2=8 * 896)
        if ct >= 4:
            cc = ct - 4
            a.wait(lg='t%d' % cc)
            I('buffer_store_dwordx4 %s, v%d, s[%d:%d], s%d offen sc1' % (vr(B0 + 4 * cc, 4), vL16, g.sWS, g.sWS + 3, sT[1]), tag='wst')
            I('s_add_u32 s%d, s%d, %d' % (sT[1], sT[1], 112 * 1024))
    signal(g, 5, sT[5], 'wst')
    if PROF:
        nm = list(g.pf.names); g.pf.n = 14; g.pf.stamp('x'); g.pf.names = nm[:-1]; g.pf.n = len(nm) - 1; g.pf.dump(g.sWS)

def gen_F(a, cfg=None):
    cfg = cfg or {}
    name = KN + '_kernel'
    head(a, name)
    g = setup(a, cfg)
    homes = [('v', 140 + 4 * k) for k in range(3)] + [('a', 224 + 4 * k) for k in range(8)] + [('v', 156 + 4 * k) for k in range(19)] + [('a', 4 * k) for k in range(26)]
    g.n_wd1 = 15
    g.wd_regs = [(homes[2 * j], homes[2 * j + 1]) for j in range(28)]
    g.wd_wait = {}
    g.act_base, g.act_ring = 104, 15
    phase_A(g); phase_B(g); phase_C(g); phase_D(g); pack_wd(g)
    a.label('kf_end')
    a.I('s_endpgm')
    a.raw('kf_pad:\n.fill (49664 - (kf_pad - %s)) / 4, 4, 0xbf800000' % name)
    return (name, 256, 256, 163840, 512, 102, 256)
```

```python
import sys, json
from gen_common import *
from gen_p import gen_F
ref = open('cdna_kernels/%s.s.ref' % KN).read().splitlines()
top = ''
for l in ref:
    if not l.startswith(';'): break
    if '@launch' in l or 'Override launch' in l or 'grid=ceil' in l: continue
    top += l + '\n'
top += '; Generated by work/genf.py (hand-written generator). One persistent launch, 4 phases with counter hand-offs.\n'
out = sys.argv[1] if len(sys.argv) > 1 else 'f.s'
cfg = json.loads(sys.argv[2]) if len(sys.argv) > 2 else {}
a = Asm()
name, grid, block, lds, vg, sg, acc = gen_F(a, cfg)
L = top + "; @launch grid=(%d,1,1) block=(%d,1,1) lds=%d\n" % (grid, block, lds)
open(out, "w").write(L + HDR + a.text() + '.section .rodata,"a"\n' + kd(name, vg, sg, acc))
print(out, "instrs", a.count, "nop states", a.nops)
```

```python
from gen_common import *
from types import SimpleNamespace as NS

CNT = KVACC + (128 << 10)
SPIN_MAX = 1 << 19
V3 = ('v_fma_f32', 'v_cvt_pk_bf16_f32', 'v_add3_u32', 'v_lshl_add_u32', 'v_bfe_u32', 'v_cndmask_b32', 'v_mul_lo_u32', 'v_accvgpr_read_b32', 'v_accvgpr_write_b32')

def MF(d, A, B, C): return 'v_mfma_f32_32x32x16_bf16 %s, %s, %s, %s' % (d, A, B, C)

def cost(o):
    if isinstance(o, tuple): return o[1]
    op = o.split()[0]
    if op in TRANS: return 8.4
    if op in V3 or op.startswith('v_pk'): return 5.3
    if op.startswith('v_'): return 4.2 if '0x' not in o else 5.3
    if op.startswith('ds_'): return 5.3
    if op.startswith('buffer_'): return 16
    return 3.0

class Side:
    def __init__(self, a): self.a = a; self.q = []; self.credit = 0.0
    def add(self, ops): self.q += list(ops)
    def _one(self):
        o = self.q.pop(0)
        if isinstance(o, tuple): o[0]()
        else: self.a.I(o)
    def emit(self, budget):
        self.credit = min(self.credit + budget, budget + 8)
        while self.q and cost(self.q[0]) <= self.credit + 2:
            self.credit -= cost(self.q[0]); self._one()
    def drain(self):
        while self.q: self._one()
        self.credit = 0.0

def poll(g, lbl, addr_v, lanes_mask, target, srdreg, early=None):
    a = g.a; I = a.I
    saved = list(a.vm)
    I('s_mov_b32 s%d, 0' % g.sSPIN)
    if early:
        a.wait(vm=early)
        a.branch('s_branch %s_chk' % lbl)
    a.label(lbl)
    I('buffer_load_dword v%d, v%d, s[%d:%d], 0 offen sc1' % (g.vPoll, addr_v, srdreg, srdreg + 3), counted=False)
    I('s_add_u32 s%d, s%d, 1' % (g.sSPIN, g.sSPIN))
    I('s_waitcnt vmcnt(0)')
    a.label(lbl + '_chk')
    I('v_cmp_le_u32 vcc, %s, v%d' % (target, g.vPoll))
    I('s_cmp_ge_u32 s%d, %d' % (g.sSPIN, SPIN_MAX))
    a.branch('s_cbranch_scc1 %s_ok' % lbl)
    I('s_and_b32 s%d, vcc_lo, %d' % (g.sT[7], lanes_mask))
    I('s_cmp_eq_u32 s%d, %d' % (g.sT[7], lanes_mask))
    a.branch('s_cbranch_scc1 %s_ok' % lbl)
    I('s_sleep %d' % g.cfg.get('sleep', 1))
    a.branch('s_branch %s' % lbl)
    a.label(lbl + '_ok')
    a.vm = saved

def sig_add(g, off_s, v=2, srd_=None):
    I = g.a.I; r = g.sKZ if srd_ is None else srd_
    I('v_mov_b32 v%d, 1' % v); I('v_mov_b32 v%d, 0' % (v + 1))
    I('s_mov_b64 exec, 1')
    I('buffer_atomic_add v%d, v%d, s[%d:%d], s%d offen sc1' % (v, v + 1, r, r + 3, off_s), tag='sig')
    I('s_mov_b64 exec, -1')

def signal(g, kind, idx_s, wait_tag):
    a = g.a; I = a.I
    I('s_lshl_b32 s%d, s%d, 8' % (g.sT[6], idx_s)); I('s_add_u32 s%d, s%d, %d' % (g.sT[6], g.sT[6], CNT + 4096 * kind))
    a.wait(vm=wait_tag)
    I('s_barrier')
    sig_add(g, g.sT[6])

def trfrag(a, dst, addr, off, tag, f='v', d2=256):
    a.I('ds_read_b64_tr_b16 %s, v%d offset:%d' % (vr(dst, 2, f), addr, off), tag=tag)
    a.I('ds_read_b64_tr_b16 %s, v%d offset:%d' % (vr(dst + 2, 2, f), addr, off + d2), tag=tag)

STATS = 19 << 20

def setup(a, cfg):
    g = NS(a=a, cfg=cfg); I = a.I
    g.pf = Prof(a, 0, vreg=127, s=100); g.pf.shift = 11
    (g.sX, g.sWq, g.sP0, g.sP1, g.sPO, g.sD, g.sOUT, g.sDBG, g.sWS, g.sKZ, g.sDZ) = 24, 28, 32, 36, 40, 44, 48, 52, 56, 60, 64
    (g.sW, g.sRBA, g.sH, g.sRHO, g.sRB64, g.sCS, g.sRB128, g.sFS, g.sR4) = 68, 69, 70, 71, 72, 73, 74, 75, 76
    g.sT = [77, 78, 79, 80, 81, 82, 83, 84]
    g.sONE, g.sEPS, g.sL2E = 85, 86, 87
    g.sMV28, g.sHI = 88, 90
    g.sW8, g.sRole = 92, 93
    g.sSPIN = 94; g.sPT = 95
    g.sQ = [96, 97, 98, 99]
    g.S4 = list(range(4, 24))
    g.WQL, g.WKL, g.WVL = 0, 51200, 79872
    g.STATL, g.CSL, g.CSQ2L = 28672, 29696, 31232
    g.XRL, g.KVRL, g.HL, g.STL = 108544, 32768, 0, 114688
    g.LCL = 31744
    (g.vL16, g.vL4k, g.vPoll, g.vPA, g.vPT, g.vXo, g.vCSg, g.vLx) = range(118, 126)
    sT = g.sT
    I('s_cmp_ge_u32 s2, 256'); a.branch('s_cbranch_scc1 kf_end')
    g.pf.stamp('start')
    load_args(a)
    I('s_getpc_b64 s[%d:%d]' % (g.sMV28, g.sMV28 + 1))
    I('v_lshrrev_b32 v2, 6, v0'); I('v_and_b32 v1, 63, v0')
    I('s_lshr_b32 s%d, s2, 3' % sT[1])
    I('s_mul_i32 s%d, s%d, 12' % (sT[2], sT[1])); I('v_and_b32 v4, 3, v2'); I('v_mul_u32_u24 v3, 3, v4'); I('v_add3_u32 v3, v3, v1, s%d' % sT[2]); I('v_lshlrev_b32 v3, 7, v3')
    I('v_cmp_lt_u32 vcc, 255, v0'); I('s_and_b64 exec, vcc, 7')
    a.branch('s_cbranch_execz kf_nt')
    I('global_load_dword v%d, v3, s[%d:%d]' % (g.vPoll, g.sMV28, g.sMV28 + 1), counted=False)
    a.label('kf_nt')
    I('s_mov_b64 exec, -1')
    I('v_readfirstlane_b32 s%d, v2' % g.sW8)
    I('s_and_b32 s%d, s2, 7' % sT[0])
    I('s_and_b32 s%d, s%d, 3' % (g.sW, g.sW8)); I('s_lshr_b32 s%d, s%d, 2' % (g.sRole, g.sW8))
    I('s_lshr_b32 s%d, s%d, 1' % (sT[2], sT[0])); I('s_lshl_b32 s%d, s%d, 2' % (sT[2], sT[2]))
    I('s_and_b32 s%d, s%d, 3' % (sT[3], sT[1])); I('s_add_u32 s%d, s%d, s%d' % (g.sRBA, sT[2], sT[3]))
    I('s_and_b32 s%d, s%d, 1' % (sT[4], sT[0])); I('s_lshr_b32 s%d, s%d, 2' % (sT[5], sT[1]))
    I('s_lshl_b32 s%d, s%d, 3' % (g.sH, sT[4])); I('s_add_u32 s%d, s%d, s%d' % (g.sH, g.sH, sT[5]))
    I('s_lshl_b32 s%d, s%d, 1' % (g.sRHO, sT[3])); I('s_add_u32 s%d, s%d, s%d' % (g.sRHO, g.sRHO, sT[5]))
    I('s_sub_u32 s%d, s%d, 7' % (sT[6], g.sRHO)); I('s_cmp_ge_u32 s%d, 7' % g.sRHO); I('s_cselect_b32 s%d, s%d, s%d' % (g.sRHO, sT[6], g.sRHO))
    I('v_lshlrev_b32 v%d, 4, v1' % g.vL16)
    return g

def roles_bcd(g):
    a = g.a; I = a.I; sT = g.sT
    I('s_and_b32 s%d, s2, 7' % sT[0]); I('s_lshr_b32 s%d, s2, 3' % sT[1])
    I('s_and_b32 s%d, s%d, 3' % (sT[2], sT[0])); I('s_lshr_b32 s%d, s%d, 2' % (sT[3], sT[0]))
    I('s_lshr_b32 s%d, s%d, 2' % (sT[4], sT[1])); I('s_and_b32 s%d, s%d, 3' % (sT[5], sT[1]))
    I('s_mul_i32 s%d, s%d, 86' % (sT[6], sT[1])); I('s_lshr_b32 s%d, s%d, 8' % (sT[6], sT[6]))
    I('s_mul_i32 s%d, s%d, 3' % (sT[7], sT[6])); I('s_sub_u32 s%d, s%d, s%d' % (sT[7], sT[1], sT[7]))
    I('s_lshl_b32 s%d, s%d, 2' % (g.sFS, sT[2])); I('s_mul_i32 s%d, s%d, 3' % (g.sCS, sT[2])); I('s_add_u32 s%d, s%d, 2' % (g.sCS, g.sCS))
    I('s_lshl_b32 s%d, s%d, 5' % (g.sRB64, sT[2])); I('s_mul_i32 s%d, s%d, 24' % (g.sR4, sT[2])); I('s_add_u32 s%d, s%d, 16' % (g.sR4, g.sR4))
    I('s_cmp_lt_u32 s%d, 2' % sT[2])
    I('s_cselect_b32 s%d, s%d, s%d' % (sT[4], sT[4], sT[6])); I('s_cselect_b32 s%d, s%d, s%d' % (sT[5], sT[5], sT[7]))
    I('s_cselect_b32 s%d, s%d, s%d' % (g.sFS, g.sFS, g.sCS)); I('s_cselect_b32 s%d, s%d, s%d' % (sT[6], g.sRB64, g.sR4))
    I('s_cselect_b32 s%d, 32, 24' % sT[7])
    I('s_add_u32 s%d, s%d, s%d' % (g.sFS, g.sFS, sT[5]))
    I('s_and_b32 s%d, s%d, 7' % (sT[4], sT[4])); I('s_and_b32 s%d, s%d, 3' % (g.sR4, sT[4]))
    I('s_lshl_b32 s%d, s%d, 3' % (g.sRB128, sT[3])); I('s_add_u32 s%d, s%d, s%d' % (g.sRB128, g.sRB128, sT[4]))
    I('s_cmp_ge_u32 s%d, s%d' % (sT[1], sT[7])); I('s_cselect_b32 s%d, 0, s%d' % (sT[5], sT[1]))
    I('s_mul_i32 s%d, s%d, 112' % (sT[4], sT[3])); I('s_add_u32 s%d, s%d, s%d' % (sT[4], sT[4], sT[6])); I('s_add_u32 s%d, s%d, s%d' % (sT[4], sT[4], sT[5]))
    I('s_mul_i32 s%d, s%d, 9363' % (g.sRB64, sT[4])); I('s_lshr_b32 s%d, s%d, 16' % (g.sRB64, g.sRB64))
    I('s_mul_i32 s%d, s%d, 7' % (sT[5], g.sRB64)); I('s_sub_u32 s%d, s%d, s%d' % (g.sCS, sT[4], sT[5]))

def common_consts(g):
    a = g.a; I = a.I; sT = g.sT; vL16 = g.vL16
    srd(a, g.sWS, 22, WS_BYTES); srd(a, g.sKZ, 22, WS_BYTES); srd(a, g.sD, 16, 1792 * 896); srd(a, g.sOUT, 18, 2048 * 896); srd(a, g.sDBG, 20, 256)
    roles_bcd(g)
    I('v_lshrrev_b32 v2, 5, v1'); I('v_and_b32 v6, 31, v1')
    I('v_mul_u32_u24 v7, 896, v6'); I('v_lshl_add_u32 v%d, v2, 4, v7' % g.vXo)
    I('v_cmp_eq_u32 s[%d:%d], 28, v6' % (g.sMV28, g.sMV28 + 1)); I('v_cmp_eq_u32 s[%d:%d], 0, v2' % (g.sHI, g.sHI + 1))
    I('s_mov_b32 s%d, 0x3f803f80' % g.sONE); I('s_mov_b32 s%d, %s' % (g.sEPS, f32(1e-6))); I('s_mov_b32 s%d, %s' % (g.sL2E, f32(LOG2E)))
    I('v_add_u32 v%d, 4096, v%d' % (g.vL4k, vL16)); I('v_lshlrev_b32 v%d, 2, v1' % g.vPA)
    I('s_lshl_b32 s%d, s%d, 3' % (sT[3], g.sFS)); I('s_add_u32 s%d, s%d, s%d' % (sT[3], sT[3], g.sW8)); I('s_mul_i32 s%d, s%d, 28672' % (sT[3], sT[3])); I('s_add_u32 s%d, s%d, %d' % (sT[3], sT[3], GUP))
    for q in range(4):
        I('s_add_u32 s%d, s%d, %d' % (sT[4], g.sR4, q)); I('s_and_b32 s%d, s%d, 3' % (sT[4], sT[4]))
        I('s_mul_i32 s%d, s%d, 7168' % (sT[4], sT[4])); I('s_add_u32 s%d, s%d, s%d' % (g.sQ[q], sT[4], sT[3]))

def a_patterns(g, vT, vXR, vN4, sXRB):
    I = g.a.I
    I('v_lshrrev_b32 v2, 5, v1'); I('v_bfe_u32 v3, v1, 4, 1'); I('v_bfe_u32 v4, v1, 2, 2'); I('v_and_b32 v5, 3, v1')
    I('v_lshlrev_b32 v6, 9, v2'); I('v_lshl_add_u32 v6, v4, 6, v6'); I('v_lshl_add_u32 v6, v5, 3, v6'); I('v_lshl_add_u32 v%d, v3, 5, v6' % vT)
    I('v_and_b32 v6, 31, v1'); I('v_lshlrev_b32 v%d, 2, v6' % vN4)
    I('v_lshrrev_b32 v7, 3, v6'); I('v_lshlrev_b32 v7, 10, v7'); I('v_and_b32 v3, 7, v6'); I('v_lshl_add_u32 v7, v3, 7, v7')
    I('v_bfe_u32 v3, v6, 1, 3'); I('v_xor_b32 v3, v3, v2'); I('v_lshl_add_u32 v7, v3, 4, v7')
    I('v_add_u32 v%d, s%d, v7' % (vXR[0], sXRB))
    for t in range(1, 4): I('v_xor_b32 v%d, %d, v%d' % (vXR[t], 32 * t, vXR[0]))

def adv(g, s):
    I = g.a.I
    I('s_add_u32 s%d, s%d, 1' % (s, s)); I('s_cmp_eq_u32 s%d, 7' % s); I('s_cselect_b32 s%d, 0, s%d' % (s, s))

def gu_load(g, j):
    r = j % 7
    g.a.I('buffer_load_dwordx4 %s, v%d, s[%d:%d], s%d offen offset:%d sc1' % (ar(4 * j, 4), g.vL4k if r >= 4 else g.vL16, g.sWS, g.sWS + 3, g.sQ[j // 7], 1024 * (r % 4)), tag='gu')

def go_addr(g, v):
    I = g.a.I; sT = g.sT
    I('s_lshl_b32 s%d, s%d, 8' % (sT[4], g.sFS)); I('s_add_u32 s%d, s%d, %d' % (sT[4], sT[4], CNT + 3 * 4096))
    I('s_lshl_b32 s%d, s%d, 8' % (sT[5], g.sCS)); I('s_add_u32 s%d, s%d, %d' % (sT[5], sT[5], CNT + 4 * 4096))
    I('v_mov_b32 v%d, s%d' % (v, sT[5])); I('v_writelane_b32 v%d, s%d, 0' % (v, sT[4]))
    I('v_mov_b32 v%d, 4' % g.vPT); I('v_writelane_b32 v%d, 14, 0' % g.vPT)

def phi(g, acc, tmp, n):
    I = g.a.I; SE = 's[%d:%d]' % (g.sEPS, g.sEPS + 1)
    for p in range(0, n, 2): I('v_pk_mul_f32 %s, %s, %s op_sel:[0,1] op_sel_hi:[1,1]' % (vr(tmp + p, 2), vr(acc + p, 2), SE))
    for v in range(n): I('v_min_f32 v%d, 0, v%d' % (tmp + v, tmp + v))
    for v in range(n): I('v_exp_f32 v%d, v%d' % (tmp + v, tmp + v)); I('v_max_f32 v%d, s%d, v%d' % (acc + v, g.sEPS, acc + v))
    for p in range(0, n, 2): I('v_pk_add_f32 %s, %s, %s' % (vr(acc + p, 2), vr(acc + p, 2), vr(tmp + p, 2)))

def a_signal(g, sfx):
    a = g.a; I = a.I; sT = g.sT
    I('s_lshr_b32 s%d, s%d, 2' % (sT[6], g.sH)); I('s_lshl_b32 s%d, s%d, 7' % (sT[6], sT[6])); I('s_add_u32 s%d, s%d, %d' % (sT[6], sT[6], CNT))
    I('v_mov_b32 v2, 1'); I('v_lshlrev_b32 v3, 9, v1'); I('v_mov_b32 v4, %d' % g.LCL)
    a.wait(vm='ast')
    I('s_mov_b64 exec, 1')
    I('ds_add_rtn_u32 v5, v4, v2')
    I('s_mov_b64 exec, -1')
    I('s_waitcnt lgkmcnt(0)')
    I('v_readfirstlane_b32 s%d, v5' % sT[5]); I('s_cmp_eq_u32 s%d, 7' % sT[5]); I('s_cselect_b32 s%d, s%d, 0x20000000' % (sT[6], sT[6]))
    I('s_mov_b64 exec, 0xff')
    I('buffer_atomic_add v2, v3, s[%d:%d], s%d offen sc1' % (g.sWS, g.sWS + 3, sT[6]), tag='sig')
    I('s_mov_b64 exec, -1')

def phase_A0(g):
    a = g.a; I = a.I; sT = g.sT; pf = g.pf; cfg = g.cfg
    sW, sH, sRBA = g.sW, g.sH, g.sRBA; vL16 = g.vL16
    ACCK, ACCV, XB, WB, vONE = 8, 24, 40, 56, 88
    vX = [92, 93, 94, 95]; vW = 96; vXR = [97, 98, 99, 100]; vT, vTc, vTo, vN4, vCA, vSA, vGA = 101, 102, 103, 104, 105, 106, 107
    vCS = 108; vRed = vX[0:2]; vKW = vX[2]
    aC0, aC1, aKV = 112, 96, 112
    I('v_lshrrev_b32 v2, 3, v1'); I('v_lshrrev_b32 v3, 4, v1'); I('v_and_b32 v4, 7, v1')
    I('v_xor_b32 v5, v4, v3'); I('v_lshlrev_b32 v5, 4, v5')
    I('v_mul_u32_u24 v6, 896, v2'); I('v_add_u32 v%d, v6, v5' % vX[0])
    I('v_xor_b32 v%d, 64, v%d' % (vX[1], vX[0])); I('v_add_u32 v%d, 7168, v%d' % (vX[1], vX[1]))
    I('v_add_u32 v%d, 14336, v%d' % (vX[2], vX[0])); I('v_add_u32 v%d, 14336, v%d' % (vX[3], vX[1]))
    I('v_lshrrev_b32 v5, 2, v1'); I('v_and_b32 v6, 3, v1')
    I('v_mul_u32_u24 v7, 2688, v5'); I('v_lshl_add_u32 v%d, v6, 4, v7' % vW)
    sXB, sWB, sXRB, sCL, sCC, sW10 = g.sP0, g.sP0 + 1, g.sP0 + 2, g.sP0 + 3, g.sP1, g.sP1 + 1
    I('s_lshl_b32 s%d, s%d, 10' % (sW10, sW))
    I('s_lshl_b32 s%d, s%d, 2' % (sT[0], sRBA)); I('s_add_u32 s%d, s%d, s%d' % (sT[0], sT[0], sW)); I('s_mul_i32 s%d, s%d, %d' % (sXB, sT[0], 32 * 896))
    I('s_mul_i32 s%d, s%d, 56' % (sWB, sH)); I('s_mul_i32 s%d, s%d, %d' % (sT[1], sW, 16 * 2688)); I('s_add_u32 s%d, s%d, s%d' % (sWB, sWB, sT[1]))
    I('s_mul_i32 s%d, s%d, 12288' % (sXRB, sW)); I('s_add_u32 s%d, s%d, %d' % (sXRB, sXRB, g.XRL))
    I('s_mov_b32 s%d, s%d' % (sCL, g.sRHO)); I('s_mov_b32 s%d, s%d' % (sCC, g.sRHO))
    I('s_waitcnt lgkmcnt(0)')
    pf.stamp('args')
    srd(a, g.sX, 4, 2048 * 896); srd(a, g.sWq, 6, 448 * 2688)
    def grp(ops):
        def f():
            for o in ops:
                if callable(o): o()
                else: I(o)
        return f
    def a_groups(j):
        G = []
        pre = ['s_mul_i32 s%d, s%d, %d' % (sT[1], sCL, 64 * 2688), 's_lshl_b32 s%d, s%d, 12' % (sT[2], sCL), 's_add_u32 s%d, s%d, s%d' % (sT[2], sT[2], sW10),
               's_add_u32 m0, s%d, %d' % (sT[2], g.WKL - 896), 's_add_u32 s%d, s%d, s%d' % (sT[1], sT[1], sWB)]
        G.append(grp(pre + [lambda: I('buffer_load_dwordx4 v%d, s[%d:%d], s%d offen offset:896 lds' % (vW, g.sWq, g.sWq + 3, sT[1]), tag='c%d' % j)]))
        G.append(grp(['s_add_u32 m0, s%d, %d' % (sT[2], g.WVL - 1792), 's_lshl_b32 s%d, s%d, 7' % (sT[0], sCL),
                      lambda: I('buffer_load_dwordx4 v%d, s[%d:%d], s%d offen offset:1792 lds' % (vW, g.sWq, g.sWq + 3, sT[1]), tag='c%d' % j)]))
        G.append(grp(['s_add_u32 m0, s%d, %d' % (sT[2], g.WQL), 's_add_u32 s%d, s%d, s%d' % (sT[0], sT[0], sXB),
                      lambda: I('buffer_load_dwordx4 v%d, s[%d:%d], s%d offen lds' % (vW, g.sWq, g.sWq + 3, sT[1]), tag='c%d' % j)]))
        for q in range(4):
            G.append(grp(['s_add_u32 m0, s%d, %d' % (sXRB, (j % 3) * 4096 + q * 1024)] + ([lambda: adv(g, sCL)] if q == 1 else []) +
                         [lambda q=q: I('buffer_load_dwordx4 v%d, s[%d:%d], s%d offen lds' % (vX[q], g.sX, g.sX + 3, sT[0]), tag='c%d' % j)]))
        return G
    for f in a_groups(0): f()
    common_consts(g)
    I('s_cmp_eq_u32 s%d, 0' % g.sW8); I('s_cselect_b32 s%d, %s, 0' % (g.sKZ + 2, hex(WS_BYTES)))
    a_patterns(g, vT, vXR, vN4, sXRB)
    I('v_add_u32 v%d, %d, v%d' % (vT, g.WKL, vT))
    for i in range(4): I('v_mov_b32 v%d, s%d' % (vONE + i, g.sONE))
    I('s_lshl_b32 s%d, s%d, 7' % (sT[3], sW)); I('s_add_u32 s%d, s%d, %d' % (sT[3], sT[3], g.CSL)); I('v_add_u32 v%d, s%d, v%d' % (vCA, sT[3], vN4))
    I('s_lshl_b32 s%d, s%d, 8' % (sT[3], sW)); I('s_add_u32 s%d, s%d, %d' % (sT[3], sT[3], g.STATL))
    I('v_lshlrev_b32 v3, 4, v2'); I('v_add_u32 v%d, s%d, v3' % (vSA, sT[3]))
    I('s_mul_i32 s%d, s%d, 4608' % (g.sPT, sW)); I('s_add_u32 s%d, s%d, %d' % (g.sPT, g.sPT, g.KVRL))
    for f in a_groups(1): f()
    pf.stamp('issued')
    def w_addr():
        I('s_lshl_b32 s%d, s%d, 12' % (sT[3], sCC)); I('v_add_u32 v%d, s%d, v%d' % (vTc, sT[3], vT)); I('v_add_u32 v%d, s%d, v%d' % (vTo, sW10, vTc)); adv(g, sCC)
    red_ops = ['v_and_b32 v3, 31, v1', 'v_mul_u32_u24 v3, 144, v3', 'v_lshrrev_b32 v4, 5, v1', 'v_lshl_add_u32 v3, v4, 4, v3', 'v_add_u32 v%d, s%d, v3' % (vKW, g.sPT),
               'v_bfe_u32 v5, v1, 2, 2', 'v_lshl_add_u32 v4, v4, 2, v5', 'v_bfe_u32 v5, v1, 4, 1', 'v_mul_u32_u24 v5, 14, v5', 'v_add_u32 v5, v5, v4',
               'v_and_b32 v6, 3, v1', 'v_lshlrev_b32 v6, 2, v6', 's_lshl_b32 s%d, s%d, 5' % (sT[4], sW), 's_add_u32 s%d, s%d, %d' % (sT[4], sT[4], g.KVRL),
               'v_add_u32 v6, s%d, v6' % sT[4], 'v_mul_u32_u24 v7, 144, v5', 'v_add_u32 v%d, v7, v6' % vRed[0],
               'v_add_u32 v%d, %d, v%d' % (vRed[1], 8 * 144, vRed[0]), 'v_mul_u32_u24 v7, 144, v4', 'v_add_u32 v7, v7, v6', 'v_add_u32 v7, %d, v7' % (22 * 144),
               'v_cmp_lt_u32 vcc, 5, v4', 'v_cndmask_b32 v%d, v%d, v7, vcc' % (vRed[1], vRed[1])]
    w_addr()
    for j in range(7):
        a.wait(vm='c%d' % j)
        for t in range(4): I('ds_read_b128 %s, v%d offset:%d' % (vr(XB + 4 * t, 4), vXR[t], 4096 * (j % 3)), tag='xf%d' % j)
        trfrag(a, WB + 24, vTo, 0, 'o%d' % j); trfrag(a, WB + 28, vTo, 28672, 'o%d' % j)
        I('s_barrier')
        if j in (0, 3, 6): pf.stamp('c%d' % j)
        def rd(t):
            st = t % 3
            trfrag(a, WB + 8 * st, vTc, 1024 * t, 'w%d_%d' % (j, t)); trfrag(a, WB + 8 * st + 4, vTc, 28672 + 1024 * t, 'w%d_%d' % (j, t))
        rd(0); rd(1)
        G = a_groups(j + 2) if j + 2 < 7 else []
        if j == 5:
            G = [grp(red_ops[k:k + 4]) for k in range(0, len(red_ops), 4)]
            G.append(lambda: I('buffer_load_dword v%d, v%d, s[%d:%d], 0 offen sc1' % (g.vPoll, g.vPA, g.sDBG, g.sDBG + 3), tag='poll'))
        if j == 6: G = [grp([]), grp([]), grp([]), grp(['ds_write_b32 v%d, a%d' % (vCA, aC0), 'ds_write_b32 v%d, a%d offset:512' % (vCA, aC1), 'v_add_u32 v5, %d, v%d' % (g.CSL, vN4)])]
        a.wait(lg='o%d' % j)
        I(MF(ar(aC0, 16), vr(vONE, 4), vr(WB + 24, 4), '0' if j == 0 else ar(aC0, 16)))
        rd(2)
        I(MF(ar(aC1, 16), vr(vONE, 4), vr(WB + 28, 4), '0' if j == 0 else ar(aC1, 16)))
        if G: G.pop(0)()
        for t in range(4):
            st = t % 3
            a.wait(lg='w%d_%d' % (j, t))
            first = (j == 0 and t == 0)
            I(MF(vr(ACCK, 16), vr(XB + 4 * t, 4), vr(WB + 8 * st, 4), '0' if first else vr(ACCK, 16)))
            if G: G.pop(0)()
            I(MF(vr(ACCV, 16), vr(XB + 4 * t, 4), vr(WB + 8 * st + 4, 4), '0' if first else vr(ACCV, 16)))
            if t == 0:
                rd(3)
                if j < 6: w_addr()
            elif G: G.pop(0)()
        while G: G.pop(0)()
    pf.stamp('loop')
    a.wait(lg=0); I('s_barrier')
    for i in range(8): I('ds_read_b32 v%d, v5 offset:%d' % (XB + i, 128 * i), tag='cs')
    for qd in range(4): I('ds_read_b128 %s, v%d offset:%d' % (vr(WB + 16 + 4 * qd, 4), vSA, 128 + 32 * qd), tag='st')
    for qd in range(4): I('ds_read_b128 %s, v%d offset:%d' % (vr(WB + 4 * qd, 4), vSA, 32 * qd), tag='st2')
    pf.stamp('X1')
    poll(g, 'kf_pz0', g.vPA, 0xffff, 4, g.sDBG, early='poll')
    Q = XB
    a.wait(lg='cs')
    I('v_add_f32 v%d, v%d, v%d' % (Q, Q, Q + 1)); I('v_add_f32 v%d, v%d, v%d' % (Q + 2, Q + 2, Q + 3)); I('v_add_f32 v%d, v%d, v%d' % (vCS, Q, Q + 2))
    I('v_add_f32 v%d, v%d, v%d' % (Q + 4, Q + 4, Q + 5)); I('v_add_f32 v%d, v%d, v%d' % (Q + 6, Q + 6, Q + 7)); I('v_add_f32 v%d, v%d, v%d' % (vCS + 1, Q + 4, Q + 6))
    SE = 's[%d:%d]' % (g.sEPS, g.sEPS + 1); CSP = vr(vCS, 2)
    a.wait(lg='st')
    for p in range(0, 16, 2):
        I('v_pk_fma_f32 %s, %s, %s, %s op_sel_hi:[1,0,1]' % (vr(ACCK + p, 2), vr(WB + 16 + p, 2), CSP, vr(ACCK + p, 2)))
        I('v_pk_fma_f32 %s, %s, %s, %s op_sel:[0,1,0] op_sel_hi:[1,1,1]' % (vr(ACCV + p, 2), vr(WB + 16 + p, 2), CSP, vr(ACCV + p, 2)))
    a.wait(lg='st2')
    for p in range(0, 16, 2):
        I('v_pk_fma_f32 %s, %s, %s, %s op_sel_hi:[1,1,0]' % (vr(ACCK + p, 2), vr(ACCK + p, 2), vr(WB + p, 2), SE))
        I('v_pk_mul_f32 %s, %s, %s' % (vr(ACCV + p, 2), vr(ACCV + p, 2), vr(WB + p, 2)))
    phi(g, ACCK, XB, 16)
    for p in range(8):
        I('v_cvt_pk_bf16_f32 v%d, v%d, v%d' % (ACCK + p, ACCK + 2 * p, ACCK + 2 * p + 1)); I('v_cvt_pk_bf16_f32 v%d, v%d, v%d' % (ACCV + p, ACCV + 2 * p, ACCV + 2 * p + 1))
    I('s_mov_b64 exec, s[%d:%d]' % (g.sMV28, g.sMV28 + 1))
    for p in range(8): I('v_mov_b32 v%d, s%d' % (ACCV + p, g.sONE))
    I('s_mov_b64 exec, -1')
    pf.stamp('epi')
    I(MF(ar(aKV, 16), vr(ACCK, 4), vr(ACCV, 4), '0')); I(MF(ar(aKV, 16), vr(ACCK + 4, 4), vr(ACCV + 4, 4), ar(aKV, 16)))
    I('s_lshl_b32 s%d, s%d, 12' % (sT[3], sH)); I('s_add_u32 s%d, s%d, s%d' % (sT[3], sT[3], sW10)); I('s_add_u32 s%d, s%d, %d' % (sT[3], sT[3], KVACC))
    go_addr(g, vGA)
    for q in range(4): I('ds_write_b128 v%d, %s offset:%d' % (vKW, ar(aKV + 4 * q, 4), 32 * q))
    a.wait(lg=0); I('s_barrier')
    pf.stamp('X2')
    RB = WB
    for j in range(4):
        for p in range(4): I('ds_read_b32 v%d, v%d offset:%d' % (RB + 4 * j + p, vRed[j % 2], 4608 * p + 16 * (j // 2)), tag='red%d' % j)
    I('s_cmp_eq_u32 s%d, 3' % sW); I('s_cselect_b32 s%d, 0x20000000, s%d' % (sT[4], sT[3]))
    for j in range(4):
        a.wait(lg='red%d' % j)
        b = RB + 4 * j
        I('v_add_f32 v%d, v%d, v%d' % (b, b, b + 1)); I('v_add_f32 v%d, v%d, v%d' % (b + 2, b + 2, b + 3)); I('v_add_f32 v%d, v%d, v%d' % (b, b, b + 2))
        I('buffer_atomic_add_f32 v%d, v%d, s[%d:%d], s%d offen offset:%d' % (b, g.vPA, g.sWS, g.sWS + 3, sT[3] if j < 2 else sT[4], 256 * j), tag='ast')
    pf.stamp('atom')
    I('buffer_load_dword v%d, v%d, s[%d:%d], 0 offen sc1' % (g.vPoll, vGA, g.sWS, g.sWS + 3), tag='gop')
    pf.stamp('pre')
    a_signal(g, '0')
    poll(g, 'kf_pg0', vGA, 3, 'v%d' % g.vPT, g.sWS, early='gop')

def phase_A1(g):
    a = g.a; I = a.I; sT = g.sT; pf = g.pf; cfg = g.cfg
    sW, sH, sRBA = g.sW, g.sH, g.sRBA; vL16 = g.vL16
    ACCQ, XB, QW, CQ, vONE = 8, 24, 40, 64, 88
    vXR = [97, 98, 99, 100]; vT, vTc, vTo, vN4, vCA, vGA = 101, 102, 103, 104, 105, 107
    vS1a, vS1b, vS2a, vS2b = 92, 93, 94, 95; vRN = 108
    vPT = [110, 111, 112, 113]; vPD = 114
    aC = 112; aPK = 0
    A_, C_ = g.sQ[0], g.sQ[1]
    I('s_mul_i32 s%d, s2, 9363' % A_); I('s_lshr_b32 s%d, s%d, 16' % (A_, A_)); I('s_mul_i32 s%d, s%d, 7' % (C_, A_)); I('s_sub_u32 s%d, s2, s%d' % (C_, C_))
    I('v_lshrrev_b32 v2, 3, v1'); I('v_lshrrev_b32 v3, 4, v1'); I('v_and_b32 v4, 7, v1')
    I('v_and_b32 v5, 15, v1'); I('v_lshlrev_b32 v5, 4, v5'); I('v_lshl_add_u32 v%d, v3, 14, v5' % vGA)
    for i in range(4): I('v_mov_b32 v%d, 0' % (vONE + i))
    I('s_waitcnt lgkmcnt(0)')
    pf.stamp('args')
    srd(a, g.sX, 4, 2048 * 896); srd(a, g.sKZ, 22, WS_BYTES); srd(a, g.sDZ, 20, 256); srd(a, g.sPO, 22, WS_BYTES)
    I('s_cmp_eq_u32 s%d, 0' % sRBA); I('s_cselect_b32 s%d, %s, 0' % (g.sKZ + 2, hex(WS_BYTES))); I('s_cselect_b32 s%d, 256, 0' % (g.sDZ + 2))
    sW10, sCC, sXRB, sPSG = g.sWq, g.sWq + 1, g.sWq + 2, g.sWq + 3
    I('s_lshl_b32 s%d, s%d, 10' % (sW10, sW))
    I('v_mov_b32 v5, %d' % g.LCL); I('ds_write_b32 v5, v%d' % vONE)
    I('s_cmp_lg_u32 s%d, 0' % sRBA); a.branch('s_cbranch_scc1 kf_nz')
    I('s_lshl_b32 s%d, s%d, 12' % (sT[3], sH)); I('s_add_u32 s%d, s%d, s%d' % (sT[3], sT[3], sW10)); I('s_add_u32 s%d, s%d, %d' % (sT[3], sT[3], KVACC))
    I('buffer_store_dwordx4 v[%d:%d], v%d, s[%d:%d], s%d offen sc0 sc1' % (vONE, vONE + 3, vL16, g.sKZ, g.sKZ + 3, sT[3]), tag='zero')
    I('s_lshl_b32 s%d, s%d, 8' % (sT[3], sH)); I('s_lshl_b32 s%d, s%d, 12' % (sT[4], sW)); I('s_add_u32 s%d, s%d, s%d' % (sT[3], sT[3], sT[4])); I('s_add_u32 s%d, s%d, %d' % (sT[3], sT[3], CNT))
    I('s_mov_b32 exec_hi, 0')
    I('buffer_store_dwordx4 v[%d:%d], v%d, s[%d:%d], s%d offen sc0 sc1' % (vONE, vONE + 3, vGA, g.sKZ, g.sKZ + 3, sT[3]), tag='zero')
    I('s_lshl_b32 s%d, s%d, 10' % (sT[3], sH)); I('s_lshl_b32 s%d, s%d, 8' % (sT[4], sW)); I('s_add_u32 s%d, s%d, s%d' % (sT[3], sT[3], sT[4])); I('s_add_u32 s%d, s%d, %d' % (sT[3], sT[3], CSGU))
    I('s_mov_b32 exec_lo, 0xffff')
    I('buffer_store_dwordx4 v[%d:%d], v%d, s[%d:%d], s%d offen sc0 sc1' % (vONE, vONE + 3, vL16, g.sKZ, g.sKZ + 3, sT[3]), tag='zero')
    I('s_mov_b64 exec, -1')
    a.label('kf_nz')
    I('s_cmp_lt_u32 s%d, 28' % A_)
    for k in range(2):
        I('s_cselect_b32 s%d, s%d, s%d' % (g.sP0 + k, 12 + k, 8 + k)); I('s_cselect_b32 s%d, s%d, s%d' % (g.sP1 + k, 14 + k, 8 + k))
    sel(a, g.sP0 + 2, 448 * 3584, 448 * 896)
    I('s_mov_b32 s%d, 0x20000' % (g.sP0 + 3)); I('s_mov_b32 s%d, 0x20000' % (g.sP1 + 3))
    I('s_cmp_lt_u32 s%d, 32' % A_)
    I('s_cselect_b32 s%d, s%d, 0' % (g.sP0 + 2, g.sP0 + 2)); I('s_mov_b32 s%d, s%d' % (g.sP1 + 2, g.sP0 + 2)); I('s_cselect_b32 s%d, %s, 0' % (g.sPO + 2, hex(WS_BYTES)))
    sPS = g.S4[0:4]; sPOs = g.S4[4:8]; sPCS = g.S4[8]
    I('s_lshl_b32 s%d, s%d, 2' % (sT[4], C_)); I('s_add_u32 s%d, s%d, s%d' % (sT[4], sT[4], sW))
    I('s_mul_i32 s%d, s%d, %d' % (sT[5], sT[4], 16 * 3584)); I('s_lshl_b32 s%d, s%d, 7' % (sT[6], A_)); I('s_add_u32 s%d, s%d, s%d' % (sPS[0], sT[5], sT[6]))
    I('s_mul_i32 s%d, s%d, 112' % (sT[5], A_)); I('s_add_u32 s%d, s%d, s%d' % (sT[5], sT[5], sT[4]))
    I('s_lshl_b32 s%d, s%d, 10' % (sT[5], sT[5])); I('s_add_u32 s%d, s%d, %d' % (sPOs[0], sT[5], GUP))
    I('s_lshr_b32 s%d, s%d, 1' % (sPSG, A_)); I('s_lshl_b32 s%d, s%d, 8' % (sPSG, sPSG)); I('s_add_u32 s%d, s%d, %d' % (sPSG, sPSG, CNT + 3 * 4096))
    I('s_sub_u32 s%d, s%d, 28' % (sT[4], A_)); I('s_lshl_b32 s%d, s%d, 2' % (sT[4], sT[4])); I('s_add_u32 s%d, s%d, s%d' % (sT[4], sT[4], sW))
    I('s_mul_i32 s%d, s%d, %d' % (sT[5], sT[4], 28 * 896)); I('s_lshl_b32 s%d, s%d, 7' % (sT[6], C_)); I('s_add_u32 s%d, s%d, s%d' % (sPS[1], sT[5], sT[6]))
    I('s_lshl_b32 s%d, s%d, 16' % (sT[5], C_)); I('s_lshl_b32 s%d, s%d, 11' % (sT[6], sT[4]))
    I('s_add_u32 s%d, s%d, s%d' % (sT[5], sT[5], sT[6])); I('s_add_u32 s%d, s%d, %d' % (sPOs[1], sT[5], WOP))
    I('s_lshl_b32 s%d, s%d, 8' % (sT[5], C_)); I('s_add_u32 s%d, s%d, %d' % (sT[5], sT[5], CNT + 4 * 4096))
    I('s_cmp_lt_u32 s%d, 32' % A_); I('s_cselect_b32 s%d, s%d, 0x20000000' % (sT[5], sT[5]))
    I('s_cmp_lt_u32 s%d, 28' % A_)
    I('s_cselect_b32 s%d, s%d, s%d' % (sPS[0], sPS[0], sPS[1])); I('s_cselect_b32 s%d, s%d, s%d' % (sPOs[0], sPOs[0], sPOs[1])); I('s_cselect_b32 s%d, s%d, s%d' % (sPSG, sPSG, sT[5]))
    I('s_mul_i32 s%d, s%d, 512' % (sPCS, A_)); I('s_cselect_b32 s%d, s%d, 0x20000000' % (sPCS, sPCS))
    sel(a, sT[3], 3584, 896); sel(a, sT[4], 8 * 3584, 8 * 896); I('s_cselect_b32 s%d, 0, %d' % (sT[5], 16 * 896))
    sel(a, sT[6], 28672, 1024); sel(a, sT[7], 57344, 32768)
    sel(a, g.sONE, 16 * 128, 32); sel(a, g.sEPS, 8 * 128, 14 * 128); I('s_cselect_b32 s%d, 32, %d' % (g.sL2E, 8 * 128))
    I('s_add_u32 s%d, s%d, s%d' % (sPS[1], sPS[0], sT[4])); I('s_add_u32 s%d, s%d, s%d' % (sPS[2], sPS[0], sT[5])); I('s_add_u32 s%d, s%d, s%d' % (sPS[3], sPS[2], sT[4]))
    I('s_add_u32 s%d, s%d, s%d' % (sPOs[1], sPOs[0], sT[6])); I('s_add_u32 s%d, s%d, s%d' % (sPOs[2], sPOs[0], sT[7])); I('s_add_u32 s%d, s%d, s%d' % (sPOs[3], sPOs[2], sT[6]))
    I('s_add_u32 s%d, s%d, %d' % (sPCS, sPCS, CSGU))
    I('v_mul_lo_u32 v5, v2, s%d' % sT[3]); I('v_lshl_add_u32 v%d, v4, 4, v5' % vPD)
    I('v_lshrrev_b32 v2, 5, v1'); I('v_bfe_u32 v3, v1, 4, 1'); I('v_bfe_u32 v4, v1, 2, 2'); I('v_and_b32 v5, 3, v1')
    I('s_mul_i32 s%d, s%d, 4608' % (g.sPT, sW)); I('s_add_u32 s%d, s%d, %d' % (g.sPT, g.sPT, g.KVRL))
    I('v_mul_lo_u32 v6, v3, s%d' % g.sONE); I('v_mul_lo_u32 v7, v2, s%d' % g.sEPS); I('v_add3_u32 v6, v6, v7, s%d' % g.sPT)
    I('v_lshl_add_u32 v6, v4, 7, v6'); I('v_lshl_add_u32 v%d, v5, 3, v6' % vPT[0])
    I('v_add_u32 v%d, s%d, v%d' % (vPT[1], g.sL2E, vPT[0])); I('v_add_u32 v%d, 64, v%d' % (vPT[2], vPT[0])); I('v_add_u32 v%d, 64, v%d' % (vPT[3], vPT[1]))
    def pk_dma():
        for j in range(4):
            s = g.sP0 if j < 2 else g.sP1
            I('s_add_u32 m0, s%d, %d' % (g.sPT, 1024 * j)); I('buffer_load_dwordx4 v%d, s[%d:%d], s%d offen lds' % (vPD, s, s + 3, sPS[j]), tag='pk')
    PKI = cfg.get('pki', 0)
    if PKI < 0: pk_dma()
    common_consts(g)
    I('s_mov_b32 s%d, 0' % (g.sKZ + 2))
    I('s_mul_i32 s%d, s%d, 12288' % (sXRB, sW)); I('s_add_u32 s%d, s%d, %d' % (sXRB, sXRB, g.XRL)); I('s_mov_b32 s%d, s%d' % (sCC, g.sRHO))
    a_patterns(g, vT, vXR, vN4, sXRB)
    for r in (vS1a, vS1b, vS2a, vS2b): I('v_mov_b32 v%d, 0' % r)
    I('s_lshl_b32 s%d, s%d, 7' % (sT[3], sW)); I('s_add_u32 s%d, s%d, %d' % (sT[3], sT[3], g.CSL + 1024)); I('v_add_u32 v%d, s%d, v%d' % (vCA, sT[3], vN4))
    def flag_set():
        a.wait(vm=0)
        I('v_mov_b32 v5, 1'); I('s_lshl_b32 s%d, s%d, 2' % (sT[4], sH)); I('v_mov_b32 v6, s%d' % sT[4])
        I('s_mov_b64 exec, 1')
        I('buffer_atomic_add v5, v6, s[%d:%d], 0 offen sc1' % (g.sDZ, g.sDZ + 3), tag='flag')
        I('s_mov_b64 exec, -1')
        srd(a, g.sDZ, g.sWS, WS_BYTES); I('s_cmp_eq_u32 s%d, 0' % sW); I('s_cselect_b32 s%d, %s, 0' % (g.sDZ + 2, hex(WS_BYTES)))
    for i in range(4): I('v_mov_b32 v%d, s%d' % (vONE + i, g.sONE))
    go_addr(g, vGA)
    I('s_setprio %d' % cfg.get('prio', 2))
    pf.stamp('issued')
    PKJ = cfg.get('pkj', 4)
    gn = 0
    for j in range(7):
        I('s_lshl_b32 s%d, s%d, 12' % (sT[3], sCC)); I('v_add_u32 v%d, s%d, v%d' % (vTc, sT[3], vT)); I('v_add_u32 v%d, s%d, v%d' % (vTo, sW10, vTc)); adv(g, sCC)
        I('s_barrier')
        if j in (0, 3, 6): pf.stamp('c%d' % j)
        for t in range(4): I('ds_read_b128 %s, v%d offset:%d' % (vr(XB + 4 * t, 4), vXR[t], 4096 * (j % 3)), tag='xf%d' % j)
        for t in range(4): trfrag(a, QW + 4 * t, vTc, 1024 * t, 'q%d' % j)
        trfrag(a, QW + 16, vTo, 0, 'q%d' % j)
        if j == 0: flag_set()
        if j == PKI: pk_dma()
        if j == PKJ - 1: I('buffer_load_dword v%d, v%d, s[%d:%d], 0 offen sc1' % (g.vPoll, g.vPA, g.sDBG, g.sDBG + 3), tag='poll')
        a.wait(lg='q%d' % j)
        SS = Side(a)
        for r in range(16):
            x = XB + r; t = CQ + 2 * (r % 4)
            SS.add(['v_lshlrev_b32 v%d, 16, v%d' % (t, x), 'v_and_b32 v%d, s%d, v%d' % (t + 1, g.sSPIN, x), 'v_add_f32 v%d, v%d, v%d' % (vS1a, vS1a, t), 'v_add_f32 v%d, v%d, v%d' % (vS1b, vS1b, t + 1),
                    'v_fmac_f32 v%d, v%d, v%d' % (vS2a, t, t), 'v_fmac_f32 v%d, v%d, v%d' % (vS2b, t + 1, t + 1)])
        I('s_mov_b32 s%d, 0xffff0000' % g.sSPIN)
        I(MF(ar(aC, 16), vr(vONE, 4), vr(QW + 16, 4), '0' if j == 0 else ar(aC, 16))); SS.emit(60)
        for t in range(4):
            I(MF(vr(ACCQ, 16), vr(QW + 4 * t, 4), vr(XB + 4 * t, 4), '0' if (j == 0 and t == 0) else vr(ACCQ, 16))); SS.emit(60)
        SS.drain()
        if j == PKJ:
            a.wait(vm='pk')
            for f in range(4): trfrag(a, aPK + 4 * f, vPT[f], 0, 'pkr', f='a', d2=512)
            a.wait(lg='pkr')
            for f in range(4): I('buffer_store_dwordx4 %s, v%d, s[%d:%d], s%d offen sc1' % (ar(aPK + 4 * f, 4), vL16, g.sPO, g.sPO + 3, sPOs[f]), tag='pks')
            for f in range(4): I(MF(ar(16 + 16 * f, 16), vr(vONE, 4), ar(aPK + 4 * f, 4), '0'))
        if j == PKJ + 1:
            poll(g, 'kf_pz1', g.vPA, 0xffff, 4, g.sDBG, early='poll')
            I('s_mov_b32 exec_hi, 0')
            for f in range(4): I('buffer_atomic_add_f32 a%d, v%d, s[%d:%d], s%d offen offset:%d' % (16 + 16 * f, g.vPA, g.sWS, g.sWS + 3, sPCS, 128 * f), tag='pks')
            I('s_mov_b64 exec, -1')
    I('v_add_f32 v%d, v%d, v%d' % (vS1a, vS1a, vS1b)); I('v_add_f32 v%d, v%d, v%d' % (vS2a, vS2a, vS2b))
    I('v_mov_b32 v%d, v%d' % (vS1b, vS1a)); I('v_mov_b32 v%d, v%d' % (vS2b, vS2a))
    I('s_lshl_b32 s%d, s%d, 8' % (sT[3], sW)); I('s_add_u32 s%d, s%d, %d' % (sT[3], sT[3], g.STATL))
    I('v_permlane32_swap_b32 v%d, v%d' % (vS1a, vS1b)); I('v_permlane32_swap_b32 v%d, v%d' % (vS2a, vS2b))
    I('v_add_f32 v%d, v%d, v%d' % (vS1a, vS1a, vS1b)); I('v_add_f32 v%d, v%d, v%d' % (vS2a, vS2a, vS2b))
    ln_finish(a, 'v%d' % vS1a, 'v%d' % vS2a, 'v2', 'v3', 'v%d' % vRN, 'v4')
    I('v_sub_f32 v%d, 0, v4' % (vRN + 1)); I('v_add_u32 v2, s%d, v%d' % (sT[3], vN4))
    I('ds_write_b32 v2, v%d' % vRN); I('ds_write_b32 v2, v%d offset:128' % (vRN + 1)); I('ds_write_b32 v%d, a%d' % (vCA, aC))
    I('v_add_u32 v5, %d, v%d' % (g.CSL + 1024, vN4))
    pf.stamp('loop')
    a.wait(vm='pks', lg=0); I('s_barrier')
    for i in range(4): I('ds_read_b32 v%d, v5 offset:%d' % (XB + i, 128 * i), tag='cq')
    sig_add(g, sPSG, 6, g.sDZ)
    I('s_setprio 0')
    I('s_lshl_b32 s%d, s%d, 7' % (sT[2], sW)); I('s_add_u32 s%d, s%d, %d' % (sT[2], sT[2], g.CSQ2L)); I('v_add_u32 v3, s%d, v%d' % (sT[2], vN4))
    I('v_lshrrev_b32 v4, 5, v1'); I('v_lshlrev_b32 v4, 4, v4'); I('v_add_u32 v4, s%d, v4' % sT[2])
    pf.stamp('X1')
    a.wait(lg='cq')
    I('v_add_f32 v%d, v%d, v%d' % (XB, XB, XB + 1)); I('v_add_f32 v%d, v%d, v%d' % (XB + 2, XB + 2, XB + 3)); I('v_add_f32 v%d, v%d, v%d' % (XB, XB, XB + 2))
    I('ds_write_b32 v3, v%d' % XB)
    for q in range(4): I('ds_read_b128 %s, v4 offset:%d' % (vr(CQ + 4 * q, 4), 32 * q), tag='cq2')
    I('s_lshl_b32 s%d, s%d, 2' % (sT[0], sRBA)); I('s_add_u32 s%d, s%d, s%d' % (sT[0], sT[0], sW))
    I('s_lshl_b32 s%d, s%d, 6' % (sT[1], sH)); I('s_add_u32 s%d, s%d, s%d' % (sT[0], sT[0], sT[1])); I('s_lshl_b32 s%d, s%d, 11' % (sT[0], sT[0]))
    if PQF: I('s_add_u32 s%d, s%d, %d' % (sT[0], sT[0], PQF))
    a.wait(lg='cq2')
    RN = vr(vRN, 2); SE = 's[%d:%d]' % (g.sEPS, g.sEPS + 1)
    for p in range(0, 16, 2): I('v_pk_fma_f32 %s, %s, %s, %s op_sel:[0,1,0] op_sel_hi:[1,1,1]' % (vr(ACCQ + p, 2), vr(CQ + p, 2), RN, vr(ACCQ + p, 2)))
    for p in range(0, 16, 2): I('v_pk_fma_f32 %s, %s, %s, %s op_sel_hi:[1,0,0]' % (vr(ACCQ + p, 2), vr(ACCQ + p, 2), RN, SE))
    phi(g, ACCQ, QW, 16)
    for p in range(8): I('v_cvt_pk_bf16_f32 v%d, v%d, v%d' % (XB + p, ACCQ + 2 * p, ACCQ + 2 * p + 1))
    for p in (6, 7): I('v_cndmask_b32 v%d, 0, v%d, s[%d:%d]' % (XB + p, XB + p, g.sHI, g.sHI + 1))
    I('buffer_store_dwordx4 %s, v%d, s[%d:%d], s%d offen sc1' % (vr(XB, 4), vL16, g.sWS, g.sWS + 3, sT[0]), tag='ast')
    I('buffer_store_dwordx4 %s, v%d, s[%d:%d], s%d offen offset:1024 sc1' % (vr(XB + 4, 4), vL16, g.sWS, g.sWS + 3, sT[0]), tag='ast')
    pf.stamp('epi')
    I('s_barrier')
    pf.stamp('X2')
    pf.stamp('atom')
    I('buffer_load_dword v%d, v%d, s[%d:%d], 0 offen sc1' % (g.vPoll, vGA, g.sWS, g.sWS + 3), tag='gop')
    pf.stamp('pre')
    a_signal(g, '1')
    poll(g, 'kf_pg1', vGA, 3, 'v%d' % g.vPT, g.sWS, early='gop')

def xwrite(g, A0, off):
    return ['ds_write_b128 v%d, %s offset:%d' % (g.vRW[t - 1], vr(A0 + 16 * (t & 1) + 8 * (t >> 1) + 4 * q, 4), off + 1024 * q) for t in range(1, 4) for q in range(2)]
def xfinish(g, b, O, P0, RS, off, tag, pk):
    a = g.a; I = a.I
    ops = [((lambda t=t, q=q: I('ds_read_b128 %s, v%d offset:%d' % (vr(P0 + 8 * t + 4 * q, 4), g.vRR, off + 2048 * t + 1024 * q), tag=tag)), 6) for t in range(3) for q in range(2)]
    ops += ['v_permlane32_swap_b32 v%d, v%d' % (O + k, O + 2 + k) for k in range(2)]
    for k in range(4): ops += ['v_lshlrev_b32 v%d, 16, v%d' % (RS + 2 * k, O + k), 'v_and_b32 v%d, 0xffff0000, v%d' % (RS + 2 * k + 1, O + k)]
    if pk:
        ops += ['v_pk_add_f32 %s, %s, %s' % (vr(b + v, 2), vr(b + v, 2), vr(RS + v, 2)) for v in range(0, 8, 2)]
        ops += [((lambda: a.wait(lg=tag)), 3)]
        for v in range(0, 8, 2): ops += ['v_pk_add_f32 %s, %s, %s' % (vr(b + v, 2), vr(b + v, 2), vr(P0 + v, 2)), 'v_pk_add_f32 %s, %s, %s' % (vr(P0 + 8 + v, 2), vr(P0 + 8 + v, 2), vr(P0 + 16 + v, 2))]
        ops += ['v_pk_add_f32 %s, %s, %s' % (vr(b + v, 2), vr(b + v, 2), vr(P0 + 8 + v, 2)) for v in range(0, 8, 2)]
    else:
        ops += ['v_add_f32 v%d, v%d, v%d' % (b + v, b + v, RS + v) for v in range(8)]
        ops += [((lambda: a.wait(lg=tag)), 3)]
        for v in range(8): ops += ['v_add_f32 v%d, v%d, v%d' % (b + v, b + v, P0 + v), 'v_add_f32 v%d, v%d, v%d' % (P0 + 8 + v, P0 + 8 + v, P0 + 16 + v)]
        ops += ['v_add_f32 v%d, v%d, v%d' % (b + v, b + v, P0 + 8 + v) for v in range(8)]
    ops += ['v_cvt_pk_bf16_f32 v%d, v%d, v%d' % (O + k, b + 2 * k, b + 2 * k + 1) for k in range(4)]
    ops += ['s_nop 0', 's_nop 0']
    ops += ['v_permlane32_swap_b32 v%d, v%d' % (O + k, O + 2 + k) for k in range(2)]
    return ops

def phase_B(g):
    a = g.a; I = a.I; sT = g.sT; pf = g.pf; cfg = g.cfg
    sW, sR = g.sW, g.sRole; vL16 = g.vL16
    ACC, KVP, NUM, RES = 8, 40, 72, 104
    vWO = [108, 109]; vKX, vKR = 110, 111
    g.vRW = [112, 113, 114]; g.vRR = 115
    aPQ, aWO = 80, 112
    WOL, KXL, XCL = 65536, 131072, 0
    sE, sCT, sKS, sRT, sKVB, sPQB = g.S4[0:6]
    g.sE, g.sCT, g.sKS = sE, sCT, sKS
    I('s_lshl_b32 s%d, s%d, 16' % (sT[2], g.sCS)); I('s_lshl_b32 s%d, s%d, 13' % (sT[3], g.sW8)); I('s_add_u32 s%d, s%d, s%d' % (sT[2], sT[2], sT[3])); I('s_add_u32 s%d, s%d, %d' % (sT[2], sT[2], WOP))
    for k in range(8):
        if k % 4 == 0:
            I('s_add_u32 m0, s%d, %d' % (sT[3], WOL + 1024 * k)); I('s_add_u32 s%d, s%d, %d' % (sT[4], sT[2], 1024 * k))
        I('buffer_load_dwordx4 v%d, s[%d:%d], s%d offen offset:%d sc1 lds' % (vL16, g.sWS, g.sWS + 3, sT[4], 1024 * (k % 4)), tag='wo')
    I('s_lshr_b32 s%d, s%d, 1' % (sT[2], g.sRB64)); I('s_lshl_b32 s%d, s%d, 2' % (sE, sT[2])); I('s_and_b32 s%d, s%d, 1' % (sT[3], g.sRB64)); I('s_add_u32 s%d, s%d, s%d' % (sE, sE, sT[3]))
    I('s_lshl_b32 s%d, s%d, 1' % (sRT, sR)); I('s_add_u32 s%d, s%d, s%d' % (sRT, sRT, sE))
    I('s_and_b32 s%d, s%d, 1' % (sT[1], sW)); I('s_lshl_b32 s%d, s%d, 1' % (sCT, g.sCS)); I('s_add_u32 s%d, s%d, s%d' % (sCT, sCT, sT[1]))
    I('s_lshr_b32 s%d, s%d, 1' % (sT[0], sW)); I('s_lshl_b32 s%d, s%d, 1' % (sKS, sCT)); I('s_add_u32 s%d, s%d, s%d' % (sKS, sKS, sT[0]))
    I('s_mul_i32 s%d, s%d, %d' % (sT[2], sRT, 32 * 896)); I('s_lshl_b32 s%d, s%d, 5' % (sT[3], sKS)); I('s_add_u32 s%d, s%d, s%d' % (sT[2], sT[2], sT[3]))
    I('buffer_load_dwordx4 %s, v%d, s[%d:%d], s%d offen' % (vr(RES, 4), g.vXo, g.sX, g.sX + 3, sT[2]), tag='xr')
    I('s_lshl_b32 s%d, s%d, 8' % (sT[3], sT[0])); I('v_xor_b32 v%d, s%d, v%d' % (g.vLx, sT[3], vL16))
    I('s_lshl_b32 s%d, s%d, 15' % (sT[3], sT[1])); I('s_lshl_b32 s%d, s%d, 13' % (sT[4], sW)); I('s_add_u32 s%d, s%d, s%d' % (sT[3], sT[3], sT[4]))
    I('s_lshl_b32 s%d, s%d, 12' % (sT[4], sR)); I('s_add_u32 s%d, s%d, s%d' % (sT[3], sT[3], sT[4])); I('s_add_u32 s%d, s%d, %d' % (sT[3], sT[3], WOL))
    I('v_add_u32 v%d, s%d, v%d' % (vWO[0], sT[3], g.vLx)); I('v_xor_b32 v%d, 32768, v%d' % (vWO[1], vWO[0]))
    I('s_lshl_b32 s%d, s%d, 12' % (sT[3], g.sW8)); I('s_add_u32 s%d, s%d, %d' % (sT[3], sT[3], KXL)); I('v_add_u32 v%d, s%d, v%d' % (vKX, sT[3], vL16)); I('v_xor_b32 v%d, 16384, v%d' % (vKR, vKX))
    I('s_mul_i32 s%d, s%d, 24576' % (sT[4], sR)); I('s_add_u32 s%d, s%d, %d' % (sT[4], sT[4], XCL))
    for t in range(1, 4):
        I('s_xor_b32 s%d, s%d, %d' % (sT[3], sW, t)); I('s_mul_i32 s%d, s%d, 6144' % (sT[3], sT[3])); I('s_add_u32 s%d, s%d, s%d' % (sT[3], sT[3], sT[4])); I('s_add_u32 s%d, s%d, %d' % (sT[3], sT[3], (t - 1) * 2048))
        I('v_add_u32 v%d, s%d, v%d' % (g.vRW[t - 1], sT[3], vL16))
    I('s_mul_i32 s%d, s%d, 6144' % (sT[3], sW)); I('s_add_u32 s%d, s%d, s%d' % (sT[3], sT[3], sT[4])); I('v_add_u32 v%d, s%d, v%d' % (g.vRR, sT[3], vL16))
    I('s_and_b32 s%d, s2, 7' % sT[2]); I('s_lshl_b32 s%d, s%d, 2' % (sT[2], sT[2])); I('s_add_u32 s%d, s%d, s%d' % (sT[2], sT[2], sW))
    I('s_lshl_b32 s%d, s%d, 7' % (sT[2], sT[2])); I('s_add_u32 s%d, s%d, %d' % (sT[2], sT[2], CNT)); I('v_mov_b32 v%d, s%d' % (g.vPA, sT[2]))
    I('s_lshl_b32 s%d, s%d, 1' % (sT[2], sW)); I('s_add_u32 s%d, s%d, s%d' % (sT[2], sT[2], sR))
    I('s_lshl_b32 s%d, s%d, 13' % (sKVB, sT[2])); I('s_add_u32 s%d, s%d, %d' % (sKVB, sKVB, KVACC))
    I('s_lshl_b32 s%d, s%d, 18' % (sPQB, sT[2])); I('s_lshl_b32 s%d, s%d, 11' % (sT[3], sRT)); I('s_add_u32 s%d, s%d, s%d' % (sPQB, sPQB, sT[3]))
    c_setup(g)
    for j in range(g.gu_a): gu_load(g, j)
    pf.stamp('pfB')
    poll(g, 'kf_p1', g.vPA, 1, 64, g.sWS)
    pf.stamp('sync1')
    for k in range(2):
        for q in range(4):
            I('buffer_load_dwordx4 %s, v%d, s[%d:%d], s%d offen offset:%d sc1' % (vr(NUM + 16 * k + 4 * q, 4), g.vL4k if k else vL16, g.sWS, g.sWS + 3, sKVB, 1024 * q), tag='kv%d' % k)
    for i in range(4):
        if i == 0: I('s_add_u32 s%d, s%d, %d' % (sT[4], sPQB, PQF))
        if i == 1: I('s_add_u32 s%d, s%d, %d' % (sT[4], sT[4], 1 << 17))
        if i == 2: I('s_xor_b32 s%d, s%d, %d' % (sT[4], sPQB, 1 << 18)); I('s_add_u32 s%d, s%d, %d' % (sT[4], sT[4], PQF))
        if i == 3: I('s_add_u32 s%d, s%d, %d' % (sT[4], sT[4], 1 << 17))
        for kk in range(2):
            I('buffer_load_dwordx4 %s, v%d, s[%d:%d], s%d offen offset:%d sc1' % (ar(aPQ + 8 * i + 4 * kk, 4), vL16, g.sWS, g.sWS + 3, sT[4], 1024 * kk), tag='pq%d' % i)
    for j in range(g.gu_a, g.gu_c): gu_load(g, j)
    for k in range(2):
        a.wait(vm='kv%d' % k)
        for q in range(8): I('v_cvt_pk_bf16_f32 v%d, v%d, v%d' % (KVP + 8 * k + q, NUM + 16 * k + 2 * q, NUM + 16 * k + 2 * q + 1))
        for f in range(2): I('ds_write_b128 v%d, %s offset:%d' % (vKX, vr(KVP + 8 * k + 4 * f, 4), 2048 * k + 1024 * f))
    a.wait(lg=0); I('s_barrier')
    for f in range(4): I('ds_read_b128 %s, v%d offset:%d' % (vr(KVP + 16 + 4 * f, 4), vKR, 1024 * f), tag='kx')
    pf.stamp('kvx')
    def o_ops(k):
        n = NUM + 16 * (k % 2); t = 2 + k % 2
        ops = ['v_cvt_pk_bf16_f32 v%d, v%d, v%d' % (t, n + 14, n + 14), 'v_and_b32 v%d, 0xffff0000, v%d' % (t, t),
               'v_add_f32 v%d, s%d, v%d' % (t, g.sEPS, t), 'v_rcp_f32 v%d, v%d' % (t, t)]
        for v in range(14): ops.append('v_mul_f32 v%d, v%d, v%d' % (n + v, n + v, t))
        for p in range(7): ops.append('v_cvt_pk_bf16_f32 v%d, v%d, v%d' % (n + p, n + 2 * p, n + 2 * p + 1))
        ops.append('v_mov_b32 v%d, 0' % (n + 7))
        return ops
    def num(i):
        if i == 2: a.wait(lg='kx')
        a.wait(vm='pq%d' % i)
        n = NUM + 16 * (i % 2)
        for kk in range(2): I(MF(vr(n, 16), vr(KVP + 8 * i + 4 * kk, 4), ar(aPQ + 8 * i + 4 * kk, 4), '0' if kk == 0 else vr(n, 16)))
    def wo_rd(i):
        if i == 2:
            for c in range(2): I('v_xor_b32 v%d, 4096, v%d' % (vWO[c], vWO[c]))
        for c in range(2):
            for kk in range(2): I('ds_read_b128 %s, v%d offset:%d' % (ar(aWO + 8 * c + 4 * kk, 4), vWO[c], 2048 * (i % 2) + 1024 * kk), tag='wr%d' % i)
    S = Side(a)
    for j in range(g.gu_c, g.gu_b): gu_load(g, j)
    wo_rd(0); num(0)
    for op in o_ops(0): I(op)
    for i in range(4):
        if i + 1 < 4: num(i + 1); S.add(o_ops(i + 1))
        a.wait(lg='wr%d' % i)
        for kk in range(2):
            for c in range(2):
                acc = ACC + 16 * c
                I(MF(vr(acc, 16), ar(aWO + 8 * c + 4 * kk, 4), vr(NUM + 16 * (i % 2) + 4 * kk, 4), '0' if (i == 0 and kk == 0) else vr(acc, 16)))
                S.emit(30)
        if i + 1 < 4: wo_rd(i + 1)
        S.drain()
        if i == 2:
            for j in range(g.gu_b, 28): gu_load(g, j)
    pf.stamp('gemmB')
    for op in xwrite(g, ACC, 0): I(op)
    a.wait(lg=0); I('s_barrier')
    S.add(xfinish(g, ACC, RES, KVP, KVP + 24, 0, 'bx', True)); S.drain()
    I('s_mul_i32 s%d, s%d, 28' % (sT[0], sRT)); I('s_add_u32 s%d, s%d, s%d' % (sT[0], sT[0], sKS))
    I('s_lshl_b32 s%d, s%d, 10' % (sT[0], sT[0])); I('s_add_u32 s%d, s%d, %d' % (sT[0], sT[0], HF))
    I('buffer_store_dwordx4 %s, v%d, s[%d:%d], s%d offen sc1' % (vr(RES, 4), vL16, g.sWS, g.sWS + 3, sT[0]), tag='bst')
    X = KVP
    I('v_mov_b32 v%d, 0' % X); I('v_mov_b32 v%d, 0' % (X + 1))
    for q in range(4):
        I('v_dot2c_f32_bf16 v%d, s%d, v%d' % (X, g.sONE, RES + q)); I('v_dot2c_f32_bf16 v%d, v%d, v%d' % (X + 1, RES + q, RES + q))
    I('s_lshl_b32 s%d, s%d, 14' % (sT[0], sKS)); I('s_lshl_b32 s%d, s%d, 8' % (sT[1], sRT))
    I('s_add_u32 s%d, s%d, s%d' % (sT[0], sT[0], sT[1])); I('s_add_u32 s%d, s%d, %d' % (sT[0], sT[0], STATS))
    I('v_mov_b32 v%d, v%d' % (X + 2, X)); I('v_mov_b32 v%d, v%d' % (X + 3, X + 1)); I('v_lshlrev_b32 v%d, 3, v1' % (X + 6))
    I('v_permlane32_swap_b32 v%d, v%d' % (X, X + 2)); I('v_permlane32_swap_b32 v%d, v%d' % (X + 1, X + 3))
    I('v_add_f32 v%d, v%d, v%d' % (X + 4, X, X + 2)); I('v_add_f32 v%d, v%d, v%d' % (X + 5, X + 1, X + 3))
    I('s_mov_b32 exec_hi, 0')
    I('buffer_store_dwordx2 %s, v%d, s[%d:%d], s%d offen sc1' % (vr(X + 4, 2), X + 6, g.sWS, g.sWS + 3, sT[0]), tag='bst')
    I('s_mov_b64 exec, -1')
    pf.stamp('hst')

def c_setup(g):
    a = g.a; I = a.I; sT = g.sT; sW = g.sW
    g.sHG, g.sHL = g.S4[6], g.S4[7]; g.sO = g.S4[8]; g.sQD = g.S4[9:11]; g.sSTB = g.S4[11]
    I('s_lshl_b32 s%d, s%d, 3' % (sT[2], g.sFS)); I('s_add_u32 s%d, s%d, s%d' % (sT[2], sT[2], g.sW8))
    I('s_lshl_b32 s%d, s%d, 7' % (sT[3], sT[2])); I('s_add_u32 s%d, s%d, %d' % (sT[3], sT[3], CSGU))
    I('v_and_b32 v2, 31, v1'); I('v_lshlrev_b32 v3, 2, v2')
    I('buffer_load_dword v%d, v3, s[%d:%d], s%d offen sc1' % (g.vCSg, g.sWS, g.sWS + 3, sT[3]), tag='csg')
    I('s_mul_i32 s%d, s%d, %d' % (sT[0], g.sRB128, 4 * 112)); I('s_add_u32 s%d, s%d, s%d' % (sT[0], sT[0], sT[2]))
    I('s_lshl_b32 s%d, s%d, 10' % (sT[0], sT[0])); I('s_add_u32 s%d, s%d, %d' % (g.sO, sT[0], ACTF))
    I('s_min_u32 s%d, s%d, 6' % (g.sHL, g.sW8)); I('s_lshl_b32 s%d, s%d, 12' % (g.sHL, g.sHL))
    I('s_mul_i32 s%d, s%d, %d' % (g.sHG, g.sRB128, 4 * 28672)); I('s_add_u32 s%d, s%d, s%d' % (g.sHG, g.sHG, g.sHL)); I('s_add_u32 s%d, s%d, %d' % (g.sHG, g.sHG, HF))
    I('s_lshl_b32 s%d, s%d, 2' % (sT[0], g.sRB128)); I('s_add_u32 s%d, s%d, s%d' % (sT[0], sT[0], sW))
    I('s_lshl_b32 s%d, s%d, 8' % (g.sSTB, sT[0])); I('s_add_u32 s%d, s%d, %d' % (g.sSTB, g.sSTB, STATS))
    I('s_mul_i32 s%d, s%d, 224' % (sT[3], g.sCS)); I('s_mul_i32 s%d, s%d, 14' % (sT[4], g.sW8)); I('s_add_u32 s%d, s%d, s%d' % (sT[3], sT[3], sT[4]))
    I('s_lshl_b32 s%d, s%d, 10' % (sT[3], sT[3])); I('s_add_u32 s%d, s%d, %d' % (sT[3], sT[3], WDP))
    for q in range(2):
        I('s_add_u32 s%d, s%d, %d' % (sT[4], g.sR4, q)); I('s_and_b32 s%d, s%d, 1' % (sT[4], sT[4])); I('s_mul_i32 s%d, s%d, 7168' % (sT[4], sT[4])); I('s_add_u32 s%d, s%d, s%d' % (g.sQD[q], sT[4], sT[3]))

def wd_load(g, j, c):
    r = j % 7; f, reg = g.wd_regs[j][c]
    g.a.I('buffer_load_dwordx4 %s, v%d, s[%d:%d], s%d offen offset:%d sc1' % (vr(reg, 4, f), g.vLd[2 * c + (r >= 4)], g.sWS, g.sWS + 3, g.sQD[j // 7], 1024 * (r % 4)), tag='wd')

def phase_C(g):
    a = g.a; I = a.I; sT = g.sT; pf = g.pf; cfg = g.cfg
    sW = g.sW; vL16 = g.vL16
    ACC, HB, NMF, CI, TM, CSF = 8, 40, 60, 72, 80, 88
    NHB = 5
    vHQ = list(range(92, 100)); g.vLd = [100, 101, 102, 103]; vSO = 70; vSP = 8
    vSP = 24 - 0
    for q in range(4):
        I('s_add_u32 s%d, s%d, %d' % (sT[4], g.sR4, q)); I('s_and_b32 s%d, s%d, 3' % (sT[4], sT[4]))
        I('s_mul_i32 s%d, s%d, 7168' % (sT[5], sT[4])); I('v_add_u32 v%d, s%d, v%d' % (vHQ[q], sT[5], vL16)); I('v_add_u32 v%d, 57344, v%d' % (vHQ[4 + q], vHQ[q]))
    I('s_lshr_b32 s%d, s%d, 1' % (sT[6], g.sW8)); I('s_lshl_b32 s%d, s%d, 7' % (sT[6], sT[6])); I('v_xor_b32 v2, s%d, v%d' % (sT[6], vL16))
    I('s_and_b32 s%d, s%d, 1' % (sT[4], g.sW8)); I('s_mul_i32 s%d, s%d, 114688' % (sT[4], sT[4])); I('s_sub_u32 s%d, 114688, s%d' % (sT[5], sT[4]))
    I('v_add_u32 v%d, s%d, v2' % (g.vLd[0], sT[4])); I('v_add_u32 v%d, 4096, v%d' % (g.vLd[1], g.vLd[0]))
    I('v_add_u32 v%d, s%d, v2' % (g.vLd[2], sT[5])); I('v_add_u32 v%d, 4096, v%d' % (g.vLd[3], g.vLd[2]))
    I('v_and_b32 v2, 31, v1'); I('v_lshrrev_b32 v3, 5, v1')
    I('s_mul_i32 s%d, s%d, %d' % (sT[4], g.sRole, 7 * 16384))
    I('v_mul_u32_u24 v%d, %d, v3' % (vSO, 14 * 16384)); I('v_lshl_add_u32 v%d, v2, 3, v%d' % (vSO, vSO)); I('v_add_u32 v%d, s%d, v%d' % (vSO, sT[4], vSO))
    f = CSF
    I('v_mov_b32 v4, v%d' % g.vCSg)
    I('v_cvt_pk_bf16_f32 v5, v4, v4'); I('v_and_b32 v5, 0xffff0000, v5'); I('v_sub_f32 v6, v4, v5')
    I('v_cvt_pk_bf16_f32 v%d, v4, v6' % f); I('v_and_b32 v5, 0xffff0000, v%d' % f); I('v_sub_f32 v6, v6, v5'); I('v_cvt_pk_bf16_f32 v%d, v6, 0' % (f + 1))
    I('v_cndmask_b32 v%d, 0, v%d, s[%d:%d]' % (f, f, g.sHI, g.sHI + 1)); I('v_cndmask_b32 v%d, 0, v%d, s[%d:%d]' % (f + 1, f + 1, g.sHI, g.sHI + 1))
    I('v_mov_b32 v%d, 0' % (f + 2)); I('v_mov_b32 v%d, 0' % (f + 3)); I('v_mov_b32 v%d, 0' % (NMF + 8)); I('v_mov_b32 v%d, 0' % (NMF + 9))
    I('s_lshr_b32 s%d, s%d, 1' % (sT[6], g.sRB64)); I('s_lshl_b32 s%d, s%d, 8' % (sT[6], sT[6])); I('s_add_u32 s%d, s%d, %d' % (sT[6], sT[6], CNT + 4096))
    I('s_lshl_b32 s%d, s%d, 8' % (sT[2], g.sRB128)); I('s_add_u32 s%d, s%d, %d' % (sT[2], sT[2], CNT + 4096)); I('v_mov_b32 v%d, s%d' % (g.vPA, sT[2]))
    a.wait(vm='bst'); I('s_barrier'); sig_add(g, sT[6], 4)
    pf.stamp('sigB')
    poll(g, 'kf_p2', g.vPA, 1, 14, g.sWS)
    pf.stamp('sync2')
    def h_dma(rt):
        I('s_add_u32 s%d, s%d, %d' % (sT[3], g.sHG, rt * 28672)); I('s_add_u32 m0, s%d, %d' % (g.sHL, g.HL + rt * 28672))
        for k in range(4): I('buffer_load_dwordx4 v%d, s[%d:%d], s%d offen offset:%d sc1 lds' % (vL16, g.sWS, g.sWS + 3, sT[3], 1024 * k), tag='h%d' % rt)
    h_dma(0)
    for p in range(7):
        I('s_add_u32 s%d, s%d, %d' % (sT[1], g.sSTB, 16384 * p))
        I('buffer_load_dwordx2 %s, v%d, s[%d:%d], s%d offen sc1' % (vr(vSP + 2 * p, 2), vSO, g.sWS, g.sWS + 3, sT[1]), tag='sp')
    I('s_lshr_b32 s%d, s%d, 1' % (sT[2], g.sW8)); I('s_lshl_b32 s%d, s%d, 8' % (sT[2], sT[2])); I('s_add_u32 s%d, s%d, %d' % (sT[2], sT[2], CNT + 5 * 4096)); I('v_mov_b32 v%d, s%d' % (g.vPA, sT[2]))
    I('buffer_load_dword v%d, v%d, s[%d:%d], 0 offen sc1' % (g.vPoll, g.vPA, g.sWS, g.sWS + 3), tag='wdp')
    a.wait(vm='h0'); I('s_barrier')
    pf.stamp('h0')
    ST1 = g.STL + 2048
    def stats1():
        ops = [((lambda: a.wait(vm='sp')), 3)]
        for p in range(1, 7): ops += ['v_add_f32 v%d, v%d, v%d' % (vSP, vSP, vSP + 2 * p), 'v_add_f32 v%d, v%d, v%d' % (vSP + 1, vSP + 1, vSP + 2 * p + 1)]
        ops += ['v_mov_b32 v5, v%d' % vSP, 'v_mov_b32 v6, v%d' % (vSP + 1), 's_lshl_b32 s%d, s%d, 8' % (sT[1], g.sW8), 's_add_u32 s%d, s%d, %d' % (sT[1], sT[1], ST1),
                'v_permlane32_swap_b32 v%d, v5' % vSP, 'v_permlane32_swap_b32 v%d, v6' % (vSP + 1),
                'v_add_f32 v%d, v%d, v5' % (vSP, vSP), 'v_add_f32 v%d, v%d, v6' % (vSP + 1, vSP + 1),
                'v_lshlrev_b32 v4, 3, v2', 'v_add_u32 v5, s%d, v4' % sT[1], 'v_xor_b32 v7, 1024, v5',
                ((lambda: I('ds_write_b64 v5, %s' % vr(vSP, 2), tag='s1w')), 6)]
        return ops
    def stats2():
        ops = [((lambda: I('ds_read_b64 %s, v7' % vr(vSP + 2, 2), tag='s1r')), 6), 's_lshl_b32 s%d, s%d, 9' % (sT[1], sW), 's_add_u32 s%d, s%d, %d' % (sT[1], sT[1], g.STL),
               ((lambda: a.wait(lg='s1r')), 3), 'v_add_f32 v%d, v%d, v%d' % (vSP, vSP, vSP + 2), 'v_add_f32 v%d, v%d, v%d' % (vSP + 1, vSP + 1, vSP + 3)]
        b = Asm(); ln_finish(b, 'v%d' % vSP, 'v%d' % (vSP + 1), 'v5', 'v6', 'v7', 'v3')
        ops += [l.strip() for l in b.out if not l.strip().startswith('s_nop')]
        X = vSP + 4
        ops += ['v_sub_f32 v3, 0, v3', 'v_cvt_pk_bf16_f32 v%d, v3, v3' % X, 'v_mov_b32 v%d, v%d' % (X + 1, X), 'v_mul_f32 v%d, %s, v7' % (X + 2, f32(-LOG2E)), 'v_mul_f32 v%d, v6, v6' % (X + 3),
                'v_lshlrev_b32 v4, 4, v2', 'v_add_u32 v5, s%d, v4' % sT[1], 'v_add_u32 v4, %d, v4' % g.STL,
                ((lambda: I('ds_write_b128 v5, %s' % vr(X, 4), tag='stw')), 6)]
        return ops
    def st_reads():
        for rt in range(4):
            I('ds_read_b64 %s, v4 offset:%d' % (vr(NMF + 2 * rt, 2), 512 * rt), tag='st')
            I('ds_read_b64 %s, v4 offset:%d' % (vr(CI + 2 * rt, 2), 512 * rt + 8), tag='st')
    def acc(rt): return ACC + 16 * (rt % 2)
    def epi_ops(rt):
        b = acc(rt); c1, ir2 = CI + 2 * rt, CI + 2 * rt + 1
        ops = []
        for j in range(8): ops += ['v_mul_f32 v%d, v%d, v%d' % (TM + j, c1, b + j)]
        for j in range(8): ops += ['v_exp_f32 v%d, v%d' % (TM + j, TM + j), 'v_mul_f32 v%d, v%d, v%d' % (b + j, b + j, b + 8 + j)]
        for j in range(8): ops += ['v_fma_f32 v%d, v%d, v%d, v%d' % (TM + j, TM + j, ir2, ir2)]
        for j in range(8):
            ops += ['v_rcp_f32 v%d, v%d' % (TM + j, TM + j)]
            if j > 0: ops += ['v_mul_f32 v%d, v%d, v%d' % (b + j - 1, b + j - 1, TM + j - 1)]
        ops += ['v_cvt_pk_bf16_f32 v%d, v%d, v%d' % (b + 8 + p, b + 2 * p, b + 2 * p + 1) for p in range(3)]
        ops += ['v_mul_f32 v%d, v%d, v%d' % (b + 7, b + 7, TM + 7), 'v_cvt_pk_bf16_f32 v%d, v%d, v%d' % (b + 11, b + 6, b + 7), 's_add_u32 s%d, s%d, %d' % (sT[5], g.sO, rt * 112 * 1024)]
        ops.append(((lambda: I('buffer_store_dwordx4 %s, v%d, s[%d:%d], s%d offen sc1' % (vr(b + 8, 4), vL16, g.sWS, g.sWS + 3, sT[5]), tag='cst%d' % (rt // 2))), 16))
        return ops
    seq = [(rt, j) for rt in range(4) for j in range(28)]
    def h_rd(n):
        rt, j = seq[n]
        if rt == 2 and j == 0:
            a.wait(vm='h3'); I('s_barrier')
        I('ds_read_b128 %s, v%d offset:%d' % (vr(HB + 4 * (n % NHB), 4), vHQ[4 * (rt // 2) + j // 7], (rt % 2) * 28672 + (j % 7) * 1024), tag='hr%d' % n)
    LA = NHB - 1
    for n in range(LA): h_rd(n)
    S = Side(a)
    wdq = [(j, c) for j in range(14) for c in range(2)]
    n1 = g.n_wd1
    for n, (rt, j) in enumerate(seq):
        if j == 0:
            S.drain()
            if rt == 0: S.add([((lambda: h_dma(1)), 40)]); S.add(stats1())
            if rt == 1: S.add([((lambda: h_dma(2)), 40), ((lambda: h_dma(3)), 40)])
            if rt == 1: poll(g, 'kf_pw', g.vPA, 1, 7, g.sWS, early='wdp')
            if rt >= 1: S.add(epi_ops(rt - 1))
            pf.stamp('rt%d' % rt)
        if n == 12: S.drain(); a.wait(lg='s1w'); I('s_barrier'); S.add(stats2())
        if n == 22: S.drain(); a.wait(vm='h1', lg='stw'); I('s_barrier'); st_reads()
        if n + LA < len(seq): h_rd(n + LA)
        a.wait(lg='hr%d' % n)
        I(MF(vr(acc(rt), 16), ar(4 * j, 4), vr(HB + 4 * (n % NHB), 4), '0' if j == 0 else vr(acc(rt), 16)))
        done = 28 - len(wdq)
        if wdq and ((done < n1 and n >= 32 and n % 6 == 0) or (done >= n1 and rt == 3 and j > done - n1)): wd_load(g, *wdq.pop(0))
        if not (j == 0 and rt >= 1): S.emit(cfg.get('cb', 40))
        if rt == 3 and j == 20: S.drain(); d_setup(g)
        if rt == 3 and j == cfg.get('midsig', 6):
            I('s_lshl_b32 s%d, s%d, 8' % (sT[6], g.sRB128)); I('s_add_u32 s%d, s%d, %d' % (sT[6], sT[6], CNT + 8192))
            a.wait(vm='cst0'); I('s_barrier'); sig_add(g, sT[6])
        if j == 27:
            a.wait(lg='st')
            I(MF(vr(acc(rt), 16), vr(CSF, 4), vr(NMF + 2 * rt, 4), vr(acc(rt), 16)))
    S.drain()
    pf.stamp('mfmaC')
    while wdq: wd_load(g, *wdq.pop(0))
    S.add(epi_ops(3)); S.drain()
    pf.stamp('actst')

def d_setup(g):
    a = g.a; I = a.I; sT = g.sT; vL16 = g.vL16
    g.sA = g.S4[12:14]; g.sOB, g.sHR = g.S4[14], g.S4[15]
    I('s_lshr_b32 s%d, s%d, 1' % (sT[2], g.sRB64)); I('s_lshl_b32 s%d, s%d, 8' % (sT[2], sT[2])); I('s_add_u32 s%d, s%d, %d' % (sT[2], sT[2], CNT + 8192)); I('v_mov_b32 v%d, s%d' % (g.vPA, sT[2]))
    I('buffer_load_dword v%d, v%d, s[%d:%d], 0 offen sc1' % (g.vPoll, g.vPA, g.sWS, g.sWS + 3), tag='p3e')
    I('s_mul_i32 s%d, s%d, 112' % (sT[0], g.sE)); I('s_mul_i32 s%d, s%d, 14' % (sT[1], g.sW8)); I('s_add_u32 s%d, s%d, s%d' % (sT[0], sT[0], sT[1]))
    I('s_lshl_b32 s%d, s%d, 10' % (sT[0], sT[0])); I('s_add_u32 s%d, s%d, %d' % (sT[0], sT[0], ACTF))
    for q in range(2):
        I('s_add_u32 s%d, s%d, %d' % (sT[4], g.sR4, q)); I('s_and_b32 s%d, s%d, 1' % (sT[4], sT[4])); I('s_mul_i32 s%d, s%d, 7168' % (sT[4], sT[4])); I('s_add_u32 s%d, s%d, s%d' % (g.sA[q], sT[4], sT[0]))
    I('s_and_b32 s%d, s%d, 1' % (sT[1], g.sW8)); I('s_lshl_b32 s%d, s%d, 1' % (sT[2], g.sCS)); I('s_add_u32 s%d, s%d, s%d' % (sT[2], sT[2], sT[1])); I('s_lshl_b32 s%d, s%d, 2' % (sT[2], sT[2]))
    I('s_lshr_b32 s%d, s%d, 1' % (sT[1], g.sW8)); I('s_add_u32 s%d, s%d, s%d' % (sT[2], sT[2], sT[1]))
    I('s_mul_i32 s%d, s%d, %d' % (sT[0], g.sE, 32 * 896)); I('s_lshl_b32 s%d, s%d, 4' % (sT[3], sT[2])); I('s_add_u32 s%d, s%d, s%d' % (g.sOB, sT[0], sT[3]))
    I('s_mul_i32 s%d, s%d, 28672' % (sT[0], g.sE)); I('s_lshl_b32 s%d, s%d, 9' % (sT[3], sT[2])); I('s_add_u32 s%d, s%d, s%d' % (sT[0], sT[0], sT[3])); I('s_add_u32 s%d, s%d, %d' % (g.sHR, sT[0], HF))

def phase_D(g):
    a = g.a; I = a.I; sT = g.sT; pf = g.pf; cfg = g.cfg
    vL16 = g.vL16
    ACC = 8
    P0 = 72
    vA2, vA3, vXW, vXR_, vHO, vOO, RES = 100, 101, 102, 103, 116, 117, 2
    poll(g, 'kf_p3', g.vPA, 1, 14, g.sWS, early='p3e')
    pf.stamp('sync3')
    NR = g.act_ring; AB = g.act_base
    I('v_add_u32 v%d, %d, v%d' % (vA2, 2 * 114688, vL16)); I('v_add_u32 v%d, 4096, v%d' % (vA3, vA2))
    vA = [vL16, g.vL4k, vA2, vA3]
    def issue(m):
        p, j = m // 14, m % 14; r = j % 7
        I('buffer_load_dwordx4 %s, v%d, s[%d:%d], s%d offen offset:%d sc1' % (ar(AB + 4 * (m % NR), 4), vA[2 * p + (r >= 4)], g.sWS, g.sWS + 3, g.sA[j // 7], 1024 * (r % 4)), tag='k%d' % m)
    LA = NR - 1
    for m in range(LA): issue(m)
    I('s_lshl_b32 s%d, s%d, 8' % (sT[6], g.sRB128)); I('s_add_u32 s%d, s%d, %d' % (sT[6], sT[6], CNT + 8192 + 128))
    a.wait(vm='cst1'); I('s_barrier'); sig_add(g, sT[6], 6)
    pf.stamp('sigC')
    I('v_add_u32 v%d, 128, v%d' % (g.vPA, g.vPA))
    I('v_and_b32 v6, 31, v1'); I('v_lshrrev_b32 v7, 5, v1')
    I('v_lshlrev_b32 v%d, 4, v6' % vHO); I('v_lshl_add_u32 v%d, v7, 3, v%d' % (vHO, vHO))
    I('v_mul_u32_u24 v%d, 896, v6' % vOO); I('v_lshl_add_u32 v%d, v7, 3, v%d' % (vOO, vOO))
    I('s_add_u32 s%d, s%d, %d' % (sT[0], g.sHR, 2 * 28672))
    I('buffer_load_dwordx2 %s, v%d, s[%d:%d], s%d offen sc1' % (vr(RES, 2), vHO, g.sWS, g.sWS + 3, g.sHR), tag='hr')
    I('buffer_load_dwordx2 %s, v%d, s[%d:%d], s%d offen sc1' % (vr(RES + 2, 2), vHO, g.sWS, g.sWS + 3, sT[0]), tag='hr')
    I('s_lshl_b32 s%d, s%d, 13' % (sT[3], g.sW8)); I('v_add_u32 v%d, s%d, v%d' % (vXR_, sT[3], vL16))
    def acc(p, c): return ACC + 32 * p + 16 * c
    def xw(p):
        ops = []
        for t in range(1, 8):
            ops += ['v_xor_b32 v%d, %d, v%d' % (vXW, 8192 * t + 65536 * p, vXR_), 'ds_write_b128 v%d, %s offset:%d' % (vXW, vr(acc(p, t & 1) + 4 * (t >> 1), 4), 1024 * t)]
        return ops
    def xf(p):
        b = acc(p, 0); R = RES + 2 * p
        ops = ['v_xor_b32 v%d, %d, v%d' % (vXW, 65536 * p, vXR_)]
        ops += [((lambda t=t: I('ds_read_b128 %s, v%d offset:%d' % (vr(P0 + 4 * (t - 1), 4), vXW, 1024 * t), tag='xr%d' % p)), 6) for t in range(1, 8)]
        T = b + 4
        for k in range(2): ops += ['v_lshlrev_b32 v%d, 16, v%d' % (T + 2 * k, R + k), 'v_and_b32 v%d, 0xffff0000, v%d' % (T + 2 * k + 1, R + k)]
        ops += ['v_add_f32 v%d, v%d, v%d' % (b + v, b + v, T + v) for v in range(4)]
        ops += [((lambda: a.wait(lg='xr%d' % p)), 3)]
        for t in range(7): ops += ['v_add_f32 v%d, v%d, v%d' % (b + v, b + v, P0 + 4 * t + v) for v in range(4)]
        ops += ['v_cvt_pk_bf16_f32 v%d, v%d, v%d' % (R + k, b + 2 * k, b + 2 * k + 1) for k in range(2)]
        ops += ['s_add_u32 s%d, s%d, %d' % (sT[1], g.sOB, 64 * 896 * p),
                ((lambda: I('buffer_store_dwordx2 %s, v%d, s[%d:%d], s%d offen' % (vr(R, 2), vOO, g.sOUT, g.sOUT + 3, sT[1]))), 16)]
        return ops
    S = Side(a)
    P4 = cfg.get('p4', 11)
    for m in range(28):
        p, j = m // 14, m % 14
        if m == max(14 - LA, P4 - 4): I('buffer_load_dword v%d, v%d, s[%d:%d], 0 offen sc1' % (g.vPoll, g.vPA, g.sWS, g.sWS + 3), tag='p4e')
        if m == P4:
            poll(g, 'kf_p4', g.vPA, 1, 14, g.sWS, early='p4e')
            for mm in range(14, m + LA): issue(mm)
        if m == 15: S.add(xw(0))
        if m == 19:
            S.drain(); a.wait(lg=0); I('s_barrier'); S.add(xf(0))
        a.wait(vm='k%d' % m)
        if m % 7 == 0: pf.stamp('k%d' % m)
        for c in range(2):
            f, r = g.wd_regs[j][c]
            I(MF(vr(acc(p, c), 16), vr(r, 4, f), ar(AB + 4 * (m % NR), 4), '0' if j == 0 else vr(acc(p, c), 16)))
            if c == 1 and m + LA < 28 and (m + LA < 14 or m >= P4): issue(m + LA)
            S.emit(30)
    S.drain()
    pf.stamp('gemmD')
    for op in xw(1): I(op)
    a.wait(lg=0); I('s_barrier')
    S.add(xf(1)); S.drain()
    pf.stamp('out')
    if PROF: I('s_waitcnt vmcnt(0)')
    pf.dump(g.sWS)
    I('s_endpgm')

def pack_wd(g):
    a = g.a; I = a.I; sT = g.sT; sW = g.sW; vL16 = g.vL16
    a.label('kf_pack'); a.reset_counts()
    I('s_cmp_eq_u32 s%d, 1' % g.sRole); a.branch('s_cbranch_scc1 kf_end')
    I('s_bfe_u32 s%d, s2, 0x30003' % sT[5]); I('s_and_b32 s%d, s2, 1' % sT[0]); I('s_lshl_b32 s%d, s%d, 3' % (sT[0], sT[0])); I('s_add_u32 s%d, s%d, s%d' % (sT[5], sT[5], sT[0]))
    I('s_and_b32 s%d, s2, 4' % sT[0]); I('s_lshl_b32 s%d, s%d, 2' % (sT[0], sT[0])); I('s_add_u32 s%d, s%d, s%d' % (sT[5], sT[5], sT[0]))
    I('s_cmp_ge_u32 s%d, 28' % sT[5]); a.branch('s_cbranch_scc1 kf_end')
    I('s_lshl_b32 s%d, s%d, 2' % (sT[0], sT[5])); I('s_add_u32 s%d, s%d, s%d' % (sT[0], sT[0], sW))
    I('s_mul_i32 s%d, s%d, 14336' % (sT[1], sT[0])); I('s_mul_i32 s%d, s%d, 14336' % (sT[2], sW)); I('s_add_u32 s%d, s%d, 65536' % (sT[2], sT[2]))
    for i in range(14):
        if i % 4 == 0:
            I('s_add_u32 s%d, s%d, %d' % (sT[3], sT[1], 1024 * i)); I('s_add_u32 m0, s%d, %d' % (sT[2], 1024 * i))
        I('buffer_load_dwordx4 v%d, s[%d:%d], s%d offen offset:%d lds' % (vL16, g.sD, g.sD + 3, sT[3], 1024 * (i % 4)))
    I('v_lshrrev_b32 v3, 5, v1'); I('v_bfe_u32 v4, v1, 2, 2'); I('v_lshl_add_u32 v4, v3, 2, v4'); I('v_mul_u32_u24 v4, 896, v4')
    I('v_bfe_u32 v5, v1, 4, 1'); I('v_lshl_add_u32 v4, v5, 5, v4'); I('v_and_b32 v5, 3, v1'); I('v_lshl_add_u32 v4, v5, 3, v4')
    I('v_add_u32 v4, s%d, v4' % sT[2])
    I('s_lshl_b32 s%d, s%d, 10' % (sT[1], sT[0])); I('s_add_u32 s%d, s%d, %d' % (sT[1], sT[1], WDP))
    I('s_mul_i32 s%d, s%d, 37' % (sT[5], sT[5])); I('s_lshr_b32 s%d, s%d, 8' % (sT[5], sT[5]))
    a.wait(vm=0)
    B0 = 16
    for ct in range(18):
        if ct < 14: trfrag(a, B0 + 4 * ct, 4, 64 * ct, 't%d' % ct, d2=8 * 896)
        if ct >= 4:
            cc = ct - 4
            a.wait(lg='t%d' % cc)
            I('buffer_store_dwordx4 %s, v%d, s[%d:%d], s%d offen sc1' % (vr(B0 + 4 * cc, 4), vL16, g.sWS, g.sWS + 3, sT[1]), tag='wst')
            I('s_add_u32 s%d, s%d, %d' % (sT[1], sT[1], 112 * 1024))
    signal(g, 5, sT[5], 'wst')

def gen_F(a, cfg=None):
    cfg = cfg or {}
    name = KN + '_kernel'
    head(a, name)
    g = setup(a, cfg); I = a.I
    g.gu_a, g.gu_c, g.gu_b = cfg.get('gu_a', 4), cfg.get('gu_c', 4), 20
    homes = [('a', 112 + 4 * k) for k in range(4)] + [('v', 104 + 4 * k) for k in range(3)] + [('a', 4 * k) for k in range(21)]
    g.n_wd1 = 7
    g.wd_regs = [(homes[2 * j], homes[2 * j + 1]) for j in range(14)]
    g.act_base, g.act_ring = 84, 7
    I('s_cmp_eq_u32 s%d, 1' % g.sRole); a.branch('s_cbranch_scc1 kf_a1')
    n0, nm0 = g.pf.n, list(g.pf.names)
    phase_A0(g)
    a.branch('s_branch kf_join')
    a.label('kf_a1'); a.reset_counts(); g.pf.n, g.pf.names = n0, nm0
    phase_A1(g)
    a.label('kf_join'); a.reset_counts()
    g.pf.stamp('sigA')
    I('s_and_b32 s%d, s2, 0xc2' % g.sT[0]); I('s_cmp_eq_u32 s%d, 0xc2' % g.sT[0]); a.branch('s_cbranch_scc1 kf_pack')
    phase_B(g); phase_C(g); phase_D(g); pack_wd(g)
    a.label('kf_end')
    a.I('s_endpgm')
    a.raw('kf_pad:\n.fill (49664 - (kf_pad - %s)) / 4, 4, 0xbf800000' % name)
    return (name, 256, 512, 163840, 256, 102, 128)
```

```python
import sys, json
from gen_common import *
from gen_w import gen_F
ref = open('cdna_kernels/%s.s.ref' % KN).read().splitlines()
top = ''
for l in ref:
    if not l.startswith(';'): break
    if '@launch' in l or 'Override launch' in l or 'grid=ceil' in l: continue
    top += l + '\n'
top += '; Generated by work/genf.py (hand-written generator). One persistent launch, 4 phases with counter hand-offs.\n'
out = sys.argv[1] if len(sys.argv) > 1 else 'f.s'
cfg = json.loads(sys.argv[2]) if len(sys.argv) > 2 else {}
a = Asm()
name, grid, block, lds, vg, sg, acc = gen_F(a, cfg)
L = top + "; @launch grid=(%d,1,1) block=(%d,1,1) lds=%d\n" % (grid, block, lds)
open(out, "w").write(L + HDR + a.text() + '.section .rodata,"a"\n' + kd(name, vg, sg, acc))
print(out, "instrs", a.count, "nop states", a.nops)
```

```python
from gen_common import *
from types import SimpleNamespace as NS

CNT = KVACC + (128 << 10)
SPIN_MAX = 1 << 22
V3 = ('v_fma_f32', 'v_cvt_pk_bf16_f32', 'v_add3_u32', 'v_lshl_add_u32', 'v_bfe_u32', 'v_cndmask_b32', 'v_mul_lo_u32', 'v_accvgpr_read_b32', 'v_accvgpr_write_b32')

def MF(d, A, B, C): return 'v_mfma_f32_32x32x16_bf16 %s, %s, %s, %s' % (d, A, B, C)

def cost(o):
    if isinstance(o, tuple): return o[1]
    op = o.split()[0]
    if op in TRANS: return 8.4
    if op in V3 or op.startswith('v_pk'): return 5.3
    if op.startswith('v_'): return 4.2 if '0x' not in o else 5.3
    if op.startswith('ds_'): return 5.3
    if op.startswith('buffer_'): return 16
    return 3.0

class Side:
    def __init__(self, a): self.a = a; self.q = []; self.credit = 0.0
    def add(self, ops): self.q += list(ops)
    def _one(self):
        o = self.q.pop(0)
        if isinstance(o, tuple): o[0]()
        else: self.a.I(o)
    def emit(self, budget):
        self.credit = min(self.credit + budget, budget + 8)
        while self.q and cost(self.q[0]) <= self.credit + 2:
            self.credit -= cost(self.q[0]); self._one()
    def drain(self):
        while self.q: self._one()
        self.credit = 0.0

def poll(g, lbl, addr_v, lanes_mask, target, srdreg, early=None):
    a = g.a; I = a.I
    saved = list(a.vm)
    I('s_mov_b32 s%d, 0' % g.sSPIN)
    if early:
        a.wait(vm=early)
        a.branch('s_branch %s_chk' % lbl)
    a.label(lbl)
    I('buffer_load_dword v%d, v%d, s[%d:%d], 0 offen sc1' % (g.vPoll, addr_v, srdreg, srdreg + 3), counted=False)
    I('s_add_u32 s%d, s%d, 1' % (g.sSPIN, g.sSPIN))
    I('s_waitcnt vmcnt(0)')
    a.label(lbl + '_chk')
    I('v_cmp_le_u32 vcc, %s, v%d' % (target, g.vPoll))
    I('s_cmp_ge_u32 s%d, %d' % (g.sSPIN, SPIN_MAX))
    a.branch('s_cbranch_scc1 %s_ok' % lbl)
    I('s_and_b32 s%d, vcc_lo, %d' % (g.sT[7], lanes_mask))
    I('s_cmp_eq_u32 s%d, %d' % (g.sT[7], lanes_mask))
    a.branch('s_cbranch_scc1 %s_ok' % lbl)
    I('s_sleep %d' % g.cfg.get('sleep', 1))
    a.branch('s_branch %s' % lbl)
    a.label(lbl + '_ok')
    a.vm = saved

def sig_add(g, off_s):
    I = g.a.I
    I('v_mov_b32 v2, 1'); I('v_mov_b32 v3, 0')
    I('s_mov_b64 exec, 1')
    I('buffer_atomic_add v2, v3, s[%d:%d], s%d offen sc1' % (g.sKZ, g.sKZ + 3, off_s), tag='sig')
    I('s_mov_b64 exec, -1')

def signal(g, kind, idx_s, wait_tag):
    a = g.a; I = a.I
    I('s_lshl_b32 s%d, s%d, 8' % (g.sT[6], idx_s)); I('s_add_u32 s%d, s%d, %d' % (g.sT[6], g.sT[6], CNT + 4096 * kind))
    a.wait(vm=wait_tag)
    I('s_barrier')
    sig_add(g, g.sT[6])

def trfrag(a, dst, addr, off, tag, f='v', d2=256):
    a.I('ds_read_b64_tr_b16 %s, v%d offset:%d' % (vr(dst, 2, f), addr, off), tag=tag)
    a.I('ds_read_b64_tr_b16 %s, v%d offset:%d' % (vr(dst + 2, 2, f), addr, off + d2), tag=tag)

def setup(a, cfg):
    g = NS(a=a, cfg=cfg); I = a.I
    g.pf = Prof(a, 0, vreg=255, s=100)
    (g.sX, g.sWq, g.sP0, g.sP1, g.sPO, g.sD, g.sOUT, g.sDBG, g.sWS, g.sKZ, g.sDZ) = 24, 28, 32, 36, 40, 44, 48, 52, 56, 60, 64
    (g.sW, g.sRBA, g.sH, g.sRHO, g.sRB64, g.sCS, g.sRB128, g.sFS, g.sR4) = 68, 69, 70, 71, 72, 73, 74, 75, 76
    g.sT = [77, 78, 79, 80, 81, 82, 83, 84]
    g.sONE, g.sEPS, g.sL2E = 85, 86, 87
    g.sMV28, g.sHI = 88, 90
    g.sPA, g.sPC = 92, 93
    g.sSPIN = 94; g.sPT = 95
    g.sQ = [96, 97, 98, 99]
    g.S4 = list(range(4, 24))
    g.WQL, g.WKL, g.WVL = 0, 51200, 79872
    g.STATL, g.CSL, g.CSQ2L = 28672, 29696, 31232
    g.XRL, g.KVRL, g.REDL, g.HL, g.STL = 108544, 32768, 0, 0, 114688
    V = Alloc(232, 255)
    g.vHK = V.get(8, 4); g.vL16 = V.get()
    g.vLo = [g.vL16, V.get(), V.get(), V.get()]
    g.vRW = [V.get() for _ in range(3)]; g.vRR = V.get()
    g.vPoll, g.vPA, g.vPT = V.get(), V.get(), V.get()
    g.vXo = V.get(); g.vCSg = V.get(2, 2)
    sT = g.sT
    I('s_cmp_ge_u32 s2, 256'); a.branch('s_cbranch_scc1 kf_end')
    g.pf.stamp('start')
    load_args(a)
    I('s_getpc_b64 s[%d:%d]' % (g.sMV28, g.sMV28 + 1))
    I('v_lshrrev_b32 v2, 6, v0'); I('v_and_b32 v1, 63, v0')
    I('s_lshr_b32 s%d, s2, 3' % sT[1]); I('s_mul_i32 s%d, s%d, 12' % (sT[2], sT[1]))
    I('v_mul_u32_u24 v3, 3, v2'); I('v_add3_u32 v3, v3, v1, s%d' % sT[2]); I('v_lshlrev_b32 v3, 7, v3')
    I('s_mov_b64 exec, 7')
    I('global_load_dword v%d, v3, s[%d:%d]' % (g.vPoll, g.sMV28, g.sMV28 + 1), tag='code')
    I('s_mov_b64 exec, -1')
    I('v_readfirstlane_b32 s%d, v2' % g.sW)
    I('s_and_b32 s%d, s2, 7' % sT[0])
    I('s_lshr_b32 s%d, s%d, 1' % (sT[2], sT[0])); I('s_lshl_b32 s%d, s%d, 2' % (sT[2], sT[2]))
    I('s_and_b32 s%d, s%d, 3' % (sT[3], sT[1])); I('s_add_u32 s%d, s%d, s%d' % (g.sRBA, sT[2], sT[3]))
    I('s_and_b32 s%d, s%d, 1' % (sT[4], sT[0])); I('s_lshr_b32 s%d, s%d, 2' % (sT[5], sT[1]))
    I('s_lshl_b32 s%d, s%d, 3' % (g.sH, sT[4])); I('s_add_u32 s%d, s%d, s%d' % (g.sH, g.sH, sT[5]))
    I('s_lshl_b32 s%d, s%d, 1' % (g.sRHO, sT[3])); I('s_add_u32 s%d, s%d, s%d' % (g.sRHO, g.sRHO, sT[5]))
    I('s_sub_u32 s%d, s%d, 7' % (sT[6], g.sRHO)); I('s_cmp_ge_u32 s%d, 7' % g.sRHO); I('s_cselect_b32 s%d, s%d, s%d' % (g.sRHO, sT[6], g.sRHO))
    I('s_and_b32 s%d, s%d, 3' % (sT[2], sT[0])); I('s_lshr_b32 s%d, s%d, 2' % (sT[3], sT[0]))
    I('s_lshr_b32 s%d, s%d, 2' % (sT[4], sT[1])); I('s_and_b32 s%d, s%d, 3' % (sT[5], sT[1]))
    I('s_mul_i32 s%d, s%d, 86' % (sT[6], sT[1])); I('s_lshr_b32 s%d, s%d, 8' % (sT[6], sT[6]))
    I('s_mul_i32 s%d, s%d, 3' % (sT[7], sT[6])); I('s_sub_u32 s%d, s%d, s%d' % (sT[7], sT[1], sT[7]))
    I('s_lshl_b32 s%d, s%d, 2' % (g.sFS, sT[2])); I('s_mul_i32 s%d, s%d, 3' % (g.sCS, sT[2])); I('s_add_u32 s%d, s%d, 2' % (g.sCS, g.sCS))
    I('s_lshl_b32 s%d, s%d, 5' % (g.sRB64, sT[2])); I('s_mul_i32 s%d, s%d, 24' % (g.sR4, sT[2])); I('s_add_u32 s%d, s%d, 16' % (g.sR4, g.sR4))
    I('s_cmp_lt_u32 s%d, 2' % sT[2])
    I('s_cselect_b32 s%d, s%d, s%d' % (sT[4], sT[4], sT[6])); I('s_cselect_b32 s%d, s%d, s%d' % (sT[5], sT[5], sT[7]))
    I('s_cselect_b32 s%d, s%d, s%d' % (g.sFS, g.sFS, g.sCS)); I('s_cselect_b32 s%d, s%d, s%d' % (sT[6], g.sRB64, g.sR4))
    I('s_cselect_b32 s%d, 32, 24' % sT[7])
    I('s_add_u32 s%d, s%d, s%d' % (g.sFS, g.sFS, sT[5]))
    I('s_and_b32 s%d, s%d, 7' % (sT[4], sT[4])); I('s_and_b32 s%d, s%d, 3' % (g.sR4, sT[4]))
    I('s_lshl_b32 s%d, s%d, 3' % (g.sRB128, sT[3])); I('s_add_u32 s%d, s%d, s%d' % (g.sRB128, g.sRB128, sT[4]))
    I('s_cmp_ge_u32 s%d, s%d' % (sT[1], sT[7])); I('s_cselect_b32 s%d, 0, s%d' % (sT[5], sT[1]))
    I('s_mul_i32 s%d, s%d, 112' % (sT[4], sT[3])); I('s_add_u32 s%d, s%d, s%d' % (sT[4], sT[4], sT[6])); I('s_add_u32 s%d, s%d, s%d' % (sT[4], sT[4], sT[5]))
    I('s_mul_i32 s%d, s%d, 9363' % (g.sRB64, sT[4])); I('s_lshr_b32 s%d, s%d, 16' % (g.sRB64, g.sRB64))
    I('s_mul_i32 s%d, s%d, 7' % (sT[5], g.sRB64)); I('s_sub_u32 s%d, s%d, s%d' % (g.sCS, sT[4], sT[5]))
    I('s_mul_i32 s%d, s2, 9363' % g.sPA); I('s_lshr_b32 s%d, s%d, 16' % (g.sPA, g.sPA))
    I('s_mul_i32 s%d, s%d, 7' % (g.sPC, g.sPA)); I('s_sub_u32 s%d, s2, s%d' % (g.sPC, g.sPC))
    return g

def gu_load(g, j, c):
    r = j % 7
    g.a.I('buffer_load_dwordx4 %s, v%d, s[%d:%d], s%d offen offset:%d sc1' % (ar(112 * c + 4 * j, 4), g.vLo[2 * c + (r >= 4)], g.sWS, g.sWS + 3, g.sQ[j // 7], 1024 * (r % 4)), tag='gu')
def wd_load(g, j, c):
    r = j % 7; f, reg = g.wd_regs[j][c]
    g.a.I('buffer_load_dwordx4 %s, v%d, s[%d:%d], s%d offen offset:%d sc1' % (vr(reg, 4, f), g.vLd[2 * c + (r >= 4)], g.sWS, g.sWS + 3, g.sQD[j // 7], 1024 * (r % 4)), tag='wd')

def phase_A(g):
    a = g.a; I = a.I; sT = g.sT; pf = g.pf; cfg = g.cfg
    sW, sH, sRBA = g.sW, g.sH, g.sRBA
    XF, ACCK, ACCV, ACCQ, WB = 8, 120, 136, 152, 168
    VA = Alloc(200, 232)
    vONE = VA.get(4, 4)
    vX = [VA.get() for _ in range(4)]; vW = VA.get()
    vXR = [VA.get() for _ in range(4)]
    vT, vTc, vTo = VA.get(), VA.get(), VA.get()
    vS1a, vS1b, vS2a, vS2b = [VA.get() for _ in range(4)]
    vRN = VA.get(2, 2); vCS = VA.get(2, 2)
    vN4, vCA, vSA = VA.get(), VA.get(), VA.get()
    vXS = [VA.get() for _ in range(4)]
    vRed = vX[0:2]; vKW = vX[2]
    vPT = [g.vHK, g.vHK + 1, g.vHK + 2, g.vHK + 3]; vPD = g.vHK + 4
    aPK = 0
    LAH = cfg.get('lah', 2)
    xslot = {j: j % 3 for j in range(7)}
    assert LAH == 2
    aC0, aC1 = 224, 240
    vL16 = g.vL16
    I('v_lshrrev_b32 v2, 3, v1'); I('v_lshrrev_b32 v3, 4, v1'); I('v_and_b32 v4, 7, v1')
    I('v_xor_b32 v5, v4, v3'); I('v_lshlrev_b32 v5, 4, v5')
    I('v_mul_u32_u24 v6, 896, v2'); I('v_add_u32 v%d, v6, v5' % vX[0])
    I('v_xor_b32 v%d, 64, v%d' % (vX[1], vX[0])); I('v_add_u32 v%d, 7168, v%d' % (vX[1], vX[1]))
    I('v_add_u32 v%d, 14336, v%d' % (vX[2], vX[0])); I('v_add_u32 v%d, 14336, v%d' % (vX[3], vX[1]))
    I('v_lshrrev_b32 v5, 2, v1'); I('v_and_b32 v6, 3, v1')
    I('v_mul_u32_u24 v7, 2688, v5'); I('v_lshl_add_u32 v%d, v6, 4, v7' % vW)
    I('v_lshlrev_b32 v%d, 4, v1' % vL16)
    I('v_and_b32 v5, 15, v1'); I('v_lshlrev_b32 v5, 4, v5'); I('v_lshl_add_u32 v5, v3, 14, v5')
    for i in range(4): I('v_mov_b32 v%d, 0' % (vONE + i))
    sXB, sWB, sXRB, sCL, sCC, sW10, sW12 = g.sQ[0], g.sQ[1], g.sQ[2], g.sQ[3], 3, g.sSPIN, g.sPT
    I('s_lshl_b32 s%d, s%d, 10' % (sW10, sW)); I('s_lshl_b32 s%d, s%d, 12' % (sW12, sW))
    I('s_lshl_b32 s%d, s%d, 2' % (sT[0], sRBA)); I('s_add_u32 s%d, s%d, s%d' % (sT[0], sT[0], sW))
    I('s_mul_i32 s%d, s%d, %d' % (sXB, sT[0], 32 * 896))
    I('s_mul_i32 s%d, s%d, 56' % (sWB, sH)); I('s_mul_i32 s%d, s%d, %d' % (sT[1], sW, 16 * 2688)); I('s_add_u32 s%d, s%d, s%d' % (sWB, sWB, sT[1]))
    I('s_mul_i32 s%d, s%d, 12288' % (sXRB, sW)); I('s_add_u32 s%d, s%d, %d' % (sXRB, sXRB, g.XRL))
    I('s_mov_b32 s%d, s%d' % (sCL, g.sRHO)); I('s_mov_b32 s%d, s%d' % (sCC, g.sRHO))
    I('s_waitcnt lgkmcnt(0)')
    pf.stamp('args')
    srd(a, g.sX, 4, 2048 * 896); srd(a, g.sWq, 6, 448 * 2688)
    def adv_ops(s): return ['s_add_u32 s%d, s%d, 1' % (s, s), 's_cmp_eq_u32 s%d, 7' % s, 's_cselect_b32 s%d, 0, s%d' % (s, s)]
    def adv(s):
        for o in adv_ops(s): I(o)
    def grp(ops):
        def f():
            for o in ops:
                if callable(o): o()
                else: I(o)
        return f
    def a_groups(j):
        G = []
        pre = ['s_mul_i32 s%d, s%d, %d' % (sT[1], sCL, 64 * 2688), 's_lshl_b32 s%d, s%d, 12' % (sT[2], sCL), 's_add_u32 s%d, s%d, s%d' % (sT[2], sT[2], sW10),
               's_add_u32 m0, s%d, %d' % (sT[2], g.WKL - 896), 's_add_u32 s%d, s%d, s%d' % (sT[1], sT[1], sWB)]
        G.append(grp(pre + [lambda: I('buffer_load_dwordx4 v%d, s[%d:%d], s%d offen offset:896 lds' % (vW, g.sWq, g.sWq + 3, sT[1]), tag='c%d' % j)]))
        G.append(grp(['s_add_u32 m0, s%d, %d' % (sT[2], g.WVL - 1792), 's_lshl_b32 s%d, s%d, 7' % (sT[0], sCL),
                      lambda: I('buffer_load_dwordx4 v%d, s[%d:%d], s%d offen offset:1792 lds' % (vW, g.sWq, g.sWq + 3, sT[1]), tag='c%d' % j)]))
        for q in range(4):
            m = 's_add_u32 m0, s%d, %d' % (sXRB, xslot[j] * 4096 + q * 1024)
            mid = ['s_add_u32 s%d, s%d, s%d' % (sT[0], sT[0], sXB)] if q == 0 else (adv_ops(sCL) if q == 1 else [])
            G.append(grp([m] + mid + [lambda q=q: I('buffer_load_dwordx4 v%d, s[%d:%d], s%d offen lds' % (vX[q], g.sX, g.sX + 3, sT[0]), tag='c%d' % j)]))
        if j >= cfg.get('wq0', 7):
            G.append(grp(['s_add_u32 m0, s%d, %d' % (sT[2], g.WQL), 's_nop 0',
                          lambda: I('buffer_load_dwordx4 v%d, s[%d:%d], s%d offen lds' % (vW, g.sWq, g.sWq + 3, sT[1]), tag='wq')]))
        return G
    def a_loads(j):
        for f in a_groups(j): f()
    def q_groups(n):
        return [grp(['s_mul_i32 s%d, s%d, %d' % (sT[1], sCL, 64 * 2688), 's_lshl_b32 s%d, s%d, 12' % (sT[2], sCL), 's_add_u32 s%d, s%d, s%d' % (sT[2], sT[2], sW10),
                     's_add_u32 m0, s%d, %d' % (sT[2], g.WQL), 's_add_u32 s%d, s%d, s%d' % (sT[1], sT[1], sWB),
                     lambda: I('buffer_load_dwordx4 v%d, s[%d:%d], s%d offen lds' % (vW, g.sWq, g.sWq + 3, sT[1]), tag='wq')] + adv_ops(sCL)) for _ in range(n)]
    a_loads(0)
    srd(a, g.sWS, 22, WS_BYTES); srd(a, g.sKZ, 22, WS_BYTES)
    srd(a, g.sDZ, 20, 256)
    I('s_cmp_eq_u32 s%d, 0' % sRBA); I('s_cselect_b32 s%d, %s, 0' % (g.sKZ + 2, hex(WS_BYTES))); I('s_cselect_b32 s%d, 256, 0' % (g.sDZ + 2))
    srd(a, g.sD, 16, 1792 * 896); srd(a, g.sOUT, 18, 2048 * 896); srd(a, g.sDBG, 20, 256); srd(a, g.sPO, 22, WS_BYTES)
    I('s_cmp_lt_u32 s%d, 28' % g.sPA)
    for k in range(2):
        I('s_cselect_b32 s%d, s%d, s%d' % (g.sP0 + k, 12 + k, 8 + k)); I('s_cselect_b32 s%d, s%d, s%d' % (g.sP1 + k, 14 + k, 8 + k))
    sel(a, g.sP0 + 2, 448 * 3584, 448 * 896)
    I('s_mov_b32 s%d, 0x20000' % (g.sP0 + 3)); I('s_mov_b32 s%d, 0x20000' % (g.sP1 + 3))
    I('s_cmp_lt_u32 s%d, 32' % g.sPA)
    I('s_cselect_b32 s%d, s%d, 0' % (g.sP0 + 2, g.sP0 + 2)); I('s_mov_b32 s%d, s%d' % (g.sP1 + 2, g.sP0 + 2)); I('s_cselect_b32 s%d, %s, 0' % (g.sPO + 2, hex(WS_BYTES)))
    I('s_lshl_b32 s%d, s%d, 12' % (sT[3], sH)); I('s_add_u32 s%d, s%d, s%d' % (sT[3], sT[3], sW10)); I('s_add_u32 s%d, s%d, %d' % (sT[3], sT[3], KVACC))
    I('buffer_store_dwordx4 v[%d:%d], v%d, s[%d:%d], s%d offen sc0 sc1' % (vONE, vONE + 3, vL16, g.sKZ, g.sKZ + 3, sT[3]), tag='zero')
    I('s_lshl_b32 s%d, s%d, 8' % (sT[3], sH)); I('s_add_u32 s%d, s%d, s%d' % (sT[3], sT[3], sW12)); I('s_add_u32 s%d, s%d, %d' % (sT[3], sT[3], CNT))
    I('s_mov_b32 exec_hi, 0')
    I('buffer_store_dwordx4 v[%d:%d], v5, s[%d:%d], s%d offen sc0 sc1' % (vONE, vONE + 3, g.sKZ, g.sKZ + 3, sT[3]), tag='zero')
    I('s_lshl_b32 s%d, s%d, 10' % (sT[3], sH)); I('s_lshl_b32 s%d, s%d, 8' % (sT[4], sW)); I('s_add_u32 s%d, s%d, s%d' % (sT[3], sT[3], sT[4])); I('s_add_u32 s%d, s%d, %d' % (sT[3], sT[3], CSGU))
    I('s_mov_b32 exec_lo, 0xffff')
    I('buffer_store_dwordx4 v[%d:%d], v%d, s[%d:%d], s%d offen sc0 sc1' % (vONE, vONE + 3, vL16, g.sKZ, g.sKZ + 3, sT[3]), tag='zero')
    I('s_mov_b64 exec, -1')
    for d, sr_ in zip(g.S4[0:7], (sXB, sWB, sXRB, sCL, sCC, sW10, sW12)): I('s_mov_b32 s%d, s%d' % (d, sr_))
    sXB, sWB, sXRB, sCL, sCC, sW10, sW12 = g.S4[0:7]
    sPS = g.S4[7:11]; sPOs = g.S4[11:15]; sPSG = g.S4[15]; sPCS = g.S4[16]
    if cfg.get('c1early'): a_loads(1)
    A_, C_ = g.sPA, g.sPC
    I('s_lshl_b32 s%d, s%d, 2' % (sT[4], C_)); I('s_add_u32 s%d, s%d, s%d' % (sT[4], sT[4], sW))
    I('s_mul_i32 s%d, s%d, %d' % (sT[5], sT[4], 16 * 3584)); I('s_lshl_b32 s%d, s%d, 7' % (sT[6], A_)); I('s_add_u32 s%d, s%d, s%d' % (sPS[0], sT[5], sT[6]))
    I('s_mul_i32 s%d, s%d, 112' % (sT[5], A_)); I('s_add_u32 s%d, s%d, s%d' % (sT[5], sT[5], sT[4]))
    I('s_lshl_b32 s%d, s%d, 10' % (sT[5], sT[5])); I('s_add_u32 s%d, s%d, %d' % (sPOs[0], sT[5], GUP))
    I('s_lshr_b32 s%d, s%d, 1' % (sPSG, A_)); I('s_lshl_b32 s%d, s%d, 8' % (sPSG, sPSG)); I('s_add_u32 s%d, s%d, %d' % (sPSG, sPSG, CNT + 3 * 4096))
    I('s_sub_u32 s%d, s%d, 28' % (sT[4], A_)); I('s_lshl_b32 s%d, s%d, 2' % (sT[4], sT[4])); I('s_add_u32 s%d, s%d, s%d' % (sT[4], sT[4], sW))
    I('s_mul_i32 s%d, s%d, %d' % (sT[5], sT[4], 28 * 896)); I('s_lshl_b32 s%d, s%d, 7' % (sT[6], C_)); I('s_add_u32 s%d, s%d, s%d' % (sPS[1], sT[5], sT[6]))
    I('s_lshl_b32 s%d, s%d, 16' % (sT[5], C_)); I('s_lshl_b32 s%d, s%d, 11' % (sT[6], sT[4]))
    I('s_add_u32 s%d, s%d, s%d' % (sT[5], sT[5], sT[6])); I('s_add_u32 s%d, s%d, %d' % (sPOs[1], sT[5], WOP))
    I('s_lshl_b32 s%d, s%d, 8' % (sT[5], C_)); I('s_add_u32 s%d, s%d, %d' % (sT[5], sT[5], CNT + 4 * 4096))
    I('s_cmp_lt_u32 s%d, 32' % A_); I('s_cselect_b32 s%d, s%d, 0x20000000' % (sT[5], sT[5]))
    I('s_cmp_lt_u32 s%d, 28' % A_)
    I('s_cselect_b32 s%d, s%d, s%d' % (sPS[0], sPS[0], sPS[1])); I('s_cselect_b32 s%d, s%d, s%d' % (sPOs[0], sPOs[0], sPOs[1]))
    I('s_cselect_b32 s%d, s%d, s%d' % (sPSG, sPSG, sT[5]))
    I('s_mul_i32 s%d, s%d, 512' % (sPCS, A_)); I('s_cselect_b32 s%d, s%d, 0x20000000' % (sPCS, sPCS))
    sel(a, sT[3], 3584, 896); sel(a, sT[4], 8 * 3584, 8 * 896); I('s_cselect_b32 s%d, 0, %d' % (sT[5], 16 * 896))
    sel(a, sT[6], 28672, 1024); sel(a, sT[7], 57344, 32768)
    sel(a, g.sONE, 16 * 128, 32); sel(a, g.sEPS, 8 * 128, 14 * 128); I('s_cselect_b32 s%d, 32, %d' % (g.sL2E, 8 * 128))
    I('s_add_u32 s%d, s%d, s%d' % (sPS[1], sPS[0], sT[4])); I('s_add_u32 s%d, s%d, s%d' % (sPS[2], sPS[0], sT[5])); I('s_add_u32 s%d, s%d, s%d' % (sPS[3], sPS[2], sT[4]))
    I('s_add_u32 s%d, s%d, s%d' % (sPOs[1], sPOs[0], sT[6])); I('s_add_u32 s%d, s%d, s%d' % (sPOs[2], sPOs[0], sT[7])); I('s_add_u32 s%d, s%d, s%d' % (sPOs[3], sPOs[2], sT[6]))
    I('v_mul_lo_u32 v5, v2, s%d' % sT[3]); I('v_lshl_add_u32 v%d, v4, 4, v5' % vPD)
    def flag_set():
        I('v_mov_b32 v5, 1'); I('s_lshl_b32 s%d, s%d, 2' % (sT[4], sH)); I('v_mov_b32 v6, s%d' % sT[4])
        I('s_mov_b64 exec, 1')
        I('buffer_atomic_add v5, v6, s[%d:%d], 0 offen sc1' % (g.sDZ, g.sDZ + 3), tag='flag')
        I('s_mov_b64 exec, -1')
        I('s_cmp_eq_u32 s%d, 0' % sW); I('s_cselect_b32 s%d, %s, 0' % (g.sKZ + 2, hex(WS_BYTES)))
    I('v_lshrrev_b32 v2, 5, v1'); I('v_bfe_u32 v3, v1, 4, 1'); I('v_bfe_u32 v4, v1, 2, 2'); I('v_and_b32 v5, 3, v1')
    I('s_mul_i32 s%d, s%d, 4608' % (g.sPT, sW)); I('s_add_u32 s%d, s%d, %d' % (g.sPT, g.sPT, g.KVRL))
    I('v_mul_lo_u32 v6, v3, s%d' % g.sONE); I('v_mul_lo_u32 v7, v2, s%d' % g.sEPS); I('v_add3_u32 v6, v6, v7, s%d' % g.sPT)
    I('v_lshl_add_u32 v6, v4, 7, v6'); I('v_lshl_add_u32 v%d, v5, 3, v6' % vPT[0])
    I('v_add_u32 v%d, s%d, v%d' % (vPT[1], g.sL2E, vPT[0])); I('v_add_u32 v%d, 64, v%d' % (vPT[2], vPT[0])); I('v_add_u32 v%d, 64, v%d' % (vPT[3], vPT[1]))
    I('v_lshlrev_b32 v6, 9, v2'); I('v_lshl_add_u32 v6, v4, 6, v6'); I('v_lshl_add_u32 v6, v5, 3, v6')
    I('v_lshl_add_u32 v%d, v3, 5, v6' % vT); I('v_add_u32 v%d, %d, v%d' % (vT, g.WKL, vT))
    I('v_and_b32 v6, 31, v1'); I('v_lshlrev_b32 v%d, 2, v6' % vN4)
    I('v_lshrrev_b32 v7, 3, v6'); I('v_lshlrev_b32 v7, 10, v7')
    I('v_and_b32 v3, 7, v6'); I('v_lshl_add_u32 v7, v3, 7, v7')
    I('v_bfe_u32 v3, v6, 1, 3'); I('v_xor_b32 v3, v3, v2'); I('v_lshl_add_u32 v7, v3, 4, v7')
    I('v_add_u32 v%d, s%d, v7' % (vXR[0], sXRB))
    for t in range(1, 4): I('v_xor_b32 v%d, %d, v%d' % (vXR[t], 32 * t, vXR[0]))
    I('v_mul_u32_u24 v7, 896, v6'); I('v_lshl_add_u32 v%d, v2, 4, v7' % g.vXo)
    I('v_cmp_eq_u32 s[%d:%d], 28, v6' % (g.sMV28, g.sMV28 + 1)); I('v_cmp_eq_u32 s[%d:%d], 0, v2' % (g.sHI, g.sHI + 1))
    I('s_mov_b32 s%d, 0x3f803f80' % g.sONE); I('s_mov_b32 s%d, %s' % (g.sEPS, f32(1e-6))); I('s_mov_b32 s%d, %s' % (g.sL2E, f32(LOG2E)))
    for i in range(4): I('v_mov_b32 v%d, s%d' % (vONE + i, g.sONE))
    for r in (vS1a, vS1b, vS2a, vS2b): I('v_mov_b32 v%d, 0' % r)
    I('s_lshl_b32 s%d, s%d, 7' % (sT[3], sW)); I('s_add_u32 s%d, s%d, %d' % (sT[3], sT[3], g.CSL)); I('v_add_u32 v%d, s%d, v%d' % (vCA, sT[3], vN4))
    I('s_lshl_b32 s%d, s%d, 8' % (sT[3], sW)); I('s_add_u32 s%d, s%d, %d' % (sT[3], sT[3], g.STATL))
    I('v_lshlrev_b32 v3, 4, v2'); I('v_add_u32 v%d, s%d, v3' % (vSA, sT[3]))
    for t in range(1, 4):
        I('s_xor_b32 s%d, s%d, %d' % (sT[3], sW, t)); I('s_mul_i32 s%d, s%d, 12288' % (sT[3], sT[3])); I('s_add_u32 s%d, s%d, %d' % (sT[3], sT[3], g.REDL + (t - 1) * 4096))
        I('v_add_u32 v%d, s%d, v%d' % (g.vRW[t - 1], sT[3], vL16))
    I('s_mul_i32 s%d, s%d, 12288' % (sT[3], sW)); I('s_add_u32 s%d, s%d, %d' % (sT[3], sT[3], g.REDL)); I('v_add_u32 v%d, s%d, v%d' % (g.vRR, sT[3], vL16))
    I('v_add_u32 v%d, 4096, v%d' % (g.vLo[1], vL16)); I('v_add_u32 v%d, 28672, v%d' % (g.vLo[2], vL16)); I('v_add_u32 v%d, 32768, v%d' % (g.vLo[3], vL16))
    I('s_lshl_b32 s%d, s%d, 2' % (sT[3], g.sFS)); I('s_add_u32 s%d, s%d, s%d' % (sT[3], sT[3], sW)); I('s_mul_i32 s%d, s%d, 57344' % (sT[3], sT[3])); I('s_add_u32 s%d, s%d, %d' % (sT[3], sT[3], GUP))
    for q in range(4):
        I('s_add_u32 s%d, s%d, %d' % (sT[4], g.sR4, q)); I('s_and_b32 s%d, s%d, 3' % (sT[4], sT[4]))
        I('s_mul_i32 s%d, s%d, 7168' % (sT[4], sT[4])); I('s_add_u32 s%d, s%d, s%d' % (g.sQ[q], sT[4], sT[3]))
    if not cfg.get('c1early'): a_loads(1)
    if LAH > 2: a_loads(2)
    def pk_group(j):
        s = g.sP0 if j < 2 else g.sP1
        return grp(['s_add_u32 m0, s%d, %d' % (g.sPT, 1024 * j), lambda: I('buffer_load_dwordx4 v%d, s[%d:%d], s%d offen lds' % (vPD, s, s + 3, sPS[j]), tag='pk')])
    pf.stamp('issued')
    def w_addr():
        I('s_lshl_b32 s%d, s%d, 12' % (sT[3], sCC)); I('v_add_u32 v%d, s%d, v%d' % (vTc, sT[3], vT)); I('v_add_u32 v%d, s%d, v%d' % (vTo, sW10, vTc))
        adv(sCC)
    def flag_poll():
        I('v_lshlrev_b32 v%d, 2, v1' % g.vPA)
        I('buffer_load_dword v%d, v%d, s[%d:%d], 0 offen sc1' % (g.vPoll, g.vPA, g.sDBG, g.sDBG + 3), tag='poll')
    def pack_rd():
        a.wait(vm='pk')
        for f in range(4): trfrag(a, aPK + 4 * f, vPT[f], 0, 'pkr', f='a', d2=512)
    def pack_st():
        a.wait(lg='pkr')
        for f in range(4): I('buffer_store_dwordx4 %s, v%d, s[%d:%d], s%d offen sc1' % (ar(aPK + 4 * f, 4), vL16, g.sPO, g.sPO + 3, sPOs[f]), tag='pks')
    def go_poll():
        I('s_lshl_b32 s%d, s%d, 8' % (sT[4], g.sFS)); I('s_add_u32 s%d, s%d, %d' % (sT[4], sT[4], CNT + 3 * 4096))
        I('s_lshl_b32 s%d, s%d, 8' % (sT[5], g.sCS)); I('s_add_u32 s%d, s%d, %d' % (sT[5], sT[5], CNT + 4 * 4096))
        I('v_mov_b32 v%d, s%d' % (vXS[0], sT[5])); I('v_writelane_b32 v%d, s%d, 0' % (vXS[0], sT[4]))
        I('v_mov_b32 v%d, 4' % g.vPT); I('v_writelane_b32 v%d, 14, 0' % g.vPT)
        I('buffer_load_dword v%d, v%d, s[%d:%d], 0 offen sc1' % (g.vPoll, vXS[0], g.sWS, g.sWS + 3), tag='gop')
    def tlb_touch():
        sh = cfg.get('tlbsh', 19)
        I('v_lshlrev_b32 v5, %d, v1' % sh); I('s_lshl_b32 s%d, s%d, %d' % (sT[4], sW, sh - 2))
        I('s_mov_b32 exec_hi, 0xff')
        I('buffer_load_dword v%d, v5, s[%d:%d], s%d offen sc1' % (g.vCSg, g.sWS, g.sWS + 3, sT[4]), tag='tlb')
        I('s_mov_b32 exec_hi, 0'); I('s_mov_b32 exec_lo, 0xf')
        I('buffer_load_dword v%d, v5, s[%d:%d], s%d offen sc1' % (g.vCSg, g.sOUT, g.sOUT + 3, sT[4]), tag='tlb')
        I('s_mov_b64 exec, -1')
    def fin_groups():
        ops = ['v_add_f32 v%d, v%d, v%d' % (vS1a, vS1a, vS1b), 'v_add_f32 v%d, v%d, v%d' % (vS2a, vS2a, vS2b),
               'v_mov_b32 v%d, v%d' % (vS1b, vS1a), 'v_mov_b32 v%d, v%d' % (vS2b, vS2a),
               's_lshl_b32 s%d, s%d, 8' % (sT[3], sW), 's_add_u32 s%d, s%d, %d' % (sT[3], sT[3], g.STATL),
               'v_permlane32_swap_b32 v%d, v%d' % (vS1a, vS1b), 'v_permlane32_swap_b32 v%d, v%d' % (vS2a, vS2b),
               'v_add_f32 v%d, v%d, v%d' % (vS1a, vS1a, vS1b), 'v_add_f32 v%d, v%d, v%d' % (vS2a, vS2a, vS2b)]
        b = Asm(); ln_finish(b, 'v%d' % vS1a, 'v%d' % vS2a, 'v2', 'v3', 'v%d' % vRN, 'v4')
        ops += [l.strip() for l in b.out if not l.strip().startswith('s_nop')]
        ops += ['v_sub_f32 v%d, 0, v4' % (vRN + 1), 'v_add_u32 v2, s%d, v%d' % (sT[3], vN4), 'ds_write_b32 v2, v%d' % vRN, 'ds_write_b32 v2, v%d offset:128' % (vRN + 1),
                'ds_write_b32 v%d, a%d' % (vCA, aC0), 'ds_write_b32 v%d, a%d offset:512' % (vCA, aC1), 'v_add_u32 v5, %d, v%d' % (g.CSL, vN4)]
        n = (len(ops) + 7) // 8
        return [grp(ops[k:k + n]) for k in range(0, len(ops), n)]
    w_addr()
    PKI = cfg.get('pki', 4)
    for j in range(7):
        a.wait(vm='c%d' % j)
        if True:
            for t in range(4): I('ds_read_b128 %s, v%d offset:%d' % (vr(XF + 16 * j + 4 * t, 4), vXR[t], 4096 * xslot[j]), tag='xf%d' % j)
        trfrag(a, WB + 24, vTo, 0, 'o%d' % j); trfrag(a, WB + 28, vTo, 28672, 'o%d' % j)
        I('s_barrier')
        pf.stamp('c%d' % j)
        def rd(t):
            st = t % 3
            trfrag(a, WB + 8 * st, vTc, 1024 * t, 'w%d_%d' % (j, t)); trfrag(a, WB + 8 * st + 4, vTc, 28672 + 1024 * t, 'w%d_%d' % (j, t))
        def dots(jj):
            for r in range(16):
                x = XF + 16 * jj + r
                I('v_dot2c_f32_bf16 v%d, s%d, v%d' % (vS1b if r & 1 else vS1a, g.sONE, x)); I('v_dot2c_f32_bf16 v%d, v%d, v%d' % (vS2b if r & 1 else vS2a, x, x))
        rd(0); rd(1); rd(2)
        if j == 1: flag_set()
        if j > 0: dots(j - 1)
        if j == 6:
            a.wait(lg='xf6'); dots(6)
        G = []
        if j + LAH < 7: G = a_groups(j + LAH)
        elif j + LAH == 7: G = q_groups(cfg.get('wq0', 7))
        if j == PKI: G = G + [pk_group(k) for k in range(4)]
        if j == 3: G = G + [flag_poll]
        if j == 6: G = fin_groups()
        if j == cfg.get('tlb', -1): G = G + [tlb_touch]
        a.wait(lg='o%d' % j)
        I(MF(ar(aC0, 16), vr(vONE, 4), vr(WB + 24, 4), '0' if j == 0 else ar(aC0, 16)))
        if G: G.pop(0)()
        I(MF(ar(aC1, 16), vr(vONE, 4), vr(WB + 28, 4), '0' if j == 0 else ar(aC1, 16)))
        if G: G.pop(0)()
        for t in range(4):
            x = XF + 16 * j + 4 * t; st = t % 3
            a.wait(lg='w%d_%d' % (j, t))
            first = (j == 0 and t == 0)
            I(MF(vr(ACCK, 16), vr(x, 4), vr(WB + 8 * st, 4), '0' if first else vr(ACCK, 16)))
            if G: G.pop(0)()
            I(MF(vr(ACCV, 16), vr(x, 4), vr(WB + 8 * st + 4, 4), '0' if first else vr(ACCV, 16)))
            if t == 0:
                rd(3)
                if j < 6: w_addr()
            elif G: G.pop(0)()
        while G: G.pop(0)()
    pf.stamp('loop')
    a.wait(vm='wq', lg=0); I('s_barrier')
    CSR = [vXR[0], vXR[1], vXR[2], vXR[3], vS1a, vS1b, vS2a, vS2b]
    for i in range(8): I('ds_read_b32 v%d, v5 offset:%d' % (CSR[i], 128 * i), tag='cs')
    I('s_mov_b32 s%d, s%d' % (sCC, g.sRHO))
    aQB, aQO = 96, 112
    qn = [0]
    def q_rd(n):
        j, t = n // 4, n % 4
        if t == 0:
            I('s_lshl_b32 s%d, s%d, 12' % (sCL, sCC)); I('s_sub_u32 s%d, s%d, %d' % (sCL, sCL, g.WKL - g.WQL))
            I('v_add_u32 v%d, s%d, v%d' % (vTc, sCL, vT)); adv(sCC)
        trfrag(a, aQB + 4 * (n % 4), vTc, 1024 * t, 'q%d' % n, f='a')
    def q_step():
        n = qn[0]
        if n >= 28: return False
        if n + 3 < 28: q_rd(n + 3)
        a.wait(lg='q%d' % n)
        I(MF(vr(ACCQ, 16), ar(aQB + 4 * (n % 4), 4), vr(XF + 4 * n, 4), '0' if n == 0 else vr(ACCQ, 16)))
        qn[0] += 1; return True
    for qd in range(4):
        I('ds_read_b128 %s, v%d offset:%d' % (vr(WB + 16 + 4 * qd, 4), vSA, 128 + 32 * qd), tag='st')
    for qd in range(4):
        I('ds_read_b128 %s, v%d offset:%d' % (vr(WB + 4 * qd, 4), vSA, 32 * qd), tag='st2')
    pf.stamp('X1')
    poll(g, 'kf_pz', g.vPA, 0xffff, 4, g.sDBG, early='poll')
    for n in range(3): q_rd(n)
    pack_rd()
    a.sprinkle(q_step, cfg.get('qs', 20))
    for op in ['v_and_b32 v3, 31, v1', 'v_mul_u32_u24 v3, 144, v3', 'v_lshrrev_b32 v4, 5, v1', 'v_lshl_add_u32 v3, v4, 4, v3', 'v_add_u32 v%d, s%d, v3' % (vKW, g.sPT),
               'v_bfe_u32 v5, v1, 2, 2', 'v_lshl_add_u32 v4, v4, 2, v5',
               'v_bfe_u32 v5, v1, 4, 1', 'v_mul_u32_u24 v5, 14, v5', 'v_add_u32 v5, v5, v4',
               'v_and_b32 v6, 3, v1', 'v_lshlrev_b32 v6, 2, v6', 's_lshl_b32 s%d, s%d, 5' % (sT[4], sW), 's_add_u32 s%d, s%d, %d' % (sT[4], sT[4], g.KVRL),
               'v_add_u32 v6, s%d, v6' % sT[4], 'v_mul_u32_u24 v7, 144, v5', 'v_add_u32 v%d, v7, v6' % vRed[0],
               'v_add_u32 v%d, %d, v%d' % (vRed[1], 8 * 144, vRed[0]), 'v_mul_u32_u24 v7, 144, v4', 'v_add_u32 v7, v7, v6', 'v_add_u32 v7, %d, v7' % (22 * 144),
               'v_cmp_lt_u32 vcc, 5, v4', 'v_cndmask_b32 v%d, v%d, v7, vcc' % (vRed[1], vRed[1])]: I(op)
    pack_st()
    a.wait(lg='cs')
    I('v_add_f32 v%d, v%d, v%d' % (CSR[0], CSR[0], CSR[1])); I('v_add_f32 v%d, v%d, v%d' % (CSR[2], CSR[2], CSR[3])); I('v_add_f32 v%d, v%d, v%d' % (vCS, CSR[0], CSR[2]))
    I('v_add_f32 v%d, v%d, v%d' % (CSR[4], CSR[4], CSR[5])); I('v_add_f32 v%d, v%d, v%d' % (CSR[6], CSR[6], CSR[7])); I('v_add_f32 v%d, v%d, v%d' % (vCS + 1, CSR[4], CSR[6]))
    a.sprinkle(None, 0)
    for f in range(4): I(MF(ar(32 + 16 * f, 16), vr(vONE, 4), ar(aPK + 4 * f, 4), '0'))
    I('s_sub_u32 s%d, s%d, %d' % (sT[3], sW10, g.WKL - g.WQL)); I('v_add_u32 v%d, s%d, v%d' % (vTo, sT[3], vT))
    for c in range(7): trfrag(a, aQO + 4 * c, vTo, 4096 * c, 'qo%d' % c, f='a')
    SE = 's[%d:%d]' % (g.sEPS, g.sEPS + 1)
    def phi(acc, tmp, n):
        for p in range(0, n, 2): I('v_pk_mul_f32 %s, %s, %s op_sel:[0,1] op_sel_hi:[1,1]' % (vr(tmp + p, 2), vr(acc + p, 2), SE))
        for v in range(n): I('v_min_f32 v%d, 0, v%d' % (tmp + v, tmp + v))
        for v in range(n): I('v_exp_f32 v%d, v%d' % (tmp + v, tmp + v)); I('v_max_f32 v%d, s%d, v%d' % (acc + v, g.sEPS, acc + v))
        for p in range(0, n, 2): I('v_pk_add_f32 %s, %s, %s' % (vr(acc + p, 2), vr(acc + p, 2), vr(tmp + p, 2)))
    CSP = vr(vCS, 2)
    a.wait(lg='st')
    for p in range(0, 16, 2):
        I('v_pk_fma_f32 %s, %s, %s, %s op_sel_hi:[1,0,1]' % (vr(ACCK + p, 2), vr(WB + 16 + p, 2), CSP, vr(ACCK + p, 2)))
        I('v_pk_fma_f32 %s, %s, %s, %s op_sel:[0,1,0] op_sel_hi:[1,1,1]' % (vr(ACCV + p, 2), vr(WB + 16 + p, 2), CSP, vr(ACCV + p, 2)))
    I('s_add_u32 s%d, s%d, %d' % (sPCS, sPCS, CSGU)); I('s_mov_b32 exec_hi, 0')
    for f in range(4): I('buffer_atomic_add_f32 a%d, v%d, s[%d:%d], s%d offen offset:%d' % (32 + 16 * f, g.vPA, g.sWS, g.sWS + 3, sPCS, 128 * f), tag='pks')
    I('s_mov_b64 exec, -1')
    a.wait(lg='st2')
    for p in range(0, 16, 2):
        I('v_pk_fma_f32 %s, %s, %s, %s op_sel_hi:[1,1,0]' % (vr(ACCK + p, 2), vr(ACCK + p, 2), vr(WB + p, 2), SE))
        I('v_pk_mul_f32 %s, %s, %s' % (vr(ACCV + p, 2), vr(ACCV + p, 2), vr(WB + p, 2)))
    for p in range(0, 16, 2): I('v_pk_mul_f32 %s, %s, %s op_sel:[0,1] op_sel_hi:[1,1]' % (vr(WB + p, 2), vr(ACCK + p, 2), SE))
    a.sprinkle(q_step, cfg.get('qs', 20))
    for v in range(16): I('v_min_f32 v%d, 0, v%d' % (WB + v, WB + v))
    for v in range(16): I('v_exp_f32 v%d, v%d' % (WB + v, WB + v)); I('v_max_f32 v%d, s%d, v%d' % (ACCK + v, g.sEPS, ACCK + v))
    for v in range(16): I('v_add_f32 v%d, v%d, v%d' % (ACCK + v, ACCK + v, WB + v))
    for p in range(8):
        I('v_cvt_pk_bf16_f32 v%d, v%d, v%d' % (ACCK + p, ACCK + 2 * p, ACCK + 2 * p + 1)); I('v_cvt_pk_bf16_f32 v%d, v%d, v%d' % (ACCV + p, ACCV + 2 * p, ACCV + 2 * p + 1))
    a.sprinkle(None, 0)
    I('s_mov_b64 exec, s[%d:%d]' % (g.sMV28, g.sMV28 + 1))
    for p in range(8): I('v_mov_b32 v%d, s%d' % (ACCV + p, g.sONE))
    I('s_mov_b64 exec, -1')
    pf.stamp('epikv')
    I(MF(ar(aC1, 16), vr(ACCK, 4), vr(ACCV, 4), '0')); I(MF(ar(aC1, 16), vr(ACCK + 4, 4), vr(ACCV + 4, 4), ar(aC1, 16)))
    a.wait(lg='qo6')
    for c in range(7):
        I(MF(ar(aC0, 16), vr(vONE, 4), ar(aQO + 4 * c, 4), '0' if c == 0 else ar(aC0, 16)))
        if c == 1:
            for q in range(4): I('ds_write_b128 v%d, %s offset:%d' % (vKW, ar(aC1 + 4 * q, 4), 32 * q))
    I('s_lshl_b32 s%d, s%d, 12' % (sT[5], sH)); I('s_add_u32 s%d, s%d, s%d' % (sT[5], sT[5], sW10)); I('s_add_u32 s%d, s%d, %d' % (sT[5], sT[5], KVACC))
    I('ds_write_b32 v%d, a%d offset:1024' % (vCA, aC0))
    a.wait(vm='pks', lg=0); I('s_barrier')
    pf.stamp('X2')
    RB = WB + 16
    a.sprinkle(q_step, cfg.get('qs', 20))
    for j in range(4):
        for p in range(4): I('ds_read_b32 v%d, v%d offset:%d' % (RB + 4 * j + p, vRed[j % 2], 4608 * p + 16 * (j // 2)), tag='red%d' % j)
    for j in range(4):
        a.wait(lg='red%d' % j)
        b = RB + 4 * j
        I('v_add_f32 v%d, v%d, v%d' % (b, b, b + 1)); I('v_add_f32 v%d, v%d, v%d' % (b + 2, b + 2, b + 3)); I('v_add_f32 v%d, v%d, v%d' % (b, b, b + 2))
        if j < 2: I('buffer_atomic_add_f32 v%d, v%d, s[%d:%d], s%d offen offset:%d' % (b, g.vPA, g.sWS, g.sWS + 3, sT[5], 256 * j), tag='ast')
    a.sprinkle(None, 0)
    I('s_cmp_eq_u32 s%d, 3' % sW); a.branch('s_cbranch_scc1 kf_noat')
    for j in (2, 3): I('buffer_atomic_add_f32 v%d, v%d, s[%d:%d], s%d offen offset:%d' % (RB + 4 * j, g.vPA, g.sWS, g.sWS + 3, sT[5], 256 * j), counted=False)
    a.label('kf_noat')
    sig_add(g, sPSG)
    pf.stamp('atom')
    S = Side(a)
    CQ = ACCK + 8
    S.add(['v_add_u32 v2, %d, v%d' % (g.CSL + 1024, vN4)])
    S.add([((lambda i=i: I('ds_read_b32 v%d, v2 offset:%d' % (CQ + i, 128 * i), tag='cq')), 5) for i in range(4)])
    S.add(['s_lshl_b32 s%d, s%d, 7' % (sT[2], sW), 's_add_u32 s%d, s%d, %d' % (sT[2], sT[2], g.CSQ2L), 'v_add_u32 v3, s%d, v%d' % (sT[2], vN4),
           'v_lshrrev_b32 v4, 5, v1', 'v_lshlrev_b32 v4, 4, v4', 'v_add_u32 v4, s%d, v4' % sT[2], ((lambda: a.wait(lg='cq')), 3),
           'v_add_f32 v%d, v%d, v%d' % (CQ, CQ, CQ + 1), 'v_add_f32 v%d, v%d, v%d' % (CQ + 2, CQ + 2, CQ + 3), 'v_add_f32 v%d, v%d, v%d' % (CQ, CQ, CQ + 2),
           'ds_write_b32 v3, v%d' % CQ])
    S.add([((lambda q=q: I('ds_read_b128 %s, v4 offset:%d' % (vr(ACCV + 4 * q, 4), 32 * q), tag='cq2')), 5) for q in range(4)])
    g.guq = [(j, c) for j in range(28) for c in range(2)]
    print('q steps left after atomics', 28 - qn[0])
    while q_step(): S.emit(18)
    S.drain()
    pf.stamp('q28')
    a.wait(lg='cq2')
    RN = vr(vRN, 2)
    for p in range(0, 16, 2): I('v_pk_fma_f32 %s, %s, %s, %s op_sel:[0,1,0] op_sel_hi:[1,1,1]' % (vr(ACCQ + p, 2), vr(ACCV + p, 2), RN, vr(ACCQ + p, 2)))
    for p in range(0, 16, 2): I('v_pk_fma_f32 %s, %s, %s, %s op_sel_hi:[1,0,0]' % (vr(ACCQ + p, 2), vr(ACCQ + p, 2), RN, SE))
    phi(ACCQ, WB, 16)
    for p in range(8): I('v_cvt_pk_bf16_f32 v%d, v%d, v%d' % (ACCK + p, ACCQ + 2 * p, ACCQ + 2 * p + 1))
    for p in (6, 7): I('v_cndmask_b32 v%d, 0, v%d, s[%d:%d]' % (ACCK + p, ACCK + p, g.sHI, g.sHI + 1))
    I('s_lshl_b32 s%d, s%d, 2' % (sT[0], sRBA)); I('s_add_u32 s%d, s%d, s%d' % (sT[0], sT[0], sW))
    I('s_lshl_b32 s%d, s%d, 6' % (sT[1], sH)); I('s_add_u32 s%d, s%d, s%d' % (sT[0], sT[0], sT[1])); I('s_lshl_b32 s%d, s%d, 11' % (sT[0], sT[0]))
    if PQF: I('s_add_u32 s%d, s%d, %d' % (sT[0], sT[0], PQF))
    I('buffer_store_dwordx4 %s, v%d, s[%d:%d], s%d offen sc1' % (vr(ACCK, 4), vL16, g.sWS, g.sWS + 3, sT[0]), tag='ast')
    I('buffer_store_dwordx4 %s, v%d, s[%d:%d], s%d offen offset:1024 sc1' % (vr(ACCK + 4, 4), vL16, g.sWS, g.sWS + 3, sT[0]), tag='ast')
    pf.stamp('pqst')
    go_poll()
    I('s_lshr_b32 s%d, s%d, 2' % (sT[6], sH)); I('s_lshl_b32 s%d, s%d, 7' % (sT[6], sT[6])); I('s_add_u32 s%d, s%d, %d' % (sT[6], sT[6], CNT))
    I('v_mov_b32 v2, 1'); I('v_lshlrev_b32 v3, 9, v1')
    a.wait(vm='ast'); I('s_barrier')
    I('s_mov_b64 exec, 0xff')
    I('buffer_atomic_add v2, v3, s[%d:%d], s%d offen sc1' % (g.sKZ, g.sKZ + 3, sT[6]), tag='sig')
    I('s_mov_b64 exec, -1')
    pf.stamp('sigA')
    I('s_and_b32 s%d, s2, 0xc2' % sT[0]); I('s_cmp_eq_u32 s%d, 0xc2' % sT[0]); a.branch('s_cbranch_scc1 kf_pack')
    poll(g, 'kf_pg', vXS[0], 3, 'v%d' % g.vPT, g.sWS, early='gop')
    wo_loads(g, 0, 2)

def wo_loads(g, lo, hi):
    a = g.a; I = a.I; sT = g.sT
    for i in range(lo, hi):
        I('s_add_u32 s%d, s%d, %d' % (sT[2], g.sR4, i)); I('s_and_b32 s%d, s%d, 3' % (sT[2], sT[2]))
        I('s_lshl_b32 s%d, s%d, 2' % (sT[3], g.sW)); I('s_add_u32 s%d, s%d, s%d' % (sT[2], sT[2], sT[3])); I('s_lshl_b32 s%d, s%d, 11' % (sT[2], sT[2]))
        I('s_lshl_b32 s%d, s%d, 1' % (sT[3], g.sCS)); I('s_and_b32 s%d, s%d, 1' % (sT[4], g.sW)); I('s_add_u32 s%d, s%d, s%d' % (sT[3], sT[3], sT[4]))
        I('s_lshl_b32 s%d, s%d, 15' % (sT[3], sT[3])); I('s_add_u32 s%d, s%d, s%d' % (sT[2], sT[2], sT[3]))
        I('s_xor_b32 s%d, s%d, 32768' % (sT[3], sT[2]))
        I('s_add_u32 s%d, s%d, %d' % (sT[2], sT[2], WOP)); I('s_add_u32 s%d, s%d, %d' % (sT[3], sT[3], WOP))
        for c in range(2):
            for kk in range(2):
                I('buffer_load_dwordx4 %s, v%d, s[%d:%d], s%d offen offset:%d sc1' % (vr(8 + 16 * i + 8 * c + 4 * kk, 4), g.vL16, g.sWS, g.sWS + 3, sT[2 + c], 1024 * kk), tag='wo')

def resid_init(g, RES, ACC0, T):
    I = g.a.I
    for p in range(8): I('v_mov_b32 v%d, v%d' % (T + p, RES + p))
    for pr in range(2):
        for k in range(2): I('v_permlane32_swap_b32 v%d, v%d' % (T + 4 * pr + k, T + 4 * pr + 2 + k))
    for p in range(8):
        I('v_lshlrev_b32 v%d, 16, v%d' % (ACC0 + 2 * p, T + p)); I('v_and_b32 v%d, 0xffff0000, v%d' % (ACC0 + 2 * p + 1, T + p))

def reduce_tiles(g, ACC, P0, OUT):
    a = g.a; I = a.I
    for t in range(1, 4):
        for q in range(4): I('ds_write_b128 v%d, %s offset:%d' % (g.vRW[t - 1], vr(ACC + 16 * t + 4 * q, 4), 1024 * q))
    a.wait(lg=0); I('s_barrier')
    for q in range(4):
        for t in range(3): I('ds_read_b128 %s, v%d offset:%d' % (vr(P0 + 16 * t + 4 * q, 4), g.vRR, 4096 * t + 1024 * q), tag='rr%d' % q)
    for q in range(4):
        a.wait(lg='rr%d' % q)
        for v in (4 * q, 4 * q + 2):
            I('v_pk_add_f32 %s, %s, %s' % (vr(P0 + v, 2), vr(P0 + v, 2), vr(ACC + v, 2))); I('v_pk_add_f32 %s, %s, %s' % (vr(P0 + 16 + v, 2), vr(P0 + 16 + v, 2), vr(P0 + 32 + v, 2)))
        for v in (4 * q, 4 * q + 2): I('v_pk_add_f32 %s, %s, %s' % (vr(P0 + v, 2), vr(P0 + v, 2), vr(P0 + 16 + v, 2)))
        for p in (2 * q, 2 * q + 1): I('v_cvt_pk_bf16_f32 v%d, v%d, v%d' % (OUT + p, P0 + 2 * p, P0 + 2 * p + 1))
        if q % 2 == 1:
            for k in range(2): I('v_permlane32_swap_b32 v%d, v%d' % (OUT + 2 * (q - 1) + k, OUT + 2 * (q - 1) + 2 + k))

def colsum(g, lo, hi):
    a = g.a; I = a.I
    for i in range(4): I('v_mov_b32 v%d, s%d' % (4 + i, g.sONE))
    for j in range(lo, hi):
        for c in range(2): I(MF(ar(224 + 16 * c, 16), 'v[4:7]', ar(112 * c + 4 * j, 4), '0' if j == 0 else ar(224 + 16 * c, 16)))

def phase_B(g):
    a = g.a; I = a.I; sT = g.sT; pf = g.pf; cfg = g.cfg
    sW = g.sW; vL16 = g.vL16
    WO, ACC, KV, NUM = 8, 72, 136, 168
    aPQ = 224
    sRT, sCT, sKVB, sPQB, sRX = g.S4[0:5]
    wo_loads(g, 2, 4)
    I('s_lshr_b32 s%d, s%d, 1' % (sT[0], sW)); I('s_and_b32 s%d, s%d, 1' % (sT[1], sW))
    I('s_lshl_b32 s%d, s%d, 1' % (sRT, g.sRB64)); I('s_add_u32 s%d, s%d, s%d' % (sRT, sRT, sT[0]))
    I('s_lshl_b32 s%d, s%d, 1' % (sCT, g.sCS)); I('s_add_u32 s%d, s%d, s%d' % (sCT, sCT, sT[1]))
    g.sRT, g.sCT = sRT, sCT
    I('s_mul_i32 s%d, s%d, %d' % (sT[2], sRT, 32 * 896)); I('s_lshl_b32 s%d, s%d, 6' % (sT[3], sCT)); I('s_add_u32 s%d, s%d, s%d' % (sT[2], sT[2], sT[3]))
    for i in range(2):
        I('buffer_load_dwordx4 %s, v%d, s[%d:%d], s%d offen offset:%d' % (vr(g.vHK + 4 * i, 4), g.vXo, g.sX, g.sX + 3, sT[2], 32 * i), tag='xr')
    I('s_and_b32 s%d, s2, 7' % sT[2]); I('s_lshl_b32 s%d, s%d, 2' % (sT[2], sT[2])); I('s_add_u32 s%d, s%d, s%d' % (sT[2], sT[2], sW))
    I('s_lshl_b32 s%d, s%d, 7' % (sT[2], sT[2])); I('s_add_u32 s%d, s%d, %d' % (sT[2], sT[2], CNT)); I('v_mov_b32 v%d, s%d' % (g.vPA, sT[2]))
    I('s_lshl_b32 s%d, s%d, 14' % (sKVB, sW)); I('s_add_u32 s%d, s%d, %d' % (sKVB, sKVB, KVACC))
    I('s_lshl_b32 s%d, s%d, 19' % (sPQB, sW)); I('s_lshl_b32 s%d, s%d, 12' % (sT[2], g.sRB64)); I('s_add_u32 s%d, s%d, s%d' % (sPQB, sPQB, sT[2]))
    if PQF: I('s_add_u32 s%d, s%d, %d' % (sPQB, sPQB, PQF))
    I('s_lshl_b32 s%d, s%d, 11' % (sRX, sT[0]))
    pf.stamp('pfB')
    poll(g, 'kf_p1', g.vPA, 1, 64, g.sWS)
    pf.stamp('sync1')
    def loads(i):
        I('s_add_u32 s%d, s%d, %d' % (sT[2], g.sR4, i)); I('s_and_b32 s%d, s%d, 3' % (sT[2], sT[2]))
        I('s_lshl_b32 s%d, s%d, 12' % (sT[3], sT[2])); I('s_add_u32 s%d, s%d, s%d' % (sT[3], sT[3], sKVB))
        I('s_lshl_b32 s%d, s%d, 17' % (sT[4], sT[2])); I('s_add_u32 s%d, s%d, s%d' % (sT[4], sT[4], sPQB))
        I('s_add_u32 s%d, s%d, s%d' % (sT[5], sT[4], sRX)); I('s_xor_b32 s%d, s%d, 2048' % (sT[4], sT[5]))
        for q in range(4):
            I('buffer_load_dwordx4 %s, v%d, s[%d:%d], s%d offen offset:%d sc1' % (vr(KV + 16 * (i % 2) + 4 * q, 4), vL16, g.sWS, g.sWS + 3, sT[3], 1024 * q), tag='kv%d' % i)
        for rt in range(2):
            for kk in range(2):
                I('buffer_load_dwordx4 %s, v%d, s[%d:%d], s%d offen offset:%d sc1' % (ar(aPQ + 16 * (i % 2) + 8 * rt + 4 * kk, 4), vL16, g.sWS, g.sWS + 3, sT[5] if rt == 0 else sT[4], 1024 * kk), tag='pq%d' % i)
    def o_ops(i, rt):
        n = NUM + 32 * (i % 2) + 16 * rt; t = 2 + rt
        ops = ['v_cvt_pk_bf16_f32 v%d, v%d, v%d' % (t, n + 14, n + 14), 'v_and_b32 v%d, 0xffff0000, v%d' % (t, t),
               'v_add_f32 v%d, s%d, v%d' % (t, g.sEPS, t), 'v_rcp_f32 v%d, v%d' % (t, t)]
        for v in range(14): ops.append('v_mul_f32 v%d, v%d, v%d' % (n + v, n + v, t))
        for p in range(7): ops.append('v_cvt_pk_bf16_f32 v%d, v%d, v%d' % (n + p, n + 2 * p, n + 2 * p + 1))
        ops.append('v_mov_b32 v%d, 0' % (n + 7))
        return ops
    def num(i):
        b = KV + 16 * (i % 2)
        a.wait(vm='kv%d' % i)
        for p in range(8): I('v_cvt_pk_bf16_f32 v%d, v%d, v%d' % (b + p, b + 2 * p, b + 2 * p + 1))
        a.wait(vm='pq%d' % i)
        for rt in range(2):
            for kk in range(2):
                n = NUM + 32 * (i % 2) + 16 * rt
                I(MF(vr(n, 16), vr(b + 4 * kk, 4), ar(aPQ + 16 * (i % 2) + 8 * rt + 4 * kk, 4), '0' if kk == 0 else vr(n, 16)))
        if i + 2 < 4: loads(i + 2)
    def gemm(i, rt, S, per):
        for kk in range(2):
            for c in range(2):
                acc = ACC + 16 * (2 * rt + c)
                I(MF(vr(acc, 16), vr(WO + 16 * i + 8 * c + 4 * kk, 4), vr(NUM + 32 * (i % 2) + 16 * rt + 4 * kk, 4), '0' if (i == 0 and kk == 0 and (rt or c)) else vr(acc, 16)))
                S.emit(per)
    def gu_one():
        if len(g.guq) <= cfg.get('gu_keep', 20): return False
        gu_load(g, *g.guq.pop(0)); return True
    loads(0); loads(1)
    resid_init(g, g.vHK, ACC, NUM)
    S = Side(a)
    num(0)
    for i in range(4):
        S.add(o_ops(i, 0)); S.drain()
        S.add(o_ops(i, 1))
        gemm(i, 0, S, 28); S.drain()
        if i + 1 < 4: num(i + 1)
        if i == cfg.get('spr_i', 1): a.sprinkle(gu_one, cfg.get('spr', 80))
        gemm(i, 1, S, 0)
    pf.stamp('gemmB')
    reduce_tiles(g, ACC, NUM, g.vHK)
    a.sprinkle(None, 0)
    I('s_mul_i32 s%d, s%d, 28' % (sT[0], sRT)); I('s_lshl_b32 s%d, s%d, 1' % (sT[1], sCT)); I('s_add_u32 s%d, s%d, s%d' % (sT[0], sT[0], sT[1]))
    I('s_lshl_b32 s%d, s%d, 10' % (sT[0], sT[0])); I('s_add_u32 s%d, s%d, %d' % (sT[0], sT[0], HF))
    for i in range(2):
        I('buffer_store_dwordx4 %s, v%d, s[%d:%d], s%d offen offset:%d sc1' % (vr(g.vHK + 4 * i, 4), vL16, g.sWS, g.sWS + 3, sT[0], 1024 * i), tag='bst')
    I('v_mov_b32 v2, 0'); I('v_mov_b32 v3, 0')
    for p in range(8):
        I('v_dot2c_f32_bf16 v2, s%d, v%d' % (g.sONE, g.vHK + p)); I('v_dot2c_f32_bf16 v3, v%d, v%d' % (g.vHK + p, g.vHK + p))
    I('s_lshl_b32 s%d, s%d, 14' % (sT[0], sCT)); I('s_lshl_b32 s%d, s%d, 8' % (sT[1], sRT))
    I('s_add_u32 s%d, s%d, s%d' % (sT[0], sT[0], sT[1])); I('s_add_u32 s%d, s%d, %d' % (sT[0], sT[0], STATS))
    I('v_mov_b32 v4, v2'); I('v_mov_b32 v5, v3'); I('v_lshlrev_b32 v6, 3, v1')
    I('v_permlane32_swap_b32 v2, v4'); I('v_permlane32_swap_b32 v3, v5')
    I('v_add_f32 v8, v2, v4'); I('v_add_f32 v9, v3, v5')
    I('s_mov_b32 exec_hi, 0')
    I('buffer_store_dwordx2 v[8:9], v6, s[%d:%d], s%d offen sc1' % (g.sWS, g.sWS + 3, sT[0]), tag='bst')
    I('s_mov_b64 exec, -1')
    pf.stamp('hst')
    for _ in range(min(cfg.get('b_gu4', 10), len(g.guq))): gu_load(g, *g.guq.pop(0))
    I('s_lshr_b32 s%d, s%d, 1' % (sT[5], g.sRB64))
    I('s_lshl_b32 s%d, s%d, 8' % (g.sT[6], sT[5])); I('s_add_u32 s%d, s%d, %d' % (g.sT[6], g.sT[6], CNT + 4096))
    a.wait(vm='bst'); I('s_barrier'); sig_add(g, g.sT[6])
    pf.stamp('sigB')

def phase_C(g):
    a = g.a; I = a.I; sT = g.sT; pf = g.pf; cfg = g.cfg
    sW = g.sW; vL16 = g.vL16
    ACC, HB, NMF, CI, TM, CSF = 8, 72, 96, 108, 116, 132
    NHB = 6
    vHQ = list(range(124, 132))
    I('s_lshl_b32 s%d, s%d, 2' % (sT[3], g.sFS)); I('s_add_u32 s%d, s%d, s%d' % (sT[3], sT[3], sW)); I('s_lshl_b32 s%d, s%d, 8' % (sT[3], sT[3])); I('s_add_u32 s%d, s%d, %d' % (sT[3], sT[3], CSGU))
    I('v_and_b32 v2, 31, v1'); I('v_lshlrev_b32 v3, 2, v2')
    for c in range(2): I('buffer_load_dword v%d, v3, s[%d:%d], s%d offen offset:%d sc1' % (g.vCSg + c, g.sWS, g.sWS + 3, sT[3], 128 * c), tag='csg')
    while len(g.guq) > cfg.get('c_gu', 0): gu_load(g, *g.guq.pop(0))
    sHG, sHL = g.S4[5], g.S4[6]
    sO = g.S4[7:11]; g.sQD = g.S4[15:19]
    I('s_mul_i32 s%d, s%d, 112' % (sT[3], g.sCT)); I('s_mul_i32 s%d, s%d, 28' % (sT[4], sW)); I('s_add_u32 s%d, s%d, s%d' % (sT[3], sT[3], sT[4]))
    I('s_lshl_b32 s%d, s%d, 10' % (sT[3], sT[3])); I('s_add_u32 s%d, s%d, %d' % (sT[3], sT[3], WDP))
    for q in range(4):
        I('s_add_u32 s%d, s%d, %d' % (sT[4], g.sR4, q)); I('s_and_b32 s%d, s%d, 3' % (sT[4], sT[4]))
        I('s_mul_i32 s%d, s%d, 7168' % (sT[5], sT[4])); I('v_add_u32 v%d, s%d, v%d' % (vHQ[q], sT[5], vL16)); I('v_add_u32 v%d, 57344, v%d' % (vHQ[4 + q], vHQ[q]))
        I('s_add_u32 s%d, s%d, s%d' % (g.sQD[q], sT[5], sT[3]))
    I('s_and_b32 s%d, s%d, 1' % (sT[4], g.sCT)); I('s_mul_i32 s%d, s%d, 114688' % (sT[4], sT[4])); I('s_sub_u32 s%d, 114688, s%d' % (sT[5], sT[4]))
    for q in range(4): I('s_sub_u32 s%d, s%d, s%d' % (g.sQD[q], g.sQD[q], sT[4]))
    g.vLd = [152, 153, 154, 155]
    I('s_lshr_b32 s%d, s%d, 1' % (sT[6], sW)); I('s_lshl_b32 s%d, s%d, 8' % (sT[6], sT[6])); I('v_xor_b32 v2, s%d, v%d' % (sT[6], vL16))
    I('v_add_u32 v%d, s%d, v2' % (g.vLd[0], sT[4])); I('v_add_u32 v%d, 4096, v%d' % (g.vLd[1], g.vLd[0]))
    I('v_add_u32 v%d, s%d, v2' % (g.vLd[2], sT[5])); I('v_add_u32 v%d, 4096, v%d' % (g.vLd[3], g.vLd[2]))
    I('s_mul_i32 s%d, s%d, %d' % (sHG, g.sRB128, 4 * 28672)); I('s_mul_i32 s%d, s%d, 7168' % (sHL, sW))
    I('s_add_u32 s%d, s%d, s%d' % (sHG, sHG, sHL)); I('s_add_u32 s%d, s%d, %d' % (sHG, sHG, HF))
    I('s_lshl_b32 s%d, s%d, 3' % (sT[2], g.sFS)); I('s_lshl_b32 s%d, s%d, 1' % (sT[3], sW)); I('s_add_u32 s%d, s%d, s%d' % (sT[2], sT[2], sT[3]))
    I('s_mul_i32 s%d, s%d, %d' % (sT[0], g.sRB128, 4 * 112)); I('s_add_u32 s%d, s%d, s%d' % (sT[0], sT[0], sT[2]))
    I('s_lshl_b32 s%d, s%d, 10' % (sT[0], sT[0])); I('s_add_u32 s%d, s%d, %d' % (sT[0], sT[0], ACTF))
    for rt in range(4): I('s_add_u32 s%d, s%d, %d' % (sO[rt], sT[0], rt * 112 * 1024))
    I('v_and_b32 v2, 31, v1'); I('v_lshrrev_b32 v3, 5, v1')
    I('v_mul_u32_u24 v%d, %d, v3' % (TM, 7 * 16384)); I('v_lshl_add_u32 v%d, v2, 3, v%d' % (TM, TM))
    I('s_lshl_b32 s%d, s%d, 2' % (sT[0], g.sRB128)); I('s_add_u32 s%d, s%d, s%d' % (sT[0], sT[0], sW))
    I('s_lshl_b32 s%d, s%d, 8' % (sT[1], sT[0])); I('s_add_u32 s%d, s%d, %d' % (sT[1], sT[1], STATS))
    I('s_lshl_b32 s%d, s%d, 8' % (sT[2], g.sRB128)); I('s_add_u32 s%d, s%d, %d' % (sT[2], sT[2], CNT + 4096)); I('v_mov_b32 v%d, s%d' % (g.vPA, sT[2]))
    pf.stamp('csC')
    poll(g, 'kf_p2', g.vPA, 1, 14, g.sWS)
    pf.stamp('sync2')
    def h_dma(rt, lo=0, hi=7):
        for k in range(lo, hi):
            if k % 4 == 0 or k == lo:
                kb = k - k % 4
                I('s_add_u32 s%d, s%d, %d' % (sT[3], sHG, rt * 28672 + 1024 * kb)); I('s_add_u32 m0, s%d, %d' % (sHL, g.HL + rt * 28672 + 1024 * kb))
            I('buffer_load_dwordx4 v%d, s[%d:%d], s%d offen offset:%d sc1 lds' % (vL16, g.sWS, g.sWS + 3, sT[3], 1024 * (k % 4)), tag='h%d' % rt)
    h_dma(0)
    vSP = 156
    while g.guq:
        j, c = g.guq.pop(0); gu_load(g, j, c); a.vm[-1] = 'gu%d' % j
        g.late_gu = getattr(g, 'late_gu', []) + [j]
    for p in range(7):
        I('buffer_load_dwordx2 %s, v%d, s[%d:%d], s%d offen sc1' % (vr(vSP + 2 * p, 2), TM, g.sWS, g.sWS + 3, sT[1]), tag='sp')
        if p < 6: I('s_add_u32 s%d, s%d, 16384' % (sT[1], sT[1]))
    for c in range(2):
        f = CSF + 4 * c
        I('v_mov_b32 v4, v%d' % (g.vCSg + c))
        I('v_cvt_pk_bf16_f32 v5, v4, v4'); I('v_and_b32 v5, 0xffff0000, v5'); I('v_sub_f32 v6, v4, v5')
        I('v_cvt_pk_bf16_f32 v%d, v4, v6' % f); I('v_and_b32 v5, 0xffff0000, v%d' % f); I('v_sub_f32 v6, v6, v5')
        I('v_cvt_pk_bf16_f32 v%d, v6, 0' % (f + 1))
        I('v_cndmask_b32 v%d, 0, v%d, s[%d:%d]' % (f, f, g.sHI, g.sHI + 1)); I('v_cndmask_b32 v%d, 0, v%d, s[%d:%d]' % (f + 1, f + 1, g.sHI, g.sHI + 1))
        I('v_mov_b32 v%d, 0' % (f + 2)); I('v_mov_b32 v%d, 0' % (f + 3))
    I('s_lshl_b32 s%d, s%d, 8' % (sT[2], sW)); I('s_add_u32 s%d, s%d, %d' % (sT[2], sT[2], CNT + 5 * 4096)); I('v_mov_b32 v%d, s%d' % (g.vPA, sT[2]))
    a.wait(vm='h0'); I('s_barrier')
    pf.stamp('h0')
    def stats_ops():
        ops = [((lambda: a.wait(vm='sp')), 3)]
        for p in range(1, 7): ops += ['v_add_f32 v%d, v%d, v%d' % (vSP, vSP, vSP + 2 * p), 'v_add_f32 v%d, v%d, v%d' % (vSP + 1, vSP + 1, vSP + 2 * p + 1)]
        ops += ['v_mov_b32 v5, v%d' % vSP, 'v_mov_b32 v6, v%d' % (vSP + 1), 's_lshl_b32 s%d, s%d, 9' % (sT[1], sW), 's_add_u32 s%d, s%d, %d' % (sT[1], sT[1], g.STL),
                'v_permlane32_swap_b32 v%d, v5' % vSP, 'v_permlane32_swap_b32 v%d, v6' % (vSP + 1),
                'v_add_f32 v%d, v%d, v5' % (vSP, vSP), 'v_add_f32 v%d, v%d, v6' % (vSP + 1, vSP + 1)]
        b = Asm(); ln_finish(b, 'v%d' % vSP, 'v%d' % (vSP + 1), 'v5', 'v6', 'v7', 'v3')
        ops += [l.strip() for l in b.out if not l.strip().startswith('s_nop')]
        X = vSP + 4
        ops += ['v_sub_f32 v3, 0, v3', 'v_cvt_pk_bf16_f32 v%d, v3, v3' % X, 'v_mov_b32 v%d, v%d' % (X + 1, X), 'v_mul_f32 v%d, %s, v7' % (X + 2, f32(-LOG2E)), 'v_mul_f32 v%d, v6, v6' % (X + 3),
                'v_lshlrev_b32 v4, 4, v2', 'v_add_u32 v5, s%d, v4' % sT[1], 'v_add_u32 v4, %d, v4' % g.STL,
                ((lambda: I('ds_write_b128 v5, %s' % vr(X, 4), tag='stw')), 6)]
        return ops
    def st_reads():
        for rt in range(4):
            I('ds_read_b64 %s, v4 offset:%d' % (vr(NMF + 2 * rt, 2), 512 * rt), tag='st')
            I('ds_read_b64 %s, v4 offset:%d' % (vr(CI + 2 * rt, 2), 512 * rt + 8), tag='st')
        I('v_mov_b32 v%d, 0' % (NMF + 8)); I('v_mov_b32 v%d, 0' % (NMF + 9))
    def acc(rt, c): return ACC + 32 * (rt % 2) + 16 * c
    def epi_ops(rt, c):
        b = acc(rt, c); c1, ir2 = CI + 2 * rt, CI + 2 * rt + 1
        ops = []
        for j in range(8): ops += ['v_mul_f32 v%d, v%d, v%d' % (TM + j, c1, b + j)]
        for j in range(8): ops += ['v_exp_f32 v%d, v%d' % (TM + j, TM + j), 'v_mul_f32 v%d, v%d, v%d' % (b + j, b + j, b + 8 + j)]
        for j in range(8): ops += ['v_fma_f32 v%d, v%d, v%d, v%d' % (TM + j, TM + j, ir2, ir2)]
        for j in range(8):
            ops += ['v_rcp_f32 v%d, v%d' % (TM + j, TM + j)]
            if j > 0: ops += ['v_mul_f32 v%d, v%d, v%d' % (b + j - 1, b + j - 1, TM + j - 1)]
        ops += ['v_cvt_pk_bf16_f32 v%d, v%d, v%d' % (b + 8 + p, b + 2 * p, b + 2 * p + 1) for p in range(3)]
        ops += ['v_mul_f32 v%d, v%d, v%d' % (b + 7, b + 7, TM + 7), 'v_cvt_pk_bf16_f32 v%d, v%d, v%d' % (b + 11, b + 6, b + 7)]
        ops.append(((lambda: I('buffer_store_dwordx4 %s, v%d, s[%d:%d], s%d offen offset:%d sc1' % (vr(b + 8, 4), vL16, g.sWS, g.sWS + 3, sO[rt], 1024 * c), tag='cst%d' % (rt // 2))), 16))
        return ops
    seq = [(rt, j) for rt in range(4) for j in range(28)]
    vis = 0
    def h_rd(n):
        nonlocal vis
        rt, j = seq[n]
        if rt > vis:
            vis = rt
            if rt == 1: a.wait(vm='h1', lg='stw')
            else: a.wait(vm='h%d' % rt)
            I('s_barrier')
            if rt == 1: st_reads()
        I('ds_read_b128 %s, v%d offset:%d' % (vr(HB + 4 * (n % NHB), 4), vHQ[4 * (rt // 2) + j // 7], (rt % 2) * 28672 + (j % 7) * 1024), tag='hr%d' % n)
    LA = NHB - 1
    for n in range(LA): h_rd(n)
    S = Side(a)
    wdq = [(j, c) for j in range(g.n_wd1) for c in range(2)]
    g.wdq2 = [(j, c) for j in range(g.n_wd1, 28) for c in range(2)]
    def hd(rt, k): return ((lambda: h_dma(rt, k, k + 1)), 22)
    for n, (rt, j) in enumerate(seq):
        if j == 0:
            S.drain()
            if rt == 0:
                S.add([hd(1, k) for k in range(7)]); S.add(stats_ops()); S.add([hd(2, k) for k in range(7)])
                S.add([((lambda: I('buffer_load_dword v%d, v%d, s[%d:%d], 0 offen sc1' % (g.vPoll, g.vPA, g.sWS, g.sWS + 3), tag='wdp')), 16)])
            if rt == 1:
                S.add([hd(3, k) for k in range(7)])
                poll(g, 'kf_pw', g.vPA, 1, 7, g.sWS, early='wdp')
            if rt >= 1: S.add(epi_ops(rt - 1, 0) + epi_ops(rt - 1, 1))
            pf.stamp('rt%d' % rt)
        if n + LA == 28: S.drain()
        if n + LA < len(seq): h_rd(n + LA)
        if rt == 0 and j in getattr(g, 'late_gu', []): a.wait(vm='gu%d' % j)
        a.wait(lg='hr%d' % n)
        for c in range(2):
            I(MF(vr(acc(rt, c), 16), ar(112 * c + 4 * j, 4), vr(HB + 4 * (n % NHB), 4), '0' if j == 0 else vr(acc(rt, c), 16)))
            if c == 0 and n >= 30 and n % 5 in (0, 2, 4) and wdq: wd_load(g, *wdq.pop(0))
            elif c == 0 and rt == 3 and 1 <= j <= cfg.get('wd3', 26) and not wdq: wd_load(g, *g.wdq2.pop(0))
            elif not (j == 0 and rt >= 1): S.emit(cfg.get('cb0', 16) if c == 0 else cfg.get('cb1', 22))
        if rt == 3 and j == 20: S.drain(); d_setup(g)
        if rt == 3 and j == cfg.get('midsig', 6):
            I('s_lshl_b32 s%d, s%d, 8' % (sT[6], g.sRB128)); I('s_add_u32 s%d, s%d, %d' % (sT[6], sT[6], CNT + 8192))
            a.wait(vm='cst0'); I('s_barrier'); sig_add(g, sT[6])
        if j == 27:
            a.wait(lg='st')
            for c in range(2): I(MF(vr(acc(rt, c), 16), vr(CSF + 4 * c, 4), vr(NMF + 2 * rt, 4), vr(acc(rt, c), 16)))
    S.drain()
    pf.stamp('mfmaC')
    assert not wdq
    for _ in range(min(len(g.wdq2), cfg.get('wd_pre', 8))): wd_load(g, *g.wdq2.pop(0))
    S.add(epi_ops(3, 0) + epi_ops(3, 1)); S.drain()
    pf.stamp('actst')

def d_setup(g):
    a = g.a; I = a.I; sT = g.sT; sW = g.sW; vL16 = g.vL16
    g.sA = g.S4[11:15]; g.sE, g.sHR, g.sOB = g.S4[2], g.S4[3], g.S4[4]
    I('s_lshr_b32 s%d, s%d, 1' % (sT[2], g.sRB64)); I('s_lshl_b32 s%d, s%d, 2' % (g.sE, sT[2])); I('s_and_b32 s%d, s%d, 1' % (sT[3], g.sRB64)); I('s_add_u32 s%d, s%d, s%d' % (g.sE, g.sE, sT[3]))
    I('s_lshl_b32 s%d, s%d, 8' % (sT[2], sT[2])); I('s_add_u32 s%d, s%d, %d' % (sT[2], sT[2], CNT + 8192)); I('v_mov_b32 v%d, s%d' % (g.vPA, sT[2]))
    I('buffer_load_dword v%d, v%d, s[%d:%d], 0 offen sc1' % (g.vPoll, g.vPA, g.sWS, g.sWS + 3), tag='p3e')
    I('s_mul_i32 s%d, s%d, 112' % (sT[0], g.sE)); I('s_mul_i32 s%d, s%d, 28' % (sT[1], sW)); I('s_add_u32 s%d, s%d, s%d' % (sT[0], sT[0], sT[1]))
    I('s_lshl_b32 s%d, s%d, 10' % (sT[0], sT[0])); I('s_add_u32 s%d, s%d, %d' % (sT[0], sT[0], ACTF))
    for q in range(4):
        I('s_add_u32 s%d, s%d, %d' % (sT[4], g.sR4, q)); I('s_and_b32 s%d, s%d, 3' % (sT[4], sT[4]))
        I('s_mul_i32 s%d, s%d, 7168' % (sT[4], sT[4])); I('s_add_u32 s%d, s%d, s%d' % (g.sA[q], sT[4], sT[0]))
    g.vA = [vL16, g.vLo[1], g.vLo[2], g.vLo[3]]
    I('v_add_u32 v%d, %d, v%d' % (g.vA[2], 2 * 114688, vL16)); I('v_add_u32 v%d, 4096, v%d' % (g.vA[3], g.vA[2]))
    I('s_lshr_b32 s%d, s%d, 1' % (sT[1], sW))
    I('s_mul_i32 s%d, s%d, 28' % (sT[0], g.sE)); I('s_lshl_b32 s%d, s%d, 1' % (sT[2], g.sCT)); I('s_add_u32 s%d, s%d, s%d' % (sT[2], sT[2], sT[1])); I('s_add_u32 s%d, s%d, s%d' % (sT[0], sT[0], sT[2]))
    I('s_lshl_b32 s%d, s%d, 10' % (sT[0], sT[0])); I('s_add_u32 s%d, s%d, %d' % (g.sHR, sT[0], HF))
    I('s_mul_i32 s%d, s%d, %d' % (sT[0], g.sE, 32 * 896)); I('s_lshl_b32 s%d, s%d, 5' % (sT[2], sT[2])); I('s_add_u32 s%d, s%d, s%d' % (g.sOB, sT[0], sT[2]))
    for t in range(1, 4):
        I('s_xor_b32 s%d, s%d, %d' % (sT[3], sW, t)); I('s_mul_i32 s%d, s%d, 6144' % (sT[3], sT[3])); I('s_add_u32 s%d, s%d, %d' % (sT[3], sT[3], (t - 1) * 2048))
        I('v_add_u32 v%d, s%d, v%d' % (g.vRW[t - 1], sT[3], vL16))
    I('s_mul_i32 s%d, s%d, 6144' % (sT[3], sW)); I('v_add_u32 v%d, s%d, v%d' % (g.vRR, sT[3], vL16))

def phase_D(g):
    a = g.a; I = a.I; sT = g.sT; pf = g.pf; cfg = g.cfg
    sW = g.sW; vL16 = g.vL16
    ACC, P0, RS = 8, 72, 104
    poll(g, 'kf_p3', g.vPA, 1, 14, g.sWS, early='p3e')
    pf.stamp('sync3')
    NR = 2 * g.act_ring; AB = g.act_base
    def issue(m):
        p, j = m // 28, m % 28; r = j % 7
        I('buffer_load_dwordx4 %s, v%d, s[%d:%d], s%d offen offset:%d sc1' % (ar(AB + 4 * (m % NR), 4), g.vA[2 * p + (r >= 4)], g.sWS, g.sWS + 3, g.sA[j // 7], 1024 * (r % 4)), tag='k%d' % m)
    LA = cfg.get('d_la', 16)
    I('s_add_u32 s%d, s%d, %d' % (sT[0], g.sHR, 2 * 28672))
    I('buffer_load_dwordx4 %s, v%d, s[%d:%d], s%d offen sc1' % (vr(g.vHK, 4), vL16, g.sWS, g.sWS + 3, g.sHR), tag='hr')
    I('buffer_load_dwordx4 %s, v%d, s[%d:%d], s%d offen sc1' % (vr(g.vHK + 4, 4), vL16, g.sWS, g.sWS + 3, sT[0]), tag='hr')
    for m in range(8): issue(m)
    I('s_lshl_b32 s%d, s%d, 8' % (sT[6], g.sRB128)); I('s_add_u32 s%d, s%d, %d' % (sT[6], sT[6], CNT + 8192 + 128))
    a.wait(vm='cst1'); I('s_barrier'); sig_add(g, sT[6])
    pf.stamp('sigC')
    for m in range(8, LA): issue(m)
    I('v_add_u32 v%d, 128, v%d' % (g.vPA, g.vPA))
    def acc(p, c): return ACC + 32 * p + 16 * c
    def xwrite(p):
        return ['ds_write_b128 v%d, %s offset:%d' % (g.vRW[t - 1], vr(acc(p, t & 1) + 8 * (t >> 1) + 4 * q, 4), 24576 * p + 1024 * q) for t in range(1, 4) for q in range(2)]
    def xfinish(p, pk):
        O = g.vHK + 4 * p; b = acc(p, 0)
        ops = [((lambda t=t, q=q: I('ds_read_b128 %s, v%d offset:%d' % (vr(P0 + 8 * t + 4 * q, 4), g.vRR, 24576 * p + 2048 * t + 1024 * q), tag='xr%d' % p)), 6) for t in range(3) for q in range(2)]
        ops += ['v_permlane32_swap_b32 v%d, v%d' % (O + k, O + 2 + k) for k in range(2)]
        for k in range(4): ops += ['v_lshlrev_b32 v%d, 16, v%d' % (RS + 2 * k, O + k), 'v_and_b32 v%d, 0xffff0000, v%d' % (RS + 2 * k + 1, O + k)]
        if pk:
            ops += ['v_pk_add_f32 %s, %s, %s' % (vr(b + v, 2), vr(b + v, 2), vr(RS + v, 2)) for v in range(0, 8, 2)]
            ops += [((lambda: a.wait(lg='xr%d' % p)), 3)]
            for v in range(0, 8, 2): ops += ['v_pk_add_f32 %s, %s, %s' % (vr(b + v, 2), vr(b + v, 2), vr(P0 + v, 2)), 'v_pk_add_f32 %s, %s, %s' % (vr(P0 + 8 + v, 2), vr(P0 + 8 + v, 2), vr(P0 + 16 + v, 2))]
            ops += ['v_pk_add_f32 %s, %s, %s' % (vr(b + v, 2), vr(b + v, 2), vr(P0 + 8 + v, 2)) for v in range(0, 8, 2)]
        else:
            ops += ['v_add_f32 v%d, v%d, v%d' % (b + v, b + v, RS + v) for v in range(8)]
            ops += [((lambda: a.wait(lg='xr%d' % p)), 3)]
            for v in range(8): ops += ['v_add_f32 v%d, v%d, v%d' % (b + v, b + v, P0 + v), 'v_add_f32 v%d, v%d, v%d' % (P0 + 8 + v, P0 + 8 + v, P0 + 16 + v)]
            ops += ['v_add_f32 v%d, v%d, v%d' % (b + v, b + v, P0 + 8 + v) for v in range(8)]
        ops += ['v_cvt_pk_bf16_f32 v%d, v%d, v%d' % (O + k, b + 2 * k, b + 2 * k + 1) for k in range(4)]
        ops += ['s_add_u32 s%d, s%d, %d' % (sT[1], g.sOB, 64 * 896 * p), 's_nop 0']
        ops += ['v_permlane32_swap_b32 v%d, v%d' % (O + k, O + 2 + k) for k in range(2)]
        ops += [((lambda: I('buffer_store_dwordx4 %s, v%d, s[%d:%d], s%d offen' % (vr(O, 4), g.vXo, g.sOUT, g.sOUT + 3, sT[1]))), 16)]
        return ops
    S = Side(a)
    P4 = cfg.get('p4', 22)
    for m in range(56):
        p, j = m // 28, m % 28
        if m == max(28 - LA, P4 - 8): I('buffer_load_dword v%d, v%d, s[%d:%d], 0 offen sc1' % (g.vPoll, g.vPA, g.sWS, g.sWS + 3), tag='p4e')
        if m == P4:
            poll(g, 'kf_p4', g.vPA, 1, 14, g.sWS, early='p4e')
            for mm in range(28, m + LA): issue(mm)
        if m == 29: S.add(xwrite(0))
        if m == 36:
            S.drain(); a.wait(lg=0); I('s_barrier'); S.add(xfinish(0, False))
        if g.wd_wait.get(j) and p == 0: a.wait(vm=['k%d' % m, 'wd%d' % j])
        else: a.wait(vm='k%d' % m)
        if m % 14 == 0: pf.stamp('k%d' % m)
        for c in range(2):
            f, r = g.wd_regs[j][c]
            I(MF(vr(acc(p, c), 16), vr(r, 4, f), ar(AB + 4 * (m % NR), 4), '0' if j == 0 else vr(acc(p, c), 16)))
            if c == 0:
                if m + LA < 56 and (m + LA < 28 or m >= P4): issue(m + LA)
                if g.wdq2:
                    jj, cc = g.wdq2.pop(0); wd_load(g, jj, cc); a.vm[-1] = 'wd%d' % jj; g.wd_wait[jj] = True
            else: S.emit(24)
    S.drain()
    pf.stamp('gemmD')
    for op in xwrite(1): I(op)
    a.wait(lg=0); I('s_barrier')
    S.add(xfinish(1, True)); S.drain()
    pf.stamp('out')
    if PROF: I('s_waitcnt vmcnt(0)')
    pf.dump(g.sWS)
    I('s_endpgm')

def pack_wd(g):
    a = g.a; I = a.I; sT = g.sT; sW = g.sW; vL16 = g.vL16
    a.label('kf_pack'); a.reset_counts()
    I('s_bfe_u32 s%d, s2, 0x30003' % sT[5]); I('s_and_b32 s%d, s2, 1' % sT[0]); I('s_lshl_b32 s%d, s%d, 3' % (sT[0], sT[0])); I('s_add_u32 s%d, s%d, s%d' % (sT[5], sT[5], sT[0]))
    I('s_and_b32 s%d, s2, 4' % sT[0]); I('s_lshl_b32 s%d, s%d, 2' % (sT[0], sT[0])); I('s_add_u32 s%d, s%d, s%d' % (sT[5], sT[5], sT[0]))
    I('s_cmp_ge_u32 s%d, 28' % sT[5]); a.branch('s_cbranch_scc1 kf_end')
    I('s_lshl_b32 s%d, s%d, 2' % (sT[0], sT[5])); I('s_add_u32 s%d, s%d, s%d' % (sT[0], sT[0], sW))
    I('s_mul_i32 s%d, s%d, 14336' % (sT[1], sT[0])); I('s_mul_i32 s%d, s%d, 14336' % (sT[2], sW))
    for i in range(14):
        if i % 4 == 0:
            I('s_add_u32 s%d, s%d, %d' % (sT[3], sT[1], 1024 * i)); I('s_add_u32 m0, s%d, %d' % (sT[2], 1024 * i))
        I('buffer_load_dwordx4 v%d, s[%d:%d], s%d offen offset:%d lds' % (vL16, g.sD, g.sD + 3, sT[3], 1024 * (i % 4)))
    I('v_lshrrev_b32 v3, 5, v1'); I('v_bfe_u32 v4, v1, 2, 2'); I('v_lshl_add_u32 v4, v3, 2, v4'); I('v_mul_u32_u24 v4, 896, v4')
    I('v_bfe_u32 v5, v1, 4, 1'); I('v_lshl_add_u32 v4, v5, 5, v4'); I('v_and_b32 v5, 3, v1'); I('v_lshl_add_u32 v4, v5, 3, v4')
    I('v_add_u32 v4, s%d, v4' % sT[2])
    I('s_lshl_b32 s%d, s%d, 10' % (sT[1], sT[0])); I('s_add_u32 s%d, s%d, %d' % (sT[1], sT[1], WDP))
    I('s_mul_i32 s%d, s%d, 37' % (sT[5], sT[5])); I('s_lshr_b32 s%d, s%d, 8' % (sT[5], sT[5]))
    a.wait(vm=0)
    B0 = 80
    for ct in range(18):
        if ct < 14: trfrag(a, B0 + 4 * ct, 4, 64 * ct, 't%d' % ct, d2=8 * 896)
        if ct >= 4:
            cc = ct - 4
            a.wait(lg='t%d' % cc)
            I('buffer_store_dwordx4 %s, v%d, s[%d:%d], s%d offen sc1' % (vr(B0 + 4 * cc, 4), vL16, g.sWS, g.sWS + 3, sT[1]), tag='wst')
            I('s_add_u32 s%d, s%d, %d' % (sT[1], sT[1], 112 * 1024))
    signal(g, 5, sT[5], 'wst')
    if PROF:
        nm = list(g.pf.names); g.pf.n = 14; g.pf.stamp('x'); g.pf.names = nm[:-1]; g.pf.n = len(nm) - 1; g.pf.dump(g.sWS)

def gen_F(a, cfg=None):
    cfg = cfg or {}
    name = KN + '_kernel'
    head(a, name)
    g = setup(a, cfg)
    homes = [('v', 140 + 4 * k) for k in range(3)] + [('a', 224 + 4 * k) for k in range(8)] + [('v', 156 + 4 * k) for k in range(19)] + [('a', 4 * k) for k in range(26)]
    g.n_wd1 = 15
    g.wd_regs = [(homes[2 * j], homes[2 * j + 1]) for j in range(28)]
    g.wd_wait = {}
    g.act_base, g.act_ring = 104, 15
    phase_A(g); phase_B(g); phase_C(g); phase_D(g); pack_wd(g)
    a.label('kf_end')
    a.I('s_endpgm')
    a.raw('kf_pad:\n.fill (49664 - (kf_pad - %s)) / 4, 4, 0xbf800000' % name)
    return (name, 256, 256, 163840, 512, 102, 256)
```

```python
import sys, json
from gen_common import *
from gen_r import gen_F
ref = open('cdna_kernels/%s.s.ref' % KN).read().splitlines()
top = ''
for l in ref:
    if not l.startswith(';'): break
    if '@launch' in l or 'Override launch' in l or 'grid=ceil' in l: continue
    top += l + '\n'
top += '; Generated by work/genf.py (hand-written generator). One persistent launch, 4 phases with counter hand-offs.\n'
out = sys.argv[1] if len(sys.argv) > 1 else 'f.s'
cfg = json.loads(sys.argv[2]) if len(sys.argv) > 2 else {}
a = Asm()
name, grid, block, lds, vg, sg, acc = gen_F(a, cfg)
L = top + "; @launch grid=(%d,1,1) block=(%d,1,1) lds=%d\n" % (grid, block, lds)
open(out, "w").write(L + HDR + a.text() + '.section .rodata,"a"\n' + kd(name, vg, sg, acc))
print(out, "instrs", a.count, "nop states", a.nops)
```

```python
from gen_common import *
from types import SimpleNamespace as NS

CNT = KVACC + (128 << 10)
SPIN_MAX = 1 << 22
V3 = ('v_fma_f32', 'v_cvt_pk_bf16_f32', 'v_add3_u32', 'v_lshl_add_u32', 'v_bfe_u32', 'v_cndmask_b32', 'v_mul_lo_u32', 'v_accvgpr_read_b32', 'v_accvgpr_write_b32')

def MF(d, A, B, C): return 'v_mfma_f32_32x32x16_bf16 %s, %s, %s, %s' % (d, A, B, C)

def cost(o):
    if isinstance(o, tuple): return o[1]
    op = o.split()[0]
    if op in TRANS: return 8.4
    if op in V3 or op.startswith('v_pk'): return 5.3
    if op.startswith('v_'): return 4.2 if '0x' not in o else 5.3
    if op.startswith('ds_'): return 5.3
    if op.startswith('buffer_'): return 16
    return 3.0

class Side:
    def __init__(self, a): self.a = a; self.q = []; self.credit = 0.0
    def add(self, ops): self.q += list(ops)
    def _one(self):
        o = self.q.pop(0)
        if isinstance(o, tuple): o[0]()
        else: self.a.I(o)
    def emit(self, budget):
        self.credit = min(self.credit + budget, budget + 8)
        while self.q and cost(self.q[0]) <= self.credit + 2:
            self.credit -= cost(self.q[0]); self._one()
    def drain(self):
        while self.q: self._one()
        self.credit = 0.0

def poll(g, lbl, addr_v, lanes_mask, target, srdreg, early=None):
    a = g.a; I = a.I
    saved = list(a.vm)
    I('s_mov_b32 s%d, 0' % g.sSPIN)
    if early:
        a.wait(vm=early)
        a.branch('s_branch %s_chk' % lbl)
    a.label(lbl)
    I('buffer_load_dword v%d, v%d, s[%d:%d], 0 offen sc1' % (g.vPoll, addr_v, srdreg, srdreg + 3), counted=False)
    I('s_add_u32 s%d, s%d, 1' % (g.sSPIN, g.sSPIN))
    I('s_waitcnt vmcnt(0)')
    a.label(lbl + '_chk')
    I('v_cmp_le_u32 vcc, %s, v%d' % (target, g.vPoll))
    I('s_cmp_ge_u32 s%d, %d' % (g.sSPIN, SPIN_MAX))
    a.branch('s_cbranch_scc1 %s_ok' % lbl)
    I('s_and_b32 s%d, vcc_lo, %d' % (g.sT[7], lanes_mask))
    I('s_cmp_eq_u32 s%d, %d' % (g.sT[7], lanes_mask))
    a.branch('s_cbranch_scc1 %s_ok' % lbl)
    I('s_sleep %d' % g.cfg.get('sleep', 1))
    a.branch('s_branch %s' % lbl)
    a.label(lbl + '_ok')
    a.vm = saved

def sig_add(g, off_s):
    I = g.a.I
    I('v_mov_b32 v2, 1'); I('v_mov_b32 v3, 0')
    I('s_mov_b64 exec, 1')
    I('buffer_atomic_add v2, v3, s[%d:%d], s%d offen sc1' % (g.sKZ, g.sKZ + 3, off_s), tag='sig')
    I('s_mov_b64 exec, -1')

def signal(g, kind, idx_s, wait_tag):
    a = g.a; I = a.I
    I('s_lshl_b32 s%d, s%d, 8' % (g.sT[6], idx_s)); I('s_add_u32 s%d, s%d, %d' % (g.sT[6], g.sT[6], CNT + 4096 * kind))
    a.wait(vm=wait_tag)
    I('s_barrier')
    sig_add(g, g.sT[6])

def trfrag(a, dst, addr, off, tag, f='v', d2=256):
    a.I('ds_read_b64_tr_b16 %s, v%d offset:%d' % (vr(dst, 2, f), addr, off), tag=tag)
    a.I('ds_read_b64_tr_b16 %s, v%d offset:%d' % (vr(dst + 2, 2, f), addr, off + d2), tag=tag)

def setup(a, cfg):
    g = NS(a=a, cfg=cfg); I = a.I
    g.pf = Prof(a, 0, vreg=255, s=100)
    (g.sX, g.sWq, g.sP0, g.sP1, g.sPO, g.sD, g.sOUT, g.sDBG, g.sWS, g.sKZ, g.sDZ) = 24, 28, 32, 36, 40, 44, 48, 52, 56, 60, 64
    (g.sW, g.sRBA, g.sH, g.sRHO, g.sRB64, g.sCS, g.sRB128, g.sFS, g.sR4) = 68, 69, 70, 71, 72, 73, 74, 75, 76
    g.sT = [77, 78, 79, 80, 81, 82, 83, 84]
    g.sONE, g.sEPS, g.sL2E = 85, 86, 87
    g.sMV28, g.sHI = 88, 90
    g.sPA, g.sPC = 92, 93
    g.sSPIN = 94; g.sPT = 95
    g.sQ = [96, 97, 98, 99]
    g.S4 = list(range(4, 24))
    g.WQL, g.WKL, g.WVL = 0, 51200, 79872
    g.STATL, g.CSL, g.CSQ2L = 28672, 29696, 31232
    g.XRL, g.KVRL, g.REDL, g.HL, g.STL = 108544, 32768, 0, 0, 114688
    V = Alloc(232, 255)
    g.vHK = V.get(8, 4); g.vL16 = V.get()
    g.vLo = [g.vL16, V.get(), V.get(), V.get()]
    g.vRW = [V.get() for _ in range(3)]; g.vRR = V.get()
    g.vPoll, g.vPA, g.vPT = V.get(), V.get(), V.get()
    g.vXo = V.get(); g.vCSg = V.get(2, 2)
    sT = g.sT
    I('s_cmp_ge_u32 s2, 256'); a.branch('s_cbranch_scc1 kf_end')
    g.pf.stamp('start')
    load_args(a)
    I('s_getpc_b64 s[%d:%d]' % (g.sMV28, g.sMV28 + 1))
    I('v_lshrrev_b32 v2, 6, v0'); I('v_and_b32 v1, 63, v0')
    I('s_lshr_b32 s%d, s2, 3' % sT[1]); I('s_mul_i32 s%d, s%d, 12' % (sT[2], sT[1]))
    I('v_mul_u32_u24 v3, 3, v2'); I('v_add3_u32 v3, v3, v1, s%d' % sT[2]); I('v_lshlrev_b32 v3, 7, v3')
    I('s_mov_b64 exec, 7')
    I('global_load_dword v%d, v3, s[%d:%d]' % (g.vPoll, g.sMV28, g.sMV28 + 1), tag='code')
    I('s_mov_b64 exec, -1')
    I('v_readfirstlane_b32 s%d, v2' % g.sW)
    I('s_and_b32 s%d, s2, 7' % sT[0])
    I('s_lshr_b32 s%d, s%d, 1' % (sT[2], sT[0])); I('s_lshl_b32 s%d, s%d, 2' % (sT[2], sT[2]))
    I('s_and_b32 s%d, s%d, 3' % (sT[3], sT[1])); I('s_add_u32 s%d, s%d, s%d' % (g.sRBA, sT[2], sT[3]))
    I('s_and_b32 s%d, s%d, 1' % (sT[4], sT[0])); I('s_lshr_b32 s%d, s%d, 2' % (sT[5], sT[1]))
    I('s_lshl_b32 s%d, s%d, 3' % (g.sH, sT[4])); I('s_add_u32 s%d, s%d, s%d' % (g.sH, g.sH, sT[5]))
    I('s_lshl_b32 s%d, s%d, 1' % (g.sRHO, sT[3])); I('s_add_u32 s%d, s%d, s%d' % (g.sRHO, g.sRHO, sT[5]))
    I('s_sub_u32 s%d, s%d, 7' % (sT[6], g.sRHO)); I('s_cmp_ge_u32 s%d, 7' % g.sRHO); I('s_cselect_b32 s%d, s%d, s%d' % (g.sRHO, sT[6], g.sRHO))
    I('s_and_b32 s%d, s%d, 3' % (sT[2], sT[0])); I('s_lshr_b32 s%d, s%d, 2' % (sT[3], sT[0]))
    I('s_lshr_b32 s%d, s%d, 2' % (sT[4], sT[1])); I('s_and_b32 s%d, s%d, 3' % (sT[5], sT[1]))
    I('s_mul_i32 s%d, s%d, 86' % (sT[6], sT[1])); I('s_lshr_b32 s%d, s%d, 8' % (sT[6], sT[6]))
    I('s_mul_i32 s%d, s%d, 3' % (sT[7], sT[6])); I('s_sub_u32 s%d, s%d, s%d' % (sT[7], sT[1], sT[7]))
    I('s_lshl_b32 s%d, s%d, 2' % (g.sFS, sT[2])); I('s_mul_i32 s%d, s%d, 3' % (g.sCS, sT[2])); I('s_add_u32 s%d, s%d, 2' % (g.sCS, g.sCS))
    I('s_lshl_b32 s%d, s%d, 5' % (g.sRB64, sT[2])); I('s_mul_i32 s%d, s%d, 24' % (g.sR4, sT[2])); I('s_add_u32 s%d, s%d, 16' % (g.sR4, g.sR4))
    I('s_cmp_lt_u32 s%d, 2' % sT[2])
    I('s_cselect_b32 s%d, s%d, s%d' % (sT[4], sT[4], sT[6])); I('s_cselect_b32 s%d, s%d, s%d' % (sT[5], sT[5], sT[7]))
    I('s_cselect_b32 s%d, s%d, s%d' % (g.sFS, g.sFS, g.sCS)); I('s_cselect_b32 s%d, s%d, s%d' % (sT[6], g.sRB64, g.sR4))
    I('s_cselect_b32 s%d, 32, 24' % sT[7])
    I('s_add_u32 s%d, s%d, s%d' % (g.sFS, g.sFS, sT[5]))
    I('s_and_b32 s%d, s%d, 7' % (sT[4], sT[4])); I('s_and_b32 s%d, s%d, 3' % (g.sR4, sT[4]))
    I('s_lshl_b32 s%d, s%d, 3' % (g.sRB128, sT[3])); I('s_add_u32 s%d, s%d, s%d' % (g.sRB128, g.sRB128, sT[4]))
    I('s_cmp_ge_u32 s%d, s%d' % (sT[1], sT[7])); I('s_cselect_b32 s%d, 0, s%d' % (sT[5], sT[1]))
    I('s_mul_i32 s%d, s%d, 112' % (sT[4], sT[3])); I('s_add_u32 s%d, s%d, s%d' % (sT[4], sT[4], sT[6])); I('s_add_u32 s%d, s%d, s%d' % (sT[4], sT[4], sT[5]))
    I('s_mul_i32 s%d, s%d, 9363' % (g.sRB64, sT[4])); I('s_lshr_b32 s%d, s%d, 16' % (g.sRB64, g.sRB64))
    I('s_mul_i32 s%d, s%d, 7' % (sT[5], g.sRB64)); I('s_sub_u32 s%d, s%d, s%d' % (g.sCS, sT[4], sT[5]))
    I('s_mul_i32 s%d, s2, 9363' % g.sPA); I('s_lshr_b32 s%d, s%d, 16' % (g.sPA, g.sPA))
    I('s_mul_i32 s%d, s%d, 7' % (g.sPC, g.sPA)); I('s_sub_u32 s%d, s2, s%d' % (g.sPC, g.sPC))
    return g

def gu_load(g, j, c):
    r = j % 7
    g.a.I('buffer_load_dwordx4 %s, v%d, s[%d:%d], s%d offen offset:%d sc1' % (ar(112 * c + 4 * j, 4), g.vLo[2 * c + (r >= 4)], g.sWS, g.sWS + 3, g.sQ[j // 7], 1024 * (r % 4)), tag='gu')
def wd_load(g, j, c):
    r = j % 7; f, reg = g.wd_regs[j][c]
    g.a.I('buffer_load_dwordx4 %s, v%d, s[%d:%d], s%d offen offset:%d sc1' % (vr(reg, 4, f), g.vLd[2 * c + (r >= 4)], g.sWS, g.sWS + 3, g.sQD[j // 7], 1024 * (r % 4)), tag='wd')

def phase_A(g):
    a = g.a; I = a.I; sT = g.sT; pf = g.pf; cfg = g.cfg
    sW, sH, sRBA = g.sW, g.sH, g.sRBA
    XF, ACCK, ACCV, ACCQ, WB = 8, 120, 136, 152, 168
    VA = Alloc(200, 232)
    vONE = VA.get(4, 4)
    vX = [VA.get() for _ in range(4)]; vW = VA.get()
    vXR = [VA.get() for _ in range(4)]
    vT, vTc, vTo = VA.get(), VA.get(), VA.get()
    vS1a, vS1b, vS2a, vS2b = [VA.get() for _ in range(4)]
    vRN = VA.get(2, 2); vCS = VA.get(2, 2)
    vN4, vCA, vSA = VA.get(), VA.get(), VA.get()
    vXS = [VA.get() for _ in range(4)]
    vRed = vX[0:2]; vKW = vX[2]
    vPT = [g.vHK, g.vHK + 1, g.vHK + 2, g.vHK + 3]; vPD = g.vHK + 4
    aPK = 0
    LAH = cfg.get('lah', 2)
    xslot = {j: j % 3 for j in range(7)}
    assert LAH == 2
    aC0, aC1 = 224, 240
    vL16 = g.vL16
    I('v_lshrrev_b32 v2, 3, v1'); I('v_lshrrev_b32 v3, 4, v1'); I('v_and_b32 v4, 7, v1')
    I('v_xor_b32 v5, v4, v3'); I('v_lshlrev_b32 v5, 4, v5')
    I('v_mul_u32_u24 v6, 896, v2'); I('v_add_u32 v%d, v6, v5' % vX[0])
    I('v_xor_b32 v%d, 64, v%d' % (vX[1], vX[0])); I('v_add_u32 v%d, 7168, v%d' % (vX[1], vX[1]))
    I('v_add_u32 v%d, 14336, v%d' % (vX[2], vX[0])); I('v_add_u32 v%d, 14336, v%d' % (vX[3], vX[1]))
    I('v_lshrrev_b32 v5, 2, v1'); I('v_and_b32 v6, 3, v1')
    I('v_mul_u32_u24 v7, 2688, v5'); I('v_lshl_add_u32 v%d, v6, 4, v7' % vW)
    I('v_lshlrev_b32 v%d, 4, v1' % vL16)
    I('v_and_b32 v5, 15, v1'); I('v_lshlrev_b32 v5, 4, v5'); I('v_lshl_add_u32 v5, v3, 14, v5')
    for i in range(4): I('v_mov_b32 v%d, 0' % (vONE + i))
    sXB, sWB, sXRB, sCL, sCC, sW10, sW12 = g.sQ[0], g.sQ[1], g.sQ[2], g.sQ[3], 3, g.sSPIN, g.sPT
    I('s_lshl_b32 s%d, s%d, 10' % (sW10, sW)); I('s_lshl_b32 s%d, s%d, 12' % (sW12, sW))
    I('s_lshl_b32 s%d, s%d, 2' % (sT[0], sRBA)); I('s_add_u32 s%d, s%d, s%d' % (sT[0], sT[0], sW))
    I('s_mul_i32 s%d, s%d, %d' % (sXB, sT[0], 32 * 896))
    I('s_mul_i32 s%d, s%d, 56' % (sWB, sH)); I('s_mul_i32 s%d, s%d, %d' % (sT[1], sW, 16 * 2688)); I('s_add_u32 s%d, s%d, s%d' % (sWB, sWB, sT[1]))
    I('s_mul_i32 s%d, s%d, 12288' % (sXRB, sW)); I('s_add_u32 s%d, s%d, %d' % (sXRB, sXRB, g.XRL))
    I('s_mov_b32 s%d, s%d' % (sCL, g.sRHO)); I('s_mov_b32 s%d, s%d' % (sCC, g.sRHO))
    I('s_waitcnt lgkmcnt(0)')
    pf.stamp('args')
    srd(a, g.sX, 4, 2048 * 896); srd(a, g.sWq, 6, 448 * 2688)
    def adv_ops(s): return ['s_add_u32 s%d, s%d, 1' % (s, s), 's_cmp_eq_u32 s%d, 7' % s, 's_cselect_b32 s%d, 0, s%d' % (s, s)]
    def adv(s):
        for o in adv_ops(s): I(o)
    def grp(ops):
        def f():
            for o in ops:
                if callable(o): o()
                else: I(o)
        return f
    def a_groups(j):
        G = []
        pre = ['s_mul_i32 s%d, s%d, %d' % (sT[1], sCL, 64 * 2688), 's_lshl_b32 s%d, s%d, 12' % (sT[2], sCL), 's_add_u32 s%d, s%d, s%d' % (sT[2], sT[2], sW10),
               's_add_u32 m0, s%d, %d' % (sT[2], g.WKL - 896), 's_add_u32 s%d, s%d, s%d' % (sT[1], sT[1], sWB)]
        G.append(grp(pre + [lambda: I('buffer_load_dwordx4 v%d, s[%d:%d], s%d offen offset:896 lds' % (vW, g.sWq, g.sWq + 3, sT[1]), tag='c%d' % j)]))
        G.append(grp(['s_add_u32 m0, s%d, %d' % (sT[2], g.WVL - 1792), 's_lshl_b32 s%d, s%d, 7' % (sT[0], sCL),
                      lambda: I('buffer_load_dwordx4 v%d, s[%d:%d], s%d offen offset:1792 lds' % (vW, g.sWq, g.sWq + 3, sT[1]), tag='c%d' % j)]))
        for q in range(4):
            m = 's_add_u32 m0, s%d, %d' % (sXRB, xslot[j] * 4096 + q * 1024)
            mid = ['s_add_u32 s%d, s%d, s%d' % (sT[0], sT[0], sXB)] if q == 0 else (adv_ops(sCL) if q == 1 else [])
            G.append(grp([m] + mid + [lambda q=q: I('buffer_load_dwordx4 v%d, s[%d:%d], s%d offen lds' % (vX[q], g.sX, g.sX + 3, sT[0]), tag='c%d' % j)]))
        if j >= cfg.get('wq0', 7):
            G.append(grp(['s_add_u32 m0, s%d, %d' % (sT[2], g.WQL), 's_nop 0',
                          lambda: I('buffer_load_dwordx4 v%d, s[%d:%d], s%d offen lds' % (vW, g.sWq, g.sWq + 3, sT[1]), tag='wq')]))
        return G
    def a_loads(j):
        for f in a_groups(j): f()
    def q_groups(n):
        return [grp(['s_mul_i32 s%d, s%d, %d' % (sT[1], sCL, 64 * 2688), 's_lshl_b32 s%d, s%d, 12' % (sT[2], sCL), 's_add_u32 s%d, s%d, s%d' % (sT[2], sT[2], sW10),
                     's_add_u32 m0, s%d, %d' % (sT[2], g.WQL), 's_add_u32 s%d, s%d, s%d' % (sT[1], sT[1], sWB),
                     lambda: I('buffer_load_dwordx4 v%d, s[%d:%d], s%d offen lds' % (vW, g.sWq, g.sWq + 3, sT[1]), tag='wq')] + adv_ops(sCL)) for _ in range(n)]
    a_loads(0)
    srd(a, g.sWS, 22, WS_BYTES); srd(a, g.sKZ, 22, WS_BYTES)
    srd(a, g.sDZ, 20, 256)
    I('s_cmp_eq_u32 s%d, 0' % sRBA); I('s_cselect_b32 s%d, %s, 0' % (g.sKZ + 2, hex(WS_BYTES))); I('s_cselect_b32 s%d, 256, 0' % (g.sDZ + 2))
    srd(a, g.sD, 16, 1792 * 896); srd(a, g.sOUT, 18, 2048 * 896); srd(a, g.sDBG, 20, 256); srd(a, g.sPO, 22, WS_BYTES)
    I('s_cmp_lt_u32 s%d, 28' % g.sPA)
    for k in range(2):
        I('s_cselect_b32 s%d, s%d, s%d' % (g.sP0 + k, 12 + k, 8 + k)); I('s_cselect_b32 s%d, s%d, s%d' % (g.sP1 + k, 14 + k, 8 + k))
    sel(a, g.sP0 + 2, 448 * 3584, 448 * 896)
    I('s_mov_b32 s%d, 0x20000' % (g.sP0 + 3)); I('s_mov_b32 s%d, 0x20000' % (g.sP1 + 3))
    I('s_cmp_lt_u32 s%d, 32' % g.sPA)
    I('s_cselect_b32 s%d, s%d, 0' % (g.sP0 + 2, g.sP0 + 2)); I('s_mov_b32 s%d, s%d' % (g.sP1 + 2, g.sP0 + 2)); I('s_cselect_b32 s%d, %s, 0' % (g.sPO + 2, hex(WS_BYTES)))
    I('s_lshl_b32 s%d, s%d, 12' % (sT[3], sH)); I('s_add_u32 s%d, s%d, s%d' % (sT[3], sT[3], sW10)); I('s_add_u32 s%d, s%d, %d' % (sT[3], sT[3], KVACC))
    I('buffer_store_dwordx4 v[%d:%d], v%d, s[%d:%d], s%d offen sc0 sc1' % (vONE, vONE + 3, vL16, g.sKZ, g.sKZ + 3, sT[3]), tag='zero')
    I('s_lshl_b32 s%d, s%d, 8' % (sT[3], sH)); I('s_add_u32 s%d, s%d, s%d' % (sT[3], sT[3], sW12)); I('s_add_u32 s%d, s%d, %d' % (sT[3], sT[3], CNT))
    I('s_mov_b32 exec_hi, 0')
    I('buffer_store_dwordx4 v[%d:%d], v5, s[%d:%d], s%d offen sc0 sc1' % (vONE, vONE + 3, g.sKZ, g.sKZ + 3, sT[3]), tag='zero')
    I('s_lshl_b32 s%d, s%d, 10' % (sT[3], sH)); I('s_lshl_b32 s%d, s%d, 8' % (sT[4], sW)); I('s_add_u32 s%d, s%d, s%d' % (sT[3], sT[3], sT[4])); I('s_add_u32 s%d, s%d, %d' % (sT[3], sT[3], CSGU))
    I('s_mov_b32 exec_lo, 0xffff')
    I('buffer_store_dwordx4 v[%d:%d], v%d, s[%d:%d], s%d offen sc0 sc1' % (vONE, vONE + 3, vL16, g.sKZ, g.sKZ + 3, sT[3]), tag='zero')
    I('s_mov_b64 exec, -1')
    for d, sr_ in zip(g.S4[0:7], (sXB, sWB, sXRB, sCL, sCC, sW10, sW12)): I('s_mov_b32 s%d, s%d' % (d, sr_))
    sXB, sWB, sXRB, sCL, sCC, sW10, sW12 = g.S4[0:7]
    sPS = g.S4[7:11]; sPOs = g.S4[11:15]; sPSG = g.S4[15]; sPCS = g.S4[16]
    if cfg.get('c1early'): a_loads(1)
    A_, C_ = g.sPA, g.sPC
    I('s_lshl_b32 s%d, s%d, 2' % (sT[4], C_)); I('s_add_u32 s%d, s%d, s%d' % (sT[4], sT[4], sW))
    I('s_mul_i32 s%d, s%d, %d' % (sT[5], sT[4], 16 * 3584)); I('s_lshl_b32 s%d, s%d, 7' % (sT[6], A_)); I('s_add_u32 s%d, s%d, s%d' % (sPS[0], sT[5], sT[6]))
    I('s_mul_i32 s%d, s%d, 112' % (sT[5], A_)); I('s_add_u32 s%d, s%d, s%d' % (sT[5], sT[5], sT[4]))
    I('s_lshl_b32 s%d, s%d, 10' % (sT[5], sT[5])); I('s_add_u32 s%d, s%d, %d' % (sPOs[0], sT[5], GUP))
    I('s_lshr_b32 s%d, s%d, 1' % (sPSG, A_)); I('s_lshl_b32 s%d, s%d, 8' % (sPSG, sPSG)); I('s_add_u32 s%d, s%d, %d' % (sPSG, sPSG, CNT + 3 * 4096))
    I('s_sub_u32 s%d, s%d, 28' % (sT[4], A_)); I('s_lshl_b32 s%d, s%d, 2' % (sT[4], sT[4])); I('s_add_u32 s%d, s%d, s%d' % (sT[4], sT[4], sW))
    I('s_mul_i32 s%d, s%d, %d' % (sT[5], sT[4], 28 * 896)); I('s_lshl_b32 s%d, s%d, 7' % (sT[6], C_)); I('s_add_u32 s%d, s%d, s%d' % (sPS[1], sT[5], sT[6]))
    I('s_lshl_b32 s%d, s%d, 16' % (sT[5], C_)); I('s_lshl_b32 s%d, s%d, 11' % (sT[6], sT[4]))
    I('s_add_u32 s%d, s%d, s%d' % (sT[5], sT[5], sT[6])); I('s_add_u32 s%d, s%d, %d' % (sPOs[1], sT[5], WOP))
    I('s_lshl_b32 s%d, s%d, 8' % (sT[5], C_)); I('s_add_u32 s%d, s%d, %d' % (sT[5], sT[5], CNT + 4 * 4096))
    I('s_cmp_lt_u32 s%d, 32' % A_); I('s_cselect_b32 s%d, s%d, 0x20000000' % (sT[5], sT[5]))
    I('s_cmp_lt_u32 s%d, 28' % A_)
    I('s_cselect_b32 s%d, s%d, s%d' % (sPS[0], sPS[0], sPS[1])); I('s_cselect_b32 s%d, s%d, s%d' % (sPOs[0], sPOs[0], sPOs[1]))
    I('s_cselect_b32 s%d, s%d, s%d' % (sPSG, sPSG, sT[5]))
    I('s_mul_i32 s%d, s%d, 512' % (sPCS, A_)); I('s_cselect_b32 s%d, s%d, 0x20000000' % (sPCS, sPCS))
    sel(a, sT[3], 3584, 896); sel(a, sT[4], 8 * 3584, 8 * 896); I('s_cselect_b32 s%d, 0, %d' % (sT[5], 16 * 896))
    sel(a, sT[6], 28672, 1024); sel(a, sT[7], 57344, 32768)
    sel(a, g.sONE, 16 * 128, 32); sel(a, g.sEPS, 8 * 128, 14 * 128); I('s_cselect_b32 s%d, 32, %d' % (g.sL2E, 8 * 128))
    I('s_add_u32 s%d, s%d, s%d' % (sPS[1], sPS[0], sT[4])); I('s_add_u32 s%d, s%d, s%d' % (sPS[2], sPS[0], sT[5])); I('s_add_u32 s%d, s%d, s%d' % (sPS[3], sPS[2], sT[4]))
    I('s_add_u32 s%d, s%d, s%d' % (sPOs[1], sPOs[0], sT[6])); I('s_add_u32 s%d, s%d, s%d' % (sPOs[2], sPOs[0], sT[7])); I('s_add_u32 s%d, s%d, s%d' % (sPOs[3], sPOs[2], sT[6]))
    I('v_mul_lo_u32 v5, v2, s%d' % sT[3]); I('v_lshl_add_u32 v%d, v4, 4, v5' % vPD)
    def flag_set():
        I('v_mov_b32 v5, 1'); I('s_lshl_b32 s%d, s%d, 2' % (sT[4], sH)); I('v_mov_b32 v6, s%d' % sT[4])
        I('s_mov_b64 exec, 1')
        I('buffer_atomic_add v5, v6, s[%d:%d], 0 offen sc1' % (g.sDZ, g.sDZ + 3), tag='flag')
        I('s_mov_b64 exec, -1')
        I('s_cmp_eq_u32 s%d, 0' % sW); I('s_cselect_b32 s%d, %s, 0' % (g.sKZ + 2, hex(WS_BYTES)))
    I('v_lshrrev_b32 v2, 5, v1'); I('v_bfe_u32 v3, v1, 4, 1'); I('v_bfe_u32 v4, v1, 2, 2'); I('v_and_b32 v5, 3, v1')
    I('s_mul_i32 s%d, s%d, 4608' % (g.sPT, sW)); I('s_add_u32 s%d, s%d, %d' % (g.sPT, g.sPT, g.KVRL))
    I('v_mul_lo_u32 v6, v3, s%d' % g.sONE); I('v_mul_lo_u32 v7, v2, s%d' % g.sEPS); I('v_add3_u32 v6, v6, v7, s%d' % g.sPT)
    I('v_lshl_add_u32 v6, v4, 7, v6'); I('v_lshl_add_u32 v%d, v5, 3, v6' % vPT[0])
    I('v_add_u32 v%d, s%d, v%d' % (vPT[1], g.sL2E, vPT[0])); I('v_add_u32 v%d, 64, v%d' % (vPT[2], vPT[0])); I('v_add_u32 v%d, 64, v%d' % (vPT[3], vPT[1]))
    I('v_lshlrev_b32 v6, 9, v2'); I('v_lshl_add_u32 v6, v4, 6, v6'); I('v_lshl_add_u32 v6, v5, 3, v6')
    I('v_lshl_add_u32 v%d, v3, 5, v6' % vT); I('v_add_u32 v%d, %d, v%d' % (vT, g.WKL, vT))
    I('v_and_b32 v6, 31, v1'); I('v_lshlrev_b32 v%d, 2, v6' % vN4)
    I('v_lshrrev_b32 v7, 3, v6'); I('v_lshlrev_b32 v7, 10, v7')
    I('v_and_b32 v3, 7, v6'); I('v_lshl_add_u32 v7, v3, 7, v7')
    I('v_bfe_u32 v3, v6, 1, 3'); I('v_xor_b32 v3, v3, v2'); I('v_lshl_add_u32 v7, v3, 4, v7')
    I('v_add_u32 v%d, s%d, v7' % (vXR[0], sXRB))
    for t in range(1, 4): I('v_xor_b32 v%d, %d, v%d' % (vXR[t], 32 * t, vXR[0]))
    I('v_mul_u32_u24 v7, 896, v6'); I('v_lshl_add_u32 v%d, v2, 4, v7' % g.vXo)
    I('v_cmp_eq_u32 s[%d:%d], 28, v6' % (g.sMV28, g.sMV28 + 1)); I('v_cmp_eq_u32 s[%d:%d], 0, v2' % (g.sHI, g.sHI + 1))
    I('s_mov_b32 s%d, 0x3f803f80' % g.sONE); I('s_mov_b32 s%d, %s' % (g.sEPS, f32(1e-6))); I('s_mov_b32 s%d, %s' % (g.sL2E, f32(LOG2E)))
    for i in range(4): I('v_mov_b32 v%d, s%d' % (vONE + i, g.sONE))
    for r in (vS1a, vS1b, vS2a, vS2b): I('v_mov_b32 v%d, 0' % r)
    I('s_lshl_b32 s%d, s%d, 7' % (sT[3], sW)); I('s_add_u32 s%d, s%d, %d' % (sT[3], sT[3], g.CSL)); I('v_add_u32 v%d, s%d, v%d' % (vCA, sT[3], vN4))
    I('s_lshl_b32 s%d, s%d, 8' % (sT[3], sW)); I('s_add_u32 s%d, s%d, %d' % (sT[3], sT[3], g.STATL))
    I('v_lshlrev_b32 v3, 4, v2'); I('v_add_u32 v%d, s%d, v3' % (vSA, sT[3]))
    for t in range(1, 4):
        I('s_xor_b32 s%d, s%d, %d' % (sT[3], sW, t)); I('s_mul_i32 s%d, s%d, 12288' % (sT[3], sT[3])); I('s_add_u32 s%d, s%d, %d' % (sT[3], sT[3], g.REDL + (t - 1) * 4096))
        I('v_add_u32 v%d, s%d, v%d' % (g.vRW[t - 1], sT[3], vL16))
    I('s_mul_i32 s%d, s%d, 12288' % (sT[3], sW)); I('s_add_u32 s%d, s%d, %d' % (sT[3], sT[3], g.REDL)); I('v_add_u32 v%d, s%d, v%d' % (g.vRR, sT[3], vL16))
    I('v_add_u32 v%d, 4096, v%d' % (g.vLo[1], vL16)); I('v_add_u32 v%d, 28672, v%d' % (g.vLo[2], vL16)); I('v_add_u32 v%d, 32768, v%d' % (g.vLo[3], vL16))
    I('s_lshl_b32 s%d, s%d, 2' % (sT[3], g.sFS)); I('s_add_u32 s%d, s%d, s%d' % (sT[3], sT[3], sW)); I('s_mul_i32 s%d, s%d, 57344' % (sT[3], sT[3])); I('s_add_u32 s%d, s%d, %d' % (sT[3], sT[3], GUP))
    for q in range(4):
        I('s_add_u32 s%d, s%d, %d' % (sT[4], g.sR4, q)); I('s_and_b32 s%d, s%d, 3' % (sT[4], sT[4]))
        I('s_mul_i32 s%d, s%d, 7168' % (sT[4], sT[4])); I('s_add_u32 s%d, s%d, s%d' % (g.sQ[q], sT[4], sT[3]))
    if not cfg.get('c1early'): a_loads(1)
    if LAH > 2: a_loads(2)
    def pk_group(j):
        s = g.sP0 if j < 2 else g.sP1
        return grp(['s_add_u32 m0, s%d, %d' % (g.sPT, 1024 * j), lambda: I('buffer_load_dwordx4 v%d, s[%d:%d], s%d offen lds' % (vPD, s, s + 3, sPS[j]), tag='pk')])
    pf.stamp('issued')
    def w_addr():
        I('s_lshl_b32 s%d, s%d, 12' % (sT[3], sCC)); I('v_add_u32 v%d, s%d, v%d' % (vTc, sT[3], vT)); I('v_add_u32 v%d, s%d, v%d' % (vTo, sW10, vTc))
        adv(sCC)
    def flag_poll():
        I('v_lshlrev_b32 v%d, 2, v1' % g.vPA)
        I('buffer_load_dword v%d, v%d, s[%d:%d], 0 offen sc1' % (g.vPoll, g.vPA, g.sDBG, g.sDBG + 3), tag='poll')
    def pack_rd():
        a.wait(vm='pk')
        for f in range(4): trfrag(a, aPK + 4 * f, vPT[f], 0, 'pkr', f='a', d2=512)
    def pack_st():
        a.wait(lg='pkr')
        for f in range(4): I('buffer_store_dwordx4 %s, v%d, s[%d:%d], s%d offen sc1' % (ar(aPK + 4 * f, 4), vL16, g.sPO, g.sPO + 3, sPOs[f]), tag='pks')
    def go_poll():
        I('s_lshl_b32 s%d, s%d, 8' % (sT[4], g.sFS)); I('s_add_u32 s%d, s%d, %d' % (sT[4], sT[4], CNT + 3 * 4096))
        I('s_lshl_b32 s%d, s%d, 8' % (sT[5], g.sCS)); I('s_add_u32 s%d, s%d, %d' % (sT[5], sT[5], CNT + 4 * 4096))
        I('v_mov_b32 v%d, s%d' % (vXS[0], sT[5])); I('v_writelane_b32 v%d, s%d, 0' % (vXS[0], sT[4]))
        I('v_mov_b32 v%d, 4' % g.vPT); I('v_writelane_b32 v%d, 14, 0' % g.vPT)
        I('buffer_load_dword v%d, v%d, s[%d:%d], 0 offen sc1' % (g.vPoll, vXS[0], g.sWS, g.sWS + 3), tag='gop')
    def tlb_touch():
        sh = cfg.get('tlbsh', 19)
        I('v_lshlrev_b32 v5, %d, v1' % sh); I('s_lshl_b32 s%d, s%d, %d' % (sT[4], sW, sh - 2))
        I('s_mov_b32 exec_hi, 0xff')
        I('buffer_load_dword v%d, v5, s[%d:%d], s%d offen sc1' % (g.vCSg, g.sWS, g.sWS + 3, sT[4]), tag='tlb')
        I('s_mov_b32 exec_hi, 0'); I('s_mov_b32 exec_lo, 0xf')
        I('buffer_load_dword v%d, v5, s[%d:%d], s%d offen sc1' % (g.vCSg, g.sOUT, g.sOUT + 3, sT[4]), tag='tlb')
        I('s_mov_b64 exec, -1')
    def fin_groups():
        ops = ['v_add_f32 v%d, v%d, v%d' % (vS1a, vS1a, vS1b), 'v_add_f32 v%d, v%d, v%d' % (vS2a, vS2a, vS2b),
               'v_mov_b32 v%d, v%d' % (vS1b, vS1a), 'v_mov_b32 v%d, v%d' % (vS2b, vS2a),
               's_lshl_b32 s%d, s%d, 8' % (sT[3], sW), 's_add_u32 s%d, s%d, %d' % (sT[3], sT[3], g.STATL),
               'v_permlane32_swap_b32 v%d, v%d' % (vS1a, vS1b), 'v_permlane32_swap_b32 v%d, v%d' % (vS2a, vS2b),
               'v_add_f32 v%d, v%d, v%d' % (vS1a, vS1a, vS1b), 'v_add_f32 v%d, v%d, v%d' % (vS2a, vS2a, vS2b)]
        b = Asm(); ln_finish(b, 'v%d' % vS1a, 'v%d' % vS2a, 'v2', 'v3', 'v%d' % vRN, 'v4')
        ops += [l.strip() for l in b.out if not l.strip().startswith('s_nop')]
        ops += ['v_sub_f32 v%d, 0, v4' % (vRN + 1), 'v_add_u32 v2, s%d, v%d' % (sT[3], vN4), 'ds_write_b32 v2, v%d' % vRN, 'ds_write_b32 v2, v%d offset:128' % (vRN + 1),
                'ds_write_b32 v%d, a%d' % (vCA, aC0), 'ds_write_b32 v%d, a%d offset:512' % (vCA, aC1), 'v_add_u32 v5, %d, v%d' % (g.CSL, vN4)]
        n = (len(ops) + 7) // 8
        return [grp(ops[k:k + n]) for k in range(0, len(ops), n)]
    w_addr()
    PKI = cfg.get('pki', 4)
    for j in range(7):
        a.wait(vm='c%d' % j)
        if True:
            for t in range(4): I('ds_read_b128 %s, v%d offset:%d' % (vr(XF + 16 * j + 4 * t, 4), vXR[t], 4096 * xslot[j]), tag='xf%d' % j)
        trfrag(a, WB + 24, vTo, 0, 'o%d' % j); trfrag(a, WB + 28, vTo, 28672, 'o%d' % j)
        I('s_barrier')
        pf.stamp('c%d' % j)
        def rd(t):
            st = t % 3
            trfrag(a, WB + 8 * st, vTc, 1024 * t, 'w%d_%d' % (j, t)); trfrag(a, WB + 8 * st + 4, vTc, 28672 + 1024 * t, 'w%d_%d' % (j, t))
        def dots(jj):
            for r in range(16):
                x = XF + 16 * jj + r
                I('v_dot2c_f32_bf16 v%d, s%d, v%d' % (vS1b if r & 1 else vS1a, g.sONE, x)); I('v_dot2c_f32_bf16 v%d, v%d, v%d' % (vS2b if r & 1 else vS2a, x, x))
        rd(0); rd(1); rd(2)
        if j == 1: flag_set()
        if j > 0: dots(j - 1)
        if j == 6:
            a.wait(lg='xf6'); dots(6)
        G = []
        if j + LAH < 7: G = a_groups(j + LAH)
        elif j + LAH == 7: G = q_groups(cfg.get('wq0', 7))
        if j == PKI: G = G + [pk_group(k) for k in range(4)]
        if j == 3: G = G + [flag_poll]
        if j == 6: G = fin_groups()
        if j == cfg.get('tlb', -1): G = G + [tlb_touch]
        a.wait(lg='o%d' % j)
        I(MF(ar(aC0, 16), vr(vONE, 4), vr(WB + 24, 4), '0' if j == 0 else ar(aC0, 16)))
        if G: G.pop(0)()
        I(MF(ar(aC1, 16), vr(vONE, 4), vr(WB + 28, 4), '0' if j == 0 else ar(aC1, 16)))
        if G: G.pop(0)()
        for t in range(4):
            x = XF + 16 * j + 4 * t; st = t % 3
            a.wait(lg='w%d_%d' % (j, t))
            first = (j == 0 and t == 0)
            I(MF(vr(ACCK, 16), vr(x, 4), vr(WB + 8 * st, 4), '0' if first else vr(ACCK, 16)))
            if G: G.pop(0)()
            I(MF(vr(ACCV, 16), vr(x, 4), vr(WB + 8 * st + 4, 4), '0' if first else vr(ACCV, 16)))
            if t == 0:
                rd(3)
                if j < 6: w_addr()
            elif G: G.pop(0)()
        while G: G.pop(0)()
    pf.stamp('loop')
    a.wait(lg=0); I('s_barrier')
    for i in range(8): I('ds_read_b32 v%d, v5 offset:%d' % (ACCQ + i, 128 * i), tag='cs')
    for qd in range(4):
        I('ds_read_b128 %s, v%d offset:%d' % (vr(WB + 16 + 4 * qd, 4), vSA, 128 + 32 * qd), tag='st')
    for qd in range(4):
        I('ds_read_b128 %s, v%d offset:%d' % (vr(WB + 4 * qd, 4), vSA, 32 * qd), tag='st2')
    pf.stamp('X1')
    poll(g, 'kf_pz', g.vPA, 0xffff, 4, g.sDBG, early='poll')
    pack_rd()
    for op in ['v_and_b32 v3, 31, v1', 'v_mul_u32_u24 v3, 144, v3', 'v_lshrrev_b32 v4, 5, v1', 'v_lshl_add_u32 v3, v4, 4, v3', 'v_add_u32 v%d, s%d, v3' % (vKW, g.sPT),
               'v_bfe_u32 v5, v1, 2, 2', 'v_lshl_add_u32 v4, v4, 2, v5',
               'v_bfe_u32 v5, v1, 4, 1', 'v_mul_u32_u24 v5, 14, v5', 'v_add_u32 v5, v5, v4',
               'v_and_b32 v6, 3, v1', 'v_lshlrev_b32 v6, 2, v6', 's_lshl_b32 s%d, s%d, 5' % (sT[4], sW), 's_add_u32 s%d, s%d, %d' % (sT[4], sT[4], g.KVRL),
               'v_add_u32 v6, s%d, v6' % sT[4], 'v_mul_u32_u24 v7, 144, v5', 'v_add_u32 v%d, v7, v6' % vRed[0],
               'v_add_u32 v%d, %d, v%d' % (vRed[1], 8 * 144, vRed[0]), 'v_mul_u32_u24 v7, 144, v4', 'v_add_u32 v7, v7, v6', 'v_add_u32 v7, %d, v7' % (22 * 144),
               'v_cmp_lt_u32 vcc, 5, v4', 'v_cndmask_b32 v%d, v%d, v7, vcc' % (vRed[1], vRed[1])]: I(op)
    Q = ACCQ
    pack_st()
    for f in range(4): I(MF(ar(32 + 16 * f, 16), vr(vONE, 4), ar(aPK + 4 * f, 4), '0'))
    a.wait(lg='cs')
    I('v_add_f32 v%d, v%d, v%d' % (Q, Q, Q + 1)); I('v_add_f32 v%d, v%d, v%d' % (Q + 2, Q + 2, Q + 3)); I('v_add_f32 v%d, v%d, v%d' % (vCS, Q, Q + 2))
    I('v_add_f32 v%d, v%d, v%d' % (Q + 4, Q + 4, Q + 5)); I('v_add_f32 v%d, v%d, v%d' % (Q + 6, Q + 6, Q + 7)); I('v_add_f32 v%d, v%d, v%d' % (vCS + 1, Q + 4, Q + 6))
    SE = 's[%d:%d]' % (g.sEPS, g.sEPS + 1)
    def phi(acc, tmp, n):
        for p in range(0, n, 2): I('v_pk_mul_f32 %s, %s, %s op_sel:[0,1] op_sel_hi:[1,1]' % (vr(tmp + p, 2), vr(acc + p, 2), SE))
        for v in range(n): I('v_min_f32 v%d, 0, v%d' % (tmp + v, tmp + v))
        for v in range(n): I('v_exp_f32 v%d, v%d' % (tmp + v, tmp + v)); I('v_max_f32 v%d, s%d, v%d' % (acc + v, g.sEPS, acc + v))
        for p in range(0, n, 2): I('v_pk_add_f32 %s, %s, %s' % (vr(acc + p, 2), vr(acc + p, 2), vr(tmp + p, 2)))
    CSP = vr(vCS, 2)
    a.wait(lg='st')
    for p in range(0, 16, 2):
        I('v_pk_fma_f32 %s, %s, %s, %s op_sel_hi:[1,0,1]' % (vr(ACCK + p, 2), vr(WB + 16 + p, 2), CSP, vr(ACCK + p, 2)))
        I('v_pk_fma_f32 %s, %s, %s, %s op_sel:[0,1,0] op_sel_hi:[1,1,1]' % (vr(ACCV + p, 2), vr(WB + 16 + p, 2), CSP, vr(ACCV + p, 2)))
    I('s_add_u32 s%d, s%d, %d' % (sPCS, sPCS, CSGU)); I('s_mov_b32 exec_hi, 0')
    for f in range(4): I('buffer_atomic_add_f32 a%d, v%d, s[%d:%d], s%d offen offset:%d' % (32 + 16 * f, g.vPA, g.sWS, g.sWS + 3, sPCS, 128 * f), tag='pks')
    I('s_mov_b64 exec, -1')
    a.wait(lg='st2')
    for p in range(0, 16, 2):
        I('v_pk_fma_f32 %s, %s, %s, %s op_sel_hi:[1,1,0]' % (vr(ACCK + p, 2), vr(ACCK + p, 2), vr(WB + p, 2), SE))
        I('v_pk_mul_f32 %s, %s, %s' % (vr(ACCV + p, 2), vr(ACCV + p, 2), vr(WB + p, 2)))
    a.wait(vm='wq')
    I('s_sub_u32 s%d, s%d, %d' % (sT[3], sW10, g.WKL - g.WQL)); I('v_add_u32 v%d, s%d, v%d' % (vTo, sT[3], vT))
    for c in range(7): trfrag(a, WB + 4 * c, vTo, 4096 * c, 'qo%d' % c)
    phi(ACCK, ACCQ, 16)
    for p in range(8):
        I('v_cvt_pk_bf16_f32 v%d, v%d, v%d' % (ACCK + p, ACCK + 2 * p, ACCK + 2 * p + 1)); I('v_cvt_pk_bf16_f32 v%d, v%d, v%d' % (ACCV + p, ACCV + 2 * p, ACCV + 2 * p + 1))
    I('s_mov_b64 exec, s[%d:%d]' % (g.sMV28, g.sMV28 + 1))
    for p in range(8): I('v_mov_b32 v%d, s%d' % (ACCV + p, g.sONE))
    I('s_mov_b64 exec, -1')
    pf.stamp('epikv')
    I(MF(ar(aC1, 16), vr(ACCK, 4), vr(ACCV, 4), '0')); I(MF(ar(aC1, 16), vr(ACCK + 4, 4), vr(ACCV + 4, 4), ar(aC1, 16)))
    a.wait(lg='qo6')
    for c in range(7):
        I(MF(ar(aC0, 16), vr(vONE, 4), vr(WB + 4 * c, 4), '0' if c == 0 else ar(aC0, 16)))
        if c == 1:
            for q in range(4): I('ds_write_b128 v%d, %s offset:%d' % (vKW, ar(aC1 + 4 * q, 4), 32 * q))
    I('s_mov_b32 s%d, s%d' % (sCC, g.sRHO))
    I('s_lshl_b32 s%d, s%d, 12' % (sT[5], sH)); I('s_add_u32 s%d, s%d, s%d' % (sT[5], sT[5], sW10)); I('s_add_u32 s%d, s%d, %d' % (sT[5], sT[5], KVACC))
    I('ds_write_b32 v%d, a%d offset:1024' % (vCA, aC0))
    a.wait(vm='pks', lg=0); I('s_barrier')
    pf.stamp('X2')
    RB = WB + 16
    for j in range(4):
        for p in range(4): I('ds_read_b32 v%d, v%d offset:%d' % (RB + 4 * j + p, vRed[j % 2], 4608 * p + 16 * (j // 2)), tag='red%d' % j)
    for j in range(4):
        a.wait(lg='red%d' % j)
        b = RB + 4 * j
        I('v_add_f32 v%d, v%d, v%d' % (b, b, b + 1)); I('v_add_f32 v%d, v%d, v%d' % (b + 2, b + 2, b + 3)); I('v_add_f32 v%d, v%d, v%d' % (b, b, b + 2))
        if j < 2: I('buffer_atomic_add_f32 v%d, v%d, s[%d:%d], s%d offen offset:%d' % (b, g.vPA, g.sWS, g.sWS + 3, sT[5], 256 * j), tag='ast')
    I('s_cmp_eq_u32 s%d, 3' % sW); a.branch('s_cbranch_scc1 kf_noat')
    for j in (2, 3): I('buffer_atomic_add_f32 v%d, v%d, s[%d:%d], s%d offen offset:%d' % (RB + 4 * j, g.vPA, g.sWS, g.sWS + 3, sT[5], 256 * j), counted=False)
    a.label('kf_noat')
    sig_add(g, sPSG)
    pf.stamp('atom')
    QB = WB
    def q_rd(n):
        j, t = n // 4, n % 4
        if t == 0:
            I('s_lshl_b32 s%d, s%d, 12' % (sT[3], sCC)); I('s_sub_u32 s%d, s%d, %d' % (sT[3], sT[3], g.WKL - g.WQL))
            I('v_add_u32 v%d, s%d, v%d' % (vTc, sT[3], vT)); adv(sCC)
        trfrag(a, QB + 4 * (n % 4), vTc, 1024 * t, 'q%d' % n)
    for n in range(3): q_rd(n)
    S = Side(a)
    CQ = ACCK + 8
    S.add(['v_add_u32 v2, %d, v%d' % (g.CSL + 1024, vN4)])
    S.add([((lambda i=i: I('ds_read_b32 v%d, v2 offset:%d' % (CQ + i, 128 * i), tag='cq')), 5) for i in range(4)])
    S.add(['s_lshl_b32 s%d, s%d, 7' % (sT[2], sW), 's_add_u32 s%d, s%d, %d' % (sT[2], sT[2], g.CSQ2L), 'v_add_u32 v3, s%d, v%d' % (sT[2], vN4),
           'v_lshrrev_b32 v4, 5, v1', 'v_lshlrev_b32 v4, 4, v4', 'v_add_u32 v4, s%d, v4' % sT[2], ((lambda: a.wait(lg='cq')), 3),
           'v_add_f32 v%d, v%d, v%d' % (CQ, CQ, CQ + 1), 'v_add_f32 v%d, v%d, v%d' % (CQ + 2, CQ + 2, CQ + 3), 'v_add_f32 v%d, v%d, v%d' % (CQ, CQ, CQ + 2),
           'ds_write_b32 v3, v%d' % CQ])
    S.add([((lambda q=q: I('ds_read_b128 %s, v4 offset:%d' % (vr(ACCV + 4 * q, 4), 32 * q), tag='cq2')), 5) for q in range(4)])
    g.guq = [(j, c) for j in range(28) for c in range(2)]
    for n in range(28):
        if n + 3 < 28: q_rd(n + 3)
        a.wait(lg='q%d' % n)
        I(MF(vr(ACCQ, 16), vr(QB + 4 * (n % 4), 4), vr(XF + 4 * n, 4), '0' if n == 0 else vr(ACCQ, 16)))
        S.emit(12)
    S.drain()
    pf.stamp('q28')
    a.wait(lg='cq2')
    RN = vr(vRN, 2)
    for p in range(0, 16, 2): I('v_pk_fma_f32 %s, %s, %s, %s op_sel:[0,1,0] op_sel_hi:[1,1,1]' % (vr(ACCQ + p, 2), vr(ACCV + p, 2), RN, vr(ACCQ + p, 2)))
    for p in range(0, 16, 2): I('v_pk_fma_f32 %s, %s, %s, %s op_sel_hi:[1,0,0]' % (vr(ACCQ + p, 2), vr(ACCQ + p, 2), RN, SE))
    phi(ACCQ, WB, 16)
    for p in range(8): I('v_cvt_pk_bf16_f32 v%d, v%d, v%d' % (ACCK + p, ACCQ + 2 * p, ACCQ + 2 * p + 1))
    for p in (6, 7): I('v_cndmask_b32 v%d, 0, v%d, s[%d:%d]' % (ACCK + p, ACCK + p, g.sHI, g.sHI + 1))
    I('s_lshl_b32 s%d, s%d, 2' % (sT[0], sRBA)); I('s_add_u32 s%d, s%d, s%d' % (sT[0], sT[0], sW))
    I('s_lshl_b32 s%d, s%d, 6' % (sT[1], sH)); I('s_add_u32 s%d, s%d, s%d' % (sT[0], sT[0], sT[1])); I('s_lshl_b32 s%d, s%d, 11' % (sT[0], sT[0]))
    if PQF: I('s_add_u32 s%d, s%d, %d' % (sT[0], sT[0], PQF))
    I('buffer_store_dwordx4 %s, v%d, s[%d:%d], s%d offen sc1' % (vr(ACCK, 4), vL16, g.sWS, g.sWS + 3, sT[0]), tag='ast')
    I('buffer_store_dwordx4 %s, v%d, s[%d:%d], s%d offen offset:1024 sc1' % (vr(ACCK + 4, 4), vL16, g.sWS, g.sWS + 3, sT[0]), tag='ast')
    pf.stamp('pqst')
    go_poll()
    I('s_lshr_b32 s%d, s%d, 2' % (sT[6], sH)); I('s_lshl_b32 s%d, s%d, 7' % (sT[6], sT[6])); I('s_add_u32 s%d, s%d, %d' % (sT[6], sT[6], CNT))
    I('v_mov_b32 v2, 1'); I('v_lshlrev_b32 v3, 9, v1')
    a.wait(vm='ast'); I('s_barrier')
    I('s_mov_b64 exec, 0xff')
    I('buffer_atomic_add v2, v3, s[%d:%d], s%d offen sc1' % (g.sKZ, g.sKZ + 3, sT[6]), tag='sig')
    I('s_mov_b64 exec, -1')
    pf.stamp('sigA')
    I('s_and_b32 s%d, s2, 0xc2' % sT[0]); I('s_cmp_eq_u32 s%d, 0xc2' % sT[0]); a.branch('s_cbranch_scc1 kf_pack')
    poll(g, 'kf_pg', vXS[0], 3, 'v%d' % g.vPT, g.sWS, early='gop')
    wo_loads(g, 0, 2)

def wo_loads(g, lo, hi):
    a = g.a; I = a.I; sT = g.sT
    for i in range(lo, hi):
        I('s_add_u32 s%d, s%d, %d' % (sT[2], g.sR4, i)); I('s_and_b32 s%d, s%d, 3' % (sT[2], sT[2]))
        I('s_lshl_b32 s%d, s%d, 2' % (sT[3], g.sW)); I('s_add_u32 s%d, s%d, s%d' % (sT[2], sT[2], sT[3])); I('s_lshl_b32 s%d, s%d, 11' % (sT[2], sT[2]))
        I('s_lshl_b32 s%d, s%d, 1' % (sT[3], g.sCS)); I('s_and_b32 s%d, s%d, 1' % (sT[4], g.sW)); I('s_add_u32 s%d, s%d, s%d' % (sT[3], sT[3], sT[4]))
        I('s_lshl_b32 s%d, s%d, 15' % (sT[3], sT[3])); I('s_add_u32 s%d, s%d, s%d' % (sT[2], sT[2], sT[3]))
        I('s_xor_b32 s%d, s%d, 32768' % (sT[3], sT[2]))
        I('s_add_u32 s%d, s%d, %d' % (sT[2], sT[2], WOP)); I('s_add_u32 s%d, s%d, %d' % (sT[3], sT[3], WOP))
        for c in range(2):
            for kk in range(2):
                I('buffer_load_dwordx4 %s, v%d, s[%d:%d], s%d offen offset:%d sc1' % (vr(8 + 16 * i + 8 * c + 4 * kk, 4), g.vL16, g.sWS, g.sWS + 3, sT[2 + c], 1024 * kk), tag='wo')

def resid_init(g, RES, ACC0, T):
    I = g.a.I
    for p in range(8): I('v_mov_b32 v%d, v%d' % (T + p, RES + p))
    for pr in range(2):
        for k in range(2): I('v_permlane32_swap_b32 v%d, v%d' % (T + 4 * pr + k, T + 4 * pr + 2 + k))
    for p in range(8):
        I('v_lshlrev_b32 v%d, 16, v%d' % (ACC0 + 2 * p, T + p)); I('v_and_b32 v%d, 0xffff0000, v%d' % (ACC0 + 2 * p + 1, T + p))

def reduce_tiles(g, ACC, P0, OUT):
    a = g.a; I = a.I
    for t in range(1, 4):
        for q in range(4): I('ds_write_b128 v%d, %s offset:%d' % (g.vRW[t - 1], vr(ACC + 16 * t + 4 * q, 4), 1024 * q))
    a.wait(lg=0); I('s_barrier')
    for q in range(4):
        for t in range(3): I('ds_read_b128 %s, v%d offset:%d' % (vr(P0 + 16 * t + 4 * q, 4), g.vRR, 4096 * t + 1024 * q), tag='rr%d' % q)
    for q in range(4):
        a.wait(lg='rr%d' % q)
        for v in (4 * q, 4 * q + 2):
            I('v_pk_add_f32 %s, %s, %s' % (vr(P0 + v, 2), vr(P0 + v, 2), vr(ACC + v, 2))); I('v_pk_add_f32 %s, %s, %s' % (vr(P0 + 16 + v, 2), vr(P0 + 16 + v, 2), vr(P0 + 32 + v, 2)))
        for v in (4 * q, 4 * q + 2): I('v_pk_add_f32 %s, %s, %s' % (vr(P0 + v, 2), vr(P0 + v, 2), vr(P0 + 16 + v, 2)))
        for p in (2 * q, 2 * q + 1): I('v_cvt_pk_bf16_f32 v%d, v%d, v%d' % (OUT + p, P0 + 2 * p, P0 + 2 * p + 1))
        if q % 2 == 1:
            for k in range(2): I('v_permlane32_swap_b32 v%d, v%d' % (OUT + 2 * (q - 1) + k, OUT + 2 * (q - 1) + 2 + k))

def colsum(g, lo, hi):
    a = g.a; I = a.I
    for i in range(4): I('v_mov_b32 v%d, s%d' % (4 + i, g.sONE))
    for j in range(lo, hi):
        for c in range(2): I(MF(ar(224 + 16 * c, 16), 'v[4:7]', ar(112 * c + 4 * j, 4), '0' if j == 0 else ar(224 + 16 * c, 16)))

def phase_B(g):
    a = g.a; I = a.I; sT = g.sT; pf = g.pf; cfg = g.cfg
    sW = g.sW; vL16 = g.vL16
    WO, ACC, KV, NUM = 8, 72, 136, 168
    aPQ = 224
    sRT, sCT, sKVB, sPQB, sRX = g.S4[0:5]
    wo_loads(g, 2, 4)
    I('s_lshr_b32 s%d, s%d, 1' % (sT[0], sW)); I('s_and_b32 s%d, s%d, 1' % (sT[1], sW))
    I('s_lshl_b32 s%d, s%d, 1' % (sRT, g.sRB64)); I('s_add_u32 s%d, s%d, s%d' % (sRT, sRT, sT[0]))
    I('s_lshl_b32 s%d, s%d, 1' % (sCT, g.sCS)); I('s_add_u32 s%d, s%d, s%d' % (sCT, sCT, sT[1]))
    g.sRT, g.sCT = sRT, sCT
    I('s_mul_i32 s%d, s%d, %d' % (sT[2], sRT, 32 * 896)); I('s_lshl_b32 s%d, s%d, 6' % (sT[3], sCT)); I('s_add_u32 s%d, s%d, s%d' % (sT[2], sT[2], sT[3]))
    for i in range(2):
        I('buffer_load_dwordx4 %s, v%d, s[%d:%d], s%d offen offset:%d' % (vr(g.vHK + 4 * i, 4), g.vXo, g.sX, g.sX + 3, sT[2], 32 * i), tag='xr')
    I('s_and_b32 s%d, s2, 7' % sT[2]); I('s_lshl_b32 s%d, s%d, 2' % (sT[2], sT[2])); I('s_add_u32 s%d, s%d, s%d' % (sT[2], sT[2], sW))
    I('s_lshl_b32 s%d, s%d, 7' % (sT[2], sT[2])); I('s_add_u32 s%d, s%d, %d' % (sT[2], sT[2], CNT)); I('v_mov_b32 v%d, s%d' % (g.vPA, sT[2]))
    I('s_lshl_b32 s%d, s%d, 14' % (sKVB, sW)); I('s_add_u32 s%d, s%d, %d' % (sKVB, sKVB, KVACC))
    I('s_lshl_b32 s%d, s%d, 19' % (sPQB, sW)); I('s_lshl_b32 s%d, s%d, 12' % (sT[2], g.sRB64)); I('s_add_u32 s%d, s%d, s%d' % (sPQB, sPQB, sT[2]))
    if PQF: I('s_add_u32 s%d, s%d, %d' % (sPQB, sPQB, PQF))
    I('s_lshl_b32 s%d, s%d, 11' % (sRX, sT[0]))
    if cfg.get('retouch'):
        I('s_getpc_b64 s[%d:%d]' % (g.sP0, g.sP0 + 1))
        I('s_lshr_b32 s%d, s2, 3' % sT[2]); I('s_lshl_b32 s%d, s%d, 2' % (sT[2], sT[2])); I('s_add_u32 s%d, s%d, s%d' % (sT[2], sT[2], sW)); I('s_lshl_b32 s%d, s%d, 1' % (sT[2], sT[2]))
        I('v_add_u32 v3, s%d, v1' % sT[2]); I('v_lshlrev_b32 v3, 7, v3')
        I('s_mov_b64 exec, 3')
        I('global_load_dword v%d, v3, s[%d:%d]' % (g.vPoll, g.sP0, g.sP0 + 1), tag='code')
        I('s_mov_b64 exec, -1')
    pf.stamp('pfB')
    poll(g, 'kf_p1', g.vPA, 1, 64, g.sWS)
    pf.stamp('sync1')
    def loads(i):
        I('s_add_u32 s%d, s%d, %d' % (sT[2], g.sR4, i)); I('s_and_b32 s%d, s%d, 3' % (sT[2], sT[2]))
        I('s_lshl_b32 s%d, s%d, 12' % (sT[3], sT[2])); I('s_add_u32 s%d, s%d, s%d' % (sT[3], sT[3], sKVB))
        I('s_lshl_b32 s%d, s%d, 17' % (sT[4], sT[2])); I('s_add_u32 s%d, s%d, s%d' % (sT[4], sT[4], sPQB))
        I('s_add_u32 s%d, s%d, s%d' % (sT[5], sT[4], sRX)); I('s_xor_b32 s%d, s%d, 2048' % (sT[4], sT[5]))
        for q in range(4):
            I('buffer_load_dwordx4 %s, v%d, s[%d:%d], s%d offen offset:%d sc1' % (vr(KV + 16 * (i % 2) + 4 * q, 4), vL16, g.sWS, g.sWS + 3, sT[3], 1024 * q), tag='kv%d' % i)
        for rt in range(2):
            for kk in range(2):
                I('buffer_load_dwordx4 %s, v%d, s[%d:%d], s%d offen offset:%d sc1' % (ar(aPQ + 16 * (i % 2) + 8 * rt + 4 * kk, 4), vL16, g.sWS, g.sWS + 3, sT[5] if rt == 0 else sT[4], 1024 * kk), tag='pq%d' % i)
    def o_ops(i, rt):
        n = NUM + 32 * (i % 2) + 16 * rt; t = 2 + rt
        ops = ['v_cvt_pk_bf16_f32 v%d, v%d, v%d' % (t, n + 14, n + 14), 'v_and_b32 v%d, 0xffff0000, v%d' % (t, t),
               'v_add_f32 v%d, s%d, v%d' % (t, g.sEPS, t), 'v_rcp_f32 v%d, v%d' % (t, t)]
        for v in range(14): ops.append('v_mul_f32 v%d, v%d, v%d' % (n + v, n + v, t))
        for p in range(7): ops.append('v_cvt_pk_bf16_f32 v%d, v%d, v%d' % (n + p, n + 2 * p, n + 2 * p + 1))
        ops.append('v_mov_b32 v%d, 0' % (n + 7))
        return ops
    def num(i):
        b = KV + 16 * (i % 2)
        a.wait(vm='kv%d' % i)
        for p in range(8): I('v_cvt_pk_bf16_f32 v%d, v%d, v%d' % (b + p, b + 2 * p, b + 2 * p + 1))
        a.wait(vm='pq%d' % i)
        for rt in range(2):
            for kk in range(2):
                n = NUM + 32 * (i % 2) + 16 * rt
                I(MF(vr(n, 16), vr(b + 4 * kk, 4), ar(aPQ + 16 * (i % 2) + 8 * rt + 4 * kk, 4), '0' if kk == 0 else vr(n, 16)))
        if i + 2 < 4: loads(i + 2)
    def gemm(i, rt, S, per):
        for kk in range(2):
            for c in range(2):
                acc = ACC + 16 * (2 * rt + c)
                I(MF(vr(acc, 16), vr(WO + 16 * i + 8 * c + 4 * kk, 4), vr(NUM + 32 * (i % 2) + 16 * rt + 4 * kk, 4), '0' if (i == 0 and kk == 0 and (rt or c)) else vr(acc, 16)))
                S.emit(per)
    def gu_one():
        if len(g.guq) <= cfg.get('gu_keep', 20): return False
        gu_load(g, *g.guq.pop(0)); return True
    loads(0); loads(1)
    resid_init(g, g.vHK, ACC, NUM)
    S = Side(a)
    num(0)
    for i in range(4):
        S.add(o_ops(i, 0)); S.drain()
        S.add(o_ops(i, 1))
        gemm(i, 0, S, 28); S.drain()
        if i + 1 < 4: num(i + 1)
        if i == cfg.get('spr_i', 1): a.sprinkle(gu_one, cfg.get('spr', 80))
        gemm(i, 1, S, 0)
    pf.stamp('gemmB')
    reduce_tiles(g, ACC, NUM, g.vHK)
    a.sprinkle(None, 0)
    I('s_mul_i32 s%d, s%d, 28' % (sT[0], sRT)); I('s_lshl_b32 s%d, s%d, 1' % (sT[1], sCT)); I('s_add_u32 s%d, s%d, s%d' % (sT[0], sT[0], sT[1]))
    I('s_lshl_b32 s%d, s%d, 10' % (sT[0], sT[0])); I('s_add_u32 s%d, s%d, %d' % (sT[0], sT[0], HF))
    for i in range(2):
        I('buffer_store_dwordx4 %s, v%d, s[%d:%d], s%d offen offset:%d sc1' % (vr(g.vHK + 4 * i, 4), vL16, g.sWS, g.sWS + 3, sT[0], 1024 * i), tag='bst')
    I('v_mov_b32 v2, 0'); I('v_mov_b32 v3, 0')
    for p in range(8):
        I('v_dot2c_f32_bf16 v2, s%d, v%d' % (g.sONE, g.vHK + p)); I('v_dot2c_f32_bf16 v3, v%d, v%d' % (g.vHK + p, g.vHK + p))
    I('s_lshl_b32 s%d, s%d, 14' % (sT[0], sCT)); I('s_lshl_b32 s%d, s%d, 8' % (sT[1], sRT))
    I('s_add_u32 s%d, s%d, s%d' % (sT[0], sT[0], sT[1])); I('s_add_u32 s%d, s%d, %d' % (sT[0], sT[0], STATS))
    I('v_mov_b32 v4, v2'); I('v_mov_b32 v5, v3'); I('v_lshlrev_b32 v6, 3, v1')
    I('v_permlane32_swap_b32 v2, v4'); I('v_permlane32_swap_b32 v3, v5')
    I('v_add_f32 v8, v2, v4'); I('v_add_f32 v9, v3, v5')
    I('s_mov_b32 exec_hi, 0')
    I('buffer_store_dwordx2 v[8:9], v6, s[%d:%d], s%d offen sc1' % (g.sWS, g.sWS + 3, sT[0]), tag='bst')
    I('s_mov_b64 exec, -1')
    pf.stamp('hst')
    for _ in range(min(cfg.get('b_gu4', 10), len(g.guq))): gu_load(g, *g.guq.pop(0))
    I('s_lshr_b32 s%d, s%d, 1' % (sT[5], g.sRB64))
    I('s_lshl_b32 s%d, s%d, 8' % (g.sT[6], sT[5])); I('s_add_u32 s%d, s%d, %d' % (g.sT[6], g.sT[6], CNT + 4096))
    a.wait(vm='bst'); I('s_barrier'); sig_add(g, g.sT[6])
    pf.stamp('sigB')

def phase_C(g):
    a = g.a; I = a.I; sT = g.sT; pf = g.pf; cfg = g.cfg
    sW = g.sW; vL16 = g.vL16
    ACC, HB, NMF, CI, TM, CSF = 8, 72, 96, 108, 116, 132
    NHB = 6
    vHQ = list(range(124, 132))
    I('s_lshl_b32 s%d, s%d, 2' % (sT[3], g.sFS)); I('s_add_u32 s%d, s%d, s%d' % (sT[3], sT[3], sW)); I('s_lshl_b32 s%d, s%d, 8' % (sT[3], sT[3])); I('s_add_u32 s%d, s%d, %d' % (sT[3], sT[3], CSGU))
    I('v_and_b32 v2, 31, v1'); I('v_lshlrev_b32 v3, 2, v2')
    for c in range(2): I('buffer_load_dword v%d, v3, s[%d:%d], s%d offen offset:%d sc1' % (g.vCSg + c, g.sWS, g.sWS + 3, sT[3], 128 * c), tag='csg')
    while len(g.guq) > cfg.get('c_gu', 0): gu_load(g, *g.guq.pop(0))
    sHG, sHL = g.S4[5], g.S4[6]
    sO = g.S4[7:11]; g.sQD = g.S4[15:19]
    I('s_mul_i32 s%d, s%d, 112' % (sT[3], g.sCT)); I('s_mul_i32 s%d, s%d, 28' % (sT[4], sW)); I('s_add_u32 s%d, s%d, s%d' % (sT[3], sT[3], sT[4]))
    I('s_lshl_b32 s%d, s%d, 10' % (sT[3], sT[3])); I('s_add_u32 s%d, s%d, %d' % (sT[3], sT[3], WDP))
    for q in range(4):
        I('s_add_u32 s%d, s%d, %d' % (sT[4], g.sR4, q)); I('s_and_b32 s%d, s%d, 3' % (sT[4], sT[4]))
        I('s_mul_i32 s%d, s%d, 7168' % (sT[5], sT[4])); I('v_add_u32 v%d, s%d, v%d' % (vHQ[q], sT[5], vL16)); I('v_add_u32 v%d, 57344, v%d' % (vHQ[4 + q], vHQ[q]))
        I('s_add_u32 s%d, s%d, s%d' % (g.sQD[q], sT[5], sT[3]))
    I('s_and_b32 s%d, s%d, 1' % (sT[4], g.sCT)); I('s_mul_i32 s%d, s%d, 114688' % (sT[4], sT[4])); I('s_sub_u32 s%d, 114688, s%d' % (sT[5], sT[4]))
    for q in range(4): I('s_sub_u32 s%d, s%d, s%d' % (g.sQD[q], g.sQD[q], sT[4]))
    g.vLd = [152, 153, 154, 155]
    I('s_lshr_b32 s%d, s%d, 1' % (sT[6], sW)); I('s_lshl_b32 s%d, s%d, 8' % (sT[6], sT[6])); I('v_xor_b32 v2, s%d, v%d' % (sT[6], vL16))
    I('v_add_u32 v%d, s%d, v2' % (g.vLd[0], sT[4])); I('v_add_u32 v%d, 4096, v%d' % (g.vLd[1], g.vLd[0]))
    I('v_add_u32 v%d, s%d, v2' % (g.vLd[2], sT[5])); I('v_add_u32 v%d, 4096, v%d' % (g.vLd[3], g.vLd[2]))
    I('s_mul_i32 s%d, s%d, %d' % (sHG, g.sRB128, 4 * 28672)); I('s_mul_i32 s%d, s%d, 7168' % (sHL, sW))
    I('s_add_u32 s%d, s%d, s%d' % (sHG, sHG, sHL)); I('s_add_u32 s%d, s%d, %d' % (sHG, sHG, HF))
    I('s_lshl_b32 s%d, s%d, 3' % (sT[2], g.sFS)); I('s_lshl_b32 s%d, s%d, 1' % (sT[3], sW)); I('s_add_u32 s%d, s%d, s%d' % (sT[2], sT[2], sT[3]))
    I('s_mul_i32 s%d, s%d, %d' % (sT[0], g.sRB128, 4 * 112)); I('s_add_u32 s%d, s%d, s%d' % (sT[0], sT[0], sT[2]))
    I('s_lshl_b32 s%d, s%d, 10' % (sT[0], sT[0])); I('s_add_u32 s%d, s%d, %d' % (sT[0], sT[0], ACTF))
    for rt in range(4): I('s_add_u32 s%d, s%d, %d' % (sO[rt], sT[0], rt * 112 * 1024))
    I('v_and_b32 v2, 31, v1'); I('v_lshrrev_b32 v3, 5, v1')
    I('v_mul_u32_u24 v%d, %d, v3' % (TM, 7 * 16384)); I('v_lshl_add_u32 v%d, v2, 3, v%d' % (TM, TM))
    I('s_lshl_b32 s%d, s%d, 2' % (sT[0], g.sRB128)); I('s_add_u32 s%d, s%d, s%d' % (sT[0], sT[0], sW))
    I('s_lshl_b32 s%d, s%d, 8' % (sT[1], sT[0])); I('s_add_u32 s%d, s%d, %d' % (sT[1], sT[1], STATS))
    I('s_lshl_b32 s%d, s%d, 8' % (sT[2], g.sRB128)); I('s_add_u32 s%d, s%d, %d' % (sT[2], sT[2], CNT + 4096)); I('v_mov_b32 v%d, s%d' % (g.vPA, sT[2]))
    pf.stamp('csC')
    poll(g, 'kf_p2', g.vPA, 1, 14, g.sWS)
    pf.stamp('sync2')
    def h_dma(rt, lo=0, hi=7):
        for k in range(lo, hi):
            if k % 4 == 0 or k == lo:
                kb = k - k % 4
                I('s_add_u32 s%d, s%d, %d' % (sT[3], sHG, rt * 28672 + 1024 * kb)); I('s_add_u32 m0, s%d, %d' % (sHL, g.HL + rt * 28672 + 1024 * kb))
            I('buffer_load_dwordx4 v%d, s[%d:%d], s%d offen offset:%d sc1 lds' % (vL16, g.sWS, g.sWS + 3, sT[3], 1024 * (k % 4)), tag='h%d' % rt)
    h_dma(0)
    vSP = 156
    while g.guq:
        j, c = g.guq.pop(0); gu_load(g, j, c); a.vm[-1] = 'gu%d' % j
        g.late_gu = getattr(g, 'late_gu', []) + [j]
    for p in range(7):
        I('buffer_load_dwordx2 %s, v%d, s[%d:%d], s%d offen sc1' % (vr(vSP + 2 * p, 2), TM, g.sWS, g.sWS + 3, sT[1]), tag='sp')
        if p < 6: I('s_add_u32 s%d, s%d, 16384' % (sT[1], sT[1]))
    for c in range(2):
        f = CSF + 4 * c
        I('v_mov_b32 v4, v%d' % (g.vCSg + c))
        I('v_cvt_pk_bf16_f32 v5, v4, v4'); I('v_and_b32 v5, 0xffff0000, v5'); I('v_sub_f32 v6, v4, v5')
        I('v_cvt_pk_bf16_f32 v%d, v4, v6' % f); I('v_and_b32 v5, 0xffff0000, v%d' % f); I('v_sub_f32 v6, v6, v5')
        I('v_cvt_pk_bf16_f32 v%d, v6, 0' % (f + 1))
        I('v_cndmask_b32 v%d, 0, v%d, s[%d:%d]' % (f, f, g.sHI, g.sHI + 1)); I('v_cndmask_b32 v%d, 0, v%d, s[%d:%d]' % (f + 1, f + 1, g.sHI, g.sHI + 1))
        I('v_mov_b32 v%d, 0' % (f + 2)); I('v_mov_b32 v%d, 0' % (f + 3))
    I('s_lshl_b32 s%d, s%d, 8' % (sT[2], sW)); I('s_add_u32 s%d, s%d, %d' % (sT[2], sT[2], CNT + 5 * 4096)); I('v_mov_b32 v%d, s%d' % (g.vPA, sT[2]))
    a.wait(vm='h0'); I('s_barrier')
    pf.stamp('h0')
    def stats_ops():
        ops = [((lambda: a.wait(vm='sp')), 3)]
        for p in range(1, 7): ops += ['v_add_f32 v%d, v%d, v%d' % (vSP, vSP, vSP + 2 * p), 'v_add_f32 v%d, v%d, v%d' % (vSP + 1, vSP + 1, vSP + 2 * p + 1)]
        ops += ['v_mov_b32 v5, v%d' % vSP, 'v_mov_b32 v6, v%d' % (vSP + 1), 's_lshl_b32 s%d, s%d, 9' % (sT[1], sW), 's_add_u32 s%d, s%d, %d' % (sT[1], sT[1], g.STL),
                'v_permlane32_swap_b32 v%d, v5' % vSP, 'v_permlane32_swap_b32 v%d, v6' % (vSP + 1),
                'v_add_f32 v%d, v%d, v5' % (vSP, vSP), 'v_add_f32 v%d, v%d, v6' % (vSP + 1, vSP + 1)]
        b = Asm(); ln_finish(b, 'v%d' % vSP, 'v%d' % (vSP + 1), 'v5', 'v6', 'v7', 'v3')
        ops += [l.strip() for l in b.out if not l.strip().startswith('s_nop')]
        X = vSP + 4
        ops += ['v_sub_f32 v3, 0, v3', 'v_cvt_pk_bf16_f32 v%d, v3, v3' % X, 'v_mov_b32 v%d, v%d' % (X + 1, X), 'v_mul_f32 v%d, %s, v7' % (X + 2, f32(-LOG2E)), 'v_mul_f32 v%d, v6, v6' % (X + 3),
                'v_lshlrev_b32 v4, 4, v2', 'v_add_u32 v5, s%d, v4' % sT[1], 'v_add_u32 v4, %d, v4' % g.STL,
                ((lambda: I('ds_write_b128 v5, %s' % vr(X, 4), tag='stw')), 6)]
        return ops
    def st_reads():
        for rt in range(4):
            I('ds_read_b64 %s, v4 offset:%d' % (vr(NMF + 2 * rt, 2), 512 * rt), tag='st')
            I('ds_read_b64 %s, v4 offset:%d' % (vr(CI + 2 * rt, 2), 512 * rt + 8), tag='st')
        I('v_mov_b32 v%d, 0' % (NMF + 8)); I('v_mov_b32 v%d, 0' % (NMF + 9))
    def acc(rt, c): return ACC + 32 * (rt % 2) + 16 * c
    def epi_ops(rt, c):
        b = acc(rt, c); c1, ir2 = CI + 2 * rt, CI + 2 * rt + 1
        ops = []
        for j in range(8): ops += ['v_mul_f32 v%d, v%d, v%d' % (TM + j, c1, b + j)]
        for j in range(8): ops += ['v_exp_f32 v%d, v%d' % (TM + j, TM + j), 'v_mul_f32 v%d, v%d, v%d' % (b + j, b + j, b + 8 + j)]
        for j in range(8): ops += ['v_fma_f32 v%d, v%d, v%d, v%d' % (TM + j, TM + j, ir2, ir2)]
        for j in range(8):
            ops += ['v_rcp_f32 v%d, v%d' % (TM + j, TM + j)]
            if j > 0: ops += ['v_mul_f32 v%d, v%d, v%d' % (b + j - 1, b + j - 1, TM + j - 1)]
        ops += ['v_cvt_pk_bf16_f32 v%d, v%d, v%d' % (b + 8 + p, b + 2 * p, b + 2 * p + 1) for p in range(3)]
        ops += ['v_mul_f32 v%d, v%d, v%d' % (b + 7, b + 7, TM + 7), 'v_cvt_pk_bf16_f32 v%d, v%d, v%d' % (b + 11, b + 6, b + 7)]
        ops.append(((lambda: I('buffer_store_dwordx4 %s, v%d, s[%d:%d], s%d offen offset:%d sc1' % (vr(b + 8, 4), vL16, g.sWS, g.sWS + 3, sO[rt], 1024 * c), tag='cst%d' % (rt // 2))), 16))
        return ops
    seq = [(rt, j) for rt in range(4) for j in range(28)]
    vis = 0
    def h_rd(n):
        nonlocal vis
        rt, j = seq[n]
        if rt > vis:
            vis = rt
            if rt == 1: a.wait(vm='h1', lg='stw')
            else: a.wait(vm='h%d' % rt)
            I('s_barrier')
            if rt == 1: st_reads()
        I('ds_read_b128 %s, v%d offset:%d' % (vr(HB + 4 * (n % NHB), 4), vHQ[4 * (rt // 2) + j // 7], (rt % 2) * 28672 + (j % 7) * 1024), tag='hr%d' % n)
    LA = NHB - 1
    for n in range(LA): h_rd(n)
    S = Side(a)
    wdq = [(j, c) for j in range(g.n_wd1) for c in range(2)]
    g.wdq2 = [(j, c) for j in range(g.n_wd1, 28) for c in range(2)]
    def hd(rt, k): return ((lambda: h_dma(rt, k, k + 1)), 22)
    for n, (rt, j) in enumerate(seq):
        if j == 0:
            S.drain()
            if rt == 0:
                S.add([hd(1, k) for k in range(7)]); S.add(stats_ops()); S.add([hd(2, k) for k in range(7)])
                S.add([((lambda: I('buffer_load_dword v%d, v%d, s[%d:%d], 0 offen sc1' % (g.vPoll, g.vPA, g.sWS, g.sWS + 3), tag='wdp')), 16)])
            if rt == 1:
                S.add([hd(3, k) for k in range(7)])
                poll(g, 'kf_pw', g.vPA, 1, 7, g.sWS, early='wdp')
            if rt >= 1: S.add(epi_ops(rt - 1, 0) + epi_ops(rt - 1, 1))
            pf.stamp('rt%d' % rt)
        if n + LA == 28: S.drain()
        if n + LA < len(seq): h_rd(n + LA)
        if rt == 0 and j in getattr(g, 'late_gu', []): a.wait(vm='gu%d' % j)
        a.wait(lg='hr%d' % n)
        for c in range(2):
            I(MF(vr(acc(rt, c), 16), ar(112 * c + 4 * j, 4), vr(HB + 4 * (n % NHB), 4), '0' if j == 0 else vr(acc(rt, c), 16)))
            if c == 0 and n >= 30 and n % 5 in (0, 2, 4) and wdq: wd_load(g, *wdq.pop(0))
            elif c == 0 and rt == 3 and 1 <= j <= cfg.get('wd3', 26) and not wdq: wd_load(g, *g.wdq2.pop(0))
            elif not (j == 0 and rt >= 1): S.emit(cfg.get('cb0', 16) if c == 0 else cfg.get('cb1', 22))
        if rt == 3 and j == 20: S.drain(); d_setup(g)
        if rt == 3 and j == cfg.get('midsig', 6):
            I('s_lshl_b32 s%d, s%d, 8' % (sT[6], g.sRB128)); I('s_add_u32 s%d, s%d, %d' % (sT[6], sT[6], CNT + 8192))
            a.wait(vm='cst0'); I('s_barrier'); sig_add(g, sT[6])
        if j == 27:
            a.wait(lg='st')
            for c in range(2): I(MF(vr(acc(rt, c), 16), vr(CSF + 4 * c, 4), vr(NMF + 2 * rt, 4), vr(acc(rt, c), 16)))
    S.drain()
    pf.stamp('mfmaC')
    assert not wdq
    for _ in range(min(len(g.wdq2), cfg.get('wd_pre', 8))): wd_load(g, *g.wdq2.pop(0))
    S.add(epi_ops(3, 0) + epi_ops(3, 1)); S.drain()
    pf.stamp('actst')

def d_setup(g):
    a = g.a; I = a.I; sT = g.sT; sW = g.sW; vL16 = g.vL16
    g.sA = g.S4[11:15]; g.sE, g.sHR, g.sOB = g.S4[2], g.S4[3], g.S4[4]
    I('s_lshr_b32 s%d, s%d, 1' % (sT[2], g.sRB64)); I('s_lshl_b32 s%d, s%d, 2' % (g.sE, sT[2])); I('s_and_b32 s%d, s%d, 1' % (sT[3], g.sRB64)); I('s_add_u32 s%d, s%d, s%d' % (g.sE, g.sE, sT[3]))
    I('s_lshl_b32 s%d, s%d, 8' % (sT[2], sT[2])); I('s_add_u32 s%d, s%d, %d' % (sT[2], sT[2], CNT + 8192)); I('v_mov_b32 v%d, s%d' % (g.vPA, sT[2]))
    I('buffer_load_dword v%d, v%d, s[%d:%d], 0 offen sc1' % (g.vPoll, g.vPA, g.sWS, g.sWS + 3), tag='p3e')
    I('s_mul_i32 s%d, s%d, 112' % (sT[0], g.sE)); I('s_mul_i32 s%d, s%d, 28' % (sT[1], sW)); I('s_add_u32 s%d, s%d, s%d' % (sT[0], sT[0], sT[1]))
    I('s_lshl_b32 s%d, s%d, 10' % (sT[0], sT[0])); I('s_add_u32 s%d, s%d, %d' % (sT[0], sT[0], ACTF))
    for q in range(4):
        I('s_add_u32 s%d, s%d, %d' % (sT[4], g.sR4, q)); I('s_and_b32 s%d, s%d, 3' % (sT[4], sT[4]))
        I('s_mul_i32 s%d, s%d, 7168' % (sT[4], sT[4])); I('s_add_u32 s%d, s%d, s%d' % (g.sA[q], sT[4], sT[0]))
    g.vA = [vL16, g.vLo[1], g.vLo[2], g.vLo[3]]
    I('v_add_u32 v%d, %d, v%d' % (g.vA[2], 2 * 114688, vL16)); I('v_add_u32 v%d, 4096, v%d' % (g.vA[3], g.vA[2]))
    I('s_lshr_b32 s%d, s%d, 1' % (sT[1], sW))
    I('s_mul_i32 s%d, s%d, 28' % (sT[0], g.sE)); I('s_lshl_b32 s%d, s%d, 1' % (sT[2], g.sCT)); I('s_add_u32 s%d, s%d, s%d' % (sT[2], sT[2], sT[1])); I('s_add_u32 s%d, s%d, s%d' % (sT[0], sT[0], sT[2]))
    I('s_lshl_b32 s%d, s%d, 10' % (sT[0], sT[0])); I('s_add_u32 s%d, s%d, %d' % (g.sHR, sT[0], HF))
    I('s_mul_i32 s%d, s%d, %d' % (sT[0], g.sE, 32 * 896)); I('s_lshl_b32 s%d, s%d, 5' % (sT[2], sT[2])); I('s_add_u32 s%d, s%d, s%d' % (g.sOB, sT[0], sT[2]))
    for t in range(1, 4):
        I('s_xor_b32 s%d, s%d, %d' % (sT[3], sW, t)); I('s_mul_i32 s%d, s%d, 6144' % (sT[3], sT[3])); I('s_add_u32 s%d, s%d, %d' % (sT[3], sT[3], (t - 1) * 2048))
        I('v_add_u32 v%d, s%d, v%d' % (g.vRW[t - 1], sT[3], vL16))
    I('s_mul_i32 s%d, s%d, 6144' % (sT[3], sW)); I('v_add_u32 v%d, s%d, v%d' % (g.vRR, sT[3], vL16))

def phase_D(g):
    a = g.a; I = a.I; sT = g.sT; pf = g.pf; cfg = g.cfg
    sW = g.sW; vL16 = g.vL16
    ACC, P0, RS = 8, 72, 104
    poll(g, 'kf_p3', g.vPA, 1, 14, g.sWS, early='p3e')
    pf.stamp('sync3')
    NR = 2 * g.act_ring; AB = g.act_base
    def issue(m):
        p, j = m // 28, m % 28; r = j % 7
        I('buffer_load_dwordx4 %s, v%d, s[%d:%d], s%d offen offset:%d sc1' % (ar(AB + 4 * (m % NR), 4), g.vA[2 * p + (r >= 4)], g.sWS, g.sWS + 3, g.sA[j // 7], 1024 * (r % 4)), tag='k%d' % m)
    LA = cfg.get('d_la', 16)
    I('s_add_u32 s%d, s%d, %d' % (sT[0], g.sHR, 2 * 28672))
    I('buffer_load_dwordx4 %s, v%d, s[%d:%d], s%d offen sc1' % (vr(g.vHK, 4), vL16, g.sWS, g.sWS + 3, g.sHR), tag='hr')
    I('buffer_load_dwordx4 %s, v%d, s[%d:%d], s%d offen sc1' % (vr(g.vHK + 4, 4), vL16, g.sWS, g.sWS + 3, sT[0]), tag='hr')
    for m in range(8): issue(m)
    I('s_lshl_b32 s%d, s%d, 8' % (sT[6], g.sRB128)); I('s_add_u32 s%d, s%d, %d' % (sT[6], sT[6], CNT + 8192 + 128))
    a.wait(vm='cst1'); I('s_barrier'); sig_add(g, sT[6])
    pf.stamp('sigC')
    for m in range(8, LA): issue(m)
    I('v_add_u32 v%d, 128, v%d' % (g.vPA, g.vPA))
    def acc(p, c): return ACC + 32 * p + 16 * c
    def xwrite(p):
        return ['ds_write_b128 v%d, %s offset:%d' % (g.vRW[t - 1], vr(acc(p, t & 1) + 8 * (t >> 1) + 4 * q, 4), 24576 * p + 1024 * q) for t in range(1, 4) for q in range(2)]
    def xfinish(p, pk):
        O = g.vHK + 4 * p; b = acc(p, 0)
        ops = [((lambda t=t, q=q: I('ds_read_b128 %s, v%d offset:%d' % (vr(P0 + 8 * t + 4 * q, 4), g.vRR, 24576 * p + 2048 * t + 1024 * q), tag='xr%d' % p)), 6) for t in range(3) for q in range(2)]
        ops += ['v_permlane32_swap_b32 v%d, v%d' % (O + k, O + 2 + k) for k in range(2)]
        for k in range(4): ops += ['v_lshlrev_b32 v%d, 16, v%d' % (RS + 2 * k, O + k), 'v_and_b32 v%d, 0xffff0000, v%d' % (RS + 2 * k + 1, O + k)]
        if pk:
            ops += ['v_pk_add_f32 %s, %s, %s' % (vr(b + v, 2), vr(b + v, 2), vr(RS + v, 2)) for v in range(0, 8, 2)]
            ops += [((lambda: a.wait(lg='xr%d' % p)), 3)]
            for v in range(0, 8, 2): ops += ['v_pk_add_f32 %s, %s, %s' % (vr(b + v, 2), vr(b + v, 2), vr(P0 + v, 2)), 'v_pk_add_f32 %s, %s, %s' % (vr(P0 + 8 + v, 2), vr(P0 + 8 + v, 2), vr(P0 + 16 + v, 2))]
            ops += ['v_pk_add_f32 %s, %s, %s' % (vr(b + v, 2), vr(b + v, 2), vr(P0 + 8 + v, 2)) for v in range(0, 8, 2)]
        else:
            ops += ['v_add_f32 v%d, v%d, v%d' % (b + v, b + v, RS + v) for v in range(8)]
            ops += [((lambda: a.wait(lg='xr%d' % p)), 3)]
            for v in range(8): ops += ['v_add_f32 v%d, v%d, v%d' % (b + v, b + v, P0 + v), 'v_add_f32 v%d, v%d, v%d' % (P0 + 8 + v, P0 + 8 + v, P0 + 16 + v)]
            ops += ['v_add_f32 v%d, v%d, v%d' % (b + v, b + v, P0 + 8 + v) for v in range(8)]
        ops += ['v_cvt_pk_bf16_f32 v%d, v%d, v%d' % (O + k, b + 2 * k, b + 2 * k + 1) for k in range(4)]
        ops += ['s_add_u32 s%d, s%d, %d' % (sT[1], g.sOB, 64 * 896 * p), 's_nop 0']
        ops += ['v_permlane32_swap_b32 v%d, v%d' % (O + k, O + 2 + k) for k in range(2)]
        ops += [((lambda: I('buffer_store_dwordx4 %s, v%d, s[%d:%d], s%d offen' % (vr(O, 4), g.vXo, g.sOUT, g.sOUT + 3, sT[1]))), 16)]
        return ops
    S = Side(a)
    P4 = cfg.get('p4', 22)
    for m in range(56):
        p, j = m // 28, m % 28
        if m == max(28 - LA, P4 - 8): I('buffer_load_dword v%d, v%d, s[%d:%d], 0 offen sc1' % (g.vPoll, g.vPA, g.sWS, g.sWS + 3), tag='p4e')
        if m == P4:
            poll(g, 'kf_p4', g.vPA, 1, 14, g.sWS, early='p4e')
            for mm in range(28, m + LA): issue(mm)
        if m == 29: S.add(xwrite(0))
        if m == 36:
            S.drain(); a.wait(lg=0); I('s_barrier'); S.add(xfinish(0, False))
        if g.wd_wait.get(j) and p == 0: a.wait(vm=['k%d' % m, 'wd%d' % j])
        else: a.wait(vm='k%d' % m)
        if m % 14 == 0: pf.stamp('k%d' % m)
        for c in range(2):
            f, r = g.wd_regs[j][c]
            I(MF(vr(acc(p, c), 16), vr(r, 4, f), ar(AB + 4 * (m % NR), 4), '0' if j == 0 else vr(acc(p, c), 16)))
            if c == 0:
                if m + LA < 56 and (m + LA < 28 or m >= P4): issue(m + LA)
                if g.wdq2:
                    jj, cc = g.wdq2.pop(0); wd_load(g, jj, cc); a.vm[-1] = 'wd%d' % jj; g.wd_wait[jj] = True
            else: S.emit(24)
    S.drain()
    pf.stamp('gemmD')
    for op in xwrite(1): I(op)
    a.wait(lg=0); I('s_barrier')
    S.add(xfinish(1, True)); S.drain()
    pf.stamp('out')
    if PROF: I('s_waitcnt vmcnt(0)')
    pf.dump(g.sWS)
    I('s_endpgm')

def pack_wd(g):
    a = g.a; I = a.I; sT = g.sT; sW = g.sW; vL16 = g.vL16
    a.label('kf_pack'); a.reset_counts()
    I('s_bfe_u32 s%d, s2, 0x30003' % sT[5]); I('s_and_b32 s%d, s2, 1' % sT[0]); I('s_lshl_b32 s%d, s%d, 3' % (sT[0], sT[0])); I('s_add_u32 s%d, s%d, s%d' % (sT[5], sT[5], sT[0]))
    I('s_and_b32 s%d, s2, 4' % sT[0]); I('s_lshl_b32 s%d, s%d, 2' % (sT[0], sT[0])); I('s_add_u32 s%d, s%d, s%d' % (sT[5], sT[5], sT[0]))
    I('s_cmp_ge_u32 s%d, 28' % sT[5]); a.branch('s_cbranch_scc1 kf_end')
    I('s_lshl_b32 s%d, s%d, 2' % (sT[0], sT[5])); I('s_add_u32 s%d, s%d, s%d' % (sT[0], sT[0], sW))
    I('s_mul_i32 s%d, s%d, 14336' % (sT[1], sT[0])); I('s_mul_i32 s%d, s%d, 14336' % (sT[2], sW))
    for i in range(14):
        if i % 4 == 0:
            I('s_add_u32 s%d, s%d, %d' % (sT[3], sT[1], 1024 * i)); I('s_add_u32 m0, s%d, %d' % (sT[2], 1024 * i))
        I('buffer_load_dwordx4 v%d, s[%d:%d], s%d offen offset:%d lds' % (vL16, g.sD, g.sD + 3, sT[3], 1024 * (i % 4)))
    I('v_lshrrev_b32 v3, 5, v1'); I('v_bfe_u32 v4, v1, 2, 2'); I('v_lshl_add_u32 v4, v3, 2, v4'); I('v_mul_u32_u24 v4, 896, v4')
    I('v_bfe_u32 v5, v1, 4, 1'); I('v_lshl_add_u32 v4, v5, 5, v4'); I('v_and_b32 v5, 3, v1'); I('v_lshl_add_u32 v4, v5, 3, v4')
    I('v_add_u32 v4, s%d, v4' % sT[2])
    I('s_lshl_b32 s%d, s%d, 10' % (sT[1], sT[0])); I('s_add_u32 s%d, s%d, %d' % (sT[1], sT[1], WDP))
    I('s_mul_i32 s%d, s%d, 37' % (sT[5], sT[5])); I('s_lshr_b32 s%d, s%d, 8' % (sT[5], sT[5]))
    a.wait(vm=0)
    B0 = 80
    for ct in range(18):
        if ct < 14: trfrag(a, B0 + 4 * ct, 4, 64 * ct, 't%d' % ct, d2=8 * 896)
        if ct >= 4:
            cc = ct - 4
            a.wait(lg='t%d' % cc)
            I('buffer_store_dwordx4 %s, v%d, s[%d:%d], s%d offen sc1' % (vr(B0 + 4 * cc, 4), vL16, g.sWS, g.sWS + 3, sT[1]), tag='wst')
            I('s_add_u32 s%d, s%d, %d' % (sT[1], sT[1], 112 * 1024))
    signal(g, 5, sT[5], 'wst')
    if PROF:
        nm = list(g.pf.names); g.pf.n = 14; g.pf.stamp('x'); g.pf.names = nm[:-1]; g.pf.n = len(nm) - 1; g.pf.dump(g.sWS)

def gen_F(a, cfg=None):
    cfg = cfg or {}
    name = KN + '_kernel'
    head(a, name)
    g = setup(a, cfg)
    homes = [('v', 140 + 4 * k) for k in range(3)] + [('a', 224 + 4 * k) for k in range(8)] + [('v', 156 + 4 * k) for k in range(19)] + [('a', 4 * k) for k in range(26)]
    g.n_wd1 = 15
    g.wd_regs = [(homes[2 * j], homes[2 * j + 1]) for j in range(28)]
    g.wd_wait = {}
    g.act_base, g.act_ring = 104, 15
    phase_A(g); phase_B(g); phase_C(g); phase_D(g); pack_wd(g)
    a.label('kf_end')
    a.I('s_endpgm')
    a.raw('kf_pad:\n.fill (49664 - (kf_pad - %s)) / 4, 4, 0xbf800000' % name)
    return (name, 256, 256, 163840, 512, 102, 256)
```

```python
from gen_common import *
from types import SimpleNamespace as NS

CNT = KVACC + (128 << 10)
SPIN_MAX = 1 << 22
V3 = ('v_fma_f32', 'v_cvt_pk_bf16_f32', 'v_add3_u32', 'v_lshl_add_u32', 'v_bfe_u32', 'v_cndmask_b32', 'v_mul_lo_u32', 'v_accvgpr_read_b32', 'v_accvgpr_write_b32')

def MF(d, A, B, C): return 'v_mfma_f32_32x32x16_bf16 %s, %s, %s, %s' % (d, A, B, C)

def cost(o):
    if isinstance(o, tuple): return o[1]
    op = o.split()[0]
    if op in TRANS: return 8.4
    if op in V3 or op.startswith('v_pk'): return 5.3
    if op.startswith('v_'): return 4.2 if '0x' not in o else 5.3
    if op.startswith('ds_'): return 5.3
    if op.startswith('buffer_'): return 16
    return 3.0

class Side:
    def __init__(self, a): self.a = a; self.q = []; self.credit = 0.0; self.carry = 8; self.tol = 2
    def add(self, ops): self.q += list(ops)
    def _one(self):
        o = self.q.pop(0)
        if isinstance(o, tuple): o[0]()
        else: self.a.I(o)
    def emit(self, budget):
        self.credit = min(self.credit + budget, budget + self.carry)
        while self.q and cost(self.q[0]) <= self.credit + self.tol:
            self.credit -= cost(self.q[0]); self._one()
    def drain(self):
        while self.q: self._one()
        self.credit = 0.0

def poll(g, lbl, addr_v, lanes_mask, target, srdreg, early=None):
    a = g.a; I = a.I
    saved = list(a.vm)
    I('s_mov_b32 s%d, 0' % g.sSPIN)
    if early:
        a.wait(vm=early)
        a.branch('s_branch %s_chk' % lbl)
    a.label(lbl)
    I('buffer_load_dword v%d, v%d, s[%d:%d], 0 offen sc1' % (g.vPoll, addr_v, srdreg, srdreg + 3), counted=False)
    I('s_add_u32 s%d, s%d, 1' % (g.sSPIN, g.sSPIN))
    I('s_waitcnt vmcnt(0)')
    a.label(lbl + '_chk')
    I('v_cmp_le_u32 vcc, %s, v%d' % (target, g.vPoll))
    I('s_cmp_ge_u32 s%d, %d' % (g.sSPIN, SPIN_MAX))
    a.branch('s_cbranch_scc1 %s_ok' % lbl)
    I('s_and_b32 s%d, vcc_lo, %d' % (g.sT[7], lanes_mask))
    I('s_cmp_eq_u32 s%d, %d' % (g.sT[7], lanes_mask))
    a.branch('s_cbranch_scc1 %s_ok' % lbl)
    I('s_sleep %d' % g.cfg.get('sleep', 1))
    a.branch('s_branch %s' % lbl)
    a.label(lbl + '_ok')
    a.vm = saved

def sig_add(g, off_s):
    I = g.a.I
    I('v_mov_b32 v2, 1'); I('v_mov_b32 v3, 0')
    I('s_mov_b64 exec, 1')
    I('buffer_atomic_add v2, v3, s[%d:%d], s%d offen sc1' % (g.sKZ, g.sKZ + 3, off_s), tag='sig')
    I('s_mov_b64 exec, -1')

def signal(g, kind, idx_s, wait_tag):
    a = g.a; I = a.I
    I('s_lshl_b32 s%d, s%d, 8' % (g.sT[6], idx_s)); I('s_add_u32 s%d, s%d, %d' % (g.sT[6], g.sT[6], CNT + 4096 * kind))
    a.wait(vm=wait_tag)
    I('s_barrier')
    sig_add(g, g.sT[6])

def trfrag(a, dst, addr, off, tag, f='v', d2=256):
    a.I('ds_read_b64_tr_b16 %s, v%d offset:%d' % (vr(dst, 2, f), addr, off), tag=tag)
    a.I('ds_read_b64_tr_b16 %s, v%d offset:%d' % (vr(dst + 2, 2, f), addr, off + d2), tag=tag)

def setup(a, cfg):
    g = NS(a=a, cfg=cfg); I = a.I
    g.pf = Prof(a, 0, vreg=255, s=100)
    (g.sX, g.sWq, g.sP0, g.sP1, g.sPO, g.sD, g.sOUT, g.sDBG, g.sWS, g.sKZ, g.sDZ) = 24, 28, 32, 36, 40, 44, 48, 52, 56, 60, 64
    (g.sW, g.sRBA, g.sH, g.sRHO, g.sRB64, g.sCS, g.sRB128, g.sFS, g.sR4) = 68, 69, 70, 71, 72, 73, 74, 75, 76
    g.sT = [77, 78, 79, 80, 81, 82, 83, 84]
    g.sONE, g.sEPS, g.sL2E = 85, 86, 87
    g.sMV28, g.sHI = 88, 90
    g.sPA, g.sPC = 92, 93
    g.sSPIN = 94; g.sPT = 95
    g.sQ = [96, 97, 98, 99]
    g.S4 = list(range(4, 24))
    g.WQL, g.WKL, g.WVL = 0, 51200, 79872
    g.STATL, g.CSL, g.CSQ2L = 28672, 29696, 31232
    g.XRL, g.KVRL, g.REDL, g.HL, g.STL = 108544, 32768, 0, 0, 114688
    V = Alloc(232, 255)
    g.vHK = V.get(8, 4); g.vL16 = V.get()
    g.vLo = [g.vL16, V.get(), V.get(), V.get()]
    g.vRW = [V.get() for _ in range(3)]; g.vRR = V.get()
    g.vPoll, g.vPA, g.vPT = V.get(), V.get(), V.get()
    g.vXo = V.get(); g.vCSg = V.get(2, 2)
    sT = g.sT
    I('s_cmp_ge_u32 s2, 256'); a.branch('s_cbranch_scc1 kf_end')
    g.pf.stamp('start')
    load_args(a)
    I('s_getpc_b64 s[%d:%d]' % (g.sMV28, g.sMV28 + 1))
    I('v_lshrrev_b32 v2, 6, v0'); I('v_and_b32 v1, 63, v0')
    I('s_lshr_b32 s%d, s2, 3' % sT[1]); I('s_mul_i32 s%d, s%d, 12' % (sT[2], sT[1]))
    I('v_mul_u32_u24 v3, 3, v2'); I('v_add3_u32 v3, v3, v1, s%d' % sT[2]); I('v_lshlrev_b32 v3, 7, v3')
    I('s_mov_b64 exec, 7')
    I('global_load_dword v%d, v3, s[%d:%d]' % (g.vPoll, g.sMV28, g.sMV28 + 1), tag='code')
    I('s_mov_b64 exec, -1')
    I('v_readfirstlane_b32 s%d, v2' % g.sW)
    I('s_and_b32 s%d, s2, 7' % sT[0])
    I('s_lshr_b32 s%d, s%d, 1' % (sT[2], sT[0])); I('s_lshl_b32 s%d, s%d, 2' % (sT[2], sT[2]))
    I('s_and_b32 s%d, s%d, 3' % (sT[3], sT[1])); I('s_add_u32 s%d, s%d, s%d' % (g.sRBA, sT[2], sT[3]))
    I('s_and_b32 s%d, s%d, 1' % (sT[4], sT[0])); I('s_lshr_b32 s%d, s%d, 2' % (sT[5], sT[1]))
    I('s_lshl_b32 s%d, s%d, 3' % (g.sH, sT[4])); I('s_add_u32 s%d, s%d, s%d' % (g.sH, g.sH, sT[5]))
    I('s_lshl_b32 s%d, s%d, 1' % (g.sRHO, sT[3])); I('s_add_u32 s%d, s%d, s%d' % (g.sRHO, g.sRHO, sT[5]))
    I('s_sub_u32 s%d, s%d, 7' % (sT[6], g.sRHO)); I('s_cmp_ge_u32 s%d, 7' % g.sRHO); I('s_cselect_b32 s%d, s%d, s%d' % (g.sRHO, sT[6], g.sRHO))
    I('s_and_b32 s%d, s%d, 3' % (sT[2], sT[0])); I('s_lshr_b32 s%d, s%d, 2' % (sT[3], sT[0]))
    I('s_lshr_b32 s%d, s%d, 2' % (sT[4], sT[1])); I('s_and_b32 s%d, s%d, 3' % (sT[5], sT[1]))
    I('s_mul_i32 s%d, s%d, 86' % (sT[6], sT[1])); I('s_lshr_b32 s%d, s%d, 8' % (sT[6], sT[6]))
    I('s_mul_i32 s%d, s%d, 3' % (sT[7], sT[6])); I('s_sub_u32 s%d, s%d, s%d' % (sT[7], sT[1], sT[7]))
    I('s_lshl_b32 s%d, s%d, 2' % (g.sFS, sT[2])); I('s_mul_i32 s%d, s%d, 3' % (g.sCS, sT[2])); I('s_add_u32 s%d, s%d, 2' % (g.sCS, g.sCS))
    I('s_lshl_b32 s%d, s%d, 5' % (g.sRB64, sT[2])); I('s_mul_i32 s%d, s%d, 24' % (g.sR4, sT[2])); I('s_add_u32 s%d, s%d, 16' % (g.sR4, g.sR4))
    I('s_cmp_lt_u32 s%d, 2' % sT[2])
    I('s_cselect_b32 s%d, s%d, s%d' % (sT[4], sT[4], sT[6])); I('s_cselect_b32 s%d, s%d, s%d' % (sT[5], sT[5], sT[7]))
    I('s_cselect_b32 s%d, s%d, s%d' % (g.sFS, g.sFS, g.sCS)); I('s_cselect_b32 s%d, s%d, s%d' % (sT[6], g.sRB64, g.sR4))
    I('s_cselect_b32 s%d, 32, 24' % sT[7])
    I('s_add_u32 s%d, s%d, s%d' % (g.sFS, g.sFS, sT[5]))
    I('s_and_b32 s%d, s%d, 7' % (sT[4], sT[4])); I('s_and_b32 s%d, s%d, 3' % (g.sR4, sT[4]))
    I('s_lshl_b32 s%d, s%d, 3' % (g.sRB128, sT[3])); I('s_add_u32 s%d, s%d, s%d' % (g.sRB128, g.sRB128, sT[4]))
    I('s_cmp_ge_u32 s%d, s%d' % (sT[1], sT[7])); I('s_cselect_b32 s%d, 0, s%d' % (sT[5], sT[1]))
    I('s_mul_i32 s%d, s%d, 112' % (sT[4], sT[3])); I('s_add_u32 s%d, s%d, s%d' % (sT[4], sT[4], sT[6])); I('s_add_u32 s%d, s%d, s%d' % (sT[4], sT[4], sT[5]))
    I('s_mul_i32 s%d, s%d, 9363' % (g.sRB64, sT[4])); I('s_lshr_b32 s%d, s%d, 16' % (g.sRB64, g.sRB64))
    I('s_mul_i32 s%d, s%d, 7' % (sT[5], g.sRB64)); I('s_sub_u32 s%d, s%d, s%d' % (g.sCS, sT[4], sT[5]))
    I('s_mul_i32 s%d, s2, 9363' % g.sPA); I('s_lshr_b32 s%d, s%d, 16' % (g.sPA, g.sPA))
    I('s_mul_i32 s%d, s%d, 7' % (g.sPC, g.sPA)); I('s_sub_u32 s%d, s2, s%d' % (g.sPC, g.sPC))
    return g

def gu_load(g, j, c):
    r = j % 7
    g.a.I('buffer_load_dwordx4 %s, v%d, s[%d:%d], s%d offen offset:%d sc1' % (ar(112 * c + 4 * j, 4), g.vLo[2 * c + (r >= 4)], g.sWS, g.sWS + 3, g.sQ[j // 7], 1024 * (r % 4)), tag='gu')
def wd_load(g, j, c):
    r = j % 7; f, reg = g.wd_regs[j][c]
    g.a.I('buffer_load_dwordx4 %s, v%d, s[%d:%d], s%d offen offset:%d sc1' % (vr(reg, 4, f), g.vLd[2 * c + (r >= 4)], g.sWS, g.sWS + 3, g.sQD[j // 7], 1024 * (r % 4)), tag='wd')

def phase_A(g):
    a = g.a; I = a.I; sT = g.sT; pf = g.pf; cfg = g.cfg
    sW, sH, sRBA = g.sW, g.sH, g.sRBA
    XF, ACCK, ACCV, ACCQ, WB = 8, 120, 136, 152, 168
    VA = Alloc(200, 232)
    vONE = VA.get(4, 4)
    vX = [VA.get() for _ in range(4)]; vW = VA.get()
    vXR = [VA.get() for _ in range(4)]
    vT, vTc, vTo = VA.get(), VA.get(), VA.get()
    vS1a, vS1b, vS2a, vS2b = [VA.get() for _ in range(4)]
    vRN = VA.get(2, 2); vCS = VA.get(2, 2)
    vN4, vCA, vSA = VA.get(), VA.get(), VA.get()
    vXS = [VA.get() for _ in range(4)]
    vRed = vX[0:2]; vKW = vX[2]
    vPT = [g.vHK, g.vHK + 1, g.vHK + 2, g.vHK + 3]; vPD = g.vHK + 4
    aPK = 0
    LAH = cfg.get('lah', 2)
    xslot = {j: j % 3 for j in range(7)}
    assert LAH == 2
    aC0, aC1 = 224, 240
    vL16 = g.vL16
    I('v_lshrrev_b32 v2, 3, v1'); I('v_lshrrev_b32 v3, 4, v1'); I('v_and_b32 v4, 7, v1')
    I('v_xor_b32 v5, v4, v3'); I('v_lshlrev_b32 v5, 4, v5')
    I('v_mul_u32_u24 v6, 896, v2'); I('v_add_u32 v%d, v6, v5' % vX[0])
    I('v_xor_b32 v%d, 64, v%d' % (vX[1], vX[0])); I('v_add_u32 v%d, 7168, v%d' % (vX[1], vX[1]))
    I('v_add_u32 v%d, 14336, v%d' % (vX[2], vX[0])); I('v_add_u32 v%d, 14336, v%d' % (vX[3], vX[1]))
    I('v_lshrrev_b32 v5, 2, v1'); I('v_and_b32 v6, 3, v1')
    I('v_mul_u32_u24 v7, 2688, v5'); I('v_lshl_add_u32 v%d, v6, 4, v7' % vW)
    I('v_lshlrev_b32 v%d, 4, v1' % vL16)
    I('v_and_b32 v5, 15, v1'); I('v_lshlrev_b32 v5, 4, v5'); I('v_lshl_add_u32 v5, v3, 14, v5')
    for i in range(4): I('v_mov_b32 v%d, 0' % (vONE + i))
    sXB, sWB, sXRB, sCL, sCC, sW10, sW12 = g.sQ[0], g.sQ[1], g.sQ[2], g.sQ[3], 3, g.sSPIN, g.sPT
    I('s_lshl_b32 s%d, s%d, 10' % (sW10, sW)); I('s_lshl_b32 s%d, s%d, 12' % (sW12, sW))
    I('s_lshl_b32 s%d, s%d, 2' % (sT[0], sRBA)); I('s_add_u32 s%d, s%d, s%d' % (sT[0], sT[0], sW))
    I('s_mul_i32 s%d, s%d, %d' % (sXB, sT[0], 32 * 896))
    I('s_mul_i32 s%d, s%d, 56' % (sWB, sH)); I('s_mul_i32 s%d, s%d, %d' % (sT[1], sW, 16 * 2688)); I('s_add_u32 s%d, s%d, s%d' % (sWB, sWB, sT[1]))
    I('s_mul_i32 s%d, s%d, 12288' % (sXRB, sW)); I('s_add_u32 s%d, s%d, %d' % (sXRB, sXRB, g.XRL))
    I('s_mov_b32 s%d, s%d' % (sCL, g.sRHO)); I('s_mov_b32 s%d, s%d' % (sCC, g.sRHO))
    I('s_waitcnt lgkmcnt(0)')
    pf.stamp('args')
    srd(a, g.sX, 4, 2048 * 896); srd(a, g.sWq, 6, 448 * 2688)
    def adv_ops(s): return ['s_add_u32 s%d, s%d, 1' % (s, s), 's_cmp_eq_u32 s%d, 7' % s, 's_cselect_b32 s%d, 0, s%d' % (s, s)]
    def adv(s):
        for o in adv_ops(s): I(o)
    def grp(ops):
        def f():
            for o in ops:
                if callable(o): o()
                else: I(o)
        return f
    def a_groups(j):
        G = []
        pre = ['s_mul_i32 s%d, s%d, %d' % (sT[1], sCL, 64 * 2688), 's_lshl_b32 s%d, s%d, 12' % (sT[2], sCL), 's_add_u32 s%d, s%d, s%d' % (sT[2], sT[2], sW10),
               's_add_u32 m0, s%d, %d' % (sT[2], g.WKL - 896), 's_add_u32 s%d, s%d, s%d' % (sT[1], sT[1], sWB)]
        G.append(grp(pre + [lambda: I('buffer_load_dwordx4 v%d, s[%d:%d], s%d offen offset:896 lds' % (vW, g.sWq, g.sWq + 3, sT[1]), tag='c%d' % j)]))
        G.append(grp(['s_add_u32 m0, s%d, %d' % (sT[2], g.WVL - 1792), 's_lshl_b32 s%d, s%d, 7' % (sT[0], sCL),
                      lambda: I('buffer_load_dwordx4 v%d, s[%d:%d], s%d offen offset:1792 lds' % (vW, g.sWq, g.sWq + 3, sT[1]), tag='c%d' % j)]))
        for q in range(4):
            m = 's_add_u32 m0, s%d, %d' % (sXRB, xslot[j] * 4096 + q * 1024)
            mid = ['s_add_u32 s%d, s%d, s%d' % (sT[0], sT[0], sXB)] if q == 0 else (adv_ops(sCL) if q == 1 else [])
            G.append(grp([m] + mid + [lambda q=q: I('buffer_load_dwordx4 v%d, s[%d:%d], s%d offen lds' % (vX[q], g.sX, g.sX + 3, sT[0]), tag='c%d' % j)]))
        if j >= cfg.get('wq0', 7):
            G.append(grp(['s_add_u32 m0, s%d, %d' % (sT[2], g.WQL), 's_nop 0',
                          lambda: I('buffer_load_dwordx4 v%d, s[%d:%d], s%d offen lds' % (vW, g.sWq, g.sWq + 3, sT[1]), tag='wq')]))
        return G
    def a_loads(j):
        for f in a_groups(j): f()
    def q_groups(n):
        return [grp(['s_mul_i32 s%d, s%d, %d' % (sT[1], sCL, 64 * 2688), 's_lshl_b32 s%d, s%d, 12' % (sT[2], sCL), 's_add_u32 s%d, s%d, s%d' % (sT[2], sT[2], sW10),
                     's_add_u32 m0, s%d, %d' % (sT[2], g.WQL), 's_add_u32 s%d, s%d, s%d' % (sT[1], sT[1], sWB),
                     lambda: I('buffer_load_dwordx4 v%d, s[%d:%d], s%d offen lds' % (vW, g.sWq, g.sWq + 3, sT[1]), tag='wq')] + adv_ops(sCL)) for _ in range(n)]
    a_loads(0)
    srd(a, g.sWS, 22, WS_BYTES); srd(a, g.sKZ, 22, WS_BYTES)
    srd(a, g.sDZ, 20, 256)
    I('s_cmp_eq_u32 s%d, 0' % sRBA); I('s_cselect_b32 s%d, %s, 0' % (g.sKZ + 2, hex(WS_BYTES))); I('s_cselect_b32 s%d, 256, 0' % (g.sDZ + 2))
    srd(a, g.sD, 16, 1792 * 896); srd(a, g.sOUT, 18, 2048 * 896); srd(a, g.sDBG, 20, 256); srd(a, g.sPO, 22, WS_BYTES)
    I('s_cmp_lt_u32 s%d, 28' % g.sPA)
    for k in range(2):
        I('s_cselect_b32 s%d, s%d, s%d' % (g.sP0 + k, 12 + k, 8 + k)); I('s_cselect_b32 s%d, s%d, s%d' % (g.sP1 + k, 14 + k, 8 + k))
    sel(a, g.sP0 + 2, 448 * 3584, 448 * 896)
    I('s_mov_b32 s%d, 0x20000' % (g.sP0 + 3)); I('s_mov_b32 s%d, 0x20000' % (g.sP1 + 3))
    I('s_cmp_lt_u32 s%d, 32' % g.sPA)
    I('s_cselect_b32 s%d, s%d, 0' % (g.sP0 + 2, g.sP0 + 2)); I('s_mov_b32 s%d, s%d' % (g.sP1 + 2, g.sP0 + 2)); I('s_cselect_b32 s%d, %s, 0' % (g.sPO + 2, hex(WS_BYTES)))
    I('s_lshl_b32 s%d, s%d, 12' % (sT[3], sH)); I('s_add_u32 s%d, s%d, s%d' % (sT[3], sT[3], sW10)); I('s_add_u32 s%d, s%d, %d' % (sT[3], sT[3], KVACC))
    I('buffer_store_dwordx4 v[%d:%d], v%d, s[%d:%d], s%d offen sc0 sc1' % (vONE, vONE + 3, vL16, g.sKZ, g.sKZ + 3, sT[3]), tag='zero')
    I('s_lshl_b32 s%d, s%d, 8' % (sT[3], sH)); I('s_add_u32 s%d, s%d, s%d' % (sT[3], sT[3], sW12)); I('s_add_u32 s%d, s%d, %d' % (sT[3], sT[3], CNT))
    I('s_mov_b32 exec_hi, 0')
    I('buffer_store_dwordx4 v[%d:%d], v5, s[%d:%d], s%d offen sc0 sc1' % (vONE, vONE + 3, g.sKZ, g.sKZ + 3, sT[3]), tag='zero')
    I('s_lshl_b32 s%d, s%d, 10' % (sT[3], sH)); I('s_lshl_b32 s%d, s%d, 8' % (sT[4], sW)); I('s_add_u32 s%d, s%d, s%d' % (sT[3], sT[3], sT[4])); I('s_add_u32 s%d, s%d, %d' % (sT[3], sT[3], CSGU))
    I('s_mov_b32 exec_lo, 0xffff')
    I('buffer_store_dwordx4 v[%d:%d], v%d, s[%d:%d], s%d offen sc0 sc1' % (vONE, vONE + 3, vL16, g.sKZ, g.sKZ + 3, sT[3]), tag='zero')
    I('s_mov_b64 exec, -1')
    for d, sr_ in zip(g.S4[0:7], (sXB, sWB, sXRB, sCL, sCC, sW10, sW12)): I('s_mov_b32 s%d, s%d' % (d, sr_))
    sXB, sWB, sXRB, sCL, sCC, sW10, sW12 = g.S4[0:7]
    sPS = g.S4[7:11]; sPOs = g.S4[11:15]; sPSG = g.S4[15]; sPCS = g.S4[16]
    if cfg.get('c1early'): a_loads(1)
    A_, C_ = g.sPA, g.sPC
    I('s_lshl_b32 s%d, s%d, 2' % (sT[4], C_)); I('s_add_u32 s%d, s%d, s%d' % (sT[4], sT[4], sW))
    I('s_mul_i32 s%d, s%d, %d' % (sT[5], sT[4], 16 * 3584)); I('s_lshl_b32 s%d, s%d, 7' % (sT[6], A_)); I('s_add_u32 s%d, s%d, s%d' % (sPS[0], sT[5], sT[6]))
    I('s_mul_i32 s%d, s%d, 112' % (sT[5], A_)); I('s_add_u32 s%d, s%d, s%d' % (sT[5], sT[5], sT[4]))
    I('s_lshl_b32 s%d, s%d, 10' % (sT[5], sT[5])); I('s_add_u32 s%d, s%d, %d' % (sPOs[0], sT[5], GUP))
    I('s_lshr_b32 s%d, s%d, 1' % (sPSG, A_)); I('s_lshl_b32 s%d, s%d, 8' % (sPSG, sPSG)); I('s_add_u32 s%d, s%d, %d' % (sPSG, sPSG, CNT + 3 * 4096))
    I('s_sub_u32 s%d, s%d, 28' % (sT[4], A_)); I('s_lshl_b32 s%d, s%d, 2' % (sT[4], sT[4])); I('s_add_u32 s%d, s%d, s%d' % (sT[4], sT[4], sW))
    I('s_mul_i32 s%d, s%d, %d' % (sT[5], sT[4], 28 * 896)); I('s_lshl_b32 s%d, s%d, 7' % (sT[6], C_)); I('s_add_u32 s%d, s%d, s%d' % (sPS[1], sT[5], sT[6]))
    I('s_lshl_b32 s%d, s%d, 16' % (sT[5], C_)); I('s_lshl_b32 s%d, s%d, 11' % (sT[6], sT[4]))
    I('s_add_u32 s%d, s%d, s%d' % (sT[5], sT[5], sT[6])); I('s_add_u32 s%d, s%d, %d' % (sPOs[1], sT[5], WOP))
    I('s_lshl_b32 s%d, s%d, 8' % (sT[5], C_)); I('s_add_u32 s%d, s%d, %d' % (sT[5], sT[5], CNT + 4 * 4096))
    I('s_cmp_lt_u32 s%d, 32' % A_); I('s_cselect_b32 s%d, s%d, 0x20000000' % (sT[5], sT[5]))
    I('s_cmp_lt_u32 s%d, 28' % A_)
    I('s_cselect_b32 s%d, s%d, s%d' % (sPS[0], sPS[0], sPS[1])); I('s_cselect_b32 s%d, s%d, s%d' % (sPOs[0], sPOs[0], sPOs[1]))
    I('s_cselect_b32 s%d, s%d, s%d' % (sPSG, sPSG, sT[5]))
    I('s_mul_i32 s%d, s%d, 512' % (sPCS, A_)); I('s_cselect_b32 s%d, s%d, 0x20000000' % (sPCS, sPCS))
    sel(a, sT[3], 3584, 896); sel(a, sT[4], 8 * 3584, 8 * 896); I('s_cselect_b32 s%d, 0, %d' % (sT[5], 16 * 896))
    sel(a, sT[6], 28672, 1024); sel(a, sT[7], 57344, 32768)
    sel(a, g.sONE, 16 * 128, 32); sel(a, g.sEPS, 8 * 128, 14 * 128); I('s_cselect_b32 s%d, 32, %d' % (g.sL2E, 8 * 128))
    I('s_add_u32 s%d, s%d, s%d' % (sPS[1], sPS[0], sT[4])); I('s_add_u32 s%d, s%d, s%d' % (sPS[2], sPS[0], sT[5])); I('s_add_u32 s%d, s%d, s%d' % (sPS[3], sPS[2], sT[4]))
    I('s_add_u32 s%d, s%d, s%d' % (sPOs[1], sPOs[0], sT[6])); I('s_add_u32 s%d, s%d, s%d' % (sPOs[2], sPOs[0], sT[7])); I('s_add_u32 s%d, s%d, s%d' % (sPOs[3], sPOs[2], sT[6]))
    I('v_mul_lo_u32 v5, v2, s%d' % sT[3]); I('v_lshl_add_u32 v%d, v4, 4, v5' % vPD)
    def flag_set():
        I('v_mov_b32 v5, 1'); I('s_lshl_b32 s%d, s%d, 2' % (sT[4], sH)); I('v_mov_b32 v6, s%d' % sT[4])
        I('s_mov_b64 exec, 1')
        I('buffer_atomic_add v5, v6, s[%d:%d], 0 offen sc1' % (g.sDZ, g.sDZ + 3), tag='flag')
        I('s_mov_b64 exec, -1')
        I('s_cmp_eq_u32 s%d, 0' % sW); I('s_cselect_b32 s%d, %s, 0' % (g.sKZ + 2, hex(WS_BYTES)))
    I('v_lshrrev_b32 v2, 5, v1'); I('v_bfe_u32 v3, v1, 4, 1'); I('v_bfe_u32 v4, v1, 2, 2'); I('v_and_b32 v5, 3, v1')
    I('s_mul_i32 s%d, s%d, 4608' % (g.sPT, sW)); I('s_add_u32 s%d, s%d, %d' % (g.sPT, g.sPT, g.KVRL))
    I('v_mul_lo_u32 v6, v3, s%d' % g.sONE); I('v_mul_lo_u32 v7, v2, s%d' % g.sEPS); I('v_add3_u32 v6, v6, v7, s%d' % g.sPT)
    I('v_lshl_add_u32 v6, v4, 7, v6'); I('v_lshl_add_u32 v%d, v5, 3, v6' % vPT[0])
    I('v_add_u32 v%d, s%d, v%d' % (vPT[1], g.sL2E, vPT[0])); I('v_add_u32 v%d, 64, v%d' % (vPT[2], vPT[0])); I('v_add_u32 v%d, 64, v%d' % (vPT[3], vPT[1]))
    I('v_lshlrev_b32 v6, 9, v2'); I('v_lshl_add_u32 v6, v4, 6, v6'); I('v_lshl_add_u32 v6, v5, 3, v6')
    I('v_lshl_add_u32 v%d, v3, 5, v6' % vT); I('v_add_u32 v%d, %d, v%d' % (vT, g.WKL, vT))
    I('v_and_b32 v6, 31, v1'); I('v_lshlrev_b32 v%d, 2, v6' % vN4)
    I('v_lshrrev_b32 v7, 3, v6'); I('v_lshlrev_b32 v7, 10, v7')
    I('v_and_b32 v3, 7, v6'); I('v_lshl_add_u32 v7, v3, 7, v7')
    I('v_bfe_u32 v3, v6, 1, 3'); I('v_xor_b32 v3, v3, v2'); I('v_lshl_add_u32 v7, v3, 4, v7')
    I('v_add_u32 v%d, s%d, v7' % (vXR[0], sXRB))
    for t in range(1, 4): I('v_xor_b32 v%d, %d, v%d' % (vXR[t], 32 * t, vXR[0]))
    I('v_mul_u32_u24 v7, 896, v6'); I('v_lshl_add_u32 v%d, v2, 4, v7' % g.vXo)
    I('v_cmp_eq_u32 s[%d:%d], 28, v6' % (g.sMV28, g.sMV28 + 1)); I('v_cmp_eq_u32 s[%d:%d], 0, v2' % (g.sHI, g.sHI + 1))
    I('s_mov_b32 s%d, 0x3f803f80' % g.sONE); I('s_mov_b32 s%d, %s' % (g.sEPS, f32(1e-6))); I('s_mov_b32 s%d, %s' % (g.sL2E, f32(LOG2E)))
    for i in range(4): I('v_mov_b32 v%d, s%d' % (vONE + i, g.sONE))
    for r in (vS1a, vS1b, vS2a, vS2b): I('v_mov_b32 v%d, 0' % r)
    I('s_lshl_b32 s%d, s%d, 7' % (sT[3], sW)); I('s_add_u32 s%d, s%d, %d' % (sT[3], sT[3], g.CSL)); I('v_add_u32 v%d, s%d, v%d' % (vCA, sT[3], vN4))
    I('s_lshl_b32 s%d, s%d, 8' % (sT[3], sW)); I('s_add_u32 s%d, s%d, %d' % (sT[3], sT[3], g.STATL))
    I('v_lshlrev_b32 v3, 4, v2'); I('v_add_u32 v%d, s%d, v3' % (vSA, sT[3]))
    for t in range(1, 4):
        I('s_xor_b32 s%d, s%d, %d' % (sT[3], sW, t)); I('s_mul_i32 s%d, s%d, 12288' % (sT[3], sT[3])); I('s_add_u32 s%d, s%d, %d' % (sT[3], sT[3], g.REDL + (t - 1) * 4096))
        I('v_add_u32 v%d, s%d, v%d' % (g.vRW[t - 1], sT[3], vL16))
    I('s_mul_i32 s%d, s%d, 12288' % (sT[3], sW)); I('s_add_u32 s%d, s%d, %d' % (sT[3], sT[3], g.REDL)); I('v_add_u32 v%d, s%d, v%d' % (g.vRR, sT[3], vL16))
    I('v_add_u32 v%d, 4096, v%d' % (g.vLo[1], vL16)); I('v_add_u32 v%d, 28672, v%d' % (g.vLo[2], vL16)); I('v_add_u32 v%d, 32768, v%d' % (g.vLo[3], vL16))
    I('s_lshl_b32 s%d, s%d, 2' % (sT[3], g.sFS)); I('s_add_u32 s%d, s%d, s%d' % (sT[3], sT[3], sW)); I('s_mul_i32 s%d, s%d, 57344' % (sT[3], sT[3])); I('s_add_u32 s%d, s%d, %d' % (sT[3], sT[3], GUP))
    for q in range(4):
        I('s_add_u32 s%d, s%d, %d' % (sT[4], g.sR4, q)); I('s_and_b32 s%d, s%d, 3' % (sT[4], sT[4]))
        I('s_mul_i32 s%d, s%d, 7168' % (sT[4], sT[4])); I('s_add_u32 s%d, s%d, s%d' % (g.sQ[q], sT[4], sT[3]))
    if not cfg.get('c1early'): a_loads(1)
    if LAH > 2: a_loads(2)
    def pk_group(j):
        s = g.sP0 if j < 2 else g.sP1
        return grp(['s_add_u32 m0, s%d, %d' % (g.sPT, 1024 * j), lambda: I('buffer_load_dwordx4 v%d, s[%d:%d], s%d offen lds' % (vPD, s, s + 3, sPS[j]), tag='pk')])
    pf.stamp('issued')
    def w_addr():
        I('s_lshl_b32 s%d, s%d, 12' % (sT[3], sCC)); I('v_add_u32 v%d, s%d, v%d' % (vTc, sT[3], vT)); I('v_add_u32 v%d, s%d, v%d' % (vTo, sW10, vTc))
        adv(sCC)
    def flag_poll():
        I('v_lshlrev_b32 v%d, 2, v1' % g.vPA)
        I('buffer_load_dword v%d, v%d, s[%d:%d], 0 offen sc1' % (g.vPoll, g.vPA, g.sDBG, g.sDBG + 3), tag='poll')
    def pack_rd():
        a.wait(vm='pk')
        for f in range(4): trfrag(a, aPK + 4 * f, vPT[f], 0, 'pkr', f='a', d2=512)
    def pack_st():
        a.wait(lg='pkr')
        for f in range(4): I('buffer_store_dwordx4 %s, v%d, s[%d:%d], s%d offen sc1' % (ar(aPK + 4 * f, 4), vL16, g.sPO, g.sPO + 3, sPOs[f]), tag='pks')
    def go_poll():
        I('s_lshl_b32 s%d, s%d, 8' % (sT[4], g.sFS)); I('s_add_u32 s%d, s%d, %d' % (sT[4], sT[4], CNT + 3 * 4096))
        I('s_lshl_b32 s%d, s%d, 8' % (sT[5], g.sCS)); I('s_add_u32 s%d, s%d, %d' % (sT[5], sT[5], CNT + 4 * 4096))
        I('v_mov_b32 v%d, s%d' % (vXS[0], sT[5])); I('v_writelane_b32 v%d, s%d, 0' % (vXS[0], sT[4]))
        I('v_mov_b32 v%d, 4' % g.vPT); I('v_writelane_b32 v%d, 14, 0' % g.vPT)
        I('buffer_load_dword v%d, v%d, s[%d:%d], 0 offen sc1' % (g.vPoll, vXS[0], g.sWS, g.sWS + 3), tag='gop')
    def tlb_touch():
        sh = cfg.get('tlbsh', 19)
        I('v_lshlrev_b32 v5, %d, v1' % sh); I('s_lshl_b32 s%d, s%d, %d' % (sT[4], sW, sh - 2))
        I('s_mov_b32 exec_hi, 0xff')
        I('buffer_load_dword v%d, v5, s[%d:%d], s%d offen sc1' % (g.vCSg, g.sWS, g.sWS + 3, sT[4]), tag='tlb')
        I('s_mov_b32 exec_hi, 0'); I('s_mov_b32 exec_lo, 0xf')
        I('buffer_load_dword v%d, v5, s[%d:%d], s%d offen sc1' % (g.vCSg, g.sOUT, g.sOUT + 3, sT[4]), tag='tlb')
        I('s_mov_b64 exec, -1')
    def fin_groups():
        ops = ['v_add_f32 v%d, v%d, v%d' % (vS1a, vS1a, vS1b), 'v_add_f32 v%d, v%d, v%d' % (vS2a, vS2a, vS2b),
               'v_mov_b32 v%d, v%d' % (vS1b, vS1a), 'v_mov_b32 v%d, v%d' % (vS2b, vS2a),
               's_lshl_b32 s%d, s%d, 8' % (sT[3], sW), 's_add_u32 s%d, s%d, %d' % (sT[3], sT[3], g.STATL),
               'v_permlane32_swap_b32 v%d, v%d' % (vS1a, vS1b), 'v_permlane32_swap_b32 v%d, v%d' % (vS2a, vS2b),
               'v_add_f32 v%d, v%d, v%d' % (vS1a, vS1a, vS1b), 'v_add_f32 v%d, v%d, v%d' % (vS2a, vS2a, vS2b)]
        b = Asm(); ln_finish(b, 'v%d' % vS1a, 'v%d' % vS2a, 'v2', 'v3', 'v%d' % vRN, 'v4')
        ops += [l.strip() for l in b.out if not l.strip().startswith('s_nop')]
        ops += ['v_sub_f32 v%d, 0, v4' % (vRN + 1), 'v_add_u32 v2, s%d, v%d' % (sT[3], vN4), 'ds_write_b32 v2, v%d' % vRN, 'ds_write_b32 v2, v%d offset:128' % (vRN + 1),
                'ds_write_b32 v%d, a%d' % (vCA, aC0), 'ds_write_b32 v%d, a%d offset:512' % (vCA, aC1), 'v_add_u32 v5, %d, v%d' % (g.CSL, vN4)]
        n = (len(ops) + 7) // 8
        return [grp(ops[k:k + n]) for k in range(0, len(ops), n)]
    w_addr()
    PKI = cfg.get('pki', 4)
    for j in range(7):
        a.wait(vm='c%d' % j)
        if True:
            for t in range(4): I('ds_read_b128 %s, v%d offset:%d' % (vr(XF + 16 * j + 4 * t, 4), vXR[t], 4096 * xslot[j]), tag='xf%d' % j)
        trfrag(a, WB + 24, vTo, 0, 'o%d' % j); trfrag(a, WB + 28, vTo, 28672, 'o%d' % j)
        I('s_barrier')
        if j in (0, 6): pf.stamp('c%d' % j)
        def rd(t):
            st = t % 3
            trfrag(a, WB + 8 * st, vTc, 1024 * t, 'w%d_%d' % (j, t)); trfrag(a, WB + 8 * st + 4, vTc, 28672 + 1024 * t, 'w%d_%d' % (j, t))
        def dots(jj):
            for r in range(16):
                x = XF + 16 * jj + r
                I('v_dot2c_f32_bf16 v%d, s%d, v%d' % (vS1b if r & 1 else vS1a, g.sONE, x)); I('v_dot2c_f32_bf16 v%d, v%d, v%d' % (vS2b if r & 1 else vS2a, x, x))
        rd(0); rd(1); rd(2)
        if j == 1: flag_set()
        if j > 0: dots(j - 1)
        if j == 6:
            a.wait(lg='xf6'); dots(6)
        G = []
        if j + LAH < 7: G = a_groups(j + LAH)
        elif j + LAH == 7: G = q_groups(cfg.get('wq0', 7))
        if j == PKI: G = G + [pk_group(k) for k in range(4)]
        if j == 3: G = G + [flag_poll]
        if j == 6: G = fin_groups()
        if j == cfg.get('tlb', -1): G = G + [tlb_touch]
        a.wait(lg='o%d' % j)
        I(MF(ar(aC0, 16), vr(vONE, 4), vr(WB + 24, 4), '0' if j == 0 else ar(aC0, 16)))
        if G: G.pop(0)()
        I(MF(ar(aC1, 16), vr(vONE, 4), vr(WB + 28, 4), '0' if j == 0 else ar(aC1, 16)))
        if G: G.pop(0)()
        for t in range(4):
            x = XF + 16 * j + 4 * t; st = t % 3
            a.wait(lg='w%d_%d' % (j, t))
            first = (j == 0 and t == 0)
            I(MF(vr(ACCK, 16), vr(x, 4), vr(WB + 8 * st, 4), '0' if first else vr(ACCK, 16)))
            if G: G.pop(0)()
            I(MF(vr(ACCV, 16), vr(x, 4), vr(WB + 8 * st + 4, 4), '0' if first else vr(ACCV, 16)))
            if t == 0:
                rd(3)
                if j < 6: w_addr()
            elif G: G.pop(0)()
        while G: G.pop(0)()
    pf.stamp('loop')
    a.wait(lg=0); I('s_barrier')
    for i in range(8): I('ds_read_b32 v%d, v5 offset:%d' % (ACCQ + i, 128 * i), tag='cs')
    for qd in range(4):
        I('ds_read_b128 %s, v%d offset:%d' % (vr(WB + 16 + 4 * qd, 4), vSA, 128 + 32 * qd), tag='st')
    for qd in range(4):
        I('ds_read_b128 %s, v%d offset:%d' % (vr(WB + 4 * qd, 4), vSA, 32 * qd), tag='st2')
    pf.stamp('X1')
    poll(g, 'kf_pz', g.vPA, 0xffff, 4, g.sDBG, early='poll')
    pack_rd()
    for op in ['v_and_b32 v3, 31, v1', 'v_mul_u32_u24 v3, 144, v3', 'v_lshrrev_b32 v4, 5, v1', 'v_lshl_add_u32 v3, v4, 4, v3', 'v_add_u32 v%d, s%d, v3' % (vKW, g.sPT),
               'v_bfe_u32 v5, v1, 2, 2', 'v_lshl_add_u32 v4, v4, 2, v5',
               'v_bfe_u32 v5, v1, 4, 1', 'v_mul_u32_u24 v5, 14, v5', 'v_add_u32 v5, v5, v4',
               'v_and_b32 v6, 3, v1', 'v_lshlrev_b32 v6, 2, v6', 's_lshl_b32 s%d, s%d, 5' % (sT[4], sW), 's_add_u32 s%d, s%d, %d' % (sT[4], sT[4], g.KVRL),
               'v_add_u32 v6, s%d, v6' % sT[4], 'v_mul_u32_u24 v7, 144, v5', 'v_add_u32 v%d, v7, v6' % vRed[0],
               'v_add_u32 v%d, %d, v%d' % (vRed[1], 8 * 144, vRed[0]), 'v_mul_u32_u24 v7, 144, v4', 'v_add_u32 v7, v7, v6', 'v_add_u32 v7, %d, v7' % (22 * 144),
               'v_cmp_lt_u32 vcc, 5, v4', 'v_cndmask_b32 v%d, v%d, v7, vcc' % (vRed[1], vRed[1])]: I(op)
    Q = ACCQ
    pack_st()
    for f in range(4): I(MF(ar(32 + 16 * f, 16), vr(vONE, 4), ar(aPK + 4 * f, 4), '0'))
    a.wait(lg='cs')
    I('v_add_f32 v%d, v%d, v%d' % (Q, Q, Q + 1)); I('v_add_f32 v%d, v%d, v%d' % (Q + 2, Q + 2, Q + 3)); I('v_add_f32 v%d, v%d, v%d' % (vCS, Q, Q + 2))
    I('v_add_f32 v%d, v%d, v%d' % (Q + 4, Q + 4, Q + 5)); I('v_add_f32 v%d, v%d, v%d' % (Q + 6, Q + 6, Q + 7)); I('v_add_f32 v%d, v%d, v%d' % (vCS + 1, Q + 4, Q + 6))
    SE = 's[%d:%d]' % (g.sEPS, g.sEPS + 1)
    def phi(acc, tmp, n):
        for p in range(0, n, 2): I('v_pk_mul_f32 %s, %s, %s op_sel:[0,1] op_sel_hi:[1,1]' % (vr(tmp + p, 2), vr(acc + p, 2), SE))
        for v in range(n): I('v_min_f32 v%d, 0, v%d' % (tmp + v, tmp + v))
        for v in range(n): I('v_exp_f32 v%d, v%d' % (tmp + v, tmp + v)); I('v_max_f32 v%d, s%d, v%d' % (acc + v, g.sEPS, acc + v))
        for p in range(0, n, 2): I('v_pk_add_f32 %s, %s, %s' % (vr(acc + p, 2), vr(acc + p, 2), vr(tmp + p, 2)))
    CSP = vr(vCS, 2)
    a.wait(lg='st')
    for p in range(0, 16, 2):
        I('v_pk_fma_f32 %s, %s, %s, %s op_sel_hi:[1,0,1]' % (vr(ACCK + p, 2), vr(WB + 16 + p, 2), CSP, vr(ACCK + p, 2)))
        I('v_pk_fma_f32 %s, %s, %s, %s op_sel:[0,1,0] op_sel_hi:[1,1,1]' % (vr(ACCV + p, 2), vr(WB + 16 + p, 2), CSP, vr(ACCV + p, 2)))
    I('s_add_u32 s%d, s%d, %d' % (sPCS, sPCS, CSGU)); I('s_mov_b32 exec_hi, 0')
    for f in range(4): I('buffer_atomic_add_f32 a%d, v%d, s[%d:%d], s%d offen offset:%d' % (32 + 16 * f, g.vPA, g.sWS, g.sWS + 3, sPCS, 128 * f), tag='pks')
    I('s_mov_b64 exec, -1')
    a.wait(lg='st2')
    for p in range(0, 16, 2):
        I('v_pk_fma_f32 %s, %s, %s, %s op_sel_hi:[1,1,0]' % (vr(ACCK + p, 2), vr(ACCK + p, 2), vr(WB + p, 2), SE))
        I('v_pk_mul_f32 %s, %s, %s' % (vr(ACCV + p, 2), vr(ACCV + p, 2), vr(WB + p, 2)))
    a.wait(vm='wq')
    I('s_sub_u32 s%d, s%d, %d' % (sT[3], sW10, g.WKL - g.WQL)); I('v_add_u32 v%d, s%d, v%d' % (vTo, sT[3], vT))
    for c in range(7): trfrag(a, WB + 4 * c, vTo, 4096 * c, 'qo%d' % c)
    phi(ACCK, ACCQ, 16)
    for p in range(8):
        I('v_cvt_pk_bf16_f32 v%d, v%d, v%d' % (ACCK + p, ACCK + 2 * p, ACCK + 2 * p + 1)); I('v_cvt_pk_bf16_f32 v%d, v%d, v%d' % (ACCV + p, ACCV + 2 * p, ACCV + 2 * p + 1))
    I('s_mov_b64 exec, s[%d:%d]' % (g.sMV28, g.sMV28 + 1))
    for p in range(8): I('v_mov_b32 v%d, s%d' % (ACCV + p, g.sONE))
    I('s_mov_b64 exec, -1')
    pf.stamp('epikv')
    I(MF(ar(aC1, 16), vr(ACCK, 4), vr(ACCV, 4), '0')); I(MF(ar(aC1, 16), vr(ACCK + 4, 4), vr(ACCV + 4, 4), ar(aC1, 16)))
    a.wait(lg='qo6')
    for c in range(7):
        I(MF(ar(aC0, 16), vr(vONE, 4), vr(WB + 4 * c, 4), '0' if c == 0 else ar(aC0, 16)))
        if c == 1:
            for q in range(4): I('ds_write_b128 v%d, %s offset:%d' % (vKW, ar(aC1 + 4 * q, 4), 32 * q))
    I('s_mov_b32 s%d, s%d' % (sCC, g.sRHO))
    I('s_lshl_b32 s%d, s%d, 12' % (sT[5], sH)); I('s_add_u32 s%d, s%d, s%d' % (sT[5], sT[5], sW10)); I('s_add_u32 s%d, s%d, %d' % (sT[5], sT[5], KVACC))
    I('ds_write_b32 v%d, a%d offset:1024' % (vCA, aC0))
    a.wait(vm='pks', lg=0); I('s_barrier')
    pf.stamp('X2')
    RB = WB + 16
    for j in range(4):
        for p in range(4): I('ds_read_b32 v%d, v%d offset:%d' % (RB + 4 * j + p, vRed[j % 2], 4608 * p + 16 * (j // 2)), tag='red%d' % j)
    for j in range(4):
        a.wait(lg='red%d' % j)
        b = RB + 4 * j
        I('v_add_f32 v%d, v%d, v%d' % (b, b, b + 1)); I('v_add_f32 v%d, v%d, v%d' % (b + 2, b + 2, b + 3)); I('v_add_f32 v%d, v%d, v%d' % (b, b, b + 2))
        if j < 2: I('buffer_atomic_add_f32 v%d, v%d, s[%d:%d], s%d offen offset:%d' % (b, g.vPA, g.sWS, g.sWS + 3, sT[5], 256 * j), tag='ast')
    I('s_cmp_eq_u32 s%d, 3' % sW); a.branch('s_cbranch_scc1 kf_noat')
    for j in (2, 3): I('buffer_atomic_add_f32 v%d, v%d, s[%d:%d], s%d offen offset:%d' % (RB + 4 * j, g.vPA, g.sWS, g.sWS + 3, sT[5], 256 * j), counted=False)
    a.label('kf_noat')
    sig_add(g, sPSG)
    pf.stamp('atom')
    QB = WB
    def q_rd(n):
        j, t = n // 4, n % 4
        if t == 0:
            I('s_lshl_b32 s%d, s%d, 12' % (sT[3], sCC)); I('s_sub_u32 s%d, s%d, %d' % (sT[3], sT[3], g.WKL - g.WQL))
            I('v_add_u32 v%d, s%d, v%d' % (vTc, sT[3], vT)); adv(sCC)
        trfrag(a, QB + 4 * (n % 4), vTc, 1024 * t, 'q%d' % n)
    for n in range(3): q_rd(n)
    S = Side(a)
    CQ = ACCK + 8
    S.add(['v_add_u32 v2, %d, v%d' % (g.CSL + 1024, vN4)])
    S.add([((lambda i=i: I('ds_read_b32 v%d, v2 offset:%d' % (CQ + i, 128 * i), tag='cq')), 5) for i in range(4)])
    S.add(['s_lshl_b32 s%d, s%d, 7' % (sT[2], sW), 's_add_u32 s%d, s%d, %d' % (sT[2], sT[2], g.CSQ2L), 'v_add_u32 v3, s%d, v%d' % (sT[2], vN4),
           'v_lshrrev_b32 v4, 5, v1', 'v_lshlrev_b32 v4, 4, v4', 'v_add_u32 v4, s%d, v4' % sT[2], ((lambda: a.wait(lg='cq')), 3),
           'v_add_f32 v%d, v%d, v%d' % (CQ, CQ, CQ + 1), 'v_add_f32 v%d, v%d, v%d' % (CQ + 2, CQ + 2, CQ + 3), 'v_add_f32 v%d, v%d, v%d' % (CQ, CQ, CQ + 2),
           'ds_write_b32 v3, v%d' % CQ])
    S.add([((lambda q=q: I('ds_read_b128 %s, v4 offset:%d' % (vr(ACCV + 4 * q, 4), 32 * q), tag='cq2')), 5) for q in range(4)])
    g.guq = [(j, c) for j in range(28) for c in range(2)]
    for n in range(28):
        if n + 3 < 28: q_rd(n + 3)
        a.wait(lg='q%d' % n)
        I(MF(vr(ACCQ, 16), vr(QB + 4 * (n % 4), 4), vr(XF + 4 * n, 4), '0' if n == 0 else vr(ACCQ, 16)))
        S.emit(12)
    S.drain()
    pf.stamp('q28')
    a.wait(lg='cq2')
    RN = vr(vRN, 2)
    for p in range(0, 16, 2): I('v_pk_fma_f32 %s, %s, %s, %s op_sel:[0,1,0] op_sel_hi:[1,1,1]' % (vr(ACCQ + p, 2), vr(ACCV + p, 2), RN, vr(ACCQ + p, 2)))
    for p in range(0, 16, 2): I('v_pk_fma_f32 %s, %s, %s, %s op_sel_hi:[1,0,0]' % (vr(ACCQ + p, 2), vr(ACCQ + p, 2), RN, SE))
    phi(ACCQ, WB, 16)
    for p in range(8): I('v_cvt_pk_bf16_f32 v%d, v%d, v%d' % (ACCK + p, ACCQ + 2 * p, ACCQ + 2 * p + 1))
    for p in (6, 7): I('v_cndmask_b32 v%d, 0, v%d, s[%d:%d]' % (ACCK + p, ACCK + p, g.sHI, g.sHI + 1))
    I('s_lshl_b32 s%d, s%d, 2' % (sT[0], sRBA)); I('s_add_u32 s%d, s%d, s%d' % (sT[0], sT[0], sW))
    I('s_lshl_b32 s%d, s%d, 6' % (sT[1], sH)); I('s_add_u32 s%d, s%d, s%d' % (sT[0], sT[0], sT[1])); I('s_lshl_b32 s%d, s%d, 11' % (sT[0], sT[0]))
    if PQF: I('s_add_u32 s%d, s%d, %d' % (sT[0], sT[0], PQF))
    I('buffer_store_dwordx4 %s, v%d, s[%d:%d], s%d offen sc1' % (vr(ACCK, 4), vL16, g.sWS, g.sWS + 3, sT[0]), tag='ast')
    I('buffer_store_dwordx4 %s, v%d, s[%d:%d], s%d offen offset:1024 sc1' % (vr(ACCK + 4, 4), vL16, g.sWS, g.sWS + 3, sT[0]), tag='ast')
    pf.stamp('pqst')
    go_poll()
    I('s_lshr_b32 s%d, s%d, 2' % (sT[6], sH)); I('s_lshl_b32 s%d, s%d, 7' % (sT[6], sT[6])); I('s_add_u32 s%d, s%d, %d' % (sT[6], sT[6], CNT))
    I('v_mov_b32 v2, 1'); I('v_lshlrev_b32 v3, 9, v1')
    a.wait(vm='ast'); I('s_barrier')
    I('s_mov_b64 exec, 0xff')
    I('buffer_atomic_add v2, v3, s[%d:%d], s%d offen sc1' % (g.sKZ, g.sKZ + 3, sT[6]), tag='sig')
    I('s_mov_b64 exec, -1')
    pf.stamp('sigA')
    I('s_and_b32 s%d, s2, 0xc2' % sT[0]); I('s_cmp_eq_u32 s%d, 0xc2' % sT[0]); a.branch('s_cbranch_scc1 kf_pack')
    poll(g, 'kf_pg', vXS[0], 3, 'v%d' % g.vPT, g.sWS, early='gop')
    wo_loads(g, 0, 2)

def wo_loads(g, lo, hi):
    a = g.a; I = a.I; sT = g.sT
    for i in range(lo, hi):
        I('s_add_u32 s%d, s%d, %d' % (sT[2], g.sR4, i)); I('s_and_b32 s%d, s%d, 3' % (sT[2], sT[2]))
        I('s_lshl_b32 s%d, s%d, 2' % (sT[3], g.sW)); I('s_add_u32 s%d, s%d, s%d' % (sT[2], sT[2], sT[3])); I('s_lshl_b32 s%d, s%d, 11' % (sT[2], sT[2]))
        I('s_lshl_b32 s%d, s%d, 1' % (sT[3], g.sCS)); I('s_and_b32 s%d, s%d, 1' % (sT[4], g.sW)); I('s_add_u32 s%d, s%d, s%d' % (sT[3], sT[3], sT[4]))
        I('s_lshl_b32 s%d, s%d, 15' % (sT[3], sT[3])); I('s_add_u32 s%d, s%d, s%d' % (sT[2], sT[2], sT[3]))
        I('s_xor_b32 s%d, s%d, 32768' % (sT[3], sT[2]))
        I('s_add_u32 s%d, s%d, %d' % (sT[2], sT[2], WOP)); I('s_add_u32 s%d, s%d, %d' % (sT[3], sT[3], WOP))
        for c in range(2):
            for kk in range(2):
                I('buffer_load_dwordx4 %s, v%d, s[%d:%d], s%d offen offset:%d sc1' % (vr(8 + 16 * i + 8 * c + 4 * kk, 4), g.vL16, g.sWS, g.sWS + 3, sT[2 + c], 1024 * kk), tag='wo')

def resid_init(g, RES, ACC0, T):
    I = g.a.I
    for p in range(8): I('v_mov_b32 v%d, v%d' % (T + p, RES + p))
    for pr in range(2):
        for k in range(2): I('v_permlane32_swap_b32 v%d, v%d' % (T + 4 * pr + k, T + 4 * pr + 2 + k))
    for p in range(8):
        I('v_lshlrev_b32 v%d, 16, v%d' % (ACC0 + 2 * p, T + p)); I('v_and_b32 v%d, 0xffff0000, v%d' % (ACC0 + 2 * p + 1, T + p))

def reduce_tiles(g, ACC, P0, OUT):
    a = g.a; I = a.I
    for t in range(1, 4):
        for q in range(4): I('ds_write_b128 v%d, %s offset:%d' % (g.vRW[t - 1], vr(ACC + 16 * t + 4 * q, 4), 1024 * q))
    a.wait(lg=0); I('s_barrier')
    if g.cfg.get('fineB'): g.pf.stamp('xbar')
    for q in range(4):
        for t in range(3): I('ds_read_b128 %s, v%d offset:%d' % (vr(P0 + 16 * t + 4 * q, 4), g.vRR, 4096 * t + 1024 * q), tag='rr%d' % q)
    for q in range(4):
        a.wait(lg='rr%d' % q)
        for v in (4 * q, 4 * q + 2):
            I('v_pk_add_f32 %s, %s, %s' % (vr(P0 + v, 2), vr(P0 + v, 2), vr(ACC + v, 2))); I('v_pk_add_f32 %s, %s, %s' % (vr(P0 + 16 + v, 2), vr(P0 + 16 + v, 2), vr(P0 + 32 + v, 2)))
        for v in (4 * q, 4 * q + 2): I('v_pk_add_f32 %s, %s, %s' % (vr(P0 + v, 2), vr(P0 + v, 2), vr(P0 + 16 + v, 2)))
        for p in (2 * q, 2 * q + 1): I('v_cvt_pk_bf16_f32 v%d, v%d, v%d' % (OUT + p, P0 + 2 * p, P0 + 2 * p + 1))
        if q % 2 == 1:
            for k in range(2): I('v_permlane32_swap_b32 v%d, v%d' % (OUT + 2 * (q - 1) + k, OUT + 2 * (q - 1) + 2 + k))

def colsum(g, lo, hi):
    a = g.a; I = a.I
    for i in range(4): I('v_mov_b32 v%d, s%d' % (4 + i, g.sONE))
    for j in range(lo, hi):
        for c in range(2): I(MF(ar(224 + 16 * c, 16), 'v[4:7]', ar(112 * c + 4 * j, 4), '0' if j == 0 else ar(224 + 16 * c, 16)))

def phase_B(g):
    a = g.a; I = a.I; sT = g.sT; pf = g.pf; cfg = g.cfg
    sW = g.sW; vL16 = g.vL16
    WO, ACC, KV, NUM = 8, 72, 136, 168
    aPQ = 224
    sRT, sCT, sKVB, sPQB, sRX = g.S4[0:5]
    wo_loads(g, 2, 4)
    I('s_lshr_b32 s%d, s%d, 1' % (sT[0], sW)); I('s_and_b32 s%d, s%d, 1' % (sT[1], sW))
    I('s_lshl_b32 s%d, s%d, 1' % (sRT, g.sRB64)); I('s_add_u32 s%d, s%d, s%d' % (sRT, sRT, sT[0]))
    I('s_lshl_b32 s%d, s%d, 1' % (sCT, g.sCS)); I('s_add_u32 s%d, s%d, s%d' % (sCT, sCT, sT[1]))
    g.sRT, g.sCT = sRT, sCT
    I('s_mul_i32 s%d, s%d, %d' % (sT[2], sRT, 32 * 896)); I('s_lshl_b32 s%d, s%d, 6' % (sT[3], sCT)); I('s_add_u32 s%d, s%d, s%d' % (sT[2], sT[2], sT[3]))
    for i in range(2):
        I('buffer_load_dwordx4 %s, v%d, s[%d:%d], s%d offen offset:%d' % (vr(g.vHK + 4 * i, 4), g.vXo, g.sX, g.sX + 3, sT[2], 32 * i), tag='xr')
    I('s_and_b32 s%d, s2, 7' % sT[2]); I('s_lshl_b32 s%d, s%d, 2' % (sT[2], sT[2])); I('s_add_u32 s%d, s%d, s%d' % (sT[2], sT[2], sW))
    I('s_lshl_b32 s%d, s%d, 7' % (sT[2], sT[2])); I('s_add_u32 s%d, s%d, %d' % (sT[2], sT[2], CNT)); I('v_mov_b32 v%d, s%d' % (g.vPA, sT[2]))
    I('s_lshl_b32 s%d, s%d, 14' % (sKVB, sW)); I('s_add_u32 s%d, s%d, %d' % (sKVB, sKVB, KVACC))
    I('s_lshl_b32 s%d, s%d, 19' % (sPQB, sW)); I('s_lshl_b32 s%d, s%d, 12' % (sT[2], g.sRB64)); I('s_add_u32 s%d, s%d, s%d' % (sPQB, sPQB, sT[2]))
    if PQF: I('s_add_u32 s%d, s%d, %d' % (sPQB, sPQB, PQF))
    I('s_lshl_b32 s%d, s%d, 11' % (sRX, sT[0]))
    if cfg.get('retouch'):
        I('s_getpc_b64 s[%d:%d]' % (g.sP0, g.sP0 + 1))
        I('s_lshr_b32 s%d, s2, 3' % sT[2]); I('s_lshl_b32 s%d, s%d, 2' % (sT[2], sT[2])); I('s_add_u32 s%d, s%d, s%d' % (sT[2], sT[2], sW)); I('s_lshl_b32 s%d, s%d, 1' % (sT[2], sT[2]))
        I('v_add_u32 v3, s%d, v1' % sT[2]); I('v_lshlrev_b32 v3, 7, v3')
        I('s_mov_b64 exec, 3')
        I('global_load_dword v%d, v3, s[%d:%d]' % (g.vPoll, g.sP0, g.sP0 + 1), tag='code')
        I('s_mov_b64 exec, -1')
    pf.stamp('pfB')
    poll(g, 'kf_p1', g.vPA, 1, 64, g.sWS)
    pf.stamp('sync1')
    def loads(i):
        I('s_add_u32 s%d, s%d, %d' % (sT[2], g.sR4, i)); I('s_and_b32 s%d, s%d, 3' % (sT[2], sT[2]))
        I('s_lshl_b32 s%d, s%d, 12' % (sT[3], sT[2])); I('s_add_u32 s%d, s%d, s%d' % (sT[3], sT[3], sKVB))
        I('s_lshl_b32 s%d, s%d, 17' % (sT[4], sT[2])); I('s_add_u32 s%d, s%d, s%d' % (sT[4], sT[4], sPQB))
        I('s_add_u32 s%d, s%d, s%d' % (sT[5], sT[4], sRX)); I('s_xor_b32 s%d, s%d, 2048' % (sT[4], sT[5]))
        for q in range(4):
            I('buffer_load_dwordx4 %s, v%d, s[%d:%d], s%d offen offset:%d sc1' % (vr(KV + 16 * (i % 2) + 4 * q, 4), vL16, g.sWS, g.sWS + 3, sT[3], 1024 * q), tag='kv%d' % i)
        for rt in range(2):
            for kk in range(2):
                I('buffer_load_dwordx4 %s, v%d, s[%d:%d], s%d offen offset:%d sc1' % (ar(aPQ + 16 * (i % 2) + 8 * rt + 4 * kk, 4), vL16, g.sWS, g.sWS + 3, sT[5] if rt == 0 else sT[4], 1024 * kk), tag='pq%d' % i)
    def o_ops(i, rt):
        n = NUM + 32 * (i % 2) + 16 * rt; t = 2 + rt
        ops = ['v_cvt_pk_bf16_f32 v%d, v%d, v%d' % (t, n + 14, n + 14), 'v_and_b32 v%d, 0xffff0000, v%d' % (t, t),
               'v_add_f32 v%d, s%d, v%d' % (t, g.sEPS, t), 'v_rcp_f32 v%d, v%d' % (t, t)]
        for v in range(14): ops.append('v_mul_f32 v%d, v%d, v%d' % (n + v, n + v, t))
        for p in range(7): ops.append('v_cvt_pk_bf16_f32 v%d, v%d, v%d' % (n + p, n + 2 * p, n + 2 * p + 1))
        ops.append('v_mov_b32 v%d, 0' % (n + 7))
        return ops
    def num(i):
        b = KV + 16 * (i % 2)
        a.wait(vm='kv%d' % i)
        for p in range(8): I('v_cvt_pk_bf16_f32 v%d, v%d, v%d' % (b + p, b + 2 * p, b + 2 * p + 1))
        a.wait(vm='pq%d' % i)
        if cfg.get('fineB'): pf.stamp('pq%d' % i)
        for rt in range(2):
            for kk in range(2):
                n = NUM + 32 * (i % 2) + 16 * rt
                I(MF(vr(n, 16), vr(b + 4 * kk, 4), ar(aPQ + 16 * (i % 2) + 8 * rt + 4 * kk, 4), '0' if kk == 0 else vr(n, 16)))
        if i + 2 < 4: loads(i + 2)
    def gemm(i, rt, S, per):
        for kk in range(2):
            for c in range(2):
                acc = ACC + 16 * (2 * rt + c)
                I(MF(vr(acc, 16), vr(WO + 16 * i + 8 * c + 4 * kk, 4), vr(NUM + 32 * (i % 2) + 16 * rt + 4 * kk, 4), '0' if (i == 0 and kk == 0 and (rt or c)) else vr(acc, 16)))
                S.emit(per)
    def gu_one():
        if len(g.guq) <= cfg.get('gu_keep', 20): return False
        gu_load(g, *g.guq.pop(0)); return True
    loads(0); loads(1)
    resid_init(g, g.vHK, ACC, NUM)
    S = Side(a)
    num(0)
    if cfg.get('oldB'):
      for i in range(4):
        S.add(o_ops(i, 0)); S.drain()
        S.add(o_ops(i, 1))
        gemm(i, 0, S, 28); S.drain()
        if i + 1 < 4: num(i + 1)
        if i == cfg.get('spr_i', 1): a.sprinkle(gu_one, cfg.get('spr', 80))
        gemm(i, 1, S, 0)
    else:
      S.add(o_ops(0, 0)); S.drain(); S.add(o_ops(0, 1))
      for i in range(4):
        gemm(i, 0, S, 26); S.drain()
        if i + 1 < 4: num(i + 1); S.add(['s_nop 0'] * 0 + o_ops(i + 1, 0))
        if i == cfg.get('spr_i', 1): a.sprinkle(gu_one, cfg.get('spr', 80))
        gemm(i, 1, S, 26); S.drain()
        if i + 1 < 4: S.add(o_ops(i + 1, 1))
    pf.stamp('gemmB')
    reduce_tiles(g, ACC, NUM, g.vHK)
    a.sprinkle(None, 0)
    I('s_mul_i32 s%d, s%d, 28' % (sT[0], sRT)); I('s_lshl_b32 s%d, s%d, 1' % (sT[1], sCT)); I('s_add_u32 s%d, s%d, s%d' % (sT[0], sT[0], sT[1]))
    I('s_lshl_b32 s%d, s%d, 10' % (sT[0], sT[0])); I('s_add_u32 s%d, s%d, %d' % (sT[0], sT[0], HF))
    for i in range(2):
        I('buffer_store_dwordx4 %s, v%d, s[%d:%d], s%d offen offset:%d sc1' % (vr(g.vHK + 4 * i, 4), vL16, g.sWS, g.sWS + 3, sT[0], 1024 * i), tag='bst')
    I('v_mov_b32 v2, 0'); I('v_mov_b32 v3, 0')
    for p in range(8):
        I('v_dot2c_f32_bf16 v2, s%d, v%d' % (g.sONE, g.vHK + p)); I('v_dot2c_f32_bf16 v3, v%d, v%d' % (g.vHK + p, g.vHK + p))
    I('s_lshl_b32 s%d, s%d, 14' % (sT[0], sCT)); I('s_lshl_b32 s%d, s%d, 8' % (sT[1], sRT))
    I('s_add_u32 s%d, s%d, s%d' % (sT[0], sT[0], sT[1])); I('s_add_u32 s%d, s%d, %d' % (sT[0], sT[0], STATS))
    I('v_mov_b32 v4, v2'); I('v_mov_b32 v5, v3'); I('v_lshlrev_b32 v6, 3, v1')
    I('v_permlane32_swap_b32 v2, v4'); I('v_permlane32_swap_b32 v3, v5')
    I('v_add_f32 v8, v2, v4'); I('v_add_f32 v9, v3, v5')
    I('s_mov_b32 exec_hi, 0')
    I('buffer_store_dwordx2 v[8:9], v6, s[%d:%d], s%d offen sc1' % (g.sWS, g.sWS + 3, sT[0]), tag='bst')
    I('s_mov_b64 exec, -1')
    pf.stamp('hst')
    for _ in range(min(cfg.get('b_gu4', 10), len(g.guq))): gu_load(g, *g.guq.pop(0))
    I('s_lshr_b32 s%d, s%d, 1' % (sT[5], g.sRB64))
    I('s_lshl_b32 s%d, s%d, 8' % (g.sT[6], sT[5])); I('s_add_u32 s%d, s%d, %d' % (g.sT[6], g.sT[6], CNT + 4096))
    a.wait(vm='bst'); I('s_barrier'); sig_add(g, g.sT[6])
    pf.stamp('sigB')

def phase_C(g):
    a = g.a; I = a.I; sT = g.sT; pf = g.pf; cfg = g.cfg
    sW = g.sW; vL16 = g.vL16
    ACC, HB, NMF, CI, TM, CSF = 8, 72, 96, 108, 116, 132
    NHB = 6
    vHQ = list(range(124, 132))
    I('s_lshl_b32 s%d, s%d, 2' % (sT[3], g.sFS)); I('s_add_u32 s%d, s%d, s%d' % (sT[3], sT[3], sW)); I('s_lshl_b32 s%d, s%d, 8' % (sT[3], sT[3])); I('s_add_u32 s%d, s%d, %d' % (sT[3], sT[3], CSGU))
    I('v_and_b32 v2, 31, v1'); I('v_lshlrev_b32 v3, 2, v2')
    for c in range(2): I('buffer_load_dword v%d, v3, s[%d:%d], s%d offen offset:%d sc1' % (g.vCSg + c, g.sWS, g.sWS + 3, sT[3], 128 * c), tag='csg')
    while len(g.guq) > cfg.get('c_gu', 0): gu_load(g, *g.guq.pop(0))
    sHG, sHL = g.S4[5], g.S4[6]
    sO = g.S4[7:11]; g.sQD = g.S4[15:19]
    I('s_mul_i32 s%d, s%d, 112' % (sT[3], g.sCT)); I('s_mul_i32 s%d, s%d, 28' % (sT[4], sW)); I('s_add_u32 s%d, s%d, s%d' % (sT[3], sT[3], sT[4]))
    I('s_lshl_b32 s%d, s%d, 10' % (sT[3], sT[3])); I('s_add_u32 s%d, s%d, %d' % (sT[3], sT[3], WDP))
    for q in range(4):
        I('s_add_u32 s%d, s%d, %d' % (sT[4], g.sR4, q)); I('s_and_b32 s%d, s%d, 3' % (sT[4], sT[4]))
        I('s_mul_i32 s%d, s%d, 7168' % (sT[5], sT[4])); I('v_add_u32 v%d, s%d, v%d' % (vHQ[q], sT[5], vL16)); I('v_add_u32 v%d, 57344, v%d' % (vHQ[4 + q], vHQ[q]))
        I('s_add_u32 s%d, s%d, s%d' % (g.sQD[q], sT[5], sT[3]))
    I('s_and_b32 s%d, s%d, 1' % (sT[4], g.sCT)); I('s_mul_i32 s%d, s%d, 114688' % (sT[4], sT[4])); I('s_sub_u32 s%d, 114688, s%d' % (sT[5], sT[4]))
    for q in range(4): I('s_sub_u32 s%d, s%d, s%d' % (g.sQD[q], g.sQD[q], sT[4]))
    g.vLd = [152, 153, 154, 155]
    I('s_lshr_b32 s%d, s%d, 1' % (sT[6], sW)); I('s_lshl_b32 s%d, s%d, 8' % (sT[6], sT[6])); I('v_xor_b32 v2, s%d, v%d' % (sT[6], vL16))
    I('v_add_u32 v%d, s%d, v2' % (g.vLd[0], sT[4])); I('v_add_u32 v%d, 4096, v%d' % (g.vLd[1], g.vLd[0]))
    I('v_add_u32 v%d, s%d, v2' % (g.vLd[2], sT[5])); I('v_add_u32 v%d, 4096, v%d' % (g.vLd[3], g.vLd[2]))
    I('s_mul_i32 s%d, s%d, %d' % (sHG, g.sRB128, 4 * 28672)); I('s_mul_i32 s%d, s%d, 7168' % (sHL, sW))
    I('s_add_u32 s%d, s%d, s%d' % (sHG, sHG, sHL)); I('s_add_u32 s%d, s%d, %d' % (sHG, sHG, HF))
    I('s_lshl_b32 s%d, s%d, 3' % (sT[2], g.sFS)); I('s_lshl_b32 s%d, s%d, 1' % (sT[3], sW)); I('s_add_u32 s%d, s%d, s%d' % (sT[2], sT[2], sT[3]))
    I('s_mul_i32 s%d, s%d, %d' % (sT[0], g.sRB128, 4 * 112)); I('s_add_u32 s%d, s%d, s%d' % (sT[0], sT[0], sT[2]))
    I('s_lshl_b32 s%d, s%d, 10' % (sT[0], sT[0])); I('s_add_u32 s%d, s%d, %d' % (sT[0], sT[0], ACTF))
    for rt in range(4): I('s_add_u32 s%d, s%d, %d' % (sO[rt], sT[0], rt * 112 * 1024))
    I('v_and_b32 v2, 31, v1'); I('v_lshrrev_b32 v3, 5, v1')
    I('v_mul_u32_u24 v%d, %d, v3' % (TM, 7 * 16384)); I('v_lshl_add_u32 v%d, v2, 3, v%d' % (TM, TM))
    I('s_lshl_b32 s%d, s%d, 2' % (sT[0], g.sRB128)); I('s_add_u32 s%d, s%d, s%d' % (sT[0], sT[0], sW))
    I('s_lshl_b32 s%d, s%d, 8' % (sT[1], sT[0])); I('s_add_u32 s%d, s%d, %d' % (sT[1], sT[1], STATS))
    I('s_lshl_b32 s%d, s%d, 8' % (sT[2], g.sRB128)); I('s_add_u32 s%d, s%d, %d' % (sT[2], sT[2], CNT + 4096)); I('v_mov_b32 v%d, s%d' % (g.vPA, sT[2]))
    pf.stamp('csC')
    poll(g, 'kf_p2', g.vPA, 1, 14, g.sWS)
    pf.stamp('sync2')
    def h_dma(rt, lo=0, hi=7):
        for k in range(lo, hi):
            if k % 4 == 0 or k == lo:
                kb = k - k % 4
                I('s_add_u32 s%d, s%d, %d' % (sT[3], sHG, rt * 28672 + 1024 * kb)); I('s_add_u32 m0, s%d, %d' % (sHL, g.HL + rt * 28672 + 1024 * kb))
            I('buffer_load_dwordx4 v%d, s[%d:%d], s%d offen offset:%d sc1 lds' % (vL16, g.sWS, g.sWS + 3, sT[3], 1024 * (k % 4)), tag='h%d' % rt)
    h_dma(0)
    vSP = 156
    while g.guq:
        j, c = g.guq.pop(0); gu_load(g, j, c); a.vm[-1] = 'gu%d' % j
        g.late_gu = getattr(g, 'late_gu', []) + [j]
    for p in range(7):
        I('buffer_load_dwordx2 %s, v%d, s[%d:%d], s%d offen sc1' % (vr(vSP + 2 * p, 2), TM, g.sWS, g.sWS + 3, sT[1]), tag='sp')
        if p < 6: I('s_add_u32 s%d, s%d, 16384' % (sT[1], sT[1]))
    for c in range(2):
        f = CSF + 4 * c
        I('v_mov_b32 v4, v%d' % (g.vCSg + c))
        I('v_cvt_pk_bf16_f32 v5, v4, v4'); I('v_and_b32 v5, 0xffff0000, v5'); I('v_sub_f32 v6, v4, v5')
        I('v_cvt_pk_bf16_f32 v%d, v4, v6' % f); I('v_and_b32 v5, 0xffff0000, v%d' % f); I('v_sub_f32 v6, v6, v5')
        I('v_cvt_pk_bf16_f32 v%d, v6, 0' % (f + 1))
        I('v_cndmask_b32 v%d, 0, v%d, s[%d:%d]' % (f, f, g.sHI, g.sHI + 1)); I('v_cndmask_b32 v%d, 0, v%d, s[%d:%d]' % (f + 1, f + 1, g.sHI, g.sHI + 1))
        I('v_mov_b32 v%d, 0' % (f + 2)); I('v_mov_b32 v%d, 0' % (f + 3))
    I('s_lshl_b32 s%d, s%d, 8' % (sT[2], sW)); I('s_add_u32 s%d, s%d, %d' % (sT[2], sT[2], CNT + 5 * 4096)); I('v_mov_b32 v%d, s%d' % (g.vPA, sT[2]))
    a.wait(vm='h0'); I('s_barrier')
    pf.stamp('h0')
    def stats_ops():
        ops = [((lambda: a.wait(vm='sp')), 3)]
        for p in range(1, 7): ops += ['v_add_f32 v%d, v%d, v%d' % (vSP, vSP, vSP + 2 * p), 'v_add_f32 v%d, v%d, v%d' % (vSP + 1, vSP + 1, vSP + 2 * p + 1)]
        ops += ['v_mov_b32 v5, v%d' % vSP, 'v_mov_b32 v6, v%d' % (vSP + 1), 's_lshl_b32 s%d, s%d, 9' % (sT[1], sW), 's_add_u32 s%d, s%d, %d' % (sT[1], sT[1], g.STL),
                'v_permlane32_swap_b32 v%d, v5' % vSP, 'v_permlane32_swap_b32 v%d, v6' % (vSP + 1),
                'v_add_f32 v%d, v%d, v5' % (vSP, vSP), 'v_add_f32 v%d, v%d, v6' % (vSP + 1, vSP + 1)]
        b = Asm(); ln_finish(b, 'v%d' % vSP, 'v%d' % (vSP + 1), 'v5', 'v6', 'v7', 'v3')
        ops += [l.strip() for l in b.out if not l.strip().startswith('s_nop')]
        X = vSP + 4
        ops += ['v_sub_f32 v3, 0, v3', 'v_cvt_pk_bf16_f32 v%d, v3, v3' % X, 'v_mov_b32 v%d, v%d' % (X + 1, X), 'v_mul_f32 v%d, %s, v7' % (X + 2, f32(-LOG2E)), 'v_mul_f32 v%d, v6, v6' % (X + 3),
                'v_lshlrev_b32 v4, 4, v2', 'v_add_u32 v5, s%d, v4' % sT[1], 'v_add_u32 v4, %d, v4' % g.STL,
                ((lambda: I('ds_write_b128 v5, %s' % vr(X, 4), tag='stw')), 6)]
        return ops
    def st_reads():
        for rt in range(4):
            I('ds_read_b64 %s, v4 offset:%d' % (vr(NMF + 2 * rt, 2), 512 * rt), tag='st')
            I('ds_read_b64 %s, v4 offset:%d' % (vr(CI + 2 * rt, 2), 512 * rt + 8), tag='st')
        I('v_mov_b32 v%d, 0' % (NMF + 8)); I('v_mov_b32 v%d, 0' % (NMF + 9))
    def acc(rt, c): return ACC + 32 * (rt % 2) + 16 * c
    def epi_ops(rt, c):
        b = acc(rt, c); c1, ir2 = CI + 2 * rt, CI + 2 * rt + 1
        ops = []
        for j in range(8): ops += ['v_mul_f32 v%d, v%d, v%d' % (TM + j, c1, b + j)]
        for j in range(8): ops += ['v_exp_f32 v%d, v%d' % (TM + j, TM + j), 'v_mul_f32 v%d, v%d, v%d' % (b + j, b + j, b + 8 + j)]
        for j in range(8): ops += ['v_fma_f32 v%d, v%d, v%d, v%d' % (TM + j, TM + j, ir2, ir2)]
        for j in range(8):
            ops += ['v_rcp_f32 v%d, v%d' % (TM + j, TM + j)]
            if j > 0: ops += ['v_mul_f32 v%d, v%d, v%d' % (b + j - 1, b + j - 1, TM + j - 1)]
        ops += ['v_cvt_pk_bf16_f32 v%d, v%d, v%d' % (b + 8 + p, b + 2 * p, b + 2 * p + 1) for p in range(3)]
        ops += ['v_mul_f32 v%d, v%d, v%d' % (b + 7, b + 7, TM + 7), 'v_cvt_pk_bf16_f32 v%d, v%d, v%d' % (b + 11, b + 6, b + 7)]
        ops.append(((lambda: I('buffer_store_dwordx4 %s, v%d, s[%d:%d], s%d offen offset:%d sc1' % (vr(b + 8, 4), vL16, g.sWS, g.sWS + 3, sO[rt], 1024 * c), tag='cst%d' % (rt // 2))), 16))
        return ops
    seq = [(rt, j) for rt in range(4) for j in range(28)]
    vis = 0
    def h_rd(n):
        nonlocal vis
        rt, j = seq[n]
        if rt > vis:
            vis = rt
            if rt == 1: a.wait(vm='h1', lg='stw')
            else: a.wait(vm='h%d' % rt)
            I('s_barrier')
            if rt == 1: st_reads()
        I('ds_read_b128 %s, v%d offset:%d' % (vr(HB + 4 * (n % NHB), 4), vHQ[4 * (rt // 2) + j // 7], (rt % 2) * 28672 + (j % 7) * 1024), tag='hr%d' % n)
    LA = NHB - 1
    for n in range(LA): h_rd(n)
    S = Side(a); S.carry = cfg.get('carry', 0); S.tol = cfg.get('tol', 1)
    wdq = [(j, c) for j in range(g.n_wd1) for c in range(2)]
    g.wdq2 = [(j, c) for j in range(g.n_wd1, 28) for c in range(2)]
    flags = set()
    def hd(rt, k): return ((lambda: h_dma(rt, k, k + 1)), 22)
    for n, (rt, j) in enumerate(seq):
        if j == 0:
            S.drain()
            if rt == 0:
                S.add([((lambda: I('buffer_load_dword v%d, v%d, s[%d:%d], 0 offen sc1' % (g.vPoll, g.vPA, g.sWS, g.sWS + 3), tag='wdp')), 16)])
                S.add([hd(1, k) for k in range(7)]); S.add(stats_ops()); S.add([((lambda: flags.add('st')), 0)])
                S.add([hd(2, k) for k in range(7)]); S.add([hd(3, k) for k in range(7)])
            if rt == 1:
                poll(g, 'kf_pw', g.vPA, 1, 7, g.sWS, early='wdp')
            if rt >= 1: S.add(epi_ops(rt - 1, 0) + epi_ops(rt - 1, 1))
            pf.stamp('rt%d' % rt)
        if cfg.get('fineC') and j in (7, 14, 21): pf.stamp('r%d_%d' % (rt, j))
        if n + LA == 28:
            while 'st' not in flags: S._one()
        if n + LA < len(seq): h_rd(n + LA)
        if rt == 0 and j in getattr(g, 'late_gu', []): a.wait(vm='gu%d' % j)
        a.wait(lg='hr%d' % n)
        for c in range(2):
            I(MF(vr(acc(rt, c), 16), ar(112 * c + 4 * j, 4), vr(HB + 4 * (n % NHB), 4), '0' if j == 0 else vr(acc(rt, c), 16)))
            if c == cfg.get('wdc', 1) and n >= 30 and n % 5 in (0, 2, 4) and wdq: wd_load(g, *wdq.pop(0))
            elif c == cfg.get('wdc', 1) and rt == 3 and 1 <= j <= cfg.get('wd3', 26) and not wdq: wd_load(g, *g.wdq2.pop(0))
            elif not (j == 0 and rt >= 1): S.emit(cfg.get('cb0', 25) if c == 0 else cfg.get('cb1', 8))
        if rt == 3 and j == 8:
            class Rec:
                def __init__(s_): s_.ops = []
                def I(s_, text, tag=None, counted=True): s_.ops.append(text if tag is None else ((lambda: a.I(text, tag=tag)), 16))
            real = g.a; g.a = Rec(); d_setup(g); S.add(g.a.ops); g.a = real
        if rt == 3 and j == cfg.get('midsig', 6):
            I('s_lshl_b32 s%d, s%d, 8' % (sT[6], g.sRB128)); I('s_add_u32 s%d, s%d, %d' % (sT[6], sT[6], CNT + 8192))
            a.wait(vm='cst0'); I('s_barrier'); sig_add(g, sT[6])
        if j == 27:
            a.wait(lg='st')
            for c in range(2): I(MF(vr(acc(rt, c), 16), vr(CSF + 4 * c, 4), vr(NMF + 2 * rt, 4), vr(acc(rt, c), 16)))
    S.drain()
    pf.stamp('mfmaC')
    assert not wdq
    for _ in range(min(len(g.wdq2), cfg.get('wd_pre', 8))): wd_load(g, *g.wdq2.pop(0))
    S.add(epi_ops(3, 0) + epi_ops(3, 1)); S.drain()
    pf.stamp('actst')

def d_setup(g):
    a = g.a; I = a.I; sT = g.sT; sW = g.sW; vL16 = g.vL16
    g.sA = g.S4[11:15]; g.sE, g.sHR, g.sOB = g.S4[2], g.S4[3], g.S4[4]
    I('s_lshr_b32 s%d, s%d, 1' % (sT[2], g.sRB64)); I('s_lshl_b32 s%d, s%d, 2' % (g.sE, sT[2])); I('s_and_b32 s%d, s%d, 1' % (sT[3], g.sRB64)); I('s_add_u32 s%d, s%d, s%d' % (g.sE, g.sE, sT[3]))
    I('s_lshl_b32 s%d, s%d, 8' % (sT[2], sT[2])); I('s_add_u32 s%d, s%d, %d' % (sT[2], sT[2], CNT + 8192)); I('v_mov_b32 v%d, s%d' % (g.vPA, sT[2]))
    I('buffer_load_dword v%d, v%d, s[%d:%d], 0 offen sc1' % (g.vPoll, g.vPA, g.sWS, g.sWS + 3), tag='p3e')
    I('s_mul_i32 s%d, s%d, 112' % (sT[0], g.sE)); I('s_mul_i32 s%d, s%d, 28' % (sT[1], sW)); I('s_add_u32 s%d, s%d, s%d' % (sT[0], sT[0], sT[1]))
    I('s_lshl_b32 s%d, s%d, 10' % (sT[0], sT[0])); I('s_add_u32 s%d, s%d, %d' % (sT[0], sT[0], ACTF))
    for q in range(4):
        I('s_add_u32 s%d, s%d, %d' % (sT[4], g.sR4, q)); I('s_and_b32 s%d, s%d, 3' % (sT[4], sT[4]))
        I('s_mul_i32 s%d, s%d, 7168' % (sT[4], sT[4])); I('s_add_u32 s%d, s%d, s%d' % (g.sA[q], sT[4], sT[0]))
    g.vA = [vL16, g.vLo[1], g.vLo[2], g.vLo[3]]
    I('v_add_u32 v%d, %d, v%d' % (g.vA[2], 2 * 114688, vL16)); I('v_add_u32 v%d, 4096, v%d' % (g.vA[3], g.vA[2]))
    I('s_lshr_b32 s%d, s%d, 1' % (sT[1], sW))
    I('s_mul_i32 s%d, s%d, 28' % (sT[0], g.sE)); I('s_lshl_b32 s%d, s%d, 1' % (sT[2], g.sCT)); I('s_add_u32 s%d, s%d, s%d' % (sT[2], sT[2], sT[1])); I('s_add_u32 s%d, s%d, s%d' % (sT[0], sT[0], sT[2]))
    I('s_lshl_b32 s%d, s%d, 10' % (sT[0], sT[0])); I('s_add_u32 s%d, s%d, %d' % (g.sHR, sT[0], HF))
    I('s_mul_i32 s%d, s%d, %d' % (sT[0], g.sE, 32 * 896)); I('s_lshl_b32 s%d, s%d, 5' % (sT[2], sT[2])); I('s_add_u32 s%d, s%d, s%d' % (g.sOB, sT[0], sT[2]))
    for t in range(1, 4):
        I('s_xor_b32 s%d, s%d, %d' % (sT[3], sW, t)); I('s_mul_i32 s%d, s%d, 6144' % (sT[3], sT[3])); I('s_add_u32 s%d, s%d, %d' % (sT[3], sT[3], (t - 1) * 2048))
        I('v_add_u32 v%d, s%d, v%d' % (g.vRW[t - 1], sT[3], vL16))
    I('s_mul_i32 s%d, s%d, 6144' % (sT[3], sW)); I('v_add_u32 v%d, s%d, v%d' % (g.vRR, sT[3], vL16))

def phase_D(g):
    a = g.a; I = a.I; sT = g.sT; pf = g.pf; cfg = g.cfg
    sW = g.sW; vL16 = g.vL16
    ACC, P0, RS = 8, 72, 104
    poll(g, 'kf_p3', g.vPA, 1, 14, g.sWS, early='p3e')
    pf.stamp('sync3')
    NR = 2 * g.act_ring; AB = g.act_base
    def issue(m):
        p, j = m // 28, m % 28; r = j % 7
        I('buffer_load_dwordx4 %s, v%d, s[%d:%d], s%d offen offset:%d sc1' % (ar(AB + 4 * (m % NR), 4), g.vA[2 * p + (r >= 4)], g.sWS, g.sWS + 3, g.sA[j // 7], 1024 * (r % 4)), tag='k%d' % m)
    LA = cfg.get('d_la', 16)
    I('s_add_u32 s%d, s%d, %d' % (sT[0], g.sHR, 2 * 28672))
    I('buffer_load_dwordx4 %s, v%d, s[%d:%d], s%d offen sc1' % (vr(g.vHK, 4), vL16, g.sWS, g.sWS + 3, g.sHR), tag='hr')
    I('buffer_load_dwordx4 %s, v%d, s[%d:%d], s%d offen sc1' % (vr(g.vHK + 4, 4), vL16, g.sWS, g.sWS + 3, sT[0]), tag='hr')
    for m in range(8): issue(m)
    I('s_lshl_b32 s%d, s%d, 8' % (sT[6], g.sRB128)); I('s_add_u32 s%d, s%d, %d' % (sT[6], sT[6], CNT + 8192 + 128))
    a.wait(vm='cst1'); I('s_barrier'); sig_add(g, sT[6])
    pf.stamp('sigC')
    for m in range(8, LA): issue(m)
    I('v_add_u32 v%d, 128, v%d' % (g.vPA, g.vPA))
    def acc(p, c): return ACC + 32 * p + 16 * c
    def xwrite(p):
        return ['ds_write_b128 v%d, %s offset:%d' % (g.vRW[t - 1], vr(acc(p, t & 1) + 8 * (t >> 1) + 4 * q, 4), 24576 * p + 1024 * q) for t in range(1, 4) for q in range(2)]
    def xfinish(p, pk):
        O = g.vHK + 4 * p; b = acc(p, 0)
        ops = [((lambda t=t, q=q: I('ds_read_b128 %s, v%d offset:%d' % (vr(P0 + 8 * t + 4 * q, 4), g.vRR, 24576 * p + 2048 * t + 1024 * q), tag='xr%d' % p)), 6) for t in range(3) for q in range(2)]
        ops += ['v_permlane32_swap_b32 v%d, v%d' % (O + k, O + 2 + k) for k in range(2)]
        for k in range(4): ops += ['v_lshlrev_b32 v%d, 16, v%d' % (RS + 2 * k, O + k), 'v_and_b32 v%d, 0xffff0000, v%d' % (RS + 2 * k + 1, O + k)]
        if pk:
            ops += ['v_pk_add_f32 %s, %s, %s' % (vr(b + v, 2), vr(b + v, 2), vr(RS + v, 2)) for v in range(0, 8, 2)]
            ops += [((lambda: a.wait(lg='xr%d' % p)), 3)]
            for v in range(0, 8, 2): ops += ['v_pk_add_f32 %s, %s, %s' % (vr(b + v, 2), vr(b + v, 2), vr(P0 + v, 2)), 'v_pk_add_f32 %s, %s, %s' % (vr(P0 + 8 + v, 2), vr(P0 + 8 + v, 2), vr(P0 + 16 + v, 2))]
            ops += ['v_pk_add_f32 %s, %s, %s' % (vr(b + v, 2), vr(b + v, 2), vr(P0 + 8 + v, 2)) for v in range(0, 8, 2)]
        else:
            ops += ['v_add_f32 v%d, v%d, v%d' % (b + v, b + v, RS + v) for v in range(8)]
            ops += [((lambda: a.wait(lg='xr%d' % p)), 3)]
            for v in range(8): ops += ['v_add_f32 v%d, v%d, v%d' % (b + v, b + v, P0 + v), 'v_add_f32 v%d, v%d, v%d' % (P0 + 8 + v, P0 + 8 + v, P0 + 16 + v)]
            ops += ['v_add_f32 v%d, v%d, v%d' % (b + v, b + v, P0 + 8 + v) for v in range(8)]
        ops += ['v_cvt_pk_bf16_f32 v%d, v%d, v%d' % (O + k, b + 2 * k, b + 2 * k + 1) for k in range(4)]
        ops += ['s_add_u32 s%d, s%d, %d' % (sT[1], g.sOB, 64 * 896 * p), 's_nop 0']
        ops += ['v_permlane32_swap_b32 v%d, v%d' % (O + k, O + 2 + k) for k in range(2)]
        ops += [((lambda: I('buffer_store_dwordx4 %s, v%d, s[%d:%d], s%d offen' % (vr(O, 4), g.vXo, g.sOUT, g.sOUT + 3, sT[1]))), 16)]
        return ops
    S = Side(a)
    P4 = cfg.get('p4', 22)
    for m in range(56):
        p, j = m // 28, m % 28
        if m == max(28 - LA, P4 - 8): I('buffer_load_dword v%d, v%d, s[%d:%d], 0 offen sc1' % (g.vPoll, g.vPA, g.sWS, g.sWS + 3), tag='p4e')
        if m == P4:
            poll(g, 'kf_p4', g.vPA, 1, 14, g.sWS, early='p4e')
            for mm in range(28, m + LA): issue(mm)
        if m == 29: S.add(xwrite(0))
        if m == 36:
            S.drain(); a.wait(lg=0); I('s_barrier'); S.add(xfinish(0, False))
        if g.wd_wait.get(j) and p == 0: a.wait(vm=['k%d' % m, 'wd%d' % j])
        else: a.wait(vm='k%d' % m)
        if m % 14 == 0: pf.stamp('k%d' % m)
        for c in range(2):
            f, r = g.wd_regs[j][c]
            I(MF(vr(acc(p, c), 16), vr(r, 4, f), ar(AB + 4 * (m % NR), 4), '0' if j == 0 else vr(acc(p, c), 16)))
            if c == 0:
                if m + LA < 56 and (m + LA < 28 or m >= P4): issue(m + LA)
                if g.wdq2:
                    jj, cc = g.wdq2.pop(0); wd_load(g, jj, cc); a.vm[-1] = 'wd%d' % jj; g.wd_wait[jj] = True
            else: S.emit(24)
    S.drain()
    pf.stamp('gemmD')
    for op in xwrite(1): I(op)
    a.wait(lg=0); I('s_barrier')
    S.add(xfinish(1, True)); S.drain()
    pf.stamp('out')
    if PROF: I('s_waitcnt vmcnt(0)')
    pf.dump(g.sWS)
    I('s_endpgm')

def pack_wd(g):
    a = g.a; I = a.I; sT = g.sT; sW = g.sW; vL16 = g.vL16
    a.label('kf_pack'); a.reset_counts()
    I('s_bfe_u32 s%d, s2, 0x30003' % sT[5]); I('s_and_b32 s%d, s2, 1' % sT[0]); I('s_lshl_b32 s%d, s%d, 3' % (sT[0], sT[0])); I('s_add_u32 s%d, s%d, s%d' % (sT[5], sT[5], sT[0]))
    I('s_and_b32 s%d, s2, 4' % sT[0]); I('s_lshl_b32 s%d, s%d, 2' % (sT[0], sT[0])); I('s_add_u32 s%d, s%d, s%d' % (sT[5], sT[5], sT[0]))
    I('s_cmp_ge_u32 s%d, 28' % sT[5]); a.branch('s_cbranch_scc1 kf_end')
    I('s_lshl_b32 s%d, s%d, 2' % (sT[0], sT[5])); I('s_add_u32 s%d, s%d, s%d' % (sT[0], sT[0], sW))
    I('s_mul_i32 s%d, s%d, 14336' % (sT[1], sT[0])); I('s_mul_i32 s%d, s%d, 14336' % (sT[2], sW))
    for i in range(14):
        if i % 4 == 0:
            I('s_add_u32 s%d, s%d, %d' % (sT[3], sT[1], 1024 * i)); I('s_add_u32 m0, s%d, %d' % (sT[2], 1024 * i))
        I('buffer_load_dwordx4 v%d, s[%d:%d], s%d offen offset:%d lds' % (vL16, g.sD, g.sD + 3, sT[3], 1024 * (i % 4)))
    I('v_lshrrev_b32 v3, 5, v1'); I('v_bfe_u32 v4, v1, 2, 2'); I('v_lshl_add_u32 v4, v3, 2, v4'); I('v_mul_u32_u24 v4, 896, v4')
    I('v_bfe_u32 v5, v1, 4, 1'); I('v_lshl_add_u32 v4, v5, 5, v4'); I('v_and_b32 v5, 3, v1'); I('v_lshl_add_u32 v4, v5, 3, v4')
    I('v_add_u32 v4, s%d, v4' % sT[2])
    I('s_lshl_b32 s%d, s%d, 10' % (sT[1], sT[0])); I('s_add_u32 s%d, s%d, %d' % (sT[1], sT[1], WDP))
    I('s_mul_i32 s%d, s%d, 37' % (sT[5], sT[5])); I('s_lshr_b32 s%d, s%d, 8' % (sT[5], sT[5]))
    a.wait(vm=0)
    B0 = 80
    for ct in range(18):
        if ct < 14: trfrag(a, B0 + 4 * ct, 4, 64 * ct, 't%d' % ct, d2=8 * 896)
        if ct >= 4:
            cc = ct - 4
            a.wait(lg='t%d' % cc)
            I('buffer_store_dwordx4 %s, v%d, s[%d:%d], s%d offen sc1' % (vr(B0 + 4 * cc, 4), vL16, g.sWS, g.sWS + 3, sT[1]), tag='wst')
            I('s_add_u32 s%d, s%d, %d' % (sT[1], sT[1], 112 * 1024))
    signal(g, 5, sT[5], 'wst')
    if PROF:
        nm = list(g.pf.names); g.pf.n = 14; g.pf.stamp('x'); g.pf.names = nm[:-1]; g.pf.n = len(nm) - 1; g.pf.dump(g.sWS)

def gen_F(a, cfg=None):
    cfg = cfg or {}
    name = KN + '_kernel'
    head(a, name)
    g = setup(a, cfg)
    homes = [('v', 140 + 4 * k) for k in range(3)] + [('a', 224 + 4 * k) for k in range(8)] + [('v', 156 + 4 * k) for k in range(19)] + [('a', 4 * k) for k in range(26)]
    g.n_wd1 = 15
    g.wd_regs = [(homes[2 * j], homes[2 * j + 1]) for j in range(28)]
    g.wd_wait = {}
    g.act_base, g.act_ring = 104, 15
    phase_A(g); phase_B(g); phase_C(g); phase_D(g); pack_wd(g)
    a.label('kf_end')
    a.I('s_endpgm')
    a.raw('kf_pad:\n.fill (49664 - (kf_pad - %s)) / 4, 4, 0xbf800000' % name)
    return (name, 256, 256, 163840, 512, 102, 256)
```

```python
from gen_common import *
from types import SimpleNamespace as NS

CNT = KVACC + (128 << 10)
SPIN_MAX = 1 << 19
STATS = 19 << 20
V3 = ('v_fma_f32', 'v_cvt_pk_bf16_f32', 'v_add3_u32', 'v_lshl_add_u32', 'v_bfe_u32', 'v_cndmask_b32', 'v_mul_lo_u32', 'v_accvgpr_read_b32', 'v_accvgpr_write_b32')

def MF(d, A, B, C): return 'v_mfma_f32_32x32x16_bf16 %s, %s, %s, %s' % (d, A, B, C)

def cost(o):
    if isinstance(o, tuple): return o[1]
    op = o.split()[0]
    if op in TRANS: return 8.4
    if op in V3 or op.startswith('v_pk'): return 5.3
    if op.startswith('v_'): return 4.2 if '0x' not in o else 5.3
    if op.startswith('ds_'): return 5.3
    if op.startswith('buffer_'): return 16
    return 3.0

class Side:
    def __init__(self, a): self.a = a; self.q = []; self.credit = 0.0; self.carry = 8; self.tol = 2
    def add(self, ops): self.q += list(ops)
    def _one(self):
        o = self.q.pop(0)
        if isinstance(o, tuple): o[0]()
        else: self.a.I(o)
    def emit(self, budget):
        self.credit = min(self.credit + budget, budget + self.carry)
        while self.q and cost(self.q[0]) <= self.credit + self.tol:
            self.credit -= cost(self.q[0]); self._one()
    def drain(self):
        while self.q: self._one()
        self.credit = 0.0

def poll(g, lbl, addr_v, lanes_mask, target, srdreg, early=None):
    a = g.a; I = a.I
    saved = list(a.vm)
    I('s_mov_b32 s%d, 0' % g.sSPIN)
    if early:
        a.wait(vm=early)
        a.branch('s_branch %s_chk' % lbl)
    a.label(lbl)
    I('buffer_load_dword v%d, v%d, s[%d:%d], 0 offen sc1' % (g.vPoll, addr_v, srdreg, srdreg + 3), counted=False)
    I('s_add_u32 s%d, s%d, 1' % (g.sSPIN, g.sSPIN))
    I('s_waitcnt vmcnt(0)')
    a.label(lbl + '_chk')
    I('v_cmp_le_u32 vcc, %s, v%d' % (target, g.vPoll))
    I('s_cmp_ge_u32 s%d, %d' % (g.sSPIN, SPIN_MAX))
    a.branch('s_cbranch_scc1 %s_ok' % lbl)
    I('s_and_b32 s%d, vcc_lo, %d' % (g.sT[7], lanes_mask))
    I('s_cmp_eq_u32 s%d, %d' % (g.sT[7], lanes_mask))
    a.branch('s_cbranch_scc1 %s_ok' % lbl)
    I('s_sleep %d' % g.cfg.get('sleep', 1))
    a.branch('s_branch %s' % lbl)
    a.label(lbl + '_ok')
    a.vm = saved

def sig_add(g, off_s, v=2):
    I = g.a.I
    I('v_mov_b32 v%d, 1' % v); I('v_mov_b32 v%d, 0' % (v + 1))
    I('s_mov_b64 exec, 1')
    I('buffer_atomic_add v%d, v%d, s[%d:%d], s%d offen sc1' % (v, v + 1, g.sKZ, g.sKZ + 3, off_s), tag='sig')
    I('s_mov_b64 exec, -1')

def signal(g, kind, idx_s, wait_tag):
    a = g.a; I = a.I
    I('s_lshl_b32 s%d, s%d, 8' % (g.sT[6], idx_s)); I('s_add_u32 s%d, s%d, %d' % (g.sT[6], g.sT[6], CNT + 4096 * kind))
    a.wait(vm=wait_tag)
    I('s_barrier')
    sig_add(g, g.sT[6])

def trfrag(a, dst, addr, off, tag, f='v', d2=256):
    a.I('ds_read_b64_tr_b16 %s, v%d offset:%d' % (vr(dst, 2, f), addr, off), tag=tag)
    a.I('ds_read_b64_tr_b16 %s, v%d offset:%d' % (vr(dst + 2, 2, f), addr, off + d2), tag=tag)

def setup(a, cfg):
    g = NS(a=a, cfg=cfg); I = a.I
    g.pf = Prof(a, 0, vreg=255, s=100)
    (g.sX, g.sWq, g.sP0, g.sP1, g.sPO, g.sD, g.sOUT, g.sDBG, g.sWS, g.sKZ, g.sDZ) = 24, 28, 32, 36, 40, 44, 48, 52, 56, 60, 64
    (g.sW, g.sRBA, g.sH, g.sRHO, g.sRB64, g.sCS, g.sRB128, g.sFS, g.sR4) = 68, 69, 70, 71, 72, 73, 74, 75, 76
    g.sT = [77, 78, 79, 80, 81, 82, 83, 84]
    g.sONE, g.sEPS, g.sL2E = 85, 86, 87
    g.sMV28, g.sHI = 88, 90
    g.sPA, g.sPC = 92, 93
    g.sSPIN = 94; g.sPT = 95
    g.sQ = [96, 97, 98, 99]
    g.S4 = list(range(4, 24))
    g.WQL, g.WKL, g.WVL = 0, 51200, 79872
    g.STATL, g.CSL, g.CSQ2L = 28672, 29696, 31232
    g.XRL, g.KVRL, g.REDL, g.HL, g.STL = 108544, 32768, 0, 0, 114688
    g.XCL = 116736
    V = Alloc(232, 255)
    g.vHK = V.get(8, 4); g.vL16 = V.get()
    g.vLo = [g.vL16, V.get(), V.get(), V.get()]
    g.vRW = [V.get() for _ in range(3)]; g.vRR = V.get()
    g.vPoll, g.vPA, g.vPT = V.get(), V.get(), V.get()
    g.vXo = V.get(); g.vCSg = V.get(2, 2); g.vLx = V.get()
    sT = g.sT
    I('s_cmp_ge_u32 s2, 256'); a.branch('s_cbranch_scc1 kf_end')
    g.pf.stamp('start')
    load_args(a)
    I('s_getpc_b64 s[%d:%d]' % (g.sMV28, g.sMV28 + 1))
    I('v_lshrrev_b32 v2, 6, v0'); I('v_and_b32 v1, 63, v0')
    I('s_lshr_b32 s%d, s2, 3' % sT[1]); I('s_mul_i32 s%d, s%d, 12' % (sT[2], sT[1]))
    I('v_mul_u32_u24 v3, 3, v2'); I('v_add3_u32 v3, v3, v1, s%d' % sT[2]); I('v_lshlrev_b32 v3, 7, v3')
    I('s_mov_b64 exec, 7')
    I('global_load_dword v%d, v3, s[%d:%d]' % (g.vPoll, g.sMV28, g.sMV28 + 1), tag='code')
    I('s_mov_b64 exec, -1')
    I('v_readfirstlane_b32 s%d, v2' % g.sW)
    I('s_and_b32 s%d, s2, 7' % sT[0])
    I('s_lshr_b32 s%d, s%d, 1' % (sT[2], sT[0])); I('s_lshl_b32 s%d, s%d, 2' % (sT[2], sT[2]))
    I('s_and_b32 s%d, s%d, 3' % (sT[3], sT[1])); I('s_add_u32 s%d, s%d, s%d' % (g.sRBA, sT[2], sT[3]))
    I('s_and_b32 s%d, s%d, 1' % (sT[4], sT[0])); I('s_lshr_b32 s%d, s%d, 2' % (sT[5], sT[1]))
    I('s_lshl_b32 s%d, s%d, 3' % (g.sH, sT[4])); I('s_add_u32 s%d, s%d, s%d' % (g.sH, g.sH, sT[5]))
    I('s_lshl_b32 s%d, s%d, 1' % (g.sRHO, sT[3])); I('s_add_u32 s%d, s%d, s%d' % (g.sRHO, g.sRHO, sT[5]))
    I('s_sub_u32 s%d, s%d, 7' % (sT[6], g.sRHO)); I('s_cmp_ge_u32 s%d, 7' % g.sRHO); I('s_cselect_b32 s%d, s%d, s%d' % (g.sRHO, sT[6], g.sRHO))
    I('s_and_b32 s%d, s%d, 3' % (sT[2], sT[0])); I('s_lshr_b32 s%d, s%d, 2' % (sT[3], sT[0]))
    I('s_lshr_b32 s%d, s%d, 2' % (sT[4], sT[1])); I('s_and_b32 s%d, s%d, 3' % (sT[5], sT[1]))
    I('s_mul_i32 s%d, s%d, 86' % (sT[6], sT[1])); I('s_lshr_b32 s%d, s%d, 8' % (sT[6], sT[6]))
    I('s_mul_i32 s%d, s%d, 3' % (sT[7], sT[6])); I('s_sub_u32 s%d, s%d, s%d' % (sT[7], sT[1], sT[7]))
    I('s_lshl_b32 s%d, s%d, 2' % (g.sFS, sT[2])); I('s_mul_i32 s%d, s%d, 3' % (g.sCS, sT[2])); I('s_add_u32 s%d, s%d, 2' % (g.sCS, g.sCS))
    I('s_lshl_b32 s%d, s%d, 5' % (g.sRB64, sT[2])); I('s_mul_i32 s%d, s%d, 24' % (g.sR4, sT[2])); I('s_add_u32 s%d, s%d, 16' % (g.sR4, g.sR4))
    I('s_cmp_lt_u32 s%d, 2' % sT[2])
    I('s_cselect_b32 s%d, s%d, s%d' % (sT[4], sT[4], sT[6])); I('s_cselect_b32 s%d, s%d, s%d' % (sT[5], sT[5], sT[7]))
    I('s_cselect_b32 s%d, s%d, s%d' % (g.sFS, g.sFS, g.sCS)); I('s_cselect_b32 s%d, s%d, s%d' % (sT[6], g.sRB64, g.sR4))
    I('s_cselect_b32 s%d, 32, 24' % sT[7])
    I('s_add_u32 s%d, s%d, s%d' % (g.sFS, g.sFS, sT[5]))
    I('s_and_b32 s%d, s%d, 7' % (sT[4], sT[4])); I('s_and_b32 s%d, s%d, 3' % (g.sR4, sT[4]))
    I('s_lshl_b32 s%d, s%d, 3' % (g.sRB128, sT[3])); I('s_add_u32 s%d, s%d, s%d' % (g.sRB128, g.sRB128, sT[4]))
    I('s_cmp_ge_u32 s%d, s%d' % (sT[1], sT[7])); I('s_cselect_b32 s%d, 0, s%d' % (sT[5], sT[1]))
    I('s_mul_i32 s%d, s%d, 112' % (sT[4], sT[3])); I('s_add_u32 s%d, s%d, s%d' % (sT[4], sT[4], sT[6])); I('s_add_u32 s%d, s%d, s%d' % (sT[4], sT[4], sT[5]))
    I('s_mul_i32 s%d, s%d, 9363' % (g.sRB64, sT[4])); I('s_lshr_b32 s%d, s%d, 16' % (g.sRB64, g.sRB64))
    I('s_mul_i32 s%d, s%d, 7' % (sT[5], g.sRB64)); I('s_sub_u32 s%d, s%d, s%d' % (g.sCS, sT[4], sT[5]))
    I('s_mul_i32 s%d, s2, 9363' % g.sPA); I('s_lshr_b32 s%d, s%d, 16' % (g.sPA, g.sPA))
    I('s_mul_i32 s%d, s%d, 7' % (g.sPC, g.sPA)); I('s_sub_u32 s%d, s2, s%d' % (g.sPC, g.sPC))
    return g

def gu_load(g, j, c):
    r = j % 7
    g.a.I('buffer_load_dwordx4 %s, v%d, s[%d:%d], s%d offen offset:%d sc1' % (ar(112 * c + 4 * j, 4), g.vLo[2 * c + (r >= 4)], g.sWS, g.sWS + 3, g.sQ[j // 7], 1024 * (r % 4)), tag='gu')
def wd_load(g, j, c):
    r = j % 7; f, reg = g.wd_regs[j][c]
    g.a.I('buffer_load_dwordx4 %s, v%d, s[%d:%d], s%d offen offset:%d sc1' % (vr(reg, 4, f), g.vLd[2 * c + (r >= 4)], g.sWS, g.sWS + 3, g.sQD[j // 7], 1024 * (r % 4)), tag='wd')

def phase_A(g):
    a = g.a; I = a.I; sT = g.sT; pf = g.pf; cfg = g.cfg
    sW, sH, sRBA = g.sW, g.sH, g.sRBA
    XF, ACCK, ACCV, ACCQ, WB = 8, 120, 136, 152, 168
    VA = Alloc(200, 232)
    vONE = VA.get(4, 4)
    vX = [VA.get() for _ in range(4)]; vW = VA.get()
    vXR = [VA.get() for _ in range(4)]
    vT, vTc, vTo = VA.get(), VA.get(), VA.get()
    vS1a, vS1b, vS2a, vS2b = [VA.get() for _ in range(4)]
    vRN = VA.get(2, 2); vCS = VA.get(2, 2)
    vN4, vCA, vSA = VA.get(), VA.get(), VA.get()
    vXS = [VA.get() for _ in range(4)]
    vRed = vX[0:2]; vKW = vX[2]
    vPT = [g.vHK, g.vHK + 1, g.vHK + 2, g.vHK + 3]; vPD = g.vHK + 4
    aPK = 0
    LAH = cfg.get('lah', 2)
    xslot = {j: j % 3 for j in range(7)}
    assert LAH == 2
    aC0, aC1 = 224, 240
    vL16 = g.vL16
    I('v_lshrrev_b32 v2, 3, v1'); I('v_lshrrev_b32 v3, 4, v1'); I('v_and_b32 v4, 7, v1')
    I('v_xor_b32 v5, v4, v3'); I('v_lshlrev_b32 v5, 4, v5')
    I('v_mul_u32_u24 v6, 896, v2'); I('v_add_u32 v%d, v6, v5' % vX[0])
    I('v_xor_b32 v%d, 64, v%d' % (vX[1], vX[0])); I('v_add_u32 v%d, 7168, v%d' % (vX[1], vX[1]))
    I('v_add_u32 v%d, 14336, v%d' % (vX[2], vX[0])); I('v_add_u32 v%d, 14336, v%d' % (vX[3], vX[1]))
    I('v_lshrrev_b32 v5, 2, v1'); I('v_and_b32 v6, 3, v1')
    I('v_mul_u32_u24 v7, 2688, v5'); I('v_lshl_add_u32 v%d, v6, 4, v7' % vW)
    I('v_lshlrev_b32 v%d, 4, v1' % vL16)
    I('v_and_b32 v5, 15, v1'); I('v_lshlrev_b32 v5, 4, v5'); I('v_lshl_add_u32 v5, v3, 14, v5')
    for i in range(4): I('v_mov_b32 v%d, 0' % (vONE + i))
    sXB, sWB, sXRB, sCL, sCC, sW10, sW12 = g.sQ[0], g.sQ[1], g.sQ[2], g.sQ[3], 3, g.sSPIN, g.sPT
    I('s_lshl_b32 s%d, s%d, 10' % (sW10, sW)); I('s_lshl_b32 s%d, s%d, 12' % (sW12, sW))
    I('s_lshl_b32 s%d, s%d, 2' % (sT[0], sRBA)); I('s_add_u32 s%d, s%d, s%d' % (sT[0], sT[0], sW))
    I('s_mul_i32 s%d, s%d, %d' % (sXB, sT[0], 32 * 896))
    I('s_mul_i32 s%d, s%d, 56' % (sWB, sH)); I('s_mul_i32 s%d, s%d, %d' % (sT[1], sW, 16 * 2688)); I('s_add_u32 s%d, s%d, s%d' % (sWB, sWB, sT[1]))
    I('s_mul_i32 s%d, s%d, 12288' % (sXRB, sW)); I('s_add_u32 s%d, s%d, %d' % (sXRB, sXRB, g.XRL))
    I('s_mov_b32 s%d, s%d' % (sCL, g.sRHO)); I('s_mov_b32 s%d, s%d' % (sCC, g.sRHO))
    I('s_waitcnt lgkmcnt(0)')
    pf.stamp('args')
    srd(a, g.sX, 4, 2048 * 896); srd(a, g.sWq, 6, 448 * 2688)
    def adv_ops(s): return ['s_add_u32 s%d, s%d, 1' % (s, s), 's_cmp_eq_u32 s%d, 7' % s, 's_cselect_b32 s%d, 0, s%d' % (s, s)]
    def adv(s):
        for o in adv_ops(s): I(o)
    def grp(ops):
        def f():
            for o in ops:
                if callable(o): o()
                else: I(o)
        return f
    def a_groups(j):
        G = []
        pre = ['s_mul_i32 s%d, s%d, %d' % (sT[1], sCL, 64 * 2688), 's_lshl_b32 s%d, s%d, 12' % (sT[2], sCL), 's_add_u32 s%d, s%d, s%d' % (sT[2], sT[2], sW10),
               's_add_u32 m0, s%d, %d' % (sT[2], g.WKL - 896), 's_add_u32 s%d, s%d, s%d' % (sT[1], sT[1], sWB)]
        G.append(grp(pre + [lambda: I('buffer_load_dwordx4 v%d, s[%d:%d], s%d offen offset:896 lds' % (vW, g.sWq, g.sWq + 3, sT[1]), tag='c%d' % j)]))
        G.append(grp(['s_add_u32 m0, s%d, %d' % (sT[2], g.WVL - 1792), 's_lshl_b32 s%d, s%d, 7' % (sT[0], sCL),
                      lambda: I('buffer_load_dwordx4 v%d, s[%d:%d], s%d offen offset:1792 lds' % (vW, g.sWq, g.sWq + 3, sT[1]), tag='c%d' % j)]))
        for q in range(4):
            m = 's_add_u32 m0, s%d, %d' % (sXRB, xslot[j] * 4096 + q * 1024)
            mid = ['s_add_u32 s%d, s%d, s%d' % (sT[0], sT[0], sXB)] if q == 0 else (adv_ops(sCL) if q == 1 else [])
            G.append(grp([m] + mid + [lambda q=q: I('buffer_load_dwordx4 v%d, s[%d:%d], s%d offen lds' % (vX[q], g.sX, g.sX + 3, sT[0]), tag='c%d' % j)]))
        if j >= cfg.get('wq0', 7):
            G.append(grp(['s_add_u32 m0, s%d, %d' % (sT[2], g.WQL), 's_nop 0',
                          lambda: I('buffer_load_dwordx4 v%d, s[%d:%d], s%d offen lds' % (vW, g.sWq, g.sWq + 3, sT[1]), tag='wq')]))
        return G
    def a_loads(j):
        for f in a_groups(j): f()
    def q_groups(n):
        return [grp(['s_mul_i32 s%d, s%d, %d' % (sT[1], sCL, 64 * 2688), 's_lshl_b32 s%d, s%d, 12' % (sT[2], sCL), 's_add_u32 s%d, s%d, s%d' % (sT[2], sT[2], sW10),
                     's_add_u32 m0, s%d, %d' % (sT[2], g.WQL), 's_add_u32 s%d, s%d, s%d' % (sT[1], sT[1], sWB),
                     lambda: I('buffer_load_dwordx4 v%d, s[%d:%d], s%d offen lds' % (vW, g.sWq, g.sWq + 3, sT[1]), tag='wq')] + adv_ops(sCL)) for _ in range(n)]
    a_loads(0)
    srd(a, g.sWS, 22, WS_BYTES); srd(a, g.sKZ, 22, WS_BYTES)
    srd(a, g.sDZ, 20, 256)
    I('s_cmp_eq_u32 s%d, 0' % sRBA); I('s_cselect_b32 s%d, %s, 0' % (g.sKZ + 2, hex(WS_BYTES))); I('s_cselect_b32 s%d, 256, 0' % (g.sDZ + 2))
    srd(a, g.sD, 16, 1792 * 896); srd(a, g.sOUT, 18, 2048 * 896); srd(a, g.sDBG, 20, 256); srd(a, g.sPO, 22, WS_BYTES)
    I('s_cmp_lt_u32 s%d, 28' % g.sPA)
    for k in range(2):
        I('s_cselect_b32 s%d, s%d, s%d' % (g.sP0 + k, 12 + k, 8 + k)); I('s_cselect_b32 s%d, s%d, s%d' % (g.sP1 + k, 14 + k, 8 + k))
    sel(a, g.sP0 + 2, 448 * 3584, 448 * 896)
    I('s_mov_b32 s%d, 0x20000' % (g.sP0 + 3)); I('s_mov_b32 s%d, 0x20000' % (g.sP1 + 3))
    I('s_cmp_lt_u32 s%d, 32' % g.sPA)
    I('s_cselect_b32 s%d, s%d, 0' % (g.sP0 + 2, g.sP0 + 2)); I('s_mov_b32 s%d, s%d' % (g.sP1 + 2, g.sP0 + 2)); I('s_cselect_b32 s%d, %s, 0' % (g.sPO + 2, hex(WS_BYTES)))
    I('s_lshl_b32 s%d, s%d, 12' % (sT[3], sH)); I('s_add_u32 s%d, s%d, s%d' % (sT[3], sT[3], sW10)); I('s_add_u32 s%d, s%d, %d' % (sT[3], sT[3], KVACC))
    I('buffer_store_dwordx4 v[%d:%d], v%d, s[%d:%d], s%d offen sc0 sc1' % (vONE, vONE + 3, vL16, g.sKZ, g.sKZ + 3, sT[3]), tag='zero')
    I('s_lshl_b32 s%d, s%d, 8' % (sT[3], sH)); I('s_add_u32 s%d, s%d, s%d' % (sT[3], sT[3], sW12)); I('s_add_u32 s%d, s%d, %d' % (sT[3], sT[3], CNT))
    I('s_mov_b32 exec_hi, 0')
    I('buffer_store_dwordx4 v[%d:%d], v5, s[%d:%d], s%d offen sc0 sc1' % (vONE, vONE + 3, g.sKZ, g.sKZ + 3, sT[3]), tag='zero')
    I('s_lshl_b32 s%d, s%d, 10' % (sT[3], sH)); I('s_lshl_b32 s%d, s%d, 8' % (sT[4], sW)); I('s_add_u32 s%d, s%d, s%d' % (sT[3], sT[3], sT[4])); I('s_add_u32 s%d, s%d, %d' % (sT[3], sT[3], CSGU))
    I('s_mov_b32 exec_lo, 0xffff')
    I('buffer_store_dwordx4 v[%d:%d], v%d, s[%d:%d], s%d offen sc0 sc1' % (vONE, vONE + 3, vL16, g.sKZ, g.sKZ + 3, sT[3]), tag='zero')
    I('s_mov_b64 exec, -1')
    for d, sr_ in zip(g.S4[0:7], (sXB, sWB, sXRB, sCL, sCC, sW10, sW12)): I('s_mov_b32 s%d, s%d' % (d, sr_))
    sXB, sWB, sXRB, sCL, sCC, sW10, sW12 = g.S4[0:7]
    sPS = g.S4[7:11]; sPOs = g.S4[11:15]; sPSG = g.S4[15]; sPCS = g.S4[16]
    if cfg.get('c1early'): a_loads(1)
    A_, C_ = g.sPA, g.sPC
    I('s_lshl_b32 s%d, s%d, 2' % (sT[4], C_)); I('s_add_u32 s%d, s%d, s%d' % (sT[4], sT[4], sW))
    I('s_mul_i32 s%d, s%d, %d' % (sT[5], sT[4], 16 * 3584)); I('s_lshl_b32 s%d, s%d, 7' % (sT[6], A_)); I('s_add_u32 s%d, s%d, s%d' % (sPS[0], sT[5], sT[6]))
    I('s_mul_i32 s%d, s%d, 112' % (sT[5], A_)); I('s_add_u32 s%d, s%d, s%d' % (sT[5], sT[5], sT[4]))
    I('s_lshl_b32 s%d, s%d, 10' % (sT[5], sT[5])); I('s_add_u32 s%d, s%d, %d' % (sPOs[0], sT[5], GUP))
    I('s_lshr_b32 s%d, s%d, 1' % (sPSG, A_)); I('s_lshl_b32 s%d, s%d, 8' % (sPSG, sPSG)); I('s_add_u32 s%d, s%d, %d' % (sPSG, sPSG, CNT + 3 * 4096))
    I('s_sub_u32 s%d, s%d, 28' % (sT[4], A_)); I('s_lshl_b32 s%d, s%d, 2' % (sT[4], sT[4])); I('s_add_u32 s%d, s%d, s%d' % (sT[4], sT[4], sW))
    I('s_mul_i32 s%d, s%d, %d' % (sT[5], sT[4], 28 * 896)); I('s_lshl_b32 s%d, s%d, 7' % (sT[6], C_)); I('s_add_u32 s%d, s%d, s%d' % (sPS[1], sT[5], sT[6]))
    I('s_lshl_b32 s%d, s%d, 16' % (sT[5], C_)); I('s_lshl_b32 s%d, s%d, 11' % (sT[6], sT[4]))
    I('s_add_u32 s%d, s%d, s%d' % (sT[5], sT[5], sT[6])); I('s_add_u32 s%d, s%d, %d' % (sPOs[1], sT[5], WOP))
    I('s_lshl_b32 s%d, s%d, 8' % (sT[5], C_)); I('s_add_u32 s%d, s%d, %d' % (sT[5], sT[5], CNT + 4 * 4096))
    I('s_cmp_lt_u32 s%d, 32' % A_); I('s_cselect_b32 s%d, s%d, 0x20000000' % (sT[5], sT[5]))
    I('s_cmp_lt_u32 s%d, 28' % A_)
    I('s_cselect_b32 s%d, s%d, s%d' % (sPS[0], sPS[0], sPS[1])); I('s_cselect_b32 s%d, s%d, s%d' % (sPOs[0], sPOs[0], sPOs[1]))
    I('s_cselect_b32 s%d, s%d, s%d' % (sPSG, sPSG, sT[5]))
    I('s_mul_i32 s%d, s%d, 512' % (sPCS, A_)); I('s_cselect_b32 s%d, s%d, 0x20000000' % (sPCS, sPCS))
    sel(a, sT[3], 3584, 896); sel(a, sT[4], 8 * 3584, 8 * 896); I('s_cselect_b32 s%d, 0, %d' % (sT[5], 16 * 896))
    sel(a, sT[6], 28672, 1024); sel(a, sT[7], 57344, 32768)
    sel(a, g.sONE, 16 * 128, 32); sel(a, g.sEPS, 8 * 128, 14 * 128); I('s_cselect_b32 s%d, 32, %d' % (g.sL2E, 8 * 128))
    I('s_add_u32 s%d, s%d, s%d' % (sPS[1], sPS[0], sT[4])); I('s_add_u32 s%d, s%d, s%d' % (sPS[2], sPS[0], sT[5])); I('s_add_u32 s%d, s%d, s%d' % (sPS[3], sPS[2], sT[4]))
    I('s_add_u32 s%d, s%d, s%d' % (sPOs[1], sPOs[0], sT[6])); I('s_add_u32 s%d, s%d, s%d' % (sPOs[2], sPOs[0], sT[7])); I('s_add_u32 s%d, s%d, s%d' % (sPOs[3], sPOs[2], sT[6]))
    I('v_mul_lo_u32 v5, v2, s%d' % sT[3]); I('v_lshl_add_u32 v%d, v4, 4, v5' % vPD)
    def flag_set():
        I('v_mov_b32 v5, 1'); I('s_lshl_b32 s%d, s%d, 2' % (sT[4], sH)); I('v_mov_b32 v6, s%d' % sT[4])
        I('s_mov_b64 exec, 1')
        I('buffer_atomic_add v5, v6, s[%d:%d], 0 offen sc1' % (g.sDZ, g.sDZ + 3), tag='flag')
        I('s_mov_b64 exec, -1')
        I('s_cmp_eq_u32 s%d, 0' % sW); I('s_cselect_b32 s%d, %s, 0' % (g.sKZ + 2, hex(WS_BYTES)))
    I('v_lshrrev_b32 v2, 5, v1'); I('v_bfe_u32 v3, v1, 4, 1'); I('v_bfe_u32 v4, v1, 2, 2'); I('v_and_b32 v5, 3, v1')
    I('s_mul_i32 s%d, s%d, 4608' % (g.sPT, sW)); I('s_add_u32 s%d, s%d, %d' % (g.sPT, g.sPT, g.KVRL))
    I('v_mul_lo_u32 v6, v3, s%d' % g.sONE); I('v_mul_lo_u32 v7, v2, s%d' % g.sEPS); I('v_add3_u32 v6, v6, v7, s%d' % g.sPT)
    I('v_lshl_add_u32 v6, v4, 7, v6'); I('v_lshl_add_u32 v%d, v5, 3, v6' % vPT[0])
    I('v_add_u32 v%d, s%d, v%d' % (vPT[1], g.sL2E, vPT[0])); I('v_add_u32 v%d, 64, v%d' % (vPT[2], vPT[0])); I('v_add_u32 v%d, 64, v%d' % (vPT[3], vPT[1]))
    I('v_lshlrev_b32 v6, 9, v2'); I('v_lshl_add_u32 v6, v4, 6, v6'); I('v_lshl_add_u32 v6, v5, 3, v6')
    I('v_lshl_add_u32 v%d, v3, 5, v6' % vT); I('v_add_u32 v%d, %d, v%d' % (vT, g.WKL, vT))
    I('v_and_b32 v6, 31, v1'); I('v_lshlrev_b32 v%d, 2, v6' % vN4)
    I('v_lshrrev_b32 v7, 3, v6'); I('v_lshlrev_b32 v7, 10, v7')
    I('v_and_b32 v3, 7, v6'); I('v_lshl_add_u32 v7, v3, 7, v7')
    I('v_bfe_u32 v3, v6, 1, 3'); I('v_xor_b32 v3, v3, v2'); I('v_lshl_add_u32 v7, v3, 4, v7')
    I('v_add_u32 v%d, s%d, v7' % (vXR[0], sXRB))
    for t in range(1, 4): I('v_xor_b32 v%d, %d, v%d' % (vXR[t], 32 * t, vXR[0]))
    I('v_mul_u32_u24 v7, 896, v6'); I('v_lshl_add_u32 v%d, v2, 4, v7' % g.vXo)
    I('v_cmp_eq_u32 s[%d:%d], 28, v6' % (g.sMV28, g.sMV28 + 1)); I('v_cmp_eq_u32 s[%d:%d], 0, v2' % (g.sHI, g.sHI + 1))
    I('s_mov_b32 s%d, 0x3f803f80' % g.sONE); I('s_mov_b32 s%d, %s' % (g.sEPS, f32(1e-6))); I('s_mov_b32 s%d, %s' % (g.sL2E, f32(LOG2E)))
    for i in range(4): I('v_mov_b32 v%d, s%d' % (vONE + i, g.sONE))
    for r in (vS1a, vS1b, vS2a, vS2b): I('v_mov_b32 v%d, 0' % r)
    I('s_lshl_b32 s%d, s%d, 7' % (sT[3], sW)); I('s_add_u32 s%d, s%d, %d' % (sT[3], sT[3], g.CSL)); I('v_add_u32 v%d, s%d, v%d' % (vCA, sT[3], vN4))
    I('s_lshl_b32 s%d, s%d, 8' % (sT[3], sW)); I('s_add_u32 s%d, s%d, %d' % (sT[3], sT[3], g.STATL))
    I('v_lshlrev_b32 v3, 4, v2'); I('v_add_u32 v%d, s%d, v3' % (vSA, sT[3]))
    for t in range(1, 4):
        I('s_xor_b32 s%d, s%d, %d' % (sT[3], sW, t)); I('s_mul_i32 s%d, s%d, 6144' % (sT[3], sT[3])); I('s_add_u32 s%d, s%d, %d' % (sT[3], sT[3], g.XCL + (t - 1) * 2048))
        I('v_add_u32 v%d, s%d, v%d' % (g.vRW[t - 1], sT[3], vL16))
    I('s_mul_i32 s%d, s%d, 6144' % (sT[3], sW)); I('s_add_u32 s%d, s%d, %d' % (sT[3], sT[3], g.XCL)); I('v_add_u32 v%d, s%d, v%d' % (g.vRR, sT[3], vL16))
    I('s_lshr_b32 s%d, s%d, 1' % (sT[3], sW)); I('s_lshl_b32 s%d, s%d, 8' % (sT[3], sT[3])); I('v_xor_b32 v%d, s%d, v%d' % (g.vLx, sT[3], vL16))
    I('v_add_u32 v%d, 4096, v%d' % (g.vLo[1], vL16)); I('v_add_u32 v%d, 28672, v%d' % (g.vLo[2], vL16)); I('v_add_u32 v%d, 32768, v%d' % (g.vLo[3], vL16))
    I('s_lshl_b32 s%d, s%d, 2' % (sT[3], g.sFS)); I('s_add_u32 s%d, s%d, s%d' % (sT[3], sT[3], sW)); I('s_mul_i32 s%d, s%d, 57344' % (sT[3], sT[3])); I('s_add_u32 s%d, s%d, %d' % (sT[3], sT[3], GUP))
    for q in range(4):
        I('s_add_u32 s%d, s%d, %d' % (sT[4], g.sR4, q)); I('s_and_b32 s%d, s%d, 3' % (sT[4], sT[4]))
        I('s_mul_i32 s%d, s%d, 7168' % (sT[4], sT[4])); I('s_add_u32 s%d, s%d, s%d' % (g.sQ[q], sT[4], sT[3]))
    if not cfg.get('c1early'): a_loads(1)
    if LAH > 2: a_loads(2)
    def pk_group(j):
        s = g.sP0 if j < 2 else g.sP1
        return grp(['s_add_u32 m0, s%d, %d' % (g.sPT, 1024 * j), lambda: I('buffer_load_dwordx4 v%d, s[%d:%d], s%d offen lds' % (vPD, s, s + 3, sPS[j]), tag='pk')])
    pf.stamp('issued')
    def w_addr():
        I('s_lshl_b32 s%d, s%d, 12' % (sT[3], sCC)); I('v_add_u32 v%d, s%d, v%d' % (vTc, sT[3], vT)); I('v_add_u32 v%d, s%d, v%d' % (vTo, sW10, vTc))
        adv(sCC)
    def flag_poll():
        I('v_lshlrev_b32 v%d, 2, v1' % g.vPA)
        I('buffer_load_dword v%d, v%d, s[%d:%d], 0 offen sc1' % (g.vPoll, g.vPA, g.sDBG, g.sDBG + 3), tag='poll')
    def pack_rd():
        a.wait(vm='pk')
        for f in range(4): trfrag(a, aPK + 4 * f, vPT[f], 0, 'pkr', f='a', d2=512)
    def pack_st():
        a.wait(lg='pkr')
        for f in range(4): I('buffer_store_dwordx4 %s, v%d, s[%d:%d], s%d offen sc1' % (ar(aPK + 4 * f, 4), vL16, g.sPO, g.sPO + 3, sPOs[f]), tag='pks')
    def go_poll():
        I('s_lshl_b32 s%d, s%d, 8' % (sT[4], g.sFS)); I('s_add_u32 s%d, s%d, %d' % (sT[4], sT[4], CNT + 3 * 4096))
        I('s_lshl_b32 s%d, s%d, 8' % (sT[5], g.sCS)); I('s_add_u32 s%d, s%d, %d' % (sT[5], sT[5], CNT + 4 * 4096))
        I('v_mov_b32 v%d, s%d' % (vXS[0], sT[5])); I('v_writelane_b32 v%d, s%d, 0' % (vXS[0], sT[4]))
        I('v_mov_b32 v%d, 4' % g.vPT); I('v_writelane_b32 v%d, 14, 0' % g.vPT)
        I('buffer_load_dword v%d, v%d, s[%d:%d], 0 offen sc1' % (g.vPoll, vXS[0], g.sWS, g.sWS + 3), tag='gop')
    def tlb_touch():
        sh = cfg.get('tlbsh', 19)
        I('v_lshlrev_b32 v5, %d, v1' % sh); I('s_lshl_b32 s%d, s%d, %d' % (sT[4], sW, sh - 2))
        I('s_mov_b32 exec_hi, 0xff')
        I('buffer_load_dword v%d, v5, s[%d:%d], s%d offen sc1' % (g.vCSg, g.sWS, g.sWS + 3, sT[4]), tag='tlb')
        I('s_mov_b32 exec_hi, 0'); I('s_mov_b32 exec_lo, 0xf')
        I('buffer_load_dword v%d, v5, s[%d:%d], s%d offen sc1' % (g.vCSg, g.sOUT, g.sOUT + 3, sT[4]), tag='tlb')
        I('s_mov_b64 exec, -1')
    def fin_groups():
        ops = ['v_add_f32 v%d, v%d, v%d' % (vS1a, vS1a, vS1b), 'v_add_f32 v%d, v%d, v%d' % (vS2a, vS2a, vS2b),
               'v_mov_b32 v%d, v%d' % (vS1b, vS1a), 'v_mov_b32 v%d, v%d' % (vS2b, vS2a),
               's_lshl_b32 s%d, s%d, 8' % (sT[3], sW), 's_add_u32 s%d, s%d, %d' % (sT[3], sT[3], g.STATL),
               'v_permlane32_swap_b32 v%d, v%d' % (vS1a, vS1b), 'v_permlane32_swap_b32 v%d, v%d' % (vS2a, vS2b),
               'v_add_f32 v%d, v%d, v%d' % (vS1a, vS1a, vS1b), 'v_add_f32 v%d, v%d, v%d' % (vS2a, vS2a, vS2b)]
        b = Asm(); ln_finish(b, 'v%d' % vS1a, 'v%d' % vS2a, 'v2', 'v3', 'v%d' % vRN, 'v4')
        ops += [l.strip() for l in b.out if not l.strip().startswith('s_nop')]
        ops += ['v_sub_f32 v%d, 0, v4' % (vRN + 1), 'v_add_u32 v2, s%d, v%d' % (sT[3], vN4), 'ds_write_b32 v2, v%d' % vRN, 'ds_write_b32 v2, v%d offset:128' % (vRN + 1),
                'ds_write_b32 v%d, a%d' % (vCA, aC0), 'ds_write_b32 v%d, a%d offset:512' % (vCA, aC1), 'v_add_u32 v5, %d, v%d' % (g.CSL, vN4)]
        n = (len(ops) + 7) // 8
        return [grp(ops[k:k + n]) for k in range(0, len(ops), n)]
    w_addr()
    PKI = cfg.get('pki', 4)
    for j in range(7):
        a.wait(vm='c%d' % j)
        if True:
            for t in range(4): I('ds_read_b128 %s, v%d offset:%d' % (vr(XF + 16 * j + 4 * t, 4), vXR[t], 4096 * xslot[j]), tag='xf%d' % j)
        trfrag(a, WB + 24, vTo, 0, 'o%d' % j); trfrag(a, WB + 28, vTo, 28672, 'o%d' % j)
        I('s_barrier')
        if j in (0, 6): pf.stamp('c%d' % j)
        def rd(t):
            st = t % 3
            trfrag(a, WB + 8 * st, vTc, 1024 * t, 'w%d_%d' % (j, t)); trfrag(a, WB + 8 * st + 4, vTc, 28672 + 1024 * t, 'w%d_%d' % (j, t))
        def dots(jj):
            for r in range(16):
                x = XF + 16 * jj + r
                I('v_dot2c_f32_bf16 v%d, s%d, v%d' % (vS1b if r & 1 else vS1a, g.sONE, x)); I('v_dot2c_f32_bf16 v%d, v%d, v%d' % (vS2b if r & 1 else vS2a, x, x))
        rd(0); rd(1); rd(2)
        if j == 1: flag_set()
        if j > 0: dots(j - 1)
        if j == 6:
            a.wait(lg='xf6'); dots(6)
        G = []
        if j + LAH < 7: G = a_groups(j + LAH)
        elif j + LAH == 7: G = q_groups(cfg.get('wq0', 7))
        if j == PKI: G = G + [pk_group(k) for k in range(4)]
        if j == 3: G = G + [flag_poll]
        if j == 6: G = fin_groups()
        if j == cfg.get('tlb', -1): G = G + [tlb_touch]
        a.wait(lg='o%d' % j)
        I(MF(ar(aC0, 16), vr(vONE, 4), vr(WB + 24, 4), '0' if j == 0 else ar(aC0, 16)))
        if G: G.pop(0)()
        I(MF(ar(aC1, 16), vr(vONE, 4), vr(WB + 28, 4), '0' if j == 0 else ar(aC1, 16)))
        if G: G.pop(0)()
        for t in range(4):
            x = XF + 16 * j + 4 * t; st = t % 3
            a.wait(lg='w%d_%d' % (j, t))
            first = (j == 0 and t == 0)
            I(MF(vr(ACCK, 16), vr(x, 4), vr(WB + 8 * st, 4), '0' if first else vr(ACCK, 16)))
            if G: G.pop(0)()
            I(MF(vr(ACCV, 16), vr(x, 4), vr(WB + 8 * st + 4, 4), '0' if first else vr(ACCV, 16)))
            if t == 0:
                rd(3)
                if j < 6: w_addr()
            elif G: G.pop(0)()
        while G: G.pop(0)()
    pf.stamp('loop')
    a.wait(lg=0); I('s_barrier')
    for i in range(8): I('ds_read_b32 v%d, v5 offset:%d' % (ACCQ + i, 128 * i), tag='cs')
    for qd in range(4):
        I('ds_read_b128 %s, v%d offset:%d' % (vr(WB + 16 + 4 * qd, 4), vSA, 128 + 32 * qd), tag='st')
    for qd in range(4):
        I('ds_read_b128 %s, v%d offset:%d' % (vr(WB + 4 * qd, 4), vSA, 32 * qd), tag='st2')
    pf.stamp('X1')
    poll(g, 'kf_pz', g.vPA, 0xffff, 4, g.sDBG, early='poll')
    pack_rd()
    for op in ['v_and_b32 v3, 31, v1', 'v_mul_u32_u24 v3, 144, v3', 'v_lshrrev_b32 v4, 5, v1', 'v_lshl_add_u32 v3, v4, 4, v3', 'v_add_u32 v%d, s%d, v3' % (vKW, g.sPT),
               'v_bfe_u32 v5, v1, 2, 2', 'v_lshl_add_u32 v4, v4, 2, v5',
               'v_bfe_u32 v5, v1, 4, 1', 'v_mul_u32_u24 v5, 14, v5', 'v_add_u32 v5, v5, v4',
               'v_and_b32 v6, 3, v1', 'v_lshlrev_b32 v6, 2, v6', 's_lshl_b32 s%d, s%d, 5' % (sT[4], sW), 's_add_u32 s%d, s%d, %d' % (sT[4], sT[4], g.KVRL),
               'v_add_u32 v6, s%d, v6' % sT[4], 'v_mul_u32_u24 v7, 144, v5', 'v_add_u32 v%d, v7, v6' % vRed[0],
               'v_add_u32 v%d, %d, v%d' % (vRed[1], 8 * 144, vRed[0]), 'v_mul_u32_u24 v7, 144, v4', 'v_add_u32 v7, v7, v6', 'v_add_u32 v7, %d, v7' % (22 * 144),
               'v_cmp_lt_u32 vcc, 5, v4', 'v_cndmask_b32 v%d, v%d, v7, vcc' % (vRed[1], vRed[1])]: I(op)
    Q = ACCQ
    pack_st()
    for f in range(4): I(MF(ar(32 + 16 * f, 16), vr(vONE, 4), ar(aPK + 4 * f, 4), '0'))
    a.wait(lg='cs')
    I('v_add_f32 v%d, v%d, v%d' % (Q, Q, Q + 1)); I('v_add_f32 v%d, v%d, v%d' % (Q + 2, Q + 2, Q + 3)); I('v_add_f32 v%d, v%d, v%d' % (vCS, Q, Q + 2))
    I('v_add_f32 v%d, v%d, v%d' % (Q + 4, Q + 4, Q + 5)); I('v_add_f32 v%d, v%d, v%d' % (Q + 6, Q + 6, Q + 7)); I('v_add_f32 v%d, v%d, v%d' % (vCS + 1, Q + 4, Q + 6))
    SE = 's[%d:%d]' % (g.sEPS, g.sEPS + 1)
    def phi(acc, tmp, n):
        for p in range(0, n, 2): I('v_pk_mul_f32 %s, %s, %s op_sel:[0,1] op_sel_hi:[1,1]' % (vr(tmp + p, 2), vr(acc + p, 2), SE))
        for v in range(n): I('v_min_f32 v%d, 0, v%d' % (tmp + v, tmp + v))
        for v in range(n): I('v_exp_f32 v%d, v%d' % (tmp + v, tmp + v)); I('v_max_f32 v%d, s%d, v%d' % (acc + v, g.sEPS, acc + v))
        for p in range(0, n, 2): I('v_pk_add_f32 %s, %s, %s' % (vr(acc + p, 2), vr(acc + p, 2), vr(tmp + p, 2)))
    CSP = vr(vCS, 2)
    a.wait(lg='st')
    for p in range(0, 16, 2):
        I('v_pk_fma_f32 %s, %s, %s, %s op_sel_hi:[1,0,1]' % (vr(ACCK + p, 2), vr(WB + 16 + p, 2), CSP, vr(ACCK + p, 2)))
        I('v_pk_fma_f32 %s, %s, %s, %s op_sel:[0,1,0] op_sel_hi:[1,1,1]' % (vr(ACCV + p, 2), vr(WB + 16 + p, 2), CSP, vr(ACCV + p, 2)))
    I('s_add_u32 s%d, s%d, %d' % (sPCS, sPCS, CSGU)); I('s_mov_b32 exec_hi, 0')
    for f in range(4): I('buffer_atomic_add_f32 a%d, v%d, s[%d:%d], s%d offen offset:%d' % (32 + 16 * f, g.vPA, g.sWS, g.sWS + 3, sPCS, 128 * f), tag='pks')
    I('s_mov_b64 exec, -1')
    a.wait(lg='st2')
    for p in range(0, 16, 2):
        I('v_pk_fma_f32 %s, %s, %s, %s op_sel_hi:[1,1,0]' % (vr(ACCK + p, 2), vr(ACCK + p, 2), vr(WB + p, 2), SE))
        I('v_pk_mul_f32 %s, %s, %s' % (vr(ACCV + p, 2), vr(ACCV + p, 2), vr(WB + p, 2)))
    a.wait(vm='wq')
    I('s_sub_u32 s%d, s%d, %d' % (sT[3], sW10, g.WKL - g.WQL)); I('v_add_u32 v%d, s%d, v%d' % (vTo, sT[3], vT))
    for c in range(7): trfrag(a, WB + 4 * c, vTo, 4096 * c, 'qo%d' % c)
    phi(ACCK, ACCQ, 16)
    for p in range(8):
        I('v_cvt_pk_bf16_f32 v%d, v%d, v%d' % (ACCK + p, ACCK + 2 * p, ACCK + 2 * p + 1)); I('v_cvt_pk_bf16_f32 v%d, v%d, v%d' % (ACCV + p, ACCV + 2 * p, ACCV + 2 * p + 1))
    I('s_mov_b64 exec, s[%d:%d]' % (g.sMV28, g.sMV28 + 1))
    for p in range(8): I('v_mov_b32 v%d, s%d' % (ACCV + p, g.sONE))
    I('s_mov_b64 exec, -1')
    pf.stamp('epikv')
    I(MF(ar(aC1, 16), vr(ACCK, 4), vr(ACCV, 4), '0')); I(MF(ar(aC1, 16), vr(ACCK + 4, 4), vr(ACCV + 4, 4), ar(aC1, 16)))
    a.wait(lg='qo6')
    for c in range(7):
        I(MF(ar(aC0, 16), vr(vONE, 4), vr(WB + 4 * c, 4), '0' if c == 0 else ar(aC0, 16)))
        if c == 1:
            for q in range(4): I('ds_write_b128 v%d, %s offset:%d' % (vKW, ar(aC1 + 4 * q, 4), 32 * q))
    I('s_mov_b32 s%d, s%d' % (sCC, g.sRHO))
    I('s_lshl_b32 s%d, s%d, 12' % (sT[5], sH)); I('s_add_u32 s%d, s%d, s%d' % (sT[5], sT[5], sW10)); I('s_add_u32 s%d, s%d, %d' % (sT[5], sT[5], KVACC))
    I('ds_write_b32 v%d, a%d offset:1024' % (vCA, aC0))
    a.wait(vm='pks', lg=0); I('s_barrier')
    pf.stamp('X2')
    RB = WB + 16
    for j in range(4):
        for p in range(4): I('ds_read_b32 v%d, v%d offset:%d' % (RB + 4 * j + p, vRed[j % 2], 4608 * p + 16 * (j // 2)), tag='red%d' % j)
    for j in range(4):
        a.wait(lg='red%d' % j)
        b = RB + 4 * j
        I('v_add_f32 v%d, v%d, v%d' % (b, b, b + 1)); I('v_add_f32 v%d, v%d, v%d' % (b + 2, b + 2, b + 3)); I('v_add_f32 v%d, v%d, v%d' % (b, b, b + 2))
        if j < 2: I('buffer_atomic_add_f32 v%d, v%d, s[%d:%d], s%d offen offset:%d' % (b, g.vPA, g.sWS, g.sWS + 3, sT[5], 256 * j), tag='ast')
    I('s_cmp_eq_u32 s%d, 3' % sW); a.branch('s_cbranch_scc1 kf_noat')
    for j in (2, 3): I('buffer_atomic_add_f32 v%d, v%d, s[%d:%d], s%d offen offset:%d' % (RB + 4 * j, g.vPA, g.sWS, g.sWS + 3, sT[5], 256 * j), counted=False)
    a.label('kf_noat')
    sig_add(g, sPSG)
    pf.stamp('atom')
    QB = WB
    def q_rd(n):
        j, t = n // 4, n % 4
        if t == 0:
            I('s_lshl_b32 s%d, s%d, 12' % (sT[3], sCC)); I('s_sub_u32 s%d, s%d, %d' % (sT[3], sT[3], g.WKL - g.WQL))
            I('v_add_u32 v%d, s%d, v%d' % (vTc, sT[3], vT)); adv(sCC)
        trfrag(a, QB + 4 * (n % 4), vTc, 1024 * t, 'q%d' % n)
    for n in range(3): q_rd(n)
    S = Side(a)
    CQ = ACCK + 8
    S.add(['v_add_u32 v2, %d, v%d' % (g.CSL + 1024, vN4)])
    S.add([((lambda i=i: I('ds_read_b32 v%d, v2 offset:%d' % (CQ + i, 128 * i), tag='cq')), 5) for i in range(4)])
    S.add(['s_lshl_b32 s%d, s%d, 7' % (sT[2], sW), 's_add_u32 s%d, s%d, %d' % (sT[2], sT[2], g.CSQ2L), 'v_add_u32 v3, s%d, v%d' % (sT[2], vN4),
           'v_lshrrev_b32 v4, 5, v1', 'v_lshlrev_b32 v4, 4, v4', 'v_add_u32 v4, s%d, v4' % sT[2], ((lambda: a.wait(lg='cq')), 3),
           'v_add_f32 v%d, v%d, v%d' % (CQ, CQ, CQ + 1), 'v_add_f32 v%d, v%d, v%d' % (CQ + 2, CQ + 2, CQ + 3), 'v_add_f32 v%d, v%d, v%d' % (CQ, CQ, CQ + 2),
           'ds_write_b32 v3, v%d' % CQ])
    S.add([((lambda q=q: I('ds_read_b128 %s, v4 offset:%d' % (vr(ACCV + 4 * q, 4), 32 * q), tag='cq2')), 5) for q in range(4)])
    g.guq = [(j, c) for j in range(28) for c in range(2)]
    for n in range(28):
        if n + 3 < 28: q_rd(n + 3)
        a.wait(lg='q%d' % n)
        I(MF(vr(ACCQ, 16), vr(QB + 4 * (n % 4), 4), vr(XF + 4 * n, 4), '0' if n == 0 else vr(ACCQ, 16)))
        S.emit(12)
    S.drain()
    pf.stamp('q28')
    a.wait(lg='cq2')
    RN = vr(vRN, 2)
    for p in range(0, 16, 2): I('v_pk_fma_f32 %s, %s, %s, %s op_sel:[0,1,0] op_sel_hi:[1,1,1]' % (vr(ACCQ + p, 2), vr(ACCV + p, 2), RN, vr(ACCQ + p, 2)))
    for p in range(0, 16, 2): I('v_pk_fma_f32 %s, %s, %s, %s op_sel_hi:[1,0,0]' % (vr(ACCQ + p, 2), vr(ACCQ + p, 2), RN, SE))
    phi(ACCQ, WB, 16)
    for p in range(8): I('v_cvt_pk_bf16_f32 v%d, v%d, v%d' % (ACCK + p, ACCQ + 2 * p, ACCQ + 2 * p + 1))
    for p in (6, 7): I('v_cndmask_b32 v%d, 0, v%d, s[%d:%d]' % (ACCK + p, ACCK + p, g.sHI, g.sHI + 1))
    I('s_lshl_b32 s%d, s%d, 2' % (sT[0], sRBA)); I('s_add_u32 s%d, s%d, s%d' % (sT[0], sT[0], sW))
    I('s_lshl_b32 s%d, s%d, 6' % (sT[1], sH)); I('s_add_u32 s%d, s%d, s%d' % (sT[0], sT[0], sT[1])); I('s_lshl_b32 s%d, s%d, 11' % (sT[0], sT[0]))
    if PQF: I('s_add_u32 s%d, s%d, %d' % (sT[0], sT[0], PQF))
    I('buffer_store_dwordx4 %s, v%d, s[%d:%d], s%d offen sc1' % (vr(ACCK, 4), vL16, g.sWS, g.sWS + 3, sT[0]), tag='ast')
    I('buffer_store_dwordx4 %s, v%d, s[%d:%d], s%d offen offset:1024 sc1' % (vr(ACCK + 4, 4), vL16, g.sWS, g.sWS + 3, sT[0]), tag='ast')
    pf.stamp('pqst')
    go_poll()
    I('s_lshr_b32 s%d, s%d, 2' % (sT[6], sH)); I('s_lshl_b32 s%d, s%d, 7' % (sT[6], sT[6])); I('s_add_u32 s%d, s%d, %d' % (sT[6], sT[6], CNT))
    I('v_mov_b32 v2, 1'); I('v_lshlrev_b32 v3, 9, v1')
    a.wait(vm='ast'); I('s_barrier')
    I('s_mov_b64 exec, 0xff')
    I('buffer_atomic_add v2, v3, s[%d:%d], s%d offen sc1' % (g.sKZ, g.sKZ + 3, sT[6]), tag='sig')
    I('s_mov_b64 exec, -1')
    pf.stamp('sigA')
    I('s_and_b32 s%d, s2, 0xc2' % sT[0]); I('s_cmp_eq_u32 s%d, 0xc2' % sT[0]); a.branch('s_cbranch_scc1 kf_pack')
    poll(g, 'kf_pg', vXS[0], 3, 'v%d' % g.vPT, g.sWS, early='gop')
    if cfg.get('tch'):
        I('v_lshlrev_b32 v4, 7, v1'); I('v_add_u32 v5, 28672, v4'); I('s_mov_b32 exec_hi, 0xffffff')
        I('buffer_load_dword v%d, v4, s[%d:%d], s%d offen sc1' % (g.vPoll, g.sWS, g.sWS + 3, g.sQ[0]), tag='tch')
        I('buffer_load_dword v%d, v5, s[%d:%d], s%d offen sc1' % (g.vPoll, g.sWS, g.sWS + 3, g.sQ[0]), tag='tch')
        I('s_mov_b64 exec, -1')
    wo_loads(g, 0, 2)

def wo_loads(g, lo, hi):
    a = g.a; I = a.I; sT = g.sT
    for i in range(lo, hi):
        I('s_add_u32 s%d, s%d, %d' % (sT[2], g.sR4, i)); I('s_and_b32 s%d, s%d, 3' % (sT[2], sT[2]))
        I('s_lshl_b32 s%d, s%d, 2' % (sT[3], g.sW)); I('s_add_u32 s%d, s%d, s%d' % (sT[2], sT[2], sT[3])); I('s_lshl_b32 s%d, s%d, 11' % (sT[2], sT[2]))
        I('s_lshl_b32 s%d, s%d, 1' % (sT[3], g.sCS)); I('s_and_b32 s%d, s%d, 1' % (sT[4], g.sW)); I('s_add_u32 s%d, s%d, s%d' % (sT[3], sT[3], sT[4]))
        I('s_lshl_b32 s%d, s%d, 15' % (sT[3], sT[3])); I('s_add_u32 s%d, s%d, s%d' % (sT[2], sT[2], sT[3]))
        I('s_xor_b32 s%d, s%d, 32768' % (sT[3], sT[2]))
        I('s_add_u32 s%d, s%d, %d' % (sT[2], sT[2], WOP)); I('s_add_u32 s%d, s%d, %d' % (sT[3], sT[3], WOP))
        for c in range(2):
            for kk in range(2):
                I('buffer_load_dwordx4 %s, v%d, s[%d:%d], s%d offen offset:%d sc1' % (vr(8 + 16 * i + 8 * c + 4 * kk, 4), g.vLx, g.sWS, g.sWS + 3, sT[2 + c], 1024 * kk), tag='wo')

def xwrite(g, A0, off):
    return ['ds_write_b128 v%d, %s offset:%d' % (g.vRW[t - 1], vr(A0 + 16 * (t & 1) + 8 * (t >> 1) + 4 * q, 4), off + 1024 * q) for t in range(1, 4) for q in range(2)]
def xfinish(g, b, O, P0, RS, off, tag, pk):
    a = g.a; I = a.I
    ops = [((lambda t=t, q=q: I('ds_read_b128 %s, v%d offset:%d' % (vr(P0 + 8 * t + 4 * q, 4), g.vRR, off + 2048 * t + 1024 * q), tag=tag)), 6) for t in range(3) for q in range(2)]
    ops += ['v_permlane32_swap_b32 v%d, v%d' % (O + k, O + 2 + k) for k in range(2)]
    for k in range(4): ops += ['v_lshlrev_b32 v%d, 16, v%d' % (RS + 2 * k, O + k), 'v_and_b32 v%d, 0xffff0000, v%d' % (RS + 2 * k + 1, O + k)]
    if pk:
        ops += ['v_pk_add_f32 %s, %s, %s' % (vr(b + v, 2), vr(b + v, 2), vr(RS + v, 2)) for v in range(0, 8, 2)]
        ops += [((lambda: a.wait(lg=tag)), 3)]
        for v in range(0, 8, 2): ops += ['v_pk_add_f32 %s, %s, %s' % (vr(b + v, 2), vr(b + v, 2), vr(P0 + v, 2)), 'v_pk_add_f32 %s, %s, %s' % (vr(P0 + 8 + v, 2), vr(P0 + 8 + v, 2), vr(P0 + 16 + v, 2))]
        ops += ['v_pk_add_f32 %s, %s, %s' % (vr(b + v, 2), vr(b + v, 2), vr(P0 + 8 + v, 2)) for v in range(0, 8, 2)]
    else:
        ops += ['v_add_f32 v%d, v%d, v%d' % (b + v, b + v, RS + v) for v in range(8)]
        ops += [((lambda: a.wait(lg=tag)), 3)]
        for v in range(8): ops += ['v_add_f32 v%d, v%d, v%d' % (b + v, b + v, P0 + v), 'v_add_f32 v%d, v%d, v%d' % (P0 + 8 + v, P0 + 8 + v, P0 + 16 + v)]
        ops += ['v_add_f32 v%d, v%d, v%d' % (b + v, b + v, P0 + 8 + v) for v in range(8)]
    ops += ['v_cvt_pk_bf16_f32 v%d, v%d, v%d' % (O + k, b + 2 * k, b + 2 * k + 1) for k in range(4)]
    ops += ['s_nop 0', 's_nop 0']
    ops += ['v_permlane32_swap_b32 v%d, v%d' % (O + k, O + 2 + k) for k in range(2)]
    return ops

def colsum(g, lo, hi):
    a = g.a; I = a.I
    for i in range(4): I('v_mov_b32 v%d, s%d' % (4 + i, g.sONE))
    for j in range(lo, hi):
        for c in range(2): I(MF(ar(224 + 16 * c, 16), 'v[4:7]', ar(112 * c + 4 * j, 4), '0' if j == 0 else ar(224 + 16 * c, 16)))

def phase_B(g):
    a = g.a; I = a.I; sT = g.sT; pf = g.pf; cfg = g.cfg
    sW = g.sW; vL16 = g.vL16
    WO, ACC, KVP, NUM, KVR = 8, 72, 136, 168, 200
    aPQ = 224
    sE, sCT, sKS, sKVB, sPQB = g.S4[0:5]
    g.sE, g.sCT, g.sKS = sE, sCT, sKS
    wo_loads(g, 2, 4)
    I('s_lshr_b32 s%d, s%d, 1' % (sT[2], g.sRB64)); I('s_lshl_b32 s%d, s%d, 2' % (sE, sT[2])); I('s_and_b32 s%d, s%d, 1' % (sT[3], g.sRB64)); I('s_add_u32 s%d, s%d, s%d' % (sE, sE, sT[3]))
    I('s_and_b32 s%d, s%d, 1' % (sT[1], sW)); I('s_lshl_b32 s%d, s%d, 1' % (sCT, g.sCS)); I('s_add_u32 s%d, s%d, s%d' % (sCT, sCT, sT[1]))
    I('s_lshr_b32 s%d, s%d, 1' % (sT[0], sW)); I('s_lshl_b32 s%d, s%d, 1' % (sKS, sCT)); I('s_add_u32 s%d, s%d, s%d' % (sKS, sKS, sT[0]))
    I('s_mul_i32 s%d, s%d, %d' % (sT[2], sE, 32 * 896)); I('s_lshl_b32 s%d, s%d, 5' % (sT[3], sKS)); I('s_add_u32 s%d, s%d, s%d' % (sT[2], sT[2], sT[3])); I('s_add_u32 s%d, s%d, %d' % (sT[3], sT[2], 64 * 896))
    for p in range(2):
        I('buffer_load_dwordx4 %s, v%d, s[%d:%d], s%d offen' % (vr(g.vHK + 4 * p, 4), g.vXo, g.sX, g.sX + 3, sT[2 + p]), tag='xr')
    for _ in range(min(cfg.get('b_gu', 8), len(g.guq))): gu_load(g, *g.guq.pop(0))
    I('s_and_b32 s%d, s2, 7' % sT[2]); I('s_lshl_b32 s%d, s%d, 2' % (sT[2], sT[2])); I('s_add_u32 s%d, s%d, s%d' % (sT[2], sT[2], sW))
    I('s_lshl_b32 s%d, s%d, 7' % (sT[2], sT[2])); I('s_add_u32 s%d, s%d, %d' % (sT[2], sT[2], CNT)); I('v_mov_b32 v%d, s%d' % (g.vPA, sT[2]))
    I('s_lshl_b32 s%d, s%d, 14' % (sKVB, sW)); I('s_add_u32 s%d, s%d, %d' % (sKVB, sKVB, KVACC))
    I('s_lshl_b32 s%d, s%d, 19' % (sPQB, sW)); I('s_lshl_b32 s%d, s%d, 11' % (sT[2], sE)); I('s_add_u32 s%d, s%d, s%d' % (sPQB, sPQB, sT[2]))
    if PQF: I('s_add_u32 s%d, s%d, %d' % (sPQB, sPQB, PQF))
    c_setup(g)
    pf.stamp('pfB')
    poll(g, 'kf_p1', g.vPA, 1, 64, g.sWS)
    pf.stamp('sync1')
    def hsel(i):
        I('s_add_u32 s%d, s%d, %d' % (sT[2], g.sR4, i)); I('s_and_b32 s%d, s%d, 3' % (sT[2], sT[2]))
    def kv_load(i):
        hsel(i); I('s_lshl_b32 s%d, s%d, 12' % (sT[3], sT[2])); I('s_add_u32 s%d, s%d, s%d' % (sT[3], sT[3], sKVB))
        for q in range(4):
            I('buffer_load_dwordx4 %s, v%d, s[%d:%d], s%d offen offset:%d sc1' % (vr(KVR + 16 * (i % 2) + 4 * q, 4), vL16, g.sWS, g.sWS + 3, sT[3], 1024 * q), tag='kv%d' % i)
    def pq_load(p, i):
        hsel(i); I('s_lshl_b32 s%d, s%d, 17' % (sT[4], sT[2])); I('s_add_u32 s%d, s%d, s%d' % (sT[4], sT[4], sPQB))
        for kk in range(2):
            I('buffer_load_dwordx4 %s, v%d, s[%d:%d], s%d offen offset:%d sc1' % (ar(aPQ + 8 * i + 4 * kk, 4), g.vLo[p], g.sWS, g.sWS + 3, sT[4], 1024 * kk), tag='pq%d_%d' % (p, i))
    def o_ops(k):
        n = NUM + 16 * (k % 2); t = 2 + k % 2
        ops = ['v_cvt_pk_bf16_f32 v%d, v%d, v%d' % (t, n + 14, n + 14), 'v_and_b32 v%d, 0xffff0000, v%d' % (t, t),
               'v_add_f32 v%d, s%d, v%d' % (t, g.sEPS, t), 'v_rcp_f32 v%d, v%d' % (t, t)]
        for v in range(14): ops.append('v_mul_f32 v%d, v%d, v%d' % (n + v, n + v, t))
        for p in range(7): ops.append('v_cvt_pk_bf16_f32 v%d, v%d, v%d' % (n + p, n + 2 * p, n + 2 * p + 1))
        ops.append('v_mov_b32 v%d, 0' % (n + 7))
        return ops
    def num(k):
        p, i = k // 4, k % 4
        if p == 0:
            b = KVR + 16 * (i % 2)
            a.wait(vm='kv%d' % i)
            for q in range(8): I('v_cvt_pk_bf16_f32 v%d, v%d, v%d' % (KVP + 8 * i + q, b + 2 * q, b + 2 * q + 1))
            if i + 2 < 4: kv_load(i + 2); pq_load(0, i + 2)
        a.wait(vm='pq%d_%d' % (p, i))
        n = NUM + 16 * (k % 2)
        for kk in range(2): I(MF(vr(n, 16), vr(KVP + 8 * i + 4 * kk, 4), ar(aPQ + 8 * i + 4 * kk, 4), '0' if kk == 0 else vr(n, 16)))
        if p == 0 and i >= 2:
            for ii in (2 * (i - 2), 2 * (i - 2) + 1):
                if ii <= i: pq_load(1, ii)
    def gemm(k, S, per):
        p, i = k // 4, k % 4
        for kk in range(2):
            for c in range(2):
                acc = ACC + 32 * p + 16 * c
                I(MF(vr(acc, 16), vr(WO + 16 * i + 8 * c + 4 * kk, 4), vr(NUM + 16 * (k % 2) + 4 * kk, 4), '0' if (i == 0 and kk == 0) else vr(acc, 16)))
                S.emit(per)
    def gu_one():
        if len(g.guq) <= cfg.get('gu_keep', 0): return False
        gu_load(g, *g.guq.pop(0)); return True
    def finish(p):
        O = g.vHK + 4 * p
        S2 = Side(a); S2.add(xfinish(g, ACC + 32 * p, O, KVR, KVR + 24, 0, 'bx%d' % p, True)); S2.drain()
        I('s_add_u32 s%d, s%d, %d' % (sT[1], sE, 2 * p)); I('s_mul_i32 s%d, s%d, 28' % (sT[0], sT[1])); I('s_add_u32 s%d, s%d, s%d' % (sT[0], sT[0], sKS))
        I('s_lshl_b32 s%d, s%d, 10' % (sT[0], sT[0])); I('s_add_u32 s%d, s%d, %d' % (sT[0], sT[0], HF))
        I('buffer_store_dwordx4 %s, v%d, s[%d:%d], s%d offen sc1' % (vr(O, 4), vL16, g.sWS, g.sWS + 3, sT[0]), tag='bst%d' % p)
        X = KVR
        I('v_mov_b32 v%d, 0' % X); I('v_mov_b32 v%d, 0' % (X + 1))
        for q in range(4):
            I('v_dot2c_f32_bf16 v%d, s%d, v%d' % (X, g.sONE, O + q)); I('v_dot2c_f32_bf16 v%d, v%d, v%d' % (X + 1, O + q, O + q))
        I('s_lshl_b32 s%d, s%d, 14' % (sT[0], sKS)); I('s_lshl_b32 s%d, s%d, 8' % (sT[1], sT[1]))
        I('s_add_u32 s%d, s%d, s%d' % (sT[0], sT[0], sT[1])); I('s_add_u32 s%d, s%d, %d' % (sT[0], sT[0], STATS))
        I('v_mov_b32 v%d, v%d' % (X + 2, X)); I('v_mov_b32 v%d, v%d' % (X + 3, X + 1)); I('v_lshlrev_b32 v%d, 3, v1' % (X + 6))
        I('v_permlane32_swap_b32 v%d, v%d' % (X, X + 2)); I('v_permlane32_swap_b32 v%d, v%d' % (X + 1, X + 3))
        I('v_add_f32 v%d, v%d, v%d' % (X + 4, X, X + 2)); I('v_add_f32 v%d, v%d, v%d' % (X + 5, X + 1, X + 3))
        I('s_mov_b32 exec_hi, 0')
        I('buffer_store_dwordx2 %s, v%d, s[%d:%d], s%d offen sc1' % (vr(X + 4, 2), X + 6, g.sWS, g.sWS + 3, sT[0]), tag='bst%d' % p)
        I('s_mov_b64 exec, -1')
    def sigB(p):
        I('s_lshr_b32 s%d, s%d, 1' % (sT[6], g.sRB64)); I('s_lshl_b32 s%d, s%d, 8' % (sT[6], sT[6])); I('s_add_u32 s%d, s%d, %d' % (sT[6], sT[6], CNT + 4096 + 128 * p))
        sig_add(g, sT[6], 4)
    g.sigB = sigB
    for i in range(2): kv_load(i); pq_load(0, i)
    S = Side(a)
    num(0)
    for op in o_ops(0): I(op)
    for k in range(8):
        if k + 1 < 8: num(k + 1); S.add(o_ops(k + 1))
        if k == cfg.get('spr_k', 1): a.sprinkle(gu_one, cfg.get('spr', 80))
        gemm(k, S, 30); S.drain()
        if k == 3:
            pf.stamp('gemmE')
            for op in xwrite(g, ACC, 0): I(op)
            a.wait(lg=0); I('s_barrier')
            finish(0)
            pf.stamp('hstE')
        if k == cfg.get('sige', 5):
            a.wait(vm='bst0'); I('s_barrier'); sigB(0)
    pf.stamp('gemmL')
    I('s_lshl_b32 s%d, s%d, 8' % (sT[2], g.sRB128)); I('s_add_u32 s%d, s%d, %d' % (sT[2], sT[2], CNT + 4096)); I('v_mov_b32 v%d, s%d' % (g.vPA, sT[2]))
    for op in xwrite(g, ACC + 32, 0): I(op)
    a.wait(lg=0); I('s_barrier')
    a.sprinkle(None, 0)
    finish(1)
    I('buffer_load_dword v%d, v%d, s[%d:%d], 0 offen sc1' % (g.vPoll, g.vPA, g.sWS, g.sWS + 3), tag='p2e')
    pf.stamp('hstL')

def c_setup(g):
    a = g.a; I = a.I; sT = g.sT; sW = g.sW
    g.sHG, g.sHL = g.S4[5], g.S4[6]; g.sO = g.S4[7:11]; g.sQD = g.S4[15:19]; g.sSTB = g.S4[19]
    I('s_lshl_b32 s%d, s%d, 2' % (sT[3], g.sFS)); I('s_add_u32 s%d, s%d, s%d' % (sT[3], sT[3], sW)); I('s_lshl_b32 s%d, s%d, 8' % (sT[3], sT[3])); I('s_add_u32 s%d, s%d, %d' % (sT[3], sT[3], CSGU))
    I('v_and_b32 v2, 31, v1'); I('v_lshlrev_b32 v3, 2, v2')
    for c in range(2): I('buffer_load_dword v%d, v3, s[%d:%d], s%d offen offset:%d sc1' % (g.vCSg + c, g.sWS, g.sWS + 3, sT[3], 128 * c), tag='csg')
    I('s_mul_i32 s%d, s%d, 112' % (sT[3], g.sCT)); I('s_mul_i32 s%d, s%d, 28' % (sT[4], sW)); I('s_add_u32 s%d, s%d, s%d' % (sT[3], sT[3], sT[4]))
    I('s_lshl_b32 s%d, s%d, 10' % (sT[3], sT[3])); I('s_add_u32 s%d, s%d, %d' % (sT[3], sT[3], WDP))
    I('s_and_b32 s%d, s%d, 1' % (sT[4], g.sCT)); I('s_mul_i32 s%d, s%d, 114688' % (sT[4], sT[4])); I('s_sub_u32 s%d, s%d, s%d' % (sT[3], sT[3], sT[4]))
    for q in range(4):
        I('s_add_u32 s%d, s%d, %d' % (sT[4], g.sR4, q)); I('s_and_b32 s%d, s%d, 3' % (sT[4], sT[4]))
        I('s_mul_i32 s%d, s%d, 7168' % (sT[5], sT[4])); I('s_add_u32 s%d, s%d, s%d' % (g.sQD[q], sT[5], sT[3]))
    I('s_mul_i32 s%d, s%d, %d' % (g.sHG, g.sRB128, 4 * 28672)); I('s_mul_i32 s%d, s%d, 7168' % (g.sHL, sW))
    I('s_add_u32 s%d, s%d, s%d' % (g.sHG, g.sHG, g.sHL)); I('s_add_u32 s%d, s%d, %d' % (g.sHG, g.sHG, HF))
    I('s_lshl_b32 s%d, s%d, 3' % (sT[2], g.sFS)); I('s_lshl_b32 s%d, s%d, 1' % (sT[3], sW)); I('s_add_u32 s%d, s%d, s%d' % (sT[2], sT[2], sT[3]))
    I('s_mul_i32 s%d, s%d, %d' % (sT[0], g.sRB128, 4 * 112)); I('s_add_u32 s%d, s%d, s%d' % (sT[0], sT[0], sT[2]))
    I('s_lshl_b32 s%d, s%d, 10' % (sT[0], sT[0])); I('s_add_u32 s%d, s%d, %d' % (sT[0], sT[0], ACTF))
    for rt in range(4): I('s_add_u32 s%d, s%d, %d' % (g.sO[rt], sT[0], rt * 112 * 1024))
    I('s_lshl_b32 s%d, s%d, 2' % (sT[0], g.sRB128)); I('s_and_b32 s%d, s%d, 1' % (sT[1], sW)); I('s_add_u32 s%d, s%d, s%d' % (sT[0], sT[0], sT[1]))
    I('s_lshl_b32 s%d, s%d, 8' % (g.sSTB, sT[0])); I('s_add_u32 s%d, s%d, %d' % (g.sSTB, g.sSTB, STATS))

def phase_C(g):
    a = g.a; I = a.I; sT = g.sT; pf = g.pf; cfg = g.cfg
    sW = g.sW; vL16 = g.vL16
    ACC, HB, NMF, CI, TM, CSF = 8, 72, 96, 108, 116, 132
    NHB = 6
    vHQ = list(range(124, 132))
    sHG, sHL, sO = g.sHG, g.sHL, g.sO
    def h_dma(rt, lo=0, hi=7):
        for k in range(lo, hi):
            if k % 4 == 0 or k == lo:
                kb = k - k % 4
                I('s_add_u32 s%d, s%d, %d' % (sT[3], sHG, rt * 28672 + 1024 * kb)); I('s_add_u32 m0, s%d, %d' % (sHL, g.HL + rt * 28672 + 1024 * kb))
            I('buffer_load_dwordx4 v%d, s[%d:%d], s%d offen offset:%d sc1 lds' % (vL16, g.sWS, g.sWS + 3, sT[3], 1024 * (k % 4)), tag='h%d' % rt)
    for _ in range(min(8, len(g.guq))): gu_load(g, *g.guq.pop(0))
    for q in range(4):
        I('s_add_u32 s%d, s%d, %d' % (sT[4], g.sR4, q)); I('s_and_b32 s%d, s%d, 3' % (sT[4], sT[4]))
        I('s_mul_i32 s%d, s%d, 7168' % (sT[5], sT[4])); I('v_add_u32 v%d, s%d, v%d' % (vHQ[q], sT[5], vL16)); I('v_add_u32 v%d, 57344, v%d' % (vHQ[4 + q], vHQ[q]))
    I('s_and_b32 s%d, s%d, 1' % (sT[4], g.sCT)); I('s_mul_i32 s%d, s%d, 114688' % (sT[4], sT[4])); I('s_sub_u32 s%d, 114688, s%d' % (sT[5], sT[4]))
    g.vLd = [152, 153, 154, 155]
    I('v_add_u32 v%d, s%d, v%d' % (g.vLd[0], sT[4], g.vLx)); I('v_add_u32 v%d, 4096, v%d' % (g.vLd[1], g.vLd[0]))
    I('v_add_u32 v%d, s%d, v%d' % (g.vLd[2], sT[5], g.vLx)); I('v_add_u32 v%d, 4096, v%d' % (g.vLd[3], g.vLd[2]))
    vSO = 106
    I('v_and_b32 v2, 31, v1'); I('v_lshrrev_b32 v3, 5, v1')
    I('v_mul_u32_u24 v%d, %d, v3' % (vSO, 14 * 16384)); I('v_lshl_add_u32 v%d, v2, 3, v%d' % (vSO, vSO))
    for c in range(2):
        f = CSF + 4 * c
        I('v_mov_b32 v4, v%d' % (g.vCSg + c))
        I('v_cvt_pk_bf16_f32 v5, v4, v4'); I('v_and_b32 v5, 0xffff0000, v5'); I('v_sub_f32 v6, v4, v5')
        I('v_cvt_pk_bf16_f32 v%d, v4, v6' % f); I('v_and_b32 v5, 0xffff0000, v%d' % f); I('v_sub_f32 v6, v6, v5')
        I('v_cvt_pk_bf16_f32 v%d, v6, 0' % (f + 1))
        I('v_cndmask_b32 v%d, 0, v%d, s[%d:%d]' % (f, f, g.sHI, g.sHI + 1)); I('v_cndmask_b32 v%d, 0, v%d, s[%d:%d]' % (f + 1, f + 1, g.sHI, g.sHI + 1))
        I('v_mov_b32 v%d, 0' % (f + 2)); I('v_mov_b32 v%d, 0' % (f + 3))
    for r in range(NMF, NMF + 10): I('v_mov_b32 v%d, 0' % r)
    a.wait(vm='bst1'); I('s_barrier'); g.sigB(1)
    pf.stamp('sigB')
    poll(g, 'kf_p2', g.vPA, 1, 14, g.sWS, early='p2e')
    pf.stamp('sync2')
    h_dma(0)
    I('s_lshl_b32 s%d, s%d, 8' % (sT[2], sW)); I('s_add_u32 s%d, s%d, %d' % (sT[2], sT[2], CNT + 5 * 4096))
    I('v_add_u32 v%d, 128, v%d' % (g.vPA, g.vPA)); I('v_writelane_b32 v%d, s%d, 1' % (g.vPA, sT[2])); I('v_mov_b32 v%d, 14' % g.vPT); I('v_writelane_b32 v%d, 7, 1' % g.vPT)
    vSP = 204
    while g.guq:
        j, c = g.guq.pop(0); gu_load(g, j, c); a.vm[-1] = 'gu%d' % j
        g.late_gu = getattr(g, 'late_gu', []) + [j]
    a.wait(vm='h0'); I('s_barrier')
    pf.stamp('h0')
    def sp_loads(st):
        def f(p):
            I('s_add_u32 s%d, s%d, %d' % (sT[1], g.sSTB, 16384 * p + 512 * st))
            I('buffer_load_dwordx2 %s, v%d, s[%d:%d], s%d offen sc1' % (vr(vSP + 2 * p, 2), vSO, g.sWS, g.sWS + 3, sT[1]), tag='sp%d' % st)
        return [((lambda p=p: f(p)), 14) for p in range(14)]
    def stats_ops(st):
        ops = [((lambda: a.wait(vm='sp%d' % st)), 3)]
        for p in range(1, 14): ops += ['v_add_f32 v%d, v%d, v%d' % (vSP, vSP, vSP + 2 * p), 'v_add_f32 v%d, v%d, v%d' % (vSP + 1, vSP + 1, vSP + 2 * p + 1)]
        ops += ['v_mov_b32 v5, v%d' % vSP, 'v_mov_b32 v6, v%d' % (vSP + 1), 's_and_b32 s%d, s%d, 1' % (sT[1], sW), 's_lshl_b32 s%d, s%d, 9' % (sT[1], sT[1]), 's_add_u32 s%d, s%d, %d' % (sT[1], sT[1], g.STL + 1024 * st),
                'v_permlane32_swap_b32 v%d, v5' % vSP, 'v_permlane32_swap_b32 v%d, v6' % (vSP + 1),
                'v_add_f32 v%d, v%d, v5' % (vSP, vSP), 'v_add_f32 v%d, v%d, v6' % (vSP + 1, vSP + 1)]
        b = Asm(); ln_finish(b, 'v%d' % vSP, 'v%d' % (vSP + 1), 'v5', 'v6', 'v7', 'v3')
        ops += [l.strip() for l in b.out if not l.strip().startswith('s_nop')]
        X = vSP + 4
        ops += ['v_sub_f32 v3, 0, v3', 'v_cvt_pk_bf16_f32 v%d, v3, v3' % X, 'v_mov_b32 v%d, v%d' % (X + 1, X), 'v_mul_f32 v%d, %s, v7' % (X + 2, f32(-LOG2E)), 'v_mul_f32 v%d, v6, v6' % (X + 3),
                'v_lshlrev_b32 v4, 4, v2', 'v_add_u32 v5, s%d, v4' % sT[1], 'v_add_u32 v4, %d, v4' % g.STL,
                ((lambda: I('ds_write_b128 v5, %s' % vr(X, 4), tag='stw%d' % st)), 6)]
        return ops
    def st_reads(st):
        for rt in range(2 * st, 2 * st + 2):
            I('ds_read_b64 %s, v4 offset:%d' % (vr(NMF + 2 * rt, 2), 512 * rt), tag='st')
            I('ds_read_b64 %s, v4 offset:%d' % (vr(CI + 2 * rt, 2), 512 * rt + 8), tag='st')
    def acc(rt, c): return ACC + 32 * (rt % 2) + 16 * c
    def epi_ops(rt, c):
        b = acc(rt, c); c1, ir2 = CI + 2 * rt, CI + 2 * rt + 1
        ops = []
        for j in range(8): ops += ['v_mul_f32 v%d, v%d, v%d' % (TM + j, c1, b + j)]
        for j in range(8): ops += ['v_exp_f32 v%d, v%d' % (TM + j, TM + j), 'v_mul_f32 v%d, v%d, v%d' % (b + j, b + j, b + 8 + j)]
        for j in range(8): ops += ['v_fma_f32 v%d, v%d, v%d, v%d' % (TM + j, TM + j, ir2, ir2)]
        for j in range(8):
            ops += ['v_rcp_f32 v%d, v%d' % (TM + j, TM + j)]
            if j > 0: ops += ['v_mul_f32 v%d, v%d, v%d' % (b + j - 1, b + j - 1, TM + j - 1)]
        ops += ['v_cvt_pk_bf16_f32 v%d, v%d, v%d' % (b + 8 + p, b + 2 * p, b + 2 * p + 1) for p in range(3)]
        ops += ['v_mul_f32 v%d, v%d, v%d' % (b + 7, b + 7, TM + 7), 'v_cvt_pk_bf16_f32 v%d, v%d, v%d' % (b + 11, b + 6, b + 7)]
        ops.append(((lambda: I('buffer_store_dwordx4 %s, v%d, s[%d:%d], s%d offen offset:%d sc1' % (vr(b + 8, 4), vL16, g.sWS, g.sWS + 3, sO[rt], 1024 * c), tag='cst%d' % (rt // 2))), 16))
        return ops
    seq = [(rt, j) for rt in range(4) for j in range(28)]
    vis = 0
    def h_rd(n):
        nonlocal vis
        rt, j = seq[n]
        if rt > vis:
            vis = rt
            if rt != 2: a.wait(vm='h%d' % rt, lg='stw%d' % (rt // 2))
            else: a.wait(vm='h%d' % rt)
            I('s_barrier')
            if rt != 2: st_reads(rt // 2)
        I('ds_read_b128 %s, v%d offset:%d' % (vr(HB + 4 * (n % NHB), 4), vHQ[4 * (rt // 2) + j // 7], (rt % 2) * 28672 + (j % 7) * 1024), tag='hr%d' % n)
    LA = NHB - 1
    for n in range(LA): h_rd(n)
    S = Side(a); S.carry = 0; S.tol = 1
    wdq = [(j, c) for j in range(g.n_wd1) for c in range(2)]
    g.wdq2 = [(j, c) for j in range(g.n_wd1, 28) for c in range(2)]
    flags = set()
    def hd(rt, k): return ((lambda: h_dma(rt, k, k + 1)), 22)
    for n, (rt, j) in enumerate(seq):
        if j == 0:
            while rt >= 2 and ('e%d' % (rt - 2)) not in flags: S._one()
            if rt == 0:
                S.add(sp_loads(0)); S.add([hd(1, k) for k in range(7)])
            if rt >= 1: S.add(epi_ops(rt - 1, 0) + epi_ops(rt - 1, 1) + [((lambda rt=rt: flags.add('e%d' % (rt - 1))), 0)])
            pf.stamp('rt%d' % rt)
        if n == 10: S.add([((lambda: I('buffer_load_dword v%d, v%d, s[%d:%d], 0 offen sc1' % (g.vPoll, g.vPA, g.sWS, g.sWS + 3), tag='wdp')), 16)])
        if n == cfg.get('st0', 13): S.add(stats_ops(0)); S.add([((lambda: flags.add('st0')), 0)])
        if n + LA == 28:
            while 'st0' not in flags: S._one()
        if n == 24:
            poll(g, 'kf_pw', g.vPA, 3, 'v%d' % g.vPT, g.sWS, early='wdp'); S.add([hd(2, k) for k in range(7)])
        if n == 48: S.add(sp_loads(1)); S.add([hd(3, k) for k in range(7)])
        if n == 66: S.q = stats_ops(1) + [((lambda: flags.add('st1')), 0)] + S.q
        if n + LA == 84:
            while 'st1' not in flags: S._one()
        if n + LA < len(seq): h_rd(n + LA)
        if rt == 0 and j in getattr(g, 'late_gu', []): a.wait(vm='gu%d' % j)
        a.wait(lg='hr%d' % n)
        for c in range(2):
            I(MF(vr(acc(rt, c), 16), ar(112 * c + 4 * j, 4), vr(HB + 4 * (n % NHB), 4), '0' if j == 0 else vr(acc(rt, c), 16)))
            if c == 1 and n >= 30 and n % 5 in (0, 2, 4) and wdq and ('st1' in flags or g.wd_regs[wdq[0][0]][wdq[0][1]] < ('v', vSP)): wd_load(g, *wdq.pop(0))
            elif c == 1 and rt == 3 and 1 <= j <= cfg.get('wd3', 26) and not wdq: wd_load(g, *g.wdq2.pop(0))
            elif not (j == 0 and rt >= 1): S.emit(cfg.get('cb0', 25) if c == 0 else cfg.get('cb1', 8))
        if rt == 3 and j == 8:
            class Rec:
                def __init__(s_): s_.ops = []
                def I(s_, text, tag=None, counted=True): s_.ops.append(text if tag is None else ((lambda: a.I(text, tag=tag)), 16))
            real = g.a; g.a = Rec(); d_setup(g); S.add(g.a.ops); g.a = real
        if rt == 3 and j == cfg.get('midsig', 6):
            I('s_lshl_b32 s%d, s%d, 8' % (sT[6], g.sRB128)); I('s_add_u32 s%d, s%d, %d' % (sT[6], sT[6], CNT + 8192))
            a.wait(vm='cst0'); I('s_barrier'); sig_add(g, sT[6])
        if j == 27:
            a.wait(lg='st')
            for c in range(2): I(MF(vr(acc(rt, c), 16), vr(CSF + 4 * c, 4), vr(NMF + 2 * rt, 4), vr(acc(rt, c), 16)))
    S.drain()
    pf.stamp('mfmaC')
    assert not wdq
    for _ in range(min(len(g.wdq2), cfg.get('wd_pre', 8))): wd_load(g, *g.wdq2.pop(0))
    S.add(epi_ops(3, 0) + epi_ops(3, 1)); S.drain()
    pf.stamp('actst')

def d_setup(g):
    a = g.a; I = a.I; sT = g.sT; sW = g.sW; vL16 = g.vL16
    g.sA = g.S4[11:15]; g.sOB = g.S4[3]
    I('s_lshr_b32 s%d, s%d, 1' % (sT[2], g.sRB64))
    I('s_lshl_b32 s%d, s%d, 8' % (sT[2], sT[2])); I('s_add_u32 s%d, s%d, %d' % (sT[2], sT[2], CNT + 8192)); I('v_mov_b32 v%d, s%d' % (g.vPA, sT[2]))
    I('buffer_load_dword v%d, v%d, s[%d:%d], 0 offen sc1' % (g.vPoll, g.vPA, g.sWS, g.sWS + 3), tag='p3e')
    I('s_mul_i32 s%d, s%d, 112' % (sT[0], g.sE)); I('s_mul_i32 s%d, s%d, 28' % (sT[1], sW)); I('s_add_u32 s%d, s%d, s%d' % (sT[0], sT[0], sT[1]))
    I('s_lshl_b32 s%d, s%d, 10' % (sT[0], sT[0])); I('s_add_u32 s%d, s%d, %d' % (sT[0], sT[0], ACTF))
    for q in range(4):
        I('s_add_u32 s%d, s%d, %d' % (sT[4], g.sR4, q)); I('s_and_b32 s%d, s%d, 3' % (sT[4], sT[4]))
        I('s_mul_i32 s%d, s%d, 7168' % (sT[4], sT[4])); I('s_add_u32 s%d, s%d, s%d' % (g.sA[q], sT[4], sT[0]))
    g.vA = [vL16, g.vLo[1], g.vLo[2], g.vLo[3]]
    I('v_add_u32 v%d, %d, v%d' % (g.vA[2], 2 * 114688, vL16)); I('v_add_u32 v%d, 4096, v%d' % (g.vA[3], g.vA[2]))
    I('s_mul_i32 s%d, s%d, %d' % (sT[0], g.sE, 32 * 896)); I('s_lshl_b32 s%d, s%d, 5' % (sT[2], g.sKS)); I('s_add_u32 s%d, s%d, s%d' % (g.sOB, sT[0], sT[2]))
    for r in g.vRW + [g.vRR]: I('v_subrev_u32 v%d, %d, v%d' % (r, g.XCL, r))

def phase_D(g):
    a = g.a; I = a.I; sT = g.sT; pf = g.pf; cfg = g.cfg
    sW = g.sW; vL16 = g.vL16
    ACC, P0, RS = 8, 72, 104
    poll(g, 'kf_p3', g.vPA, 1, 14, g.sWS, early='p3e')
    pf.stamp('sync3')
    NR = 2 * g.act_ring; AB = g.act_base
    def issue(m):
        p, j = m // 28, m % 28; r = j % 7
        I('buffer_load_dwordx4 %s, v%d, s[%d:%d], s%d offen offset:%d sc1' % (ar(AB + 4 * (m % NR), 4), g.vA[2 * p + (r >= 4)], g.sWS, g.sWS + 3, g.sA[j // 7], 1024 * (r % 4)), tag='k%d' % m)
    LA = cfg.get('d_la', 16)
    for m in range(8): issue(m)
    I('s_lshl_b32 s%d, s%d, 8' % (sT[6], g.sRB128)); I('s_add_u32 s%d, s%d, %d' % (sT[6], sT[6], CNT + 8192 + 128))
    a.wait(vm='cst1'); I('s_barrier'); sig_add(g, sT[6])
    pf.stamp('sigC')
    for m in range(8, LA): issue(m)
    I('v_add_u32 v%d, 128, v%d' % (g.vPA, g.vPA))
    def acc(p, c): return ACC + 32 * p + 16 * c
    def xfin(p, pk):
        O = g.vHK + 4 * p
        return xfinish(g, acc(p, 0), O, P0, RS, 24576 * p, 'xr%d' % p, pk) + ['s_add_u32 s%d, s%d, %d' % (sT[1], g.sOB, 64 * 896 * p),
               ((lambda: I('buffer_store_dwordx4 %s, v%d, s[%d:%d], s%d offen' % (vr(O, 4), g.vXo, g.sOUT, g.sOUT + 3, sT[1]))), 16)]
    S = Side(a)
    P4 = cfg.get('p4', 22)
    for m in range(56):
        p, j = m // 28, m % 28
        if m == max(28 - LA, P4 - 8): I('buffer_load_dword v%d, v%d, s[%d:%d], 0 offen sc1' % (g.vPoll, g.vPA, g.sWS, g.sWS + 3), tag='p4e')
        if m == P4:
            poll(g, 'kf_p4', g.vPA, 1, 14, g.sWS, early='p4e')
            for mm in range(28, m + LA): issue(mm)
        if m == 29: S.add(xwrite(g, acc(0, 0), 0))
        if m == 36:
            S.drain(); a.wait(lg=0); I('s_barrier'); S.add(xfin(0, False))
        if g.wd_wait.get(j) and p == 0: a.wait(vm=['k%d' % m, 'wd%d' % j])
        else: a.wait(vm='k%d' % m)
        if m % 14 == 0: pf.stamp('k%d' % m)
        for c in range(2):
            f, r = g.wd_regs[j][c]
            I(MF(vr(acc(p, c), 16), vr(r, 4, f), ar(AB + 4 * (m % NR), 4), '0' if j == 0 else vr(acc(p, c), 16)))
            if c == 0:
                if m + LA < 56 and (m + LA < 28 or m >= P4): issue(m + LA)
                if g.wdq2:
                    jj, cc = g.wdq2.pop(0); wd_load(g, jj, cc); a.vm[-1] = 'wd%d' % jj; g.wd_wait[jj] = True
            else: S.emit(24)
    S.drain()
    pf.stamp('gemmD')
    for op in xwrite(g, acc(1, 0), 24576): I(op)
    a.wait(lg=0); I('s_barrier')
    S.add(xfin(1, True)); S.drain()
    pf.stamp('out')
    if PROF: I('s_waitcnt vmcnt(0)')
    pf.dump(g.sWS)
    I('s_endpgm')

def pack_wd(g):
    a = g.a; I = a.I; sT = g.sT; sW = g.sW; vL16 = g.vL16
    a.label('kf_pack'); a.reset_counts()
    I('s_bfe_u32 s%d, s2, 0x30003' % sT[5]); I('s_and_b32 s%d, s2, 1' % sT[0]); I('s_lshl_b32 s%d, s%d, 3' % (sT[0], sT[0])); I('s_add_u32 s%d, s%d, s%d' % (sT[5], sT[5], sT[0]))
    I('s_and_b32 s%d, s2, 4' % sT[0]); I('s_lshl_b32 s%d, s%d, 2' % (sT[0], sT[0])); I('s_add_u32 s%d, s%d, s%d' % (sT[5], sT[5], sT[0]))
    I('s_cmp_ge_u32 s%d, 28' % sT[5]); a.branch('s_cbranch_scc1 kf_end')
    I('s_lshl_b32 s%d, s%d, 2' % (sT[0], sT[5])); I('s_add_u32 s%d, s%d, s%d' % (sT[0], sT[0], sW))
    I('s_mul_i32 s%d, s%d, 14336' % (sT[1], sT[0])); I('s_mul_i32 s%d, s%d, 14336' % (sT[2], sW))
    for i in range(14):
        if i % 4 == 0:
            I('s_add_u32 s%d, s%d, %d' % (sT[3], sT[1], 1024 * i)); I('s_add_u32 m0, s%d, %d' % (sT[2], 1024 * i))
        I('buffer_load_dwordx4 v%d, s[%d:%d], s%d offen offset:%d lds' % (vL16, g.sD, g.sD + 3, sT[3], 1024 * (i % 4)))
    I('v_lshrrev_b32 v3, 5, v1'); I('v_bfe_u32 v4, v1, 2, 2'); I('v_lshl_add_u32 v4, v3, 2, v4'); I('v_mul_u32_u24 v4, 896, v4')
    I('v_bfe_u32 v5, v1, 4, 1'); I('v_lshl_add_u32 v4, v5, 5, v4'); I('v_and_b32 v5, 3, v1'); I('v_lshl_add_u32 v4, v5, 3, v4')
    I('v_add_u32 v4, s%d, v4' % sT[2])
    I('s_lshl_b32 s%d, s%d, 10' % (sT[1], sT[0])); I('s_add_u32 s%d, s%d, %d' % (sT[1], sT[1], WDP))
    I('s_mul_i32 s%d, s%d, 37' % (sT[5], sT[5])); I('s_lshr_b32 s%d, s%d, 8' % (sT[5], sT[5]))
    a.wait(vm=0)
    B0 = 80
    for ct in range(18):
        if ct < 14: trfrag(a, B0 + 4 * ct, 4, 64 * ct, 't%d' % ct, d2=8 * 896)
        if ct >= 4:
            cc = ct - 4
            a.wait(lg='t%d' % cc)
            I('buffer_store_dwordx4 %s, v%d, s[%d:%d], s%d offen sc1' % (vr(B0 + 4 * cc, 4), vL16, g.sWS, g.sWS + 3, sT[1]), tag='wst')
            I('s_add_u32 s%d, s%d, %d' % (sT[1], sT[1], 112 * 1024))
    signal(g, 5, sT[5], 'wst')
    if PROF:
        nm = list(g.pf.names); g.pf.n = 14; g.pf.stamp('x'); g.pf.names = nm[:-1]; g.pf.n = len(nm) - 1; g.pf.dump(g.sWS)

def gen_F(a, cfg=None):
    cfg = cfg or {}
    name = KN + '_kernel'
    head(a, name)
    g = setup(a, cfg)
    homes = [('v', 140 + 4 * k) for k in range(3)] + [('a', 224 + 4 * k) for k in range(8)] + [('v', 156 + 4 * k) for k in range(19)] + [('a', 4 * k) for k in range(26)]
    g.n_wd1 = 15
    g.wd_regs = [(homes[2 * j], homes[2 * j + 1]) for j in range(28)]
    g.wd_wait = {}
    g.act_base, g.act_ring = 104, 15
    phase_A(g); phase_B(g); phase_C(g); phase_D(g); pack_wd(g)
    a.label('kf_end')
    a.I('s_endpgm')
    a.raw('kf_pad:\n.fill (49664 - (kf_pad - %s)) / 4, 4, 0xbf800000' % name)
    return (name, 256, 256, 163840, 512, 102, 256)
```

```python
import sys, json
from gen_common import *
from gen_t import gen_F
ref = open('cdna_kernels/%s.s.ref' % KN).read().splitlines()
top = ''
for l in ref:
    if not l.startswith(';'): break
    if '@launch' in l or 'Override launch' in l or 'grid=ceil' in l: continue
    top += l + '\n'
top += '; Generated by work/genf.py (hand-written generator). One persistent launch, 4 phases with counter hand-offs.\n'
out = sys.argv[1] if len(sys.argv) > 1 else 'f.s'
cfg = json.loads(sys.argv[2]) if len(sys.argv) > 2 else {}
a = Asm()
name, grid, block, lds, vg, sg, acc = gen_F(a, cfg)
L = top + "; @launch grid=(%d,1,1) block=(%d,1,1) lds=%d\n" % (grid, block, lds)
open(out, "w").write(L + HDR + a.text() + '.section .rodata,"a"\n' + kd(name, vg, sg, acc))
print(out, "instrs", a.count, "nop states", a.nops)
```
